```python
import torch

def _softmax(x, axis=-1):
    return torch.softmax(x, dim=axis)
def _gelu(x):
    return torch.nn.functional.gelu(x, approximate="tanh")
def _silu(x):
    return torch.nn.functional.silu(x)
def _sigmoid(x):
    return torch.sigmoid(x)
def _layernorm(x, axis=-1, eps=1e-5):
    m = x.mean(dim=axis, keepdim=True)
    v = x.var(dim=axis, keepdim=True, unbiased=False)
    return (x - m) / torch.sqrt(v + eps)
def _scatter_add(tgt, idx, src, axis=0):
    return tgt.clone().index_add_(axis, idx, src)
def _segment_sum(src, seg, n):
    out = torch.zeros((n,) + src.shape[1:], dtype=src.dtype)
    return out.index_add_(0, seg, src)
def _pad(x, pw):
    flat = tuple(v for pair in reversed(pw) for v in pair)
    return torch.nn.functional.pad(x, flat)

kernel_name = 'standalone__batchnorm__prompt'

def setup_inputs():

    _w = (lambda a: (lambda t: t.to(torch.bfloat16) if t.is_floating_point() else t)(torch.as_tensor(a)))
    B, S, C = 2, 2048, 1024
    K = 3
    return {
        "x": _w((lambda *s: torch.randn(*s, dtype=torch.bfloat16) * 0.05)(B, S, C)),
        "w": _w((lambda *s: torch.randn(*s, dtype=torch.bfloat16) * 0.05)(K, C, C) * (1.0 / (K * C) ** 0.5)),
        "mean": _w((lambda *s: torch.randn(*s, dtype=torch.bfloat16) * 0.05)(C) * 0.1),
        "var": _w(torch.abs((lambda *s: torch.randn(*s, dtype=torch.bfloat16) * 0.05)(C)) + 0.5),
        "g": _w((lambda *s: torch.randn(*s, dtype=torch.bfloat16) * 0.05)(C) + 1.0),
        "b": _w((lambda *s: torch.randn(*s, dtype=torch.bfloat16) * 0.05)(C) * 0.1),
    }

def reference(x, w, mean, var, g, b):
    K = 3
    P = K // 2
    S = x.shape[1]
    xp = _pad(x, ((0, 0), (P, P), (0, 0)))
    y = sum(torch.einsum('bsc,cd->bsd', xp[:, k:k + S, :], w[k]) for k in range(K))
    inv_std = 1.0 / torch.sqrt(var + 1e-5)
    y = (y - mean) * (g * inv_std) + b
    return _silu(y)
```

```python
import sys

HEADER = open("standalone__batchnorm__prompt.s.ref").read().split("; Override launch")[0]
KN = "standalone__batchnorm__prompt_kernel"

XBUF = 258 * 128
NXB = 3
WBUF = 3 * 32 * 128
NWB = 5
WBASE = NXB * XBUF
LDS = WBASE + NWB * WBUF


def plane_base(p):
    if p == 0:
        return 0
    if p == 7:
        return 34
    return 66 + 32 * (p - 1)


class G:
    def __init__(self, **o):
        self.o = dict(stamps=0, no_dma=0, no_reads=0, no_bar=0, no_mfma=0, spacing=1.5, first=0, stagger=0,
                      prio_c=0, prio_l=0, loaders_first=0, order=0, xaux="", waux="", saux="", xmap=0)
        self.o.update(o)
        self.l = []

    def e(self, s):
        self.l.append("    " + s)

    def lab(self, s):
        self.l.append(s + ":")

    def stamp(self, i):
        if self.o["stamps"]:
            self.e(f"s_memtime s[{60 + 2 * i}:{61 + 2 * i}]")

    def dump_stamps(self, n):
        if not self.o["stamps"]:
            return
        e = self.e
        e("s_memrealtime s[58:59]")
        e("s_waitcnt lgkmcnt(0)")
        e("v_mov_b32 v40, 0")
        e("v_writelane_b32 v40, s56, 0")
        e("v_writelane_b32 v40, s58, 1")
        for i in range(n):
            e(f"v_writelane_b32 v40, s{60 + 2 * i}, {2 + i}")
        e("s_lshl_b32 s3, s2, 3")
        e("s_add_u32 s3, s3, s18")
        e("s_lshl_b32 s3, s3, 6")
        e("v_mbcnt_lo_u32_b32 v41, -1, 0")
        e("v_mbcnt_hi_u32_b32 v41, -1, v41")
        e("v_lshl_add_u32 v41, v41, 2, s3")
        e("s_mov_b64 exec, 0xffff")
        e("global_store_dword v41, v40, s[34:35]")

    def barrier(self):
        if not self.o["no_bar"]:
            self.e("s_barrier")

    def issue_x(self):
        e = self.e
        if not self.o["no_dma"]:
            for p in range(8):
                e(f"s_add_u32 m0, s41, {plane_base(p) * 128}")
                e(f"s_add_u32 s45, s40, {p * 2048}")
                e(f"buffer_load_dwordx4 v2, s[4:7], s45 offen {self.o['xaux']} lds")
            e("s_add_u32 m0, s41, s44")
            e("s_mov_b64 exec, s[46:47]")
            e(f"buffer_load_dwordx4 v3, s[4:7], s40 offen {self.o['xaux']} lds")
            e("s_mov_b64 exec, -1")
        e("s_add_u32 s40, s40, 128")
        e("s_and_b32 s40, s40, 2047")
        e(f"s_add_u32 s41, s41, {XBUF}")
        e("s_cmp_ge_u32 s41, s48")
        e(f"s_cselect_b32 s45, {NXB * XBUF}, 0")
        e("s_sub_u32 s41, s41, s45")

    def issue_w(self):
        e = self.e
        if not self.o["no_dma"]:
            for k in range(3):
                e(f"s_add_u32 m0, s43, {k * 4096}")
                e(f"s_add_u32 s45, s42, {k * 2097152}")
                e(f"buffer_load_dwordx4 v4, s[8:11], s45 offen {self.o['waux']} lds")
        e("s_add_u32 s42, s42, 65536")
        e("s_and_b32 s42, s42, 0x1fffff")
        e(f"s_add_u32 s43, s43, {WBUF}")
        e("s_cmp_ge_u32 s43, s49")
        e(f"s_cselect_b32 s45, {NWB * WBUF}, 0")
        e("s_sub_u32 s43, s43, s45")

    def loader(self):
        e = self.e
        o = self.o
        self.lab("L_loader")
        if o["prio_l"]:
            e(f"s_setprio {o['prio_l']}")
        e("s_and_b32 s19, s18, 3")
        e("v_lshrrev_b32 v5, 3, v0")
        e("v_and_b32 v6, 7, v0")
        e("s_lshl_b32 s3, s19, 6")
        e("s_add_u32 s3, s3, s16")
        e("s_lshl_b32 s3, s3, 11")
        e("s_and_b32 s45, s19, 1")
        e("s_lshl_b32 s45, s45, 2")
        e("v_lshrrev_b32 v7, 1, v5")
        e("v_xor_b32 v7, v7, v6")
        e("v_xor_b32 v7, s45, v7")
        e("v_lshlrev_b32 v7, 4, v7")
        e("v_lshl_add_u32 v2, v5, 14, v7")
        e("v_add_u32 v2, s3, v2")
        e("v_bfe_u32 v7, v5, 1, 1")
        e("v_lshlrev_b32 v7, 1, v7")
        e("v_xor_b32 v7, v7, v6")
        e("v_xor_b32 v7, s45, v7")
        e("v_lshlrev_b32 v7, 4, v7")
        e("v_lshl_add_u32 v4, v5, 11, v7")
        e("s_lshl_b32 s3, s19, 14")
        e("s_lshl_b32 s45, s17, 1")
        e("s_add_u32 s3, s3, s45")
        e("v_add_u32 v4, s3, v4")
        e("s_add_u32 s3, s16, 256")
        e("s_and_b32 s45, s3, 2047")
        e("s_lshl_b32 s3, s3, 11")
        e("s_cmp_eq_u32 s45, 0")
        e("s_cselect_b32 s50, 0x80000000, s3")
        e("s_sub_u32 s3, s16, 1")
        e("s_lshl_b32 s3, s3, 11")
        e("s_and_b32 s45, s16, 2047")
        e("s_cmp_eq_u32 s45, 0")
        e("s_cselect_b32 s51, 0x80000000, s3")
        e("v_lshlrev_b32 v7, 4, v6")
        e("v_add_u32 v3, s50, v7")
        e("v_xor_b32 v7, 0x70, v7")
        e("v_add_u32 v7, s51, v7")
        e("v_cmp_eq_u32 vcc, 1, v5")
        e("s_lshl_b32 s3, s19, 2")
        e("s_lshl_b64 s[46:47], 15, s3")
        e("v_cndmask_b32 v3, v3, v7, vcc")
        e("s_lshl_b32 s40, s37, 7")
        e("s_lshl_b32 s42, s37, 17")
        e("s_lshl_b32 s41, s19, 10")
        e(f"s_add_u32 s43, s41, {WBASE}")
        e("s_sub_u32 s44, 4096, s41")
        e(f"s_add_u32 s48, s41, {NXB * XBUF}")
        e(f"s_add_u32 s49, s43, {NWB * WBUF}")
        e("s_waitcnt lgkmcnt(0)")
        e("s_mov_b32 s4, s20")
        e("s_and_b32 s5, s21, 0xffff")
        e("s_mov_b32 s6, 0x800000")
        e("s_mov_b32 s7, 0x20000")
        e("s_mov_b32 s8, s22")
        e("s_and_b32 s9, s23, 0xffff")
        e("s_mov_b32 s10, 0x600000")
        e("s_mov_b32 s11, 0x20000")
        e("s_mov_b32 s52, 0")
        self.lab("L_lpro")
        self.issue_w()
        self.issue_x()
        e("s_cmp_eq_u32 s52, 2")
        e("s_cbranch_scc1 L_lpro_done")
        self.issue_w()
        e("s_add_u32 s52, s52, 1")
        e("s_branch L_lpro")
        self.lab("L_lpro_done")
        self.stamp(1)
        e("s_waitcnt vmcnt(30)")
        self.barrier()
        self.stamp(2)
        e("s_mov_b32 s52, 13")
        self.lab("L_lloop")
        e("s_waitcnt vmcnt(27)")
        self.barrier()
        self.issue_w()
        e("s_waitcnt vmcnt(18)")
        self.barrier()
        e("s_sub_u32 s52, s52, 1")
        e("s_cbranch_scc1 L_ltail")
        self.issue_w()
        self.issue_x()
        e("s_branch L_lloop")
        self.lab("L_ltail")
        for n in (15, 3, 0):
            e(f"s_waitcnt vmcnt({n})")
            self.barrier()
        self.barrier()
        self.stamp(3)
        self.stamp(4)
        self.dump_stamps(5)
        e("s_endpgm")

    def reads(self, st, kk):
        base = 128 + 64 * st
        L = []
        a = 2 + 3 * kk
        for k in range(3):
            for t in range(2):
                r = base + 40 + (k * 2 + t) * 4
                for hh in range(2):
                    L.append(f"ds_read_b64_tr_b16 v[{r + 2 * hh}:{r + 2 * hh + 1}], v{8 + t} offset:{k * 4096 + hh * 512}")
        X = []
        for dl in range(10):
            r = base + 4 * dl
            if dl == 0:
                X.append(f"ds_read_b128 v[{r}:{r + 3}], v{a + 2} offset:{plane_base(7) * 128 - 128}")
            elif dl == 9:
                X.append(f"ds_read_b128 v[{r}:{r + 3}], v{a + 1} offset:{plane_base(0) * 128}")
            else:
                X.append(f"ds_read_b128 v[{r}:{r + 3}], v{a} offset:{plane_base(dl - 1) * 128}")
        out = []
        while L or X:
            if X:
                out.append(X.pop(0))
            if L:
                out.append(L.pop(0))
        return out

    def mfmas(self, st):
        base = 128 + 64 * st
        M = []
        if self.o["order"] == 0:
            seq = [(k, t, tm) for k in range(3) for t in range(2) for tm in range(8)]
        elif self.o["order"] == 1:
            seq = [(k, t, tm) for tm in range(8) for k in range(3) for t in range(2)]
        else:
            seq = [(k, t, dl - k) for dl in range(10) for k in range(3) for t in range(2) if 0 <= dl - k < 8]
        for k, t, tm in seq:
            acc = 64 + (tm * 2 + t) * 4
            g = base + 40 + (k * 2 + t) * 4
            f = base + 4 * (tm + k)
            M.append(f"v_mfma_f32_16x16x32_bf16 v[{acc}:{acc + 3}], v[{g}:{g + 3}], v[{f}:{f + 3}], v[{acc}:{acc + 3}]")
        return M

    def substage(self, st, pre):
        o = self.o
        M = self.mfmas(st) if not o["no_mfma"] else []
        R = self.reads(st ^ 1, st ^ 1) if not o["no_reads"] else []
        self.e("s_waitcnt lgkmcnt(0)")
        self.barrier()
        fill = {}
        for i, r in enumerate(R):
            fill.setdefault(o["first"] + int(i * o["spacing"]), []).append(r)
        tail_pos = o["first"] + int(len(R) * o["spacing"]) + 1
        for i, p in enumerate(pre):
            fill.setdefault(min(tail_pos + i, 47), []).append(p)
        for i in range(48):
            if M:
                self.e(M[i])
            for r in fill.get(i, []):
                self.e(r)

    def compute(self):
        e = self.e
        o = self.o
        self.lab("L_compute")
        if o["prio_c"]:
            e(f"s_setprio {o['prio_c']}")
        e("s_and_b32 s38, s18, 1")
        e("s_bfe_u32 s39, s18, 0x10001")
        e("v_and_b32 v10, 15, v0")
        e("v_lshrrev_b32 v11, 4, v0")
        e("s_lshl_b32 s3, s39, 5")
        e("s_add_u32 s3, s3, s17")
        e("s_lshl_b32 s3, s3, 1")
        e("v_lshl_add_u32 v12, v11, 3, s3")
        e("s_waitcnt lgkmcnt(0)")
        for i in range(4):
            for t in range(2):
                r = 32 + i * 4 + t * 2
                e(f"global_load_dwordx2 v[{r}:{r + 1}], v12, s[{24 + 2 * i}:{25 + 2 * i}] offset:{32 * t}")
        e("s_mov_b32 s12, s32")
        e("s_and_b32 s13, s33, 0xffff")
        e("s_mov_b32 s14, 0x800000")
        e("s_mov_b32 s15, 0x20000")
        e("v_lshlrev_b32 v13, 1, v10")
        e("v_subrev_u32 v14, 7, v13")
        e("v_subrev_u32 v15, 16, v13")
        e("v_cmp_lt_u32 vcc, 3, v10")
        e("s_nop 1")
        e("v_cndmask_b32 v13, v13, v14, vcc")
        e("v_cmp_lt_u32 vcc, 11, v10")
        e("s_nop 1")
        e("v_cndmask_b32 v13, v13, v15, vcc")
        e("s_lshl_b32 s3, s38, 11")
        for idx, sh in ((0, 0), (1, 1), (2, -1)):
            e(f"v_add_u32 v14, {sh}, v13")
            e("v_bfe_u32 v15, v14, 1, 3")
            e("v_xor_b32 v15, v15, v11")
            e("v_lshlrev_b32 v15, 4, v15")
            if sh == -1:
                e("v_lshl_add_u32 v15, v13, 7, v15")
            else:
                e("v_lshl_add_u32 v15, v14, 7, v15")
            e(f"v_add_u32 v{2 + idx}, s3, v15")
            e(f"v_xor_b32 v{5 + idx}, 64, v{2 + idx}")
        e("v_lshrrev_b32 v14, 2, v10")
        e("v_lshl_add_u32 v15, v11, 3, v14")
        e("v_lshlrev_b32 v15, 7, v15")
        e("v_and_b32 v48, 3, v10")
        e("v_lshl_add_u32 v15, v48, 3, v15")
        e("v_lshrrev_b32 v14, 1, v14")
        e("v_and_b32 v48, 1, v11")
        e("v_lshl_or_b32 v14, v48, 1, v14")
        e("s_lshl_b32 s3, s39, 1")
        e("v_xor_b32 v14, s3, v14")
        e("v_lshl_add_u32 v15, v14, 5, v15")
        e(f"v_add_u32 v8, {WBASE}, v15")
        e("v_xor_b32 v9, 32, v8")
        e("s_lshl_b32 s3, s38, 7")
        e("s_add_u32 s3, s3, s16")
        e("s_lshl_b32 s3, s3, 10")
        e("s_lshl_b32 s45, s39, 5")
        e("s_add_u32 s3, s3, s45")
        e("s_add_u32 s3, s3, s17")
        e("s_lshl_b32 s3, s3, 1")
        e("v_lshlrev_b32 v14, 5, v48")
        e("v_lshrrev_b32 v15, 1, v11")
        e("v_lshl_add_u32 v14, v15, 4, v14")
        e("v_lshl_add_u32 v14, v13, 14, v14")
        e("v_add_u32 v1, s3, v14")
        for r in range(64, 128):
            e(f"v_mov_b32 v{r}, 0")
        e("s_waitcnt vmcnt(0)")
        e("s_mov_b32 s3, 0xffff0000")
        for t in range(2):
            for r in range(4):
                src = lambda i: 32 + i * 4 + t * 2 + (r >> 1)
                for i, d in ((0, 48), (1, 49), (2, 50), (3, 51)):
                    if r & 1:
                        e(f"v_and_b32 v{d}, s3, v{src(i)}")
                    else:
                        e(f"v_lshlrev_b32 v{d}, 16, v{src(i)}")
                e("v_add_f32 v49, 0x3727c5ac, v49")
                e("v_cvt_pk_bf16_f32 v49, v49, v49")
                e("v_and_b32 v49, s3, v49")
                e("v_sqrt_f32 v49, v49")
                e("s_nop 0")
                e("v_cvt_pk_bf16_f32 v49, v49, v49")
                e("v_and_b32 v49, s3, v49")
                e("v_rcp_f32 v49, v49")
                e("s_nop 0")
                e("v_cvt_pk_bf16_f32 v49, v49, v49")
                e("v_and_b32 v49, s3, v49")
                e("v_mul_f32 v49, v50, v49")
                e("v_cvt_pk_bf16_f32 v49, v49, v49")
                e(f"v_and_b32 v{16 + t * 4 + r}, s3, v49")
                e(f"v_fma_f32 v{24 + t * 4 + r}, -v48, v{16 + t * 4 + r}, v51")
        e("s_mov_b32 s40, 0")
        e("s_mov_b32 s41, 0")
        e(f"s_mov_b32 s43, {WBUF}")
        e("s_mov_b32 s52, 15")
        self.barrier()
        self.stamp(1)
        if not o["no_reads"]:
            for r in self.reads(0, 0):
                e(r)
        e("v_add_u32 v8, s43, v8")
        e("v_add_u32 v9, s43, v9")
        e("s_mov_b32 s41, 1")

        def wadv():
            return ["s_add_u32 s41, s41, 1",
                    f"s_cmp_eq_u32 s41, {NWB}",
                    f"s_cselect_b32 s43, {-(NWB - 1) * WBUF & 0xffffffff:#x}, s53",
                    "s_cselect_b32 s41, 0, s41",
                    "v_add_u32 v8, s43, v8",
                    "v_add_u32 v9, s43, v9"]

        e(f"s_mov_b32 s53, {WBUF}")
        e(f"s_mov_b32 s54, {XBUF}")
        e(".p2align 6")
        self.lab("L_cloop")
        pre0 = wadv() + ["s_add_u32 s40, s40, 1",
                         f"s_cmp_eq_u32 s40, {NXB}",
                         f"s_cselect_b32 s42, {-(NXB - 1) * XBUF & 0xffffffff:#x}, s54",
                         "s_cselect_b32 s40, 0, s40"] + [f"v_add_u32 v{2 + i}, s42, v{2 + i}" for i in range(3)]
        self.substage(0, pre0)
        pre1 = wadv() + [f"v_add_u32 v{5 + i}, s42, v{5 + i}" for i in range(3)] + ["s_sub_u32 s52, s52, 1"]
        self.substage(1, pre1)
        e("s_cbranch_scc0 L_cloop")
        self.stamp(2)
        e("s_waitcnt lgkmcnt(0)")
        e("s_mov_b32 s42, 0xbfb8aa3b")
        e("s_mov_b32 s43, 0xbfb8aa3b")
        e("s_mov_b32 s44, 1.0")
        e("s_mov_b32 s45, 1.0")
        e("s_mov_b32 s46, 0")
        e("s_nop 4")
        for tm in range(8):
            a = 64 + tm * 8
            tb = 128 + (tm & 1) * 32
            for p in range(4):
                e(f"v_pk_fma_f32 v[{a + 2 * p}:{a + 2 * p + 1}], v[{a + 2 * p}:{a + 2 * p + 1}], v[{16 + 2 * p}:{17 + 2 * p}], v[{24 + 2 * p}:{25 + 2 * p}]")
            for p in range(4):
                e(f"v_pk_mul_f32 v[{tb + 2 * p}:{tb + 2 * p + 1}], v[{a + 2 * p}:{a + 2 * p + 1}], s[42:43]")
            for r in range(8):
                e(f"v_exp_f32 v{tb + r}, v{tb + r}")
            e("s_nop 0")
            for p in range(4):
                e(f"v_pk_add_f32 v[{tb + 2 * p}:{tb + 2 * p + 1}], v[{tb + 2 * p}:{tb + 2 * p + 1}], s[44:45]")
            for r in range(8):
                e(f"v_rcp_f32 v{tb + r}, v{tb + r}")
            e("s_nop 0")
            for p in range(4):
                e(f"v_pk_mul_f32 v[{tb + 2 * p}:{tb + 2 * p + 1}], v[{tb + 2 * p}:{tb + 2 * p + 1}], v[{a + 2 * p}:{a + 2 * p + 1}]")
            ob = tb + 8
            for p in range(4):
                e(f"v_cvt_pk_bf16_f32 v{ob + p}, v{tb + 2 * p}, v{tb + 2 * p + 1}")
            e("s_nop 1")
            e(f"v_permlane16_swap_b32 v{ob}, v{ob + 2}")
            e(f"v_permlane16_swap_b32 v{ob + 1}, v{ob + 3}")
            e(f"buffer_store_dwordx4 v[{ob}:{ob + 3}], v1, s[12:15], s46 offen {o['saux']}")
            e("s_add_u32 s46, s46, 2048")
        self.stamp(3)
        if o["stamps"]:
            e("s_waitcnt vmcnt(0)")
        self.stamp(4)
        self.dump_stamps(5)
        e("s_endpgm")

    def gen(self):
        e = self.e
        o = self.o
        self.l.append(HEADER.rstrip())
        self.l.append(f"; @launch grid=(256,1,1) block=(512,1,1) lds={LDS}")
        self.l.append('.amdgcn_target "amdgcn-amd-amdhsa--gfx950"')
        self.l.append(".text")
        self.l.append(f".globl {KN}")
        self.l.append(".p2align 8")
        self.l.append(f".type {KN},@function")
        self.lab(KN)
        e("s_cmp_ge_u32 s2, 256")
        e("s_cbranch_scc1 L_end")
        if o["stamps"]:
            e("s_memrealtime s[56:57]")
            e("s_load_dwordx2 s[34:35], s[0:1], 64")
        self.stamp(0)
        e("s_load_dwordx4 s[20:23], s[0:1], 0")
        e("s_load_dwordx8 s[24:31], s[0:1], 16")
        e("s_load_dwordx2 s[32:33], s[0:1], 48")
        e("v_lshrrev_b32 v1, 6, v0")
        e("v_and_b32 v0, 63, v0")
        e("v_readfirstlane_b32 s18, v1")
        e("s_lshr_b32 s36, s2, 3")
        if o["xmap"] == 0:
            e("s_bfe_u32 s3, s2, 0x20001")
            e("s_lshl_b32 s3, s3, 2")
            e("s_and_b32 s16, s36, 3")
            e("s_add_u32 s16, s16, s3")
            e("s_and_b32 s3, s2, 1")
            e("s_lshl_b32 s3, s3, 3")
            e("s_lshr_b32 s17, s36, 2")
            e("s_add_u32 s17, s17, s3")
        elif o["xmap"] == 1:
            e("s_and_b32 s3, s2, 1")
            e("s_lshl_b32 s3, s3, 3")
            e("s_and_b32 s16, s36, 7")
            e("s_add_u32 s16, s16, s3")
            e("s_bfe_u32 s3, s2, 0x20001")
            e("s_lshl_b32 s3, s3, 2")
            e("s_lshr_b32 s17, s36, 3")
            e("s_add_u32 s17, s17, s3")
        else:
            e("s_and_b32 s3, s2, 7")
            e("s_lshl_b32 s3, s3, 1")
            e("s_and_b32 s16, s36, 1")
            e("s_add_u32 s16, s16, s3")
            e("s_lshr_b32 s17, s36, 1")
        st = o["stagger"]
        if st == 0:
            e("s_mov_b32 s37, 0")
        elif st == 1:
            e("s_and_b32 s37, s2, 7")
            e("s_lshl_b32 s37, s37, 1")
        elif st == 2:
            e("s_mov_b32 s37, s16")
        elif st == 3:
            e("s_mov_b32 s37, s17")
        elif st == 4:
            e("s_and_b32 s37, s16, 3")
            e("s_lshl_b32 s37, s37, 2")
        elif st == 5:
            e("s_add_u32 s37, s16, s17")
            e("s_and_b32 s37, s37, 15")
        e("s_lshl_b32 s16, s16, 8")
        e("s_lshl_b32 s17, s17, 6")
        e("s_cmp_ge_u32 s18, 4")
        e("s_cbranch_scc1 " + ("L_compute" if o["loaders_first"] else "L_loader"))
        if o["loaders_first"]:
            self.loader()
            self.compute()
        else:
            self.compute()
            self.loader()
        self.lab("L_end")
        e("s_endpgm")
        self.l.append(f""".section .rodata,"a"
.p2align 6
.amdhsa_kernel {KN}
  .amdhsa_next_free_vgpr 256
  .amdhsa_next_free_sgpr 96
  .amdhsa_accum_offset 256
  .amdhsa_group_segment_fixed_size 0
  .amdhsa_kernarg_size 72
  .amdhsa_user_sgpr_count 2
  .amdhsa_user_sgpr_kernarg_segment_ptr 1
  .amdhsa_system_sgpr_workgroup_id_x 1
.end_amdhsa_kernel""")
        return "\n".join(self.l) + "\n"


if __name__ == "__main__":
    out = sys.argv[1]
    opts = {}
    for a in sys.argv[2:]:
        k, v = a.split("=")
        try:
            v = int(v)
        except ValueError:
            try:
                v = float(v)
            except ValueError:
                v = v.replace("+", " ")
        opts[k] = v
    open(out, "w").write(G(**opts).gen())
```

```python
import sys

HEADER = open("standalone__batchnorm__prompt.s.ref").read().split("; Override launch")[0]
KN = "standalone__batchnorm__prompt_kernel"

XBUF = 258 * 128
NXB = 3
WBUF = 3 * 32 * 128
NWB = 5
WBASE = NXB * XBUF
LDS = WBASE + NWB * WBUF


def plane_base(p):
    if p == 0:
        return 0
    if p == 7:
        return 34
    return 66 + 32 * (p - 1)


class G:
    def __init__(self, **o):
        self.o = dict(stamps=0, no_dma=0, no_reads=0, no_bar=0, no_mfma=0, spacing=1.5, first=0, stagger=0,
                      prio_c=0, prio_l=0, loaders_first=0, order=0, xaux="", waux="", saux="", xmap=0)
        self.o.update(o)
        self.l = []

    def e(self, s):
        self.l.append("    " + s)

    def lab(self, s):
        self.l.append(s + ":")

    def stamp(self, i):
        if self.o["stamps"]:
            self.e(f"s_memtime s[{60 + 4 * i}:{61 + 4 * i}]")
            self.e(f"s_memrealtime s[{62 + 4 * i}:{63 + 4 * i}]")

    def dump_stamps(self, n):
        if not self.o["stamps"]:
            return
        e = self.e
        e("s_waitcnt lgkmcnt(0)")
        e("v_mov_b32 v40, 0")
        for i in range(n):
            e(f"v_writelane_b32 v40, s{60 + 4 * i}, {2 * i}")
            e(f"v_writelane_b32 v40, s{62 + 4 * i}, {2 * i + 1}")
        e("s_lshl_b32 s3, s2, 3")
        e("s_add_u32 s3, s3, s18")
        e("s_lshl_b32 s3, s3, 6")
        e("v_mbcnt_lo_u32_b32 v41, -1, 0")
        e("v_mbcnt_hi_u32_b32 v41, -1, v41")
        e("v_lshl_add_u32 v41, v41, 2, s3")
        e("s_mov_b64 exec, 0xffff")
        e("global_store_dword v41, v40, s[34:35]")

    def barrier(self):
        if not self.o["no_bar"]:
            self.e("s_barrier")

    def issue_x(self):
        e = self.e
        if not self.o["no_dma"]:
            for p in range(8):
                e(f"s_add_u32 m0, s41, {plane_base(p) * 128}")
                e(f"s_add_u32 s45, s40, {p * 2048}")
                e(f"buffer_load_dwordx4 v2, s[4:7], s45 offen {self.o['xaux']} lds")
            e("s_add_u32 m0, s41, s44")
            e("s_mov_b64 exec, s[46:47]")
            e(f"buffer_load_dwordx4 v3, s[4:7], s40 offen {self.o['xaux']} lds")
            e("s_mov_b64 exec, -1")
        e("s_add_u32 s40, s40, 128")
        e("s_and_b32 s40, s40, 2047")
        e(f"s_add_u32 s41, s41, {XBUF}")
        e("s_cmp_ge_u32 s41, s48")
        e(f"s_cselect_b32 s45, {NXB * XBUF}, 0")
        e("s_sub_u32 s41, s41, s45")

    def issue_w(self):
        e = self.e
        if not self.o["no_dma"]:
            for k in range(3):
                e(f"s_add_u32 m0, s43, {k * 4096}")
                e(f"s_add_u32 s45, s42, {k * 2097152}")
                e(f"buffer_load_dwordx4 v4, s[8:11], s45 offen {self.o['waux']} lds")
        e("s_add_u32 s42, s42, 65536")
        e("s_and_b32 s42, s42, 0x1fffff")
        e(f"s_add_u32 s43, s43, {WBUF}")
        e("s_cmp_ge_u32 s43, s49")
        e(f"s_cselect_b32 s45, {NWB * WBUF}, 0")
        e("s_sub_u32 s43, s43, s45")

    def loader(self):
        e = self.e
        o = self.o
        self.lab("L_loader")
        if o["prio_l"]:
            e(f"s_setprio {o['prio_l']}")
        e("s_and_b32 s19, s18, 3")
        e("v_lshrrev_b32 v5, 3, v0")
        e("v_and_b32 v6, 7, v0")
        e("s_lshl_b32 s3, s19, 6")
        e("s_add_u32 s3, s3, s16")
        e("s_lshl_b32 s3, s3, 11")
        e("s_and_b32 s45, s19, 1")
        e("s_lshl_b32 s45, s45, 2")
        e("v_lshrrev_b32 v7, 1, v5")
        e("v_xor_b32 v7, v7, v6")
        e("v_xor_b32 v7, s45, v7")
        e("v_lshlrev_b32 v7, 4, v7")
        e("v_lshl_add_u32 v2, v5, 14, v7")
        e("v_add_u32 v2, s3, v2")
        e("v_bfe_u32 v7, v5, 1, 1")
        e("v_lshlrev_b32 v7, 1, v7")
        e("v_xor_b32 v7, v7, v6")
        e("v_xor_b32 v7, s45, v7")
        e("v_lshlrev_b32 v7, 4, v7")
        e("v_lshl_add_u32 v4, v5, 11, v7")
        e("s_lshl_b32 s3, s19, 14")
        e("s_lshl_b32 s45, s17, 1")
        e("s_add_u32 s3, s3, s45")
        e("v_add_u32 v4, s3, v4")
        e("s_add_u32 s3, s16, 256")
        e("s_and_b32 s45, s3, 2047")
        e("s_lshl_b32 s3, s3, 11")
        e("s_cmp_eq_u32 s45, 0")
        e("s_cselect_b32 s50, 0x80000000, s3")
        e("s_sub_u32 s3, s16, 1")
        e("s_lshl_b32 s3, s3, 11")
        e("s_and_b32 s45, s16, 2047")
        e("s_cmp_eq_u32 s45, 0")
        e("s_cselect_b32 s51, 0x80000000, s3")
        e("v_lshlrev_b32 v7, 4, v6")
        e("v_add_u32 v3, s50, v7")
        e("v_xor_b32 v7, 0x70, v7")
        e("v_add_u32 v7, s51, v7")
        e("v_cmp_eq_u32 vcc, 1, v5")
        e("s_lshl_b32 s3, s19, 2")
        e("s_lshl_b64 s[46:47], 15, s3")
        e("v_cndmask_b32 v3, v3, v7, vcc")
        e("s_lshl_b32 s40, s37, 7")
        e("s_lshl_b32 s42, s37, 17")
        e("s_lshl_b32 s41, s19, 10")
        e(f"s_add_u32 s43, s41, {WBASE}")
        e("s_sub_u32 s44, 4096, s41")
        e(f"s_add_u32 s48, s41, {NXB * XBUF}")
        e(f"s_add_u32 s49, s43, {NWB * WBUF}")
        e("s_waitcnt lgkmcnt(0)")
        e("s_mov_b32 s4, s20")
        e("s_and_b32 s5, s21, 0xffff")
        e("s_mov_b32 s6, 0x800000")
        e("s_mov_b32 s7, 0x20000")
        e("s_mov_b32 s8, s22")
        e("s_and_b32 s9, s23, 0xffff")
        e("s_mov_b32 s10, 0x600000")
        e("s_mov_b32 s11, 0x20000")
        e("s_mov_b32 s52, 0")
        self.lab("L_lpro")
        self.issue_w()
        self.issue_x()
        e("s_cmp_eq_u32 s52, 2")
        e("s_cbranch_scc1 L_lpro_done")
        self.issue_w()
        e("s_add_u32 s52, s52, 1")
        e("s_branch L_lpro")
        self.lab("L_lpro_done")
        self.stamp(1)
        e("s_waitcnt vmcnt(30)")
        self.barrier()
        self.stamp(2)
        e("s_mov_b32 s52, 13")
        self.lab("L_lloop")
        e("s_waitcnt vmcnt(27)")
        self.barrier()
        self.issue_w()
        e("s_waitcnt vmcnt(18)")
        self.barrier()
        e("s_sub_u32 s52, s52, 1")
        e("s_cbranch_scc1 L_ltail")
        self.issue_w()
        self.issue_x()
        e("s_branch L_lloop")
        self.lab("L_ltail")
        for n in (15, 3, 0):
            e(f"s_waitcnt vmcnt({n})")
            self.barrier()
        self.barrier()
        self.stamp(3)
        self.stamp(4)
        self.dump_stamps(5)
        e("s_endpgm")

    def reads(self, st, kk):
        base = 128 + 64 * st
        L = []
        a = 2 + 3 * kk
        for k in range(3):
            for t in range(2):
                r = base + 40 + (k * 2 + t) * 4
                for hh in range(2):
                    L.append(f"ds_read_b64_tr_b16 v[{r + 2 * hh}:{r + 2 * hh + 1}], v{8 + t} offset:{k * 4096 + hh * 512}")
        X = []
        for dl in range(10):
            r = base + 4 * dl
            if dl == 0:
                X.append(f"ds_read_b128 v[{r}:{r + 3}], v{a + 2} offset:{plane_base(7) * 128 - 128}")
            elif dl == 9:
                X.append(f"ds_read_b128 v[{r}:{r + 3}], v{a + 1} offset:{plane_base(0) * 128}")
            else:
                X.append(f"ds_read_b128 v[{r}:{r + 3}], v{a} offset:{plane_base(dl - 1) * 128}")
        out = []
        while L or X:
            if X:
                out.append(X.pop(0))
            if L:
                out.append(L.pop(0))
        return out

    def mfmas(self, st):
        base = 128 + 64 * st
        M = []
        if self.o["order"] == 0:
            seq = [(k, t, tm) for k in range(3) for t in range(2) for tm in range(8)]
        elif self.o["order"] == 1:
            seq = [(k, t, tm) for tm in range(8) for k in range(3) for t in range(2)]
        else:
            seq = [(k, t, dl - k) for dl in range(10) for k in range(3) for t in range(2) if 0 <= dl - k < 8]
        for k, t, tm in seq:
            acc = 64 + (tm * 2 + t) * 4
            g = base + 40 + (k * 2 + t) * 4
            f = base + 4 * (tm + k)
            M.append(f"v_mfma_f32_16x16x32_bf16 v[{acc}:{acc + 3}], v[{g}:{g + 3}], v[{f}:{f + 3}], v[{acc}:{acc + 3}]")
        return M

    def substage(self, st, pre):
        o = self.o
        M = self.mfmas(st) if not o["no_mfma"] else []
        R = self.reads(st ^ 1, st ^ 1) if not o["no_reads"] else []
        self.e("s_waitcnt lgkmcnt(0)")
        self.barrier()
        fill = {}
        for i, r in enumerate(R):
            fill.setdefault(o["first"] + int(i * o["spacing"]), []).append(r)
        tail_pos = o["first"] + int(len(R) * o["spacing"]) + 1
        for i, p in enumerate(pre):
            fill.setdefault(min(tail_pos + i, 47), []).append(p)
        for i in range(48):
            if M:
                self.e(M[i])
            for r in fill.get(i, []):
                self.e(r)

    def compute(self):
        e = self.e
        o = self.o
        self.lab("L_compute")
        if o["prio_c"]:
            e(f"s_setprio {o['prio_c']}")
        e("s_and_b32 s38, s18, 1")
        e("s_bfe_u32 s39, s18, 0x10001")
        e("v_and_b32 v10, 15, v0")
        e("v_lshrrev_b32 v11, 4, v0")
        e("s_lshl_b32 s3, s39, 5")
        e("s_add_u32 s3, s3, s17")
        e("s_lshl_b32 s3, s3, 1")
        e("v_lshl_add_u32 v12, v11, 3, s3")
        e("s_waitcnt lgkmcnt(0)")
        for i in range(4):
            for t in range(2):
                r = 32 + i * 4 + t * 2
                e(f"global_load_dwordx2 v[{r}:{r + 1}], v12, s[{24 + 2 * i}:{25 + 2 * i}] offset:{32 * t}")
        e("s_mov_b32 s12, s32")
        e("s_and_b32 s13, s33, 0xffff")
        e("s_mov_b32 s14, 0x800000")
        e("s_mov_b32 s15, 0x20000")
        e("v_lshlrev_b32 v13, 1, v10")
        e("v_subrev_u32 v14, 7, v13")
        e("v_subrev_u32 v15, 16, v13")
        e("v_cmp_lt_u32 vcc, 3, v10")
        e("s_nop 1")
        e("v_cndmask_b32 v13, v13, v14, vcc")
        e("v_cmp_lt_u32 vcc, 11, v10")
        e("s_nop 1")
        e("v_cndmask_b32 v13, v13, v15, vcc")
        e("s_lshl_b32 s3, s38, 11")
        for idx, sh in ((0, 0), (1, 1), (2, -1)):
            e(f"v_add_u32 v14, {sh}, v13")
            e("v_bfe_u32 v15, v14, 1, 3")
            e("v_xor_b32 v15, v15, v11")
            e("v_lshlrev_b32 v15, 4, v15")
            if sh == -1:
                e("v_lshl_add_u32 v15, v13, 7, v15")
            else:
                e("v_lshl_add_u32 v15, v14, 7, v15")
            e(f"v_add_u32 v{2 + idx}, s3, v15")
            e(f"v_xor_b32 v{5 + idx}, 64, v{2 + idx}")
        e("v_lshrrev_b32 v14, 2, v10")
        e("v_lshl_add_u32 v15, v11, 3, v14")
        e("v_lshlrev_b32 v15, 7, v15")
        e("v_and_b32 v48, 3, v10")
        e("v_lshl_add_u32 v15, v48, 3, v15")
        e("v_lshrrev_b32 v14, 1, v14")
        e("v_and_b32 v48, 1, v11")
        e("v_lshl_or_b32 v14, v48, 1, v14")
        e("s_lshl_b32 s3, s39, 1")
        e("v_xor_b32 v14, s3, v14")
        e("v_lshl_add_u32 v15, v14, 5, v15")
        e(f"v_add_u32 v8, {WBASE}, v15")
        e("v_xor_b32 v9, 32, v8")
        e("s_lshl_b32 s3, s38, 7")
        e("s_add_u32 s3, s3, s16")
        e("s_lshl_b32 s3, s3, 10")
        e("s_lshl_b32 s45, s39, 5")
        e("s_add_u32 s3, s3, s45")
        e("s_add_u32 s3, s3, s17")
        e("s_lshl_b32 s3, s3, 1")
        e("v_lshlrev_b32 v14, 5, v48")
        e("v_lshrrev_b32 v15, 1, v11")
        e("v_lshl_add_u32 v14, v15, 4, v14")
        e("v_lshl_add_u32 v14, v13, 14, v14")
        e("v_add_u32 v1, s3, v14")
        for r in range(64, 128):
            e(f"v_mov_b32 v{r}, 0")
        e("s_waitcnt vmcnt(0)")
        e("s_mov_b32 s3, 0xffff0000")
        for t in range(2):
            for r in range(4):
                src = lambda i: 32 + i * 4 + t * 2 + (r >> 1)
                for i, d in ((0, 48), (1, 49), (2, 50), (3, 51)):
                    if r & 1:
                        e(f"v_and_b32 v{d}, s3, v{src(i)}")
                    else:
                        e(f"v_lshlrev_b32 v{d}, 16, v{src(i)}")
                e("v_add_f32 v49, 0x3727c5ac, v49")
                e("v_cvt_pk_bf16_f32 v49, v49, v49")
                e("v_and_b32 v49, s3, v49")
                e("v_sqrt_f32 v49, v49")
                e("s_nop 0")
                e("v_cvt_pk_bf16_f32 v49, v49, v49")
                e("v_and_b32 v49, s3, v49")
                e("v_rcp_f32 v49, v49")
                e("s_nop 0")
                e("v_cvt_pk_bf16_f32 v49, v49, v49")
                e("v_and_b32 v49, s3, v49")
                e("v_mul_f32 v49, v50, v49")
                e("v_cvt_pk_bf16_f32 v49, v49, v49")
                e(f"v_and_b32 v{16 + t * 4 + r}, s3, v49")
                e(f"v_fma_f32 v{24 + t * 4 + r}, -v48, v{16 + t * 4 + r}, v51")
        e("s_mov_b32 s40, 0")
        e("s_mov_b32 s41, 0")
        e(f"s_mov_b32 s43, {WBUF}")
        e("s_mov_b32 s52, 15")
        self.barrier()
        self.stamp(1)
        if not o["no_reads"]:
            for r in self.reads(0, 0):
                e(r)
        e("v_add_u32 v8, s43, v8")
        e("v_add_u32 v9, s43, v9")
        e("s_mov_b32 s41, 1")

        def wadv():
            return ["s_add_u32 s41, s41, 1",
                    f"s_cmp_eq_u32 s41, {NWB}",
                    f"s_cselect_b32 s43, {-(NWB - 1) * WBUF & 0xffffffff:#x}, s53",
                    "s_cselect_b32 s41, 0, s41",
                    "v_add_u32 v8, s43, v8",
                    "v_add_u32 v9, s43, v9"]

        e(f"s_mov_b32 s53, {WBUF}")
        e(f"s_mov_b32 s54, {XBUF}")
        e(".p2align 6")
        self.lab("L_cloop")
        pre0 = wadv() + ["s_add_u32 s40, s40, 1",
                         f"s_cmp_eq_u32 s40, {NXB}",
                         f"s_cselect_b32 s42, {-(NXB - 1) * XBUF & 0xffffffff:#x}, s54",
                         "s_cselect_b32 s40, 0, s40"] + [f"v_add_u32 v{2 + i}, s42, v{2 + i}" for i in range(3)]
        self.substage(0, pre0)
        pre1 = wadv() + [f"v_add_u32 v{5 + i}, s42, v{5 + i}" for i in range(3)] + ["s_sub_u32 s52, s52, 1"]
        self.substage(1, pre1)
        e("s_cbranch_scc0 L_cloop")
        self.stamp(2)
        e("s_waitcnt lgkmcnt(0)")
        e("s_mov_b32 s42, 0xbfb8aa3b")
        e("s_mov_b32 s43, 0xbfb8aa3b")
        e("s_mov_b32 s44, 1.0")
        e("s_mov_b32 s45, 1.0")
        e("s_mov_b32 s46, 0")
        e("s_nop 4")
        for tm in range(8):
            a = 64 + tm * 8
            tb = 128 + (tm & 1) * 32
            for p in range(4):
                e(f"v_pk_fma_f32 v[{a + 2 * p}:{a + 2 * p + 1}], v[{a + 2 * p}:{a + 2 * p + 1}], v[{16 + 2 * p}:{17 + 2 * p}], v[{24 + 2 * p}:{25 + 2 * p}]")
            for p in range(4):
                e(f"v_pk_mul_f32 v[{tb + 2 * p}:{tb + 2 * p + 1}], v[{a + 2 * p}:{a + 2 * p + 1}], s[42:43]")
            for r in range(8):
                e(f"v_exp_f32 v{tb + r}, v{tb + r}")
            e("s_nop 0")
            for p in range(4):
                e(f"v_pk_add_f32 v[{tb + 2 * p}:{tb + 2 * p + 1}], v[{tb + 2 * p}:{tb + 2 * p + 1}], s[44:45]")
            for r in range(8):
                e(f"v_rcp_f32 v{tb + r}, v{tb + r}")
            e("s_nop 0")
            for p in range(4):
                e(f"v_pk_mul_f32 v[{tb + 2 * p}:{tb + 2 * p + 1}], v[{tb + 2 * p}:{tb + 2 * p + 1}], v[{a + 2 * p}:{a + 2 * p + 1}]")
            ob = tb + 8
            for p in range(4):
                e(f"v_cvt_pk_bf16_f32 v{ob + p}, v{tb + 2 * p}, v{tb + 2 * p + 1}")
            e("s_nop 1")
            e(f"v_permlane16_swap_b32 v{ob}, v{ob + 2}")
            e(f"v_permlane16_swap_b32 v{ob + 1}, v{ob + 3}")
            e(f"buffer_store_dwordx4 v[{ob}:{ob + 3}], v1, s[12:15], s46 offen {o['saux']}")
            e("s_add_u32 s46, s46, 2048")
        self.stamp(3)
        if o["stamps"]:
            e("s_waitcnt vmcnt(0)")
        self.stamp(4)
        self.dump_stamps(5)
        e("s_endpgm")

    def gen(self):
        e = self.e
        o = self.o
        self.l.append(HEADER.rstrip())
        self.l.append(f"; @launch grid=(256,1,1) block=(512,1,1) lds={LDS}")
        self.l.append('.amdgcn_target "amdgcn-amd-amdhsa--gfx950"')
        self.l.append(".text")
        self.l.append(f".globl {KN}")
        self.l.append(".p2align 8")
        self.l.append(f".type {KN},@function")
        self.lab(KN)
        e("s_cmp_ge_u32 s2, 256")
        e("s_cbranch_scc1 L_end")
        if o["stamps"]:
            e("s_load_dwordx2 s[34:35], s[0:1], 64")
        self.stamp(0)
        e("s_load_dwordx4 s[20:23], s[0:1], 0")
        e("s_load_dwordx8 s[24:31], s[0:1], 16")
        e("s_load_dwordx2 s[32:33], s[0:1], 48")
        e("v_lshrrev_b32 v1, 6, v0")
        e("v_and_b32 v0, 63, v0")
        e("v_readfirstlane_b32 s18, v1")
        e("s_lshr_b32 s36, s2, 3")
        if o["xmap"] == 0:
            e("s_bfe_u32 s3, s2, 0x20001")
            e("s_lshl_b32 s3, s3, 2")
            e("s_and_b32 s16, s36, 3")
            e("s_add_u32 s16, s16, s3")
            e("s_and_b32 s3, s2, 1")
            e("s_lshl_b32 s3, s3, 3")
            e("s_lshr_b32 s17, s36, 2")
            e("s_add_u32 s17, s17, s3")
        elif o["xmap"] == 1:
            e("s_and_b32 s3, s2, 1")
            e("s_lshl_b32 s3, s3, 3")
            e("s_and_b32 s16, s36, 7")
            e("s_add_u32 s16, s16, s3")
            e("s_bfe_u32 s3, s2, 0x20001")
            e("s_lshl_b32 s3, s3, 2")
            e("s_lshr_b32 s17, s36, 3")
            e("s_add_u32 s17, s17, s3")
        else:
            e("s_and_b32 s3, s2, 7")
            e("s_lshl_b32 s3, s3, 1")
            e("s_and_b32 s16, s36, 1")
            e("s_add_u32 s16, s16, s3")
            e("s_lshr_b32 s17, s36, 1")
        st = o["stagger"]
        if st == 0:
            e("s_mov_b32 s37, 0")
        elif st == 1:
            e("s_and_b32 s37, s2, 7")
            e("s_lshl_b32 s37, s37, 1")
        elif st == 2:
            e("s_mov_b32 s37, s16")
        elif st == 3:
            e("s_mov_b32 s37, s17")
        elif st == 4:
            e("s_and_b32 s37, s16, 3")
            e("s_lshl_b32 s37, s37, 2")
        elif st == 5:
            e("s_add_u32 s37, s16, s17")
            e("s_and_b32 s37, s37, 15")
        e("s_lshl_b32 s16, s16, 8")
        e("s_lshl_b32 s17, s17, 6")
        e("s_cmp_ge_u32 s18, 4")
        e("s_cbranch_scc1 " + ("L_compute" if o["loaders_first"] else "L_loader"))
        if o["loaders_first"]:
            self.loader()
            self.compute()
        else:
            self.compute()
            self.loader()
        self.lab("L_end")
        e("s_endpgm")
        self.l.append(f""".section .rodata,"a"
.p2align 6
.amdhsa_kernel {KN}
  .amdhsa_next_free_vgpr 256
  .amdhsa_next_free_sgpr 96
  .amdhsa_accum_offset 256
  .amdhsa_group_segment_fixed_size 0
  .amdhsa_kernarg_size 72
  .amdhsa_user_sgpr_count 2
  .amdhsa_user_sgpr_kernarg_segment_ptr 1
  .amdhsa_system_sgpr_workgroup_id_x 1
.end_amdhsa_kernel""")
        return "\n".join(self.l) + "\n"


if __name__ == "__main__":
    out = sys.argv[1]
    opts = {}
    for a in sys.argv[2:]:
        k, v = a.split("=")
        try:
            v = int(v)
        except ValueError:
            try:
                v = float(v)
            except ValueError:
                v = v.replace("+", " ")
        opts[k] = v
    open(out, "w").write(G(**opts).gen())
```

```python
import sys

HEADER = open("standalone__batchnorm__prompt.s.ref").read().split("; Override launch")[0]
KN = "standalone__batchnorm__prompt_kernel"

XBUF = 258 * 128
NXB = 3
WBUF = 3 * 32 * 128
NWB = 5
WBASE = NXB * XBUF
LDS = WBASE + NWB * WBUF


def plane_base(p):
    if p == 0:
        return 0
    if p == 7:
        return 34
    return 66 + 32 * (p - 1)


class G:
    def __init__(self, **o):
        self.o = dict(stamps=0, no_dma=0, no_reads=0, no_bar=0, no_mfma=0, spacing=1.5, first=0, stagger=0,
                      prio_c=0, prio_l=0, loaders_first=0, order=0, xaux="", waux="", saux="", xmap=0, probe="")
        self.o.update(o)
        self.l = []

    def e(self, s):
        self.l.append("    " + s)

    def lab(self, s):
        self.l.append(s + ":")

    def stamp(self, i):
        if self.o["stamps"]:
            self.e(f"s_memtime s[{60 + 4 * i}:{61 + 4 * i}]")
            self.e(f"s_memrealtime s[{62 + 4 * i}:{63 + 4 * i}]")

    def dump_stamps(self, n, role="c"):
        if not self.o["stamps"]:
            return
        e = self.e
        if self.o["probe"]:
            prole, a, z, kind, mult = self.o["probe"].split(",")
            if prole == role:
                off = 62 if kind == "t" else 60
                e("s_waitcnt lgkmcnt(0)")
                e(f"s_sub_u32 s3, s{off + 4 * int(z)}, s{off + 4 * int(a)}")
                if kind == "t":
                    e(f"s_mul_i32 s3, s3, {mult}")
                else:
                    e(f"s_lshr_b32 s3, s3, {mult}")
                e("s_min_u32 s3, s3, 50000")
                self.lab(f"L_spin_{role}")
                e("s_memrealtime s[56:57]")
                e("s_waitcnt lgkmcnt(0)")
                e(f"s_sub_u32 s56, s56, s{62 + 4 * (n - 1)}")
                e("s_cmp_lt_u32 s56, s3")
                e(f"s_cbranch_scc1 L_spin_{role}")
            return
        e("s_waitcnt lgkmcnt(0)")
        e("v_mov_b32 v40, 0")
        for i in range(n):
            e(f"v_writelane_b32 v40, s{60 + 4 * i}, {2 * i}")
            e(f"v_writelane_b32 v40, s{62 + 4 * i}, {2 * i + 1}")
        e("s_lshl_b32 s3, s2, 3")
        e("s_add_u32 s3, s3, s18")
        e("s_lshl_b32 s3, s3, 6")
        e("v_mbcnt_lo_u32_b32 v41, -1, 0")
        e("v_mbcnt_hi_u32_b32 v41, -1, v41")
        e("v_lshl_add_u32 v41, v41, 2, s3")
        e("s_mov_b64 exec, 0xffff")
        e("global_store_dword v41, v40, s[34:35]")

    def barrier(self):
        if not self.o["no_bar"]:
            self.e("s_barrier")

    def issue_x(self):
        e = self.e
        if not self.o["no_dma"]:
            for p in range(8):
                e(f"s_add_u32 m0, s41, {plane_base(p) * 128}")
                e(f"s_add_u32 s45, s40, {p * 2048}")
                e(f"buffer_load_dwordx4 v2, s[4:7], s45 offen {self.o['xaux']} lds")
            e("s_add_u32 m0, s41, s44")
            e("s_mov_b64 exec, s[46:47]")
            e(f"buffer_load_dwordx4 v3, s[4:7], s40 offen {self.o['xaux']} lds")
            e("s_mov_b64 exec, -1")
        e("s_add_u32 s40, s40, 128")
        e("s_and_b32 s40, s40, 2047")
        e(f"s_add_u32 s41, s41, {XBUF}")
        e("s_cmp_ge_u32 s41, s48")
        e(f"s_cselect_b32 s45, {NXB * XBUF}, 0")
        e("s_sub_u32 s41, s41, s45")

    def issue_w(self):
        e = self.e
        if not self.o["no_dma"]:
            for k in range(3):
                e(f"s_add_u32 m0, s43, {k * 4096}")
                e(f"s_add_u32 s45, s42, {k * 2097152}")
                e(f"buffer_load_dwordx4 v4, s[8:11], s45 offen {self.o['waux']} lds")
        e("s_add_u32 s42, s42, 65536")
        e("s_and_b32 s42, s42, 0x1fffff")
        e(f"s_add_u32 s43, s43, {WBUF}")
        e("s_cmp_ge_u32 s43, s49")
        e(f"s_cselect_b32 s45, {NWB * WBUF}, 0")
        e("s_sub_u32 s43, s43, s45")

    def loader(self):
        e = self.e
        o = self.o
        self.lab("L_loader")
        if o["prio_l"]:
            e(f"s_setprio {o['prio_l']}")
        e("s_and_b32 s19, s18, 3")
        e("v_lshrrev_b32 v5, 3, v0")
        e("v_and_b32 v6, 7, v0")
        e("s_lshl_b32 s3, s19, 6")
        e("s_add_u32 s3, s3, s16")
        e("s_lshl_b32 s3, s3, 11")
        e("s_and_b32 s45, s19, 1")
        e("s_lshl_b32 s45, s45, 2")
        e("v_lshrrev_b32 v7, 1, v5")
        e("v_xor_b32 v7, v7, v6")
        e("v_xor_b32 v7, s45, v7")
        e("v_lshlrev_b32 v7, 4, v7")
        e("v_lshl_add_u32 v2, v5, 14, v7")
        e("v_add_u32 v2, s3, v2")
        e("v_bfe_u32 v7, v5, 1, 1")
        e("v_lshlrev_b32 v7, 1, v7")
        e("v_xor_b32 v7, v7, v6")
        e("v_xor_b32 v7, s45, v7")
        e("v_lshlrev_b32 v7, 4, v7")
        e("v_lshl_add_u32 v4, v5, 11, v7")
        e("s_lshl_b32 s3, s19, 14")
        e("s_lshl_b32 s45, s17, 1")
        e("s_add_u32 s3, s3, s45")
        e("v_add_u32 v4, s3, v4")
        e("s_add_u32 s3, s16, 256")
        e("s_and_b32 s45, s3, 2047")
        e("s_lshl_b32 s3, s3, 11")
        e("s_cmp_eq_u32 s45, 0")
        e("s_cselect_b32 s50, 0x80000000, s3")
        e("s_sub_u32 s3, s16, 1")
        e("s_lshl_b32 s3, s3, 11")
        e("s_and_b32 s45, s16, 2047")
        e("s_cmp_eq_u32 s45, 0")
        e("s_cselect_b32 s51, 0x80000000, s3")
        e("v_lshlrev_b32 v7, 4, v6")
        e("v_add_u32 v3, s50, v7")
        e("v_xor_b32 v7, 0x70, v7")
        e("v_add_u32 v7, s51, v7")
        e("v_cmp_eq_u32 vcc, 1, v5")
        e("s_lshl_b32 s3, s19, 2")
        e("s_lshl_b64 s[46:47], 15, s3")
        e("v_cndmask_b32 v3, v3, v7, vcc")
        e("s_lshl_b32 s40, s37, 7")
        e("s_lshl_b32 s42, s37, 17")
        e("s_lshl_b32 s41, s19, 10")
        e(f"s_add_u32 s43, s41, {WBASE}")
        e("s_sub_u32 s44, 4096, s41")
        e(f"s_add_u32 s48, s41, {NXB * XBUF}")
        e(f"s_add_u32 s49, s43, {NWB * WBUF}")
        e("s_waitcnt lgkmcnt(0)")
        e("s_mov_b32 s4, s20")
        e("s_and_b32 s5, s21, 0xffff")
        e("s_mov_b32 s6, 0x800000")
        e("s_mov_b32 s7, 0x20000")
        e("s_mov_b32 s8, s22")
        e("s_and_b32 s9, s23, 0xffff")
        e("s_mov_b32 s10, 0x600000")
        e("s_mov_b32 s11, 0x20000")
        e("s_mov_b32 s52, 0")
        self.lab("L_lpro")
        self.issue_w()
        self.issue_x()
        e("s_cmp_eq_u32 s52, 2")
        e("s_cbranch_scc1 L_lpro_done")
        self.issue_w()
        e("s_add_u32 s52, s52, 1")
        e("s_branch L_lpro")
        self.lab("L_lpro_done")
        self.stamp(1)
        e("s_waitcnt vmcnt(30)")
        self.barrier()
        self.stamp(2)
        e("s_mov_b32 s52, 13")
        self.lab("L_lloop")
        e("s_waitcnt vmcnt(27)")
        self.barrier()
        self.issue_w()
        e("s_waitcnt vmcnt(18)")
        self.barrier()
        e("s_sub_u32 s52, s52, 1")
        e("s_cbranch_scc1 L_ltail")
        self.issue_w()
        self.issue_x()
        e("s_branch L_lloop")
        self.lab("L_ltail")
        for n in (15, 3, 0):
            e(f"s_waitcnt vmcnt({n})")
            self.barrier()
        self.barrier()
        self.stamp(3)
        self.stamp(4)
        self.dump_stamps(5, "l")
        e("s_endpgm")

    def reads(self, st, kk):
        base = 128 + 64 * st
        L = []
        a = 2 + 3 * kk
        for k in range(3):
            for t in range(2):
                r = base + 40 + (k * 2 + t) * 4
                for hh in range(2):
                    L.append(f"ds_read_b64_tr_b16 v[{r + 2 * hh}:{r + 2 * hh + 1}], v{8 + t} offset:{k * 4096 + hh * 512}")
        X = []
        for dl in range(10):
            r = base + 4 * dl
            if dl == 0:
                X.append(f"ds_read_b128 v[{r}:{r + 3}], v{a + 2} offset:{plane_base(7) * 128 - 128}")
            elif dl == 9:
                X.append(f"ds_read_b128 v[{r}:{r + 3}], v{a + 1} offset:{plane_base(0) * 128}")
            else:
                X.append(f"ds_read_b128 v[{r}:{r + 3}], v{a} offset:{plane_base(dl - 1) * 128}")
        out = []
        while L or X:
            if X:
                out.append(X.pop(0))
            if L:
                out.append(L.pop(0))
        return out

    def mfmas(self, st):
        base = 128 + 64 * st
        M = []
        if self.o["order"] == 0:
            seq = [(k, t, tm) for k in range(3) for t in range(2) for tm in range(8)]
        elif self.o["order"] == 1:
            seq = [(k, t, tm) for tm in range(8) for k in range(3) for t in range(2)]
        else:
            seq = [(k, t, dl - k) for dl in range(10) for k in range(3) for t in range(2) if 0 <= dl - k < 8]
        for k, t, tm in seq:
            acc = 64 + (tm * 2 + t) * 4
            g = base + 40 + (k * 2 + t) * 4
            f = base + 4 * (tm + k)
            M.append(f"v_mfma_f32_16x16x32_bf16 v[{acc}:{acc + 3}], v[{g}:{g + 3}], v[{f}:{f + 3}], v[{acc}:{acc + 3}]")
        return M

    def substage(self, st, pre):
        o = self.o
        M = self.mfmas(st) if not o["no_mfma"] else []
        R = self.reads(st ^ 1, st ^ 1) if not o["no_reads"] else []
        self.e("s_waitcnt lgkmcnt(0)")
        self.barrier()
        fill = {}
        for i, r in enumerate(R):
            fill.setdefault(o["first"] + int(i * o["spacing"]), []).append(r)
        tail_pos = o["first"] + int(len(R) * o["spacing"]) + 1
        for i, p in enumerate(pre):
            fill.setdefault(min(tail_pos + i, 47), []).append(p)
        for i in range(48):
            if M:
                self.e(M[i])
            for r in fill.get(i, []):
                self.e(r)

    def compute(self):
        e = self.e
        o = self.o
        self.lab("L_compute")
        if o["prio_c"]:
            e(f"s_setprio {o['prio_c']}")
        e("s_and_b32 s38, s18, 1")
        e("s_bfe_u32 s39, s18, 0x10001")
        e("v_and_b32 v10, 15, v0")
        e("v_lshrrev_b32 v11, 4, v0")
        e("s_lshl_b32 s3, s39, 5")
        e("s_add_u32 s3, s3, s17")
        e("s_lshl_b32 s3, s3, 1")
        e("v_lshl_add_u32 v12, v11, 3, s3")
        e("s_waitcnt lgkmcnt(0)")
        for i in range(4):
            for t in range(2):
                r = 32 + i * 4 + t * 2
                e(f"global_load_dwordx2 v[{r}:{r + 1}], v12, s[{24 + 2 * i}:{25 + 2 * i}] offset:{32 * t}")
        e("s_mov_b32 s12, s32")
        e("s_and_b32 s13, s33, 0xffff")
        e("s_mov_b32 s14, 0x800000")
        e("s_mov_b32 s15, 0x20000")
        e("v_lshlrev_b32 v13, 1, v10")
        e("v_subrev_u32 v14, 7, v13")
        e("v_subrev_u32 v15, 16, v13")
        e("v_cmp_lt_u32 vcc, 3, v10")
        e("s_nop 1")
        e("v_cndmask_b32 v13, v13, v14, vcc")
        e("v_cmp_lt_u32 vcc, 11, v10")
        e("s_nop 1")
        e("v_cndmask_b32 v13, v13, v15, vcc")
        e("s_lshl_b32 s3, s38, 11")
        for idx, sh in ((0, 0), (1, 1), (2, -1)):
            e(f"v_add_u32 v14, {sh}, v13")
            e("v_bfe_u32 v15, v14, 1, 3")
            e("v_xor_b32 v15, v15, v11")
            e("v_lshlrev_b32 v15, 4, v15")
            if sh == -1:
                e("v_lshl_add_u32 v15, v13, 7, v15")
            else:
                e("v_lshl_add_u32 v15, v14, 7, v15")
            e(f"v_add_u32 v{2 + idx}, s3, v15")
            e(f"v_xor_b32 v{5 + idx}, 64, v{2 + idx}")
        e("v_lshrrev_b32 v14, 2, v10")
        e("v_lshl_add_u32 v15, v11, 3, v14")
        e("v_lshlrev_b32 v15, 7, v15")
        e("v_and_b32 v48, 3, v10")
        e("v_lshl_add_u32 v15, v48, 3, v15")
        e("v_lshrrev_b32 v14, 1, v14")
        e("v_and_b32 v48, 1, v11")
        e("v_lshl_or_b32 v14, v48, 1, v14")
        e("s_lshl_b32 s3, s39, 1")
        e("v_xor_b32 v14, s3, v14")
        e("v_lshl_add_u32 v15, v14, 5, v15")
        e(f"v_add_u32 v8, {WBASE}, v15")
        e("v_xor_b32 v9, 32, v8")
        e("s_lshl_b32 s3, s38, 7")
        e("s_add_u32 s3, s3, s16")
        e("s_lshl_b32 s3, s3, 10")
        e("s_lshl_b32 s45, s39, 5")
        e("s_add_u32 s3, s3, s45")
        e("s_add_u32 s3, s3, s17")
        e("s_lshl_b32 s3, s3, 1")
        e("v_lshlrev_b32 v14, 5, v48")
        e("v_lshrrev_b32 v15, 1, v11")
        e("v_lshl_add_u32 v14, v15, 4, v14")
        e("v_lshl_add_u32 v14, v13, 14, v14")
        e("v_add_u32 v1, s3, v14")
        for r in range(64, 128):
            e(f"v_mov_b32 v{r}, 0")
        e("s_waitcnt vmcnt(0)")
        e("s_mov_b32 s3, 0xffff0000")
        for t in range(2):
            for r in range(4):
                src = lambda i: 32 + i * 4 + t * 2 + (r >> 1)
                for i, d in ((0, 48), (1, 49), (2, 50), (3, 51)):
                    if r & 1:
                        e(f"v_and_b32 v{d}, s3, v{src(i)}")
                    else:
                        e(f"v_lshlrev_b32 v{d}, 16, v{src(i)}")
                e("v_add_f32 v49, 0x3727c5ac, v49")
                e("v_cvt_pk_bf16_f32 v49, v49, v49")
                e("v_and_b32 v49, s3, v49")
                e("v_sqrt_f32 v49, v49")
                e("s_nop 0")
                e("v_cvt_pk_bf16_f32 v49, v49, v49")
                e("v_and_b32 v49, s3, v49")
                e("v_rcp_f32 v49, v49")
                e("s_nop 0")
                e("v_cvt_pk_bf16_f32 v49, v49, v49")
                e("v_and_b32 v49, s3, v49")
                e("v_mul_f32 v49, v50, v49")
                e("v_cvt_pk_bf16_f32 v49, v49, v49")
                e(f"v_and_b32 v{16 + t * 4 + r}, s3, v49")
                e(f"v_fma_f32 v{24 + t * 4 + r}, -v48, v{16 + t * 4 + r}, v51")
        e("s_mov_b32 s40, 0")
        e("s_mov_b32 s41, 0")
        e(f"s_mov_b32 s43, {WBUF}")
        e("s_mov_b32 s52, 15")
        self.barrier()
        self.stamp(1)
        if not o["no_reads"]:
            for r in self.reads(0, 0):
                e(r)
        e("v_add_u32 v8, s43, v8")
        e("v_add_u32 v9, s43, v9")
        e("s_mov_b32 s41, 1")

        def wadv():
            return ["s_add_u32 s41, s41, 1",
                    f"s_cmp_eq_u32 s41, {NWB}",
                    f"s_cselect_b32 s43, {-(NWB - 1) * WBUF & 0xffffffff:#x}, s53",
                    "s_cselect_b32 s41, 0, s41",
                    "v_add_u32 v8, s43, v8",
                    "v_add_u32 v9, s43, v9"]

        e(f"s_mov_b32 s53, {WBUF}")
        e(f"s_mov_b32 s54, {XBUF}")
        e(".p2align 6")
        self.lab("L_cloop")
        pre0 = wadv() + ["s_add_u32 s40, s40, 1",
                         f"s_cmp_eq_u32 s40, {NXB}",
                         f"s_cselect_b32 s42, {-(NXB - 1) * XBUF & 0xffffffff:#x}, s54",
                         "s_cselect_b32 s40, 0, s40"] + [f"v_add_u32 v{2 + i}, s42, v{2 + i}" for i in range(3)]
        self.substage(0, pre0)
        pre1 = wadv() + [f"v_add_u32 v{5 + i}, s42, v{5 + i}" for i in range(3)] + ["s_sub_u32 s52, s52, 1"]
        self.substage(1, pre1)
        e("s_cbranch_scc0 L_cloop")
        self.stamp(2)
        e("s_waitcnt lgkmcnt(0)")
        e("s_mov_b32 s42, 0xbfb8aa3b")
        e("s_mov_b32 s43, 0xbfb8aa3b")
        e("s_mov_b32 s44, 1.0")
        e("s_mov_b32 s45, 1.0")
        e("s_mov_b32 s46, 0")
        e("s_nop 4")
        for tm in range(8):
            a = 64 + tm * 8
            tb = 128 + (tm & 1) * 32
            for p in range(4):
                e(f"v_pk_fma_f32 v[{a + 2 * p}:{a + 2 * p + 1}], v[{a + 2 * p}:{a + 2 * p + 1}], v[{16 + 2 * p}:{17 + 2 * p}], v[{24 + 2 * p}:{25 + 2 * p}]")
            for p in range(4):
                e(f"v_pk_mul_f32 v[{tb + 2 * p}:{tb + 2 * p + 1}], v[{a + 2 * p}:{a + 2 * p + 1}], s[42:43]")
            for r in range(8):
                e(f"v_exp_f32 v{tb + r}, v{tb + r}")
            e("s_nop 0")
            for p in range(4):
                e(f"v_pk_add_f32 v[{tb + 2 * p}:{tb + 2 * p + 1}], v[{tb + 2 * p}:{tb + 2 * p + 1}], s[44:45]")
            for r in range(8):
                e(f"v_rcp_f32 v{tb + r}, v{tb + r}")
            e("s_nop 0")
            for p in range(4):
                e(f"v_pk_mul_f32 v[{tb + 2 * p}:{tb + 2 * p + 1}], v[{tb + 2 * p}:{tb + 2 * p + 1}], v[{a + 2 * p}:{a + 2 * p + 1}]")
            ob = tb + 8
            for p in range(4):
                e(f"v_cvt_pk_bf16_f32 v{ob + p}, v{tb + 2 * p}, v{tb + 2 * p + 1}")
            e("s_nop 1")
            e(f"v_permlane16_swap_b32 v{ob}, v{ob + 2}")
            e(f"v_permlane16_swap_b32 v{ob + 1}, v{ob + 3}")
            e(f"buffer_store_dwordx4 v[{ob}:{ob + 3}], v1, s[12:15], s46 offen {o['saux']}")
            e("s_add_u32 s46, s46, 2048")
        self.stamp(3)
        if o["stamps"]:
            e("s_waitcnt vmcnt(0)")
        self.stamp(4)
        self.dump_stamps(5)
        e("s_endpgm")

    def gen(self):
        e = self.e
        o = self.o
        self.l.append(HEADER.rstrip())
        self.l.append(f"; @launch grid=(256,1,1) block=(512,1,1) lds={LDS}")
        self.l.append('.amdgcn_target "amdgcn-amd-amdhsa--gfx950"')
        self.l.append(".text")
        self.l.append(f".globl {KN}")
        self.l.append(".p2align 8")
        self.l.append(f".type {KN},@function")
        self.lab(KN)
        e("s_cmp_ge_u32 s2, 256")
        e("s_cbranch_scc1 L_end")
        if o["stamps"]:
            e("s_load_dwordx2 s[34:35], s[0:1], 64")
        self.stamp(0)
        e("s_load_dwordx4 s[20:23], s[0:1], 0")
        e("s_load_dwordx8 s[24:31], s[0:1], 16")
        e("s_load_dwordx2 s[32:33], s[0:1], 48")
        e("v_lshrrev_b32 v1, 6, v0")
        e("v_and_b32 v0, 63, v0")
        e("v_readfirstlane_b32 s18, v1")
        e("s_lshr_b32 s36, s2, 3")
        if o["xmap"] == 0:
            e("s_bfe_u32 s3, s2, 0x20001")
            e("s_lshl_b32 s3, s3, 2")
            e("s_and_b32 s16, s36, 3")
            e("s_add_u32 s16, s16, s3")
            e("s_and_b32 s3, s2, 1")
            e("s_lshl_b32 s3, s3, 3")
            e("s_lshr_b32 s17, s36, 2")
            e("s_add_u32 s17, s17, s3")
        elif o["xmap"] == 1:
            e("s_and_b32 s3, s2, 1")
            e("s_lshl_b32 s3, s3, 3")
            e("s_and_b32 s16, s36, 7")
            e("s_add_u32 s16, s16, s3")
            e("s_bfe_u32 s3, s2, 0x20001")
            e("s_lshl_b32 s3, s3, 2")
            e("s_lshr_b32 s17, s36, 3")
            e("s_add_u32 s17, s17, s3")
        else:
            e("s_and_b32 s3, s2, 7")
            e("s_lshl_b32 s3, s3, 1")
            e("s_and_b32 s16, s36, 1")
            e("s_add_u32 s16, s16, s3")
            e("s_lshr_b32 s17, s36, 1")
        st = o["stagger"]
        if st == 0:
            e("s_mov_b32 s37, 0")
        elif st == 1:
            e("s_and_b32 s37, s2, 7")
            e("s_lshl_b32 s37, s37, 1")
        elif st == 2:
            e("s_mov_b32 s37, s16")
        elif st == 3:
            e("s_mov_b32 s37, s17")
        elif st == 4:
            e("s_and_b32 s37, s16, 3")
            e("s_lshl_b32 s37, s37, 2")
        elif st == 5:
            e("s_add_u32 s37, s16, s17")
            e("s_and_b32 s37, s37, 15")
        e("s_lshl_b32 s16, s16, 8")
        e("s_lshl_b32 s17, s17, 6")
        e("s_cmp_ge_u32 s18, 4")
        e("s_cbranch_scc1 " + ("L_compute" if o["loaders_first"] else "L_loader"))
        if o["loaders_first"]:
            self.loader()
            self.compute()
        else:
            self.compute()
            self.loader()
        self.lab("L_end")
        e("s_endpgm")
        self.l.append(f""".section .rodata,"a"
.p2align 6
.amdhsa_kernel {KN}
  .amdhsa_next_free_vgpr 256
  .amdhsa_next_free_sgpr 96
  .amdhsa_accum_offset 256
  .amdhsa_group_segment_fixed_size 0
  .amdhsa_kernarg_size 72
  .amdhsa_user_sgpr_count 2
  .amdhsa_user_sgpr_kernarg_segment_ptr 1
  .amdhsa_system_sgpr_workgroup_id_x 1
.end_amdhsa_kernel""")
        return "\n".join(self.l) + "\n"


if __name__ == "__main__":
    out = sys.argv[1]
    opts = {}
    for a in sys.argv[2:]:
        k, v = a.split("=")
        try:
            v = int(v)
        except ValueError:
            try:
                v = float(v)
            except ValueError:
                v = v.replace("+", " ")
        opts[k] = v
    open(out, "w").write(G(**opts).gen())
```

```python
import sys

HEADER = open("standalone__batchnorm__prompt.s.ref").read().split("; Override launch")[0]
KN = "standalone__batchnorm__prompt_kernel"

PS = 33 * 128
XBUF = 263 * 128
NXB = 3
WBUF = 3 * 32 * 128
NWB = 5
WBASE = NXB * XBUF
PB = WBASE + NWB * WBUF
LDS = PB + 512

ACC = 64
SET = (128, 192)


def cnt(i):
    return (3, 5, 4, 3)[i % 4]


class G:
    def __init__(self, **o):
        self.o = dict(stamps=0, trace=0, no_dma=0, no_reads=0, no_bar=0, no_mfma=0, no_epi=0, no_store=0,
                      spacing=1.5, first=0, stagger=1, prio_c=0, prio_l=0, lfirst=1, order=6,
                      xaux="", waux="", saux="", xmap=0, probe="", cum="6,8,12", pf=0, pfwhen=0, pfw=1, pfaux="",
                      tail=0, wfirst=1)
        self.o.update(o)
        self.l = []

    def e(self, s):
        self.l.append("    " + s)

    def lab(self, s):
        self.l.append(s + ":")

    def stamp(self, i):
        if self.o["stamps"]:
            self.e(f"s_memtime s[{60 + 4 * i}:{61 + 4 * i}]")
            self.e(f"s_memrealtime s[{62 + 4 * i}:{63 + 4 * i}]")

    def dump_stamps(self, n, role):
        if not self.o["stamps"]:
            return
        e = self.e
        if self.o["probe"]:
            prole, a, z, kind, mult = self.o["probe"].split(",")
            if prole == role:
                off = 62 if kind == "t" else 60
                e("s_waitcnt lgkmcnt(0)")
                e(f"s_sub_u32 s3, s{off + 4 * int(z)}, s{off + 4 * int(a)}")
                if kind == "t":
                    e(f"s_mul_i32 s3, s3, {mult}")
                else:
                    e(f"s_lshr_b32 s3, s3, {mult}")
                e("s_min_u32 s3, s3, 50000")
                self.lab(f"L_spin_{role}")
                e("s_memrealtime s[56:57]")
                e("s_waitcnt lgkmcnt(0)")
                e(f"s_sub_u32 s56, s56, s{62 + 4 * (n - 1)}")
                e("s_cmp_lt_u32 s56, s3")
                e(f"s_cbranch_scc1 L_spin_{role}")
            return
        e("s_load_dwordx2 s[34:35], s[0:1], 64")
        e("s_waitcnt lgkmcnt(0)")
        e("v_mov_b32 v40, 0")
        for i in range(n):
            e(f"v_writelane_b32 v40, s{60 + 4 * i}, {2 * i}")
            e(f"v_writelane_b32 v40, s{62 + 4 * i}, {2 * i + 1}")
        e("s_lshl_b32 s3, s2, 3")
        e("s_and_b32 s18, s18, 3")
        if role == "l":
            e("s_add_u32 s18, s18, 4")
        e("s_add_u32 s3, s3, s18")
        e("s_lshl_b32 s3, s3, 6")
        e("v_lshl_add_u32 v41, v0, 2, s3")
        if self.o["trace"] and role == "l":
            e("s_lshl_b32 s3, s3, 2")
            e("s_add_u32 s3, s3, 0x100000")
            e("v_lshl_add_u32 v42, v0, 2, s3")
            e("global_store_dword v42, v20, s[34:35]")
        e("s_mov_b64 exec, 0xffff")
        e("global_store_dword v41, v40, s[34:35]")

    def barrier(self):
        if not self.o["no_bar"]:
            self.e("s_barrier")

    def lbarrier(self, force=0):
        if force or not self.o["no_bar"]:
            self.e("s_barrier")
        if self.o["trace"]:
            self.e("s_memtime s[56:57]")
            self.e("s_waitcnt lgkmcnt(0)")
            self.e("s_sub_u32 s56, s56, s60")
            self.e("s_mov_b32 m0, s55")
            self.e("v_writelane_b32 v20, s56, m0")
            self.e("s_add_u32 s55, s55, 1")

    def issue_x(self, half, pro=0):
        e = self.e
        on = not self.o["no_dma"] or (pro and self.o["no_dma"] == 2)
        aux = self.o["xaux"]
        if half == 0:
            if on:
                e("s_add_u32 m0, s41, s44")
                e("s_mov_b64 exec, 15")
                e(f"buffer_load_dwordx4 v3, s[4:7], s40 offen {aux} lds")
                e("s_mov_b64 exec, -1")
                e("s_mov_b32 m0, s41")
                e("s_add_u32 s45, s40, s53")
                e(f"buffer_load_dwordx4 v2, s[4:7], s40 offen {aux} lds")
                for p in range(1, 4):
                    e("s_add_u32 m0, m0, s54")
                    a, b = ((45, 46), (46, 45), (45, 47))[p - 1]
                    e(f"s_add_u32 s{b}, s{a}, s53")
                    e(f"buffer_load_dwordx4 v2, s[4:7], s{a} offen {aux} lds")
            return
        if on:
            e(f"s_add_u32 m0, s41, {4 * PS}")
            e("s_add_u32 s45, s47, s53")
            e(f"buffer_load_dwordx4 v2, s[4:7], s47 offen {aux} lds")
            for p in range(1, 4):
                e("s_add_u32 m0, m0, s54")
                a, b = (45, 46) if p & 1 else (46, 45)
                e(f"s_add_u32 s{b}, s{a}, s53")
                e(f"buffer_load_dwordx4 v2, s[4:7], s{a} offen {aux} lds")
        e("s_add_u32 s40, s40, 128")
        e("s_and_b32 s40, s40, 2047")
        e(f"s_add_u32 s41, s41, {XBUF}")
        e("s_cmp_ge_u32 s41, s48")
        e("s_cselect_b32 s41, s50, s41")

    def issue_w(self, pro=0):
        e = self.e
        if not self.o["no_dma"] or (pro and self.o["no_dma"] == 2):
            aux = self.o["waux"]
            e("s_mov_b32 m0, s43")
            e("s_add_u32 s45, s42, s38")
            e(f"buffer_load_dwordx4 v4, s[8:11], s42 offen {aux} lds")
            e("s_add_u32 m0, m0, s39")
            e("s_add_u32 s46, s45, s38")
            e(f"buffer_load_dwordx4 v4, s[8:11], s45 offen {aux} lds")
            e("s_add_u32 m0, m0, s39")
            e("s_add_u32 s42, s42, 65536")
            e(f"buffer_load_dwordx4 v4, s[8:11], s46 offen {aux} lds")
        else:
            e("s_add_u32 s42, s42, 65536")
        e("s_and_b32 s42, s42, 0x1fffff")
        e(f"s_add_u32 s43, s43, {WBUF}")
        e("s_cmp_ge_u32 s43, s49")
        e("s_cselect_b32 s43, s51, s43")

    def issue(self, i, pro=0):
        if i % 4 in (0, 3):
            self.issue_w(pro)
        else:
            self.issue_x(i % 4 - 1, pro)

    def param_load(self):
        e = self.e
        e("s_cmp_lg_u32 s19, 0")
        e("s_cbranch_scc1 L_pl_done")
        e("s_load_dwordx8 s[24:31], s[0:1], 16")
        e("v_add_lshl_u32 v8, s17, v0, 1")
        e("s_waitcnt lgkmcnt(0)")
        for i in range(4):
            e(f"global_load_ushort v{10 + i}, v8, s[{24 + 2 * i}:{25 + 2 * i}]")
        self.lab("L_pl_done")

    def param_calc(self):
        e = self.e
        e("s_cmp_lg_u32 s19, 0")
        e("s_cbranch_scc1 L_pc_done")
        for i in range(4):
            e(f"v_lshlrev_b32 v{10 + i}, 16, v{10 + i}")

        def rnd():
            e("v_cvt_pk_bf16_f32 v11, v11, v11")
            e("v_lshlrev_b32 v11, 16, v11")
        e("v_add_f32 v11, 0x3727c5ac, v11")
        rnd()
        e("v_sqrt_f32 v11, v11")
        e("s_nop 0")
        rnd()
        e("v_rcp_f32 v11, v11")
        e("s_nop 0")
        rnd()
        e("v_mul_f32 v11, v12, v11")
        rnd()
        e("v_fma_f32 v13, -v10, v11, v13")
        e("v_mul_f32 v11, 0x3fb8aa3b, v11")
        e("v_mul_f32 v13, 0x3fb8aa3b, v13")
        e("v_lshlrev_b32 v8, 2, v0")
        e(f"v_add_u32 v8, {PB}, v8")
        e("ds_write_b32 v8, v11")
        e("ds_write_b32 v8, v13 offset:256")
        e("s_waitcnt lgkmcnt(0)")
        self.lab("L_pc_done")

    def loader(self):
        e = self.e
        o = self.o
        self.lab("L_loader")
        if o["prio_l"]:
            e(f"s_setprio {o['prio_l']}")
        e("s_and_b32 s19, s18, 3")
        e("v_lshrrev_b32 v5, 3, v0")
        e("v_and_b32 v6, 7, v0")
        e("s_lshl_b32 s45, s19, 2")
        e("s_and_b32 s45, s45, 4")
        e("v_xor_b32 v6, s45, v6")
        e("v_and_b32 v7, 2, v5")
        e("v_xor_b32 v7, v7, v6")
        e("v_lshlrev_b32 v7, 4, v7")
        e("v_lshl_add_u32 v4, v5, 11, v7")
        e("s_lshl_b32 s3, s19, 13")
        e("s_add_u32 s3, s3, s17")
        e("v_lshl_add_u32 v4, s3, 1, v4")
        e("v_lshrrev_b32 v7, 1, v5")
        e("v_xor_b32 v7, v7, v6")
        e("v_lshlrev_b32 v7, 4, v7")
        e("v_lshl_add_u32 v2, v5, 14, v7")
        e("s_lshl_b32 s3, s19, 6")
        e("s_add_u32 s3, s3, s16")
        e("v_lshl_add_u32 v2, s3, 11, v2")
        e("s_lshl_b32 s41, s19, 10")
        e("s_cmp_lt_u32 s19, 2")
        e("s_cselect_b32 s3, 256, 0")
        e("s_cselect_b32 s46, 256, -1")
        e("s_cselect_b32 s47, 0, 7")
        e(f"s_cselect_b32 s44, {32 * 128}, s59")
        e("s_add_u32 s3, s3, s16")
        e("s_add_u32 s46, s46, s16")
        e("s_lshl_b32 s46, s46, 11")
        e("s_and_b32 s3, s3, 2047")
        e("s_cselect_b32 s46, s46, 0x80000000")
        e("v_xor_b32 v7, s47, v6")
        e("v_lshl_add_u32 v3, v7, 4, s46")
        e("s_lshl_b32 s45, s45, 4")
        e("s_add_u32 s44, s44, s45")
        e("s_sub_u32 s44, s44, s41")
        e("s_lshl_b32 s40, s37, 7")
        e("s_lshl_b32 s42, s37, 17")
        e(f"s_add_u32 s43, s41, {WBASE}")
        e("s_mov_b32 s48, s43")
        e(f"s_add_u32 s49, s43, {NWB * WBUF}")
        e("s_mov_b32 s50, s41")
        e("s_mov_b32 s51, s43")
        e("s_movk_i32 s53, 2048")
        e(f"s_movk_i32 s54, {PS}")
        e("s_mov_b32 s38, 0x200000")
        e("s_movk_i32 s39, 4096")
        if o["trace"]:
            e("s_mov_b32 s55, 0")
            e("v_mov_b32 v20, 0")
        e("s_waitcnt lgkmcnt(0)")
        self.stamp(1)
        cum = [int(v) for v in str(o["cum"]).split(",")]
        assert len(cum) % 2 == 1
        issued = 0
        for u, c in enumerate(cum):
            need = 2 * u + 3 if u % 2 == 0 else 2 * u + 2
            assert need <= c <= max(2 * u + 8 + (u & 1), 11)
            while issued < c:
                self.issue(issued, 1)
                issued += 1
            if u == 0:
                self.stamp(2)
            n = sum(cnt(v) for v in range(need, issued))
            if o["no_dma"] == 2:
                n = 0
            e(f"s_waitcnt vmcnt({n})")
            self.lbarrier(u == 0)
            if u == 0:
                self.stamp(3)
        u0 = len(cum)
        assert issued <= 2 * u0 + 8
        while issued < 2 * u0 + 8:
            self.issue(issued, 1)
            issued += 1
        self.param_load()
        e(f"s_mov_b32 s52, {(27 - u0) // 2}")
        self.lab("L_lloop")
        e("s_waitcnt vmcnt(23)")
        self.lbarrier()
        self.issue(2)
        self.issue(3)
        e("s_waitcnt vmcnt(18)")
        self.lbarrier()
        e("s_sub_u32 s52, s52, 1")
        e("s_cbranch_scc1 L_ltail")
        self.issue(0)
        self.issue(1)
        e("s_branch L_lloop")
        self.lab("L_ltail")
        self.param_calc()
        for n in (15, 3, 0):
            e(f"s_waitcnt vmcnt({n})")
            self.lbarrier()
        if not o["tail"]:
            self.lbarrier()
        self.stamp(4)
        self.dump_stamps(5, "l")
        e("s_endpgm")

    def reads(self, st, kk):
        base = SET[st]
        L = []
        a = 2 + 3 * kk
        for t in range(2):
            for k in range(3):
                r = base + 40 + (k * 2 + t) * 4
                for hh in range(2):
                    L.append(f"ds_read_b64_tr_b16 v[{r + 2 * hh}:{r + 2 * hh + 1}], v{8 + t} offset:{k * 4096 + hh * 512}")
        X = []
        for dl in range(10):
            r = base + 4 * dl
            if dl == 0:
                X.append(f"ds_read_b128 v[{r}:{r + 3}], v{a + 2} offset:{7 * PS - 128}")
            elif dl == 9:
                X.append(f"ds_read_b128 v[{r}:{r + 3}], v{a + 1}")
            else:
                X.append(f"ds_read_b128 v[{r}:{r + 3}], v{a} offset:{(dl - 1) * PS}")
        out = []
        while L or X:
            if X:
                out.append(X.pop(0))
            if L:
                out.append(L.pop(0))
        return out

    def mf(self, st, k, t, tm):
        acc = ACC + (tm * 2 + t) * 4
        g = SET[st] + 40 + (k * 2 + t) * 4
        f = SET[st] + 4 * (tm + k)
        return f"v_mfma_f32_16x16x32_bf16 v[{acc}:{acc + 3}], v[{g}:{g + 3}], v[{f}:{f + 3}], v[{acc}:{acc + 3}]"

    def mfmas(self, st, tms=range(8)):
        od = self.o["order"]
        if od == 0:
            seq = [(k, t, tm) for k in range(3) for t in range(2) for tm in tms]
        elif od == 4:
            seq = [(k, t, tm) for t in range(2) for tm in tms for k in range(3)]
        else:
            seq = [(k, t, tm) for t in range(2) for tm in tms for k in ((0, 1, 2) if tm % 2 == 0 else (2, 1, 0))]
        return [self.mf(st, *s) for s in seq]

    def interleave(self, M, fill):
        for i, m in enumerate(M):
            if not self.o["no_mfma"]:
                self.e(m)
            for r in fill.get(i, []):
                self.e(r)

    def substage(self, st, pre):
        o = self.o
        M = self.mfmas(st)
        R = self.reads(st ^ 1, st ^ 1) if not o["no_reads"] else []
        self.e("s_waitcnt lgkmcnt(0)")
        self.barrier()
        fill = {}
        for i, r in enumerate(R):
            fill.setdefault(o["first"] + int(i * o["spacing"]), []).append(r)
        tail_pos = o["first"] + int(22 * o["spacing"]) + 1
        for i, p in enumerate(pre):
            fill.setdefault(min(tail_pos + i, 47), []).append(p)
        self.interleave(M, fill)

    def epi_ops(self, tm, tb):
        a = ACC + tm * 8
        ob = tb + 8
        L = []
        if not self.o["no_epi"]:
            for p in range(4):
                L.append(f"v_pk_fma_f32 v[{a + 2 * p}:{a + 2 * p + 1}], v[{a + 2 * p}:{a + 2 * p + 1}], v[{16 + 2 * p}:{17 + 2 * p}], v[{24 + 2 * p}:{25 + 2 * p}]")
            for r in range(8):
                L.append(f"v_exp_f32_e64 v{tb + r}, -v{a + r}")
            for p in range(4):
                L.append(f"v_pk_fma_f32 v[{tb + 2 * p}:{tb + 2 * p + 1}], v[{tb + 2 * p}:{tb + 2 * p + 1}], s[42:43], s[42:43]")
            for r in range(8):
                L.append(f"v_rcp_f32 v{tb + r}, v{tb + r}")
            for p in range(4):
                L.append(f"v_pk_mul_f32 v[{tb + 2 * p}:{tb + 2 * p + 1}], v[{tb + 2 * p}:{tb + 2 * p + 1}], v[{a + 2 * p}:{a + 2 * p + 1}]")
            for p in (0, 2, 1, 3):
                L.append(f"v_cvt_pk_bf16_f32 v{ob + p}, v{tb + 2 * p}, v{tb + 2 * p + 1}")
            L.append(f"v_permlane16_swap_b32 v{ob}, v{ob + 2}")
            L.append("s_nop 0")
            L.append(f"v_permlane16_swap_b32 v{ob + 1}, v{ob + 3}")
        if not self.o["no_store"]:
            L.append(f"buffer_store_dwordx4 v[{ob}:{ob + 3}], v1, s[12:15], s{44 + tm} offen {self.o['saux']}")
        return L

    def prefetch(self):
        e = self.e
        o = self.o
        if not o["pf"]:
            return
        aux = o["pfaux"]
        e("s_lshl_b32 s3, s36, 2")
        e("s_and_b32 s45, s18, 3")
        e("s_add_u32 s3, s3, s45")
        e("s_and_b32 s46, s16, 0xc00")
        e("s_and_b32 s47, s17, 0x200")
        offs = (0,) if o["pfw"] == 1 else (0, 64)
        if o["pf"] == 1:
            e("s_lshl_b32 s45, s3, 2")
            e("s_add_u32 s45, s45, s46")
            e("s_add_u32 s45, s45, s47")
            e("s_lshl_b32 s45, s45, 11")
            e("v_lshl_add_u32 v52, v0, 7, s45")
            e("s_lshr_b32 s45, s46, 2")
            e("s_mul_i32 s45, s45, 3")
            e("s_mul_i32 s3, s3, 6")
            e("s_add_u32 s45, s45, s3")
            e("s_lshl_b32 s45, s45, 10")
            e("s_add_u32 s45, s45, s47")
            e("s_lshl_b32 s45, s45, 1")
            e("v_lshrrev_b32 v53, 3, v0")
            e("v_and_b32 v54, 7, v0")
            e("v_lshlrev_b32 v54, 7, v54")
            e("v_lshl_add_u32 v53, v53, 11, v54")
            e("v_add_u32 v53, s45, v53")
            for of in offs:
                e(f"buffer_load_dword v12, v52, s[4:7], 0 offen offset:{of} {aux}")
            e("s_mov_b32 exec_hi, 0xffff")
            for of in offs:
                e(f"buffer_load_dword v12, v53, s[8:11], 0 offen offset:{of} {aux}")
            e("s_mov_b32 exec_hi, -1")
        else:
            e("s_lshl_b32 s45, s3, 3")
            e("s_add_u32 s45, s45, s46")
            e("s_lshl_b32 s45, s45, 11")
            e("v_lshl_add_u32 v52, v0, 7, s45")
            e("s_mul_i32 s45, s3, 24")
            e("s_lshl_b32 s45, s45, 10")
            e("s_add_u32 s45, s45, s47")
            e("s_lshl_b32 s45, s45, 1")
            e("v_lshrrev_b32 v53, 3, v0")
            e("v_and_b32 v54, 7, v0")
            e("v_lshlrev_b32 v54, 7, v54")
            e("v_lshl_add_u32 v53, v53, 11, v54")
            e("v_add_u32 v53, s45, v53")
            e("s_movk_i32 s45, 0x2000")
            e("s_movk_i32 s46, 0x4000")
            e("s_mov_b32 s47, 0x8000")
            for so in ("0", "s45"):
                for of in offs:
                    e(f"buffer_load_dword v12, v52, s[4:7], {so} offen offset:{of} {aux}")
            for so in ("0", "s46", "s47"):
                for of in offs:
                    e(f"buffer_load_dword v12, v53, s[8:11], {so} offen offset:{of} {aux}")

    def compute(self):
        e = self.e
        o = self.o
        self.lab("L_compute")
        if o["prio_c"]:
            e(f"s_setprio {o['prio_c']}")
        e("s_load_dwordx2 s[12:13], s[0:1], 48")
        e("s_and_b32 s38, s18, 1")
        e("s_bfe_u32 s39, s18, 0x10001")
        e("v_and_b32 v10, 15, v0")
        e("v_lshrrev_b32 v11, 4, v0")
        e("s_mov_b32 s14, 0x800000")
        e("s_mov_b32 s15, 0x20000")
        e("v_lshlrev_b32 v13, 1, v10")
        e("v_cmp_lt_u32 vcc, 3, v10")
        e("v_subrev_u32 v14, 7, v13")
        e("v_subrev_u32 v15, 16, v13")
        e("v_cndmask_b32 v13, v13, v14, vcc")
        e("v_cmp_lt_u32 vcc, 11, v10")
        e("s_lshl_b32 s3, s38, 11")
        e("v_lshrrev_b32 v14, 2, v10")
        e("v_cndmask_b32 v13, v13, v15, vcc")
        e("v_lshl_add_u32 v15, v11, 3, v14")
        e("v_lshlrev_b32 v15, 7, v15")
        e("v_and_b32 v48, 3, v10")
        e("v_lshl_add_u32 v15, v48, 3, v15")
        e("v_lshrrev_b32 v14, 1, v14")
        e("v_and_b32 v48, 1, v11")
        e("v_lshl_or_b32 v14, v48, 1, v14")
        e("s_lshl_b32 s45, s39, 1")
        e("v_xor_b32 v14, s45, v14")
        e("v_lshl_add_u32 v15, v14, 5, v15")
        e(f"v_add_u32 v8, {WBASE}, v15")
        e("v_xor_b32 v9, 32, v8")
        for idx, sh in ((0, 0), (1, 1), (2, -1)):
            e(f"v_add_u32 v14, {sh}, v13")
            e("v_bfe_u32 v15, v14, 1, 3")
            e("v_xor_b32 v15, v15, v11")
            e("v_lshlrev_b32 v15, 4, v15")
            e(f"v_lshl_add_u32 v15, v{13 if sh == -1 else 14}, 7, v15")
            e(f"v_add_u32 v{2 + idx}, s3, v15")
            e(f"v_xor_b32 v{5 + idx}, 64, v{2 + idx}")
        if o["pf"] and o["pfwhen"] == 0:
            e("s_waitcnt lgkmcnt(0)")
            self.prefetch()
        e("s_lshl_b32 s3, s38, 7")
        e("s_add_u32 s3, s3, s16")
        e("s_lshl_b32 s3, s3, 10")
        e("s_lshl_b32 s45, s39, 5")
        e("s_add_u32 s3, s3, s45")
        e("s_add_u32 s3, s3, s17")
        e("s_lshl_b32 s3, s3, 1")
        e("v_lshlrev_b32 v14, 5, v48")
        e("v_lshrrev_b32 v15, 1, v11")
        e("v_lshl_add_u32 v14, v15, 4, v14")
        e("v_lshl_add_u32 v14, v13, 14, v14")
        e("v_add_u32 v1, s3, v14")
        for r in range(ACC, ACC + 64, 2):
            e(f"v_mov_b64 v[{r}:{r + 1}], 0")
        e("s_mov_b32 s40, 0")
        e("s_mov_b32 s41, 1")
        e(f"s_movk_i32 s53, {WBUF}")
        e(f"s_mov_b32 s54, {XBUF}")
        e(f"s_mov_b32 s52, {14 if o['tail'] else 15}")

        e("s_mov_b32 s42, 0x3fb8aa3b")
        e("s_lshl_b32 s3, s39, 7")
        e(f"s_add_u32 s3, s3, {PB}")
        e("v_lshl_add_u32 v10, v11, 4, s3")
        e("s_waitcnt lgkmcnt(0)")
        self.stamp(1)
        e("s_barrier")
        self.stamp(2)
        if o["no_reads"] != 1:
            for r in self.reads(0, 0):
                e(r)
        if o["no_reads"] == 2:
            for r in self.reads(1, 1):
                e(r)
        e("v_add_u32 v8, s53, v8")
        e("v_add_u32 v9, s53, v9")
        if o["pf"] and o["pfwhen"] == 1:
            self.prefetch()

        def wadv():
            return ["s_add_u32 s41, s41, 1",
                    f"s_cmp_eq_u32 s41, {NWB}",
                    f"s_cselect_b32 s43, {-(NWB - 1) * WBUF & 0xffffffff:#x}, s53",
                    "s_cselect_b32 s41, 0, s41",
                    "v_add_u32 v8, s43, v8",
                    "v_add_u32 v9, s43, v9"]

        e(".p2align 6")
        self.lab("L_cloop")
        pre0 = wadv() + ["s_add_u32 s40, s40, 1",
                         f"s_cmp_eq_u32 s40, {NXB}",
                         f"s_cselect_b32 s55, {-(NXB - 1) * XBUF & 0xffffffff:#x}, s54",
                         "s_cselect_b32 s40, 0, s40"] + [f"v_add_u32 v{2 + i}, s55, v{2 + i}" for i in range(3)]
        self.substage(0, pre0)
        pre1 = wadv() + [f"v_add_u32 v{5 + i}, s55, v{5 + i}" for i in range(3)] + ["s_sub_u32 s52, s52, 1"]
        self.substage(1, pre1)
        e("s_cbranch_scc0 L_cloop")
        consts = ["s_mov_b32 s43, s42"] + [f"s_movk_i32 s{44 + tm}, {tm * 2048}" for tm in range(8)]
        self.preads = [f"ds_read_b128 v[{16 + 4 * i}:{19 + 4 * i}], v10 offset:{(i >> 1) * 256 + (i & 1) * 64}" for i in range(4)]
        if not o["tail"]:
            self.stamp(3)
            for c in self.preads + consts:
                e(c)
            e("s_waitcnt lgkmcnt(0)")
            for tm in range(8):
                for x in self.epi_ops(tm, 32 + (tm & 1) * 12):
                    e(x)
        else:
            self.tail(consts)
        if o["stamps"]:
            e("s_waitcnt vmcnt(0)")
        self.stamp(4)
        self.dump_stamps(5, "c")
        e("s_endpgm")

    def tail(self, consts):
        e = self.e
        o = self.o
        e("s_waitcnt lgkmcnt(0)")
        self.barrier()
        R = (self.reads(1, 1) if not o["no_reads"] else []) + self.preads
        M = self.mfmas(0, range(4, 8))
        fill = {}
        for i, r in enumerate(R):
            fill.setdefault(int(i * 0.7), []).append(r)
        for i, c in enumerate(consts):
            fill.setdefault(19 + i // 2, []).append(c)
        self.interleave(M, fill)
        self.stamp(3)
        seq = []
        done_at = {}
        for tm in range(8):
            for t in range(2):
                sts = (0, 1) if tm < 4 else (1,)
                for st in sts:
                    for k in range(3):
                        seq.append(self.mf(st, k, t, tm))
            done_at[tm] = len(seq)
        pend = []
        nxt = 0
        cost = lambda x: 8 if ("v_exp" in x or "v_rcp" in x) else 4
        first = True
        for i, m in enumerate(seq):
            if first and "v[192" in m or first and f"v[{SET[1] + 40}" in m:
                e("s_waitcnt lgkmcnt(0)")
                first = False
            if not o["no_mfma"]:
                e(m)
            while nxt < 8 and done_at[nxt] + 4 <= i + 1:
                pend.append(nxt)
                nxt += 1
            budget = 8
            while budget > 0:
                if not self.cur and pend:
                    tm = pend.pop(0)
                    self.cur = ["s_nop 3"] * (tm == 0) + self.epi_ops(tm, 32 + (tm & 1) * 12)
                if not self.cur:
                    break
                x = self.cur.pop(0)
                e(x)
                budget -= cost(x)
        for x in self.cur:
            e(x)
        for tm in pend + list(range(nxt, 8)):
            for x in self.epi_ops(tm, 32 + (tm & 1) * 12):
                e(x)

    def gen(self):
        e = self.e
        o = self.o
        self.cur = []
        self.l.append(HEADER.rstrip())
        self.l.append(f"; @launch grid=(256,1,1) block=(512,1,1) lds={LDS}")
        self.l.append('.amdgcn_target "amdgcn-amd-amdhsa--gfx950"')
        self.l.append(".text")
        self.l.append(f".globl {KN}")
        self.l.append(".p2align 8")
        self.l.append(f".type {KN},@function")
        self.lab(KN)
        e("s_cmp_ge_u32 s2, 256")
        e("s_cbranch_scc1 L_end")
        self.stamp(0)
        e("s_load_dwordx2 s[4:5], s[0:1], 0")
        e("s_load_dwordx2 s[8:9], s[0:1], 8")
        e("v_readfirstlane_b32 s18, v0")
        e("v_and_b32 v0, 63, v0")
        e("s_lshr_b32 s36, s2, 3")
        e("s_mov_b32 s6, 0x800000")
        e("s_mov_b32 s7, 0x20000")
        e("s_mov_b32 s10, 0x600000")
        e("s_mov_b32 s11, s7")
        e("s_lshr_b32 s18, s18, 6")
        if o["xmap"] == 0:
            e("s_and_b32 s3, s2, 6")
            e("s_lshl_b32 s3, s3, 1")
            e("s_and_b32 s16, s36, 3")
            e("s_add_u32 s16, s16, s3")
            e("s_and_b32 s3, s2, 1")
            e("s_lshl_b32 s3, s3, 3")
            e("s_lshr_b32 s17, s36, 2")
            e("s_add_u32 s17, s17, s3")
        elif o["xmap"] == 3:
            e("s_and_b32 s3, s2, 6")
            e("s_lshl_b32 s3, s3, 1")
            e("s_lshr_b32 s16, s36, 3")
            e("s_add_u32 s16, s16, s3")
            e("s_and_b32 s3, s2, 1")
            e("s_lshl_b32 s3, s3, 3")
            e("s_and_b32 s17, s36, 7")
            e("s_add_u32 s17, s17, s3")
        st = o["stagger"]
        if st == 0:
            e("s_mov_b32 s37, 0")
        elif st == 1:
            e("s_and_b32 s37, s2, 7")
            e("s_lshl_b32 s37, s37, 1")
        elif st == 2:
            e("s_mov_b32 s37, s16")
        elif st == 4:
            e("s_and_b32 s37, s16, 3")
            e("s_lshl_b32 s37, s37, 2")
        elif st == 6:
            e("s_and_b32 s37, s16, 12")
            e("s_add_u32 s37, s37, s3")
            e("s_and_b32 s37, s37, 15")
        elif st == 7:
            e("s_and_b32 s37, s2, 6")
            e("s_add_u32 s37, s37, s3")
        elif st == 8:
            e("s_mov_b32 s37, s3")
        elif st == 9:
            e("s_and_b32 s37, s16, 12")
        elif st == 10:
            e("s_add_u32 s37, s2, 1")
            e("s_bfe_u32 s37, s37, 0x30001")
            e("s_and_b32 s3, s2, 7")
            e("s_add_u32 s37, s3, 1")
            e("s_lshr_b32 s37, s37, 1")
        elif st == 14:
            e("s_lshl_b32 s37, s16, 1")
            e("s_add_u32 s37, s37, s17")
            e("s_lshl_b32 s37, s37, 1")
            e("s_and_b32 s37, s37, 15")
        elif st == 15:
            e("s_lshl_b32 s37, s16, 2")
            e("s_lshr_b32 s3, s3, 2")
            e("s_add_u32 s37, s37, s3")
            e("s_and_b32 s37, s37, 15")
        elif st == 16:
            e("s_lshl_b32 s37, s16, 2")
            e("s_add_u32 s37, s37, s3")
            e("s_bfe_u32 s3, s2, 0x20001")
            e("s_add_u32 s37, s37, s3")
            e("s_and_b32 s37, s37, 15")
        elif st == 17:
            e("s_and_b32 s37, s2, 7")
            e("s_lshl_b32 s37, s37, 1")
            e("s_lshl_b32 s3, s17, 3")
            e("s_add_u32 s37, s37, s3")
            e("s_and_b32 s37, s37, 15")
        elif st == 11:
            e("s_and_b32 s37, s2, 7")
        elif st == 12:
            e("s_bfe_u32 s37, s2, 0x20001")
            e("s_lshr_b32 s3, s3, 2")
            e("s_add_u32 s37, s37, s3")
        elif st == 13:
            e("s_bfe_u32 s37, s2, 0x20001")
            e("s_add_u32 s37, s37, s3")
        e("s_lshl_b32 s16, s16, 8")
        e("s_lshl_b32 s17, s17, 6")
        e(f"s_movk_i32 s59, {230 * 128}")
        e("s_cmp_ge_u32 s18, 4")
        e(("s_cbranch_scc1" if o["lfirst"] else "s_cbranch_scc0") + " L_compute")
        self.loader()
        self.compute()
        self.lab("L_end")
        e("s_endpgm")
        self.l.append(f""".section .rodata,"a"
.p2align 6
.amdhsa_kernel {KN}
  .amdhsa_next_free_vgpr 256
  .amdhsa_next_free_sgpr 96
  .amdhsa_accum_offset 256
  .amdhsa_group_segment_fixed_size 0
  .amdhsa_kernarg_size 72
  .amdhsa_user_sgpr_count 2
  .amdhsa_user_sgpr_kernarg_segment_ptr 1
  .amdhsa_system_sgpr_workgroup_id_x 1
.end_amdhsa_kernel""")
        return "\n".join(self.l) + "\n"


if __name__ == "__main__":
    out = sys.argv[1]
    opts = {}
    for a in sys.argv[2:]:
        k, v = a.split("=")
        try:
            v = int(v)
        except ValueError:
            try:
                v = float(v)
            except ValueError:
                v = v.replace("+", " ")
        opts[k] = v
    open(out, "w").write(G(**opts).gen())
```

```python
import sys

HEADER = open("standalone__batchnorm__prompt.s.ref").read().split("; Override launch")[0]
KN = "standalone__batchnorm__prompt_kernel"

PS = 33 * 128
XBUF = 263 * 128
NXB = 3
WBUF = 3 * 32 * 128
NWB = 5
WBASE = NXB * XBUF
PB = WBASE + NWB * WBUF
LDS = PB + 512

ACC = 64
SET = (128, 192)


def cnt(i):
    return (3, 5, 4, 3)[i % 4]


class G:
    def __init__(self, **o):
        self.o = dict(stamps=0, trace=0, no_dma=0, no_reads=0, no_bar=0, no_mfma=0, no_epi=0, no_store=0,
                      spacing=1.5, first=0, stagger=1, prio_c=0, prio_l=0, lfirst=1, order=6,
                      xaux="", waux="", saux="sc1", xmap=0, probe="", cum="6,8,12", pf=0, pfwhen=0, pfw=1, pfaux="",
                      tail=0, pstamp=0, pwg=-1, wfirst=1)
        self.o.update(o)
        self.l = []

    def e(self, s):
        self.l.append("    " + s)

    def lab(self, s):
        self.l.append(s + ":")

    def stamp(self, i):
        if self.o["stamps"]:
            self.e(f"s_memtime s[{60 + 4 * i}:{61 + 4 * i}]")
            self.e(f"s_memrealtime s[{62 + 4 * i}:{63 + 4 * i}]")

    def dump_stamps(self, n, role):
        if not self.o["stamps"]:
            return
        e = self.e
        if self.o["probe"]:
            prole, a, z, kind, mult = self.o["probe"].split(",")
            if prole == role:
                off = 62 if kind == "t" else 60
                e("s_waitcnt lgkmcnt(0)")
                e(f"s_sub_u32 s3, s{off + 4 * int(z)}, s{off + 4 * int(a)}")
                if kind == "t":
                    e(f"s_mul_i32 s3, s3, {mult}")
                else:
                    e(f"s_lshr_b32 s3, s3, {mult}")
                e("s_min_u32 s3, s3, 50000")
                if self.o["pwg"] >= 0:
                    e(f"s_cmp_eq_u32 s2, {self.o['pwg']}")
                    e("s_cselect_b32 s3, s3, 0")
                self.lab(f"L_spin_{role}")
                e("s_memrealtime s[56:57]")
                e("s_waitcnt lgkmcnt(0)")
                e(f"s_sub_u32 s56, s56, s{62 + 4 * (n - 1)}")
                e("s_cmp_lt_u32 s56, s3")
                e(f"s_cbranch_scc1 L_spin_{role}")
            return
        e("s_load_dwordx2 s[34:35], s[0:1], 64")
        e("s_waitcnt lgkmcnt(0)")
        e("v_mov_b32 v40, 0")
        for i in range(n):
            e(f"v_writelane_b32 v40, s{60 + 4 * i}, {2 * i}")
            e(f"v_writelane_b32 v40, s{62 + 4 * i}, {2 * i + 1}")
        e("s_lshl_b32 s3, s2, 3")
        e("s_and_b32 s18, s18, 3")
        if role == "l":
            e("s_add_u32 s18, s18, 4")
        e("s_add_u32 s3, s3, s18")
        e("s_lshl_b32 s3, s3, 6")
        e("v_lshl_add_u32 v41, v0, 2, s3")
        if self.o["trace"] and role == "l":
            e("s_lshl_b32 s3, s3, 2")
            e("s_add_u32 s3, s3, 0x100000")
            e("v_lshl_add_u32 v42, v0, 2, s3")
            e("global_store_dword v42, v20, s[34:35]")
        e("s_mov_b64 exec, 0xffff")
        e("global_store_dword v41, v40, s[34:35]")

    def barrier(self):
        if not self.o["no_bar"]:
            self.e("s_barrier")

    def lbarrier(self, force=0):
        if force or not self.o["no_bar"]:
            self.e("s_barrier")
        if self.o["trace"]:
            self.e("s_memtime s[56:57]")
            self.e("s_memrealtime s[80:81]")
            self.e("s_waitcnt lgkmcnt(0)")
            self.e("s_sub_u32 s56, s56, s60")
            self.e("s_sub_u32 s80, s80, s62")
            self.e("s_lshl_b32 s80, s80, 18")
            self.e("s_or_b32 s56, s56, s80")
            self.e("s_mov_b32 m0, s55")
            self.e("v_writelane_b32 v20, s56, m0")
            self.e("s_add_u32 s55, s55, 1")

    def issue_x(self, half, pro=0):
        e = self.e
        on = not self.o["no_dma"] or (pro and self.o["no_dma"] == 2)
        aux = self.o["xaux"]
        if half == 0:
            if on:
                e("s_add_u32 m0, s41, s44")
                e("s_mov_b64 exec, 15")
                e(f"buffer_load_dwordx4 v3, s[4:7], s40 offen {aux} lds")
                e("s_mov_b64 exec, -1")
                e("s_mov_b32 m0, s41")
                e("s_add_u32 s45, s40, s53")
                e(f"buffer_load_dwordx4 v2, s[4:7], s40 offen {aux} lds")
                for p in range(1, 4):
                    e("s_add_u32 m0, m0, s54")
                    a, b = ((45, 46), (46, 45), (45, 47))[p - 1]
                    e(f"s_add_u32 s{b}, s{a}, s53")
                    e(f"buffer_load_dwordx4 v2, s[4:7], s{a} offen {aux} lds")
            return
        if on:
            e(f"s_add_u32 m0, s41, {4 * PS}")
            e("s_add_u32 s45, s47, s53")
            e(f"buffer_load_dwordx4 v2, s[4:7], s47 offen {aux} lds")
            for p in range(1, 4):
                e("s_add_u32 m0, m0, s54")
                a, b = (45, 46) if p & 1 else (46, 45)
                e(f"s_add_u32 s{b}, s{a}, s53")
                e(f"buffer_load_dwordx4 v2, s[4:7], s{a} offen {aux} lds")
        e("s_add_u32 s40, s40, 128")
        e("s_and_b32 s40, s40, 2047")
        e(f"s_add_u32 s41, s41, {XBUF}")
        e("s_cmp_ge_u32 s41, s48")
        e("s_cselect_b32 s41, s50, s41")

    def issue_w(self, pro=0):
        e = self.e
        if not self.o["no_dma"] or (pro and self.o["no_dma"] == 2):
            aux = self.o["waux"]
            e("s_mov_b32 m0, s43")
            e("s_add_u32 s45, s42, s38")
            e(f"buffer_load_dwordx4 v4, s[8:11], s42 offen {aux} lds")
            e("s_add_u32 m0, m0, s39")
            e("s_add_u32 s46, s45, s38")
            e(f"buffer_load_dwordx4 v4, s[8:11], s45 offen {aux} lds")
            e("s_add_u32 m0, m0, s39")
            e("s_add_u32 s42, s42, 65536")
            e(f"buffer_load_dwordx4 v4, s[8:11], s46 offen {aux} lds")
        else:
            e("s_add_u32 s42, s42, 65536")
        e("s_and_b32 s42, s42, 0x1fffff")
        e(f"s_add_u32 s43, s43, {WBUF}")
        e("s_cmp_ge_u32 s43, s49")
        e("s_cselect_b32 s43, s51, s43")

    def issue(self, i, pro=0):
        if i % 4 in (0, 3):
            self.issue_w(pro)
        else:
            self.issue_x(i % 4 - 1, pro)

    def param_load(self):
        e = self.e
        e("s_cmp_lg_u32 s19, 0")
        e("s_cbranch_scc1 L_pl_done")
        e("s_load_dwordx8 s[24:31], s[0:1], 16")
        e("v_add_lshl_u32 v8, s17, v0, 1")
        e("s_waitcnt lgkmcnt(0)")
        for i in range(4):
            e(f"global_load_ushort v{10 + i}, v8, s[{24 + 2 * i}:{25 + 2 * i}]")
        self.lab("L_pl_done")

    def param_calc(self):
        e = self.e
        e("s_cmp_lg_u32 s19, 0")
        e("s_cbranch_scc1 L_pc_done")
        for i in range(4):
            e(f"v_lshlrev_b32 v{10 + i}, 16, v{10 + i}")

        def rnd():
            e("v_cvt_pk_bf16_f32 v11, v11, v11")
            e("v_lshlrev_b32 v11, 16, v11")
        e("v_add_f32 v11, 0x3727c5ac, v11")
        rnd()
        e("v_sqrt_f32 v11, v11")
        e("s_nop 0")
        rnd()
        e("v_rcp_f32 v11, v11")
        e("s_nop 0")
        rnd()
        e("v_mul_f32 v11, v12, v11")
        rnd()
        e("v_fma_f32 v13, -v10, v11, v13")
        e("v_mul_f32 v11, 0x3fb8aa3b, v11")
        e("v_mul_f32 v13, 0x3fb8aa3b, v13")
        e("v_lshlrev_b32 v8, 2, v0")
        e(f"v_add_u32 v8, {PB}, v8")
        e("ds_write_b32 v8, v11")
        e("ds_write_b32 v8, v13 offset:256")
        e("s_waitcnt lgkmcnt(0)")
        self.lab("L_pc_done")

    def loader(self):
        e = self.e
        o = self.o
        self.lab("L_loader")
        if o["prio_l"]:
            e(f"s_setprio {o['prio_l']}")
        e("s_and_b32 s19, s18, 3")
        e("v_lshrrev_b32 v5, 3, v0")
        e("v_and_b32 v6, 7, v0")
        e("s_lshl_b32 s45, s19, 2")
        e("s_and_b32 s45, s45, 4")
        e("v_xor_b32 v6, s45, v6")
        e("v_and_b32 v7, 2, v5")
        e("v_xor_b32 v7, v7, v6")
        e("v_lshlrev_b32 v7, 4, v7")
        e("v_lshl_add_u32 v4, v5, 11, v7")
        e("s_lshl_b32 s3, s19, 13")
        e("s_add_u32 s3, s3, s17")
        e("v_lshl_add_u32 v4, s3, 1, v4")
        e("v_lshrrev_b32 v7, 1, v5")
        e("v_xor_b32 v7, v7, v6")
        e("v_lshlrev_b32 v7, 4, v7")
        e("v_lshl_add_u32 v2, v5, 14, v7")
        e("s_lshl_b32 s3, s19, 6")
        e("s_add_u32 s3, s3, s16")
        e("v_lshl_add_u32 v2, s3, 11, v2")
        e("s_lshl_b32 s41, s19, 10")
        e("s_cmp_lt_u32 s19, 2")
        e("s_cselect_b32 s3, 256, 0")
        e("s_cselect_b32 s46, 256, -1")
        e("s_cselect_b32 s47, 0, 7")
        e(f"s_cselect_b32 s44, {32 * 128}, s59")
        e("s_add_u32 s3, s3, s16")
        e("s_add_u32 s46, s46, s16")
        e("s_lshl_b32 s46, s46, 11")
        e("s_and_b32 s3, s3, 2047")
        e("s_cselect_b32 s46, s46, 0x80000000")
        e("v_xor_b32 v7, s47, v6")
        e("v_lshl_add_u32 v3, v7, 4, s46")
        e("s_lshl_b32 s45, s45, 4")
        e("s_add_u32 s44, s44, s45")
        e("s_sub_u32 s44, s44, s41")
        e("s_lshl_b32 s40, s37, 7")
        e("s_lshl_b32 s42, s37, 17")
        e(f"s_add_u32 s43, s41, {WBASE}")
        e("s_mov_b32 s48, s43")
        e(f"s_add_u32 s49, s43, {NWB * WBUF}")
        e("s_mov_b32 s50, s41")
        e("s_mov_b32 s51, s43")
        e("s_movk_i32 s53, 2048")
        e(f"s_movk_i32 s54, {PS}")
        e("s_mov_b32 s38, 0x200000")
        e("s_movk_i32 s39, 4096")
        if o["trace"]:
            e("s_mov_b32 s55, 0")
            e("v_mov_b32 v20, 0")
        e("s_waitcnt lgkmcnt(0)")
        self.stamp(1)
        cum = [int(v) for v in str(o["cum"]).split(",")]
        assert len(cum) % 2 == 1
        issued = 0
        for u, c in enumerate(cum):
            need = 2 * u + 3 if u % 2 == 0 else 2 * u + 2
            assert need <= c <= max(2 * u + 8 + (u & 1), 11)
            while issued < c:
                self.issue(issued, 1)
                issued += 1
            if u == 0:
                self.stamp(2)
            n = sum(cnt(v) for v in range(need, issued))
            if o["no_dma"] == 2:
                n = 0
            e(f"s_waitcnt vmcnt({n})")
            self.lbarrier(u == 0)
            if u == 0:
                self.stamp(3)
        u0 = len(cum)
        assert issued <= 2 * u0 + 8
        while issued < 2 * u0 + 8:
            self.issue(issued, 1)
            issued += 1
        self.param_load()
        e(f"s_mov_b32 s52, {(27 - u0) // 2}")
        self.lab("L_lloop")
        e("s_waitcnt vmcnt(23)")
        self.lbarrier()
        if o["pstamp"]:
            e(f"s_cmp_lg_u32 s52, {(27 - o['pstamp']) // 2}")
            e("s_cbranch_scc1 L_nops")
            self.stamp(2)
            self.lab("L_nops")
        self.issue(2)
        self.issue(3)
        e("s_waitcnt vmcnt(18)")
        self.lbarrier()
        e("s_sub_u32 s52, s52, 1")
        e("s_cbranch_scc1 L_ltail")
        self.issue(0)
        self.issue(1)
        e("s_branch L_lloop")
        self.lab("L_ltail")
        self.param_calc()
        for n in (15, 3, 0):
            e(f"s_waitcnt vmcnt({n})")
            self.lbarrier()
        if not o["tail"]:
            self.lbarrier()
        self.stamp(4)
        self.dump_stamps(5, "l")
        e("s_endpgm")

    def reads(self, st, kk):
        base = SET[st]
        L = []
        a = 2 + 3 * kk
        for t in range(2):
            for k in range(3):
                r = base + 40 + (k * 2 + t) * 4
                for hh in range(2):
                    L.append(f"ds_read_b64_tr_b16 v[{r + 2 * hh}:{r + 2 * hh + 1}], v{8 + t} offset:{k * 4096 + hh * 512}")
        X = []
        for dl in range(10):
            r = base + 4 * dl
            if dl == 0:
                X.append(f"ds_read_b128 v[{r}:{r + 3}], v{a + 2} offset:{7 * PS - 128}")
            elif dl == 9:
                X.append(f"ds_read_b128 v[{r}:{r + 3}], v{a + 1}")
            else:
                X.append(f"ds_read_b128 v[{r}:{r + 3}], v{a} offset:{(dl - 1) * PS}")
        out = []
        while L or X:
            if X:
                out.append(X.pop(0))
            if L:
                out.append(L.pop(0))
        return out

    def mf(self, st, k, t, tm):
        acc = ACC + (tm * 2 + t) * 4
        g = SET[st] + 40 + (k * 2 + t) * 4
        f = SET[st] + 4 * (tm + k)
        return f"v_mfma_f32_16x16x32_bf16 v[{acc}:{acc + 3}], v[{g}:{g + 3}], v[{f}:{f + 3}], v[{acc}:{acc + 3}]"

    def mfmas(self, st, tms=range(8)):
        od = self.o["order"]
        if od == 0:
            seq = [(k, t, tm) for k in range(3) for t in range(2) for tm in tms]
        elif od == 4:
            seq = [(k, t, tm) for t in range(2) for tm in tms for k in range(3)]
        else:
            seq = [(k, t, tm) for t in range(2) for tm in tms for k in ((0, 1, 2) if tm % 2 == 0 else (2, 1, 0))]
        return [self.mf(st, *s) for s in seq]

    def interleave(self, M, fill):
        for i, m in enumerate(M):
            if not self.o["no_mfma"]:
                self.e(m)
            for r in fill.get(i, []):
                self.e(r)

    def substage(self, st, pre):
        o = self.o
        M = self.mfmas(st)
        R = self.reads(st ^ 1, st ^ 1) if not o["no_reads"] else []
        self.e("s_waitcnt lgkmcnt(0)")
        self.barrier()
        fill = {}
        for i, r in enumerate(R):
            fill.setdefault(o["first"] + int(i * o["spacing"]), []).append(r)
        tail_pos = o["first"] + int(22 * o["spacing"]) + 1
        for i, p in enumerate(pre):
            fill.setdefault(min(tail_pos + i, 47), []).append(p)
        self.interleave(M, fill)

    def epi_ops(self, tm, tb):
        a = ACC + tm * 8
        ob = tb + 8
        L = []
        if not self.o["no_epi"]:
            for p in range(4):
                L.append(f"v_pk_fma_f32 v[{a + 2 * p}:{a + 2 * p + 1}], v[{a + 2 * p}:{a + 2 * p + 1}], v[{16 + 2 * p}:{17 + 2 * p}], v[{24 + 2 * p}:{25 + 2 * p}]")
            for r in range(8):
                L.append(f"v_exp_f32_e64 v{tb + r}, -v{a + r}")
            for p in range(4):
                L.append(f"v_pk_fma_f32 v[{tb + 2 * p}:{tb + 2 * p + 1}], v[{tb + 2 * p}:{tb + 2 * p + 1}], s[42:43], s[42:43]")
            for r in range(8):
                L.append(f"v_rcp_f32 v{tb + r}, v{tb + r}")
            for p in range(4):
                L.append(f"v_pk_mul_f32 v[{tb + 2 * p}:{tb + 2 * p + 1}], v[{tb + 2 * p}:{tb + 2 * p + 1}], v[{a + 2 * p}:{a + 2 * p + 1}]")
            for p in (0, 2, 1, 3):
                L.append(f"v_cvt_pk_bf16_f32 v{ob + p}, v{tb + 2 * p}, v{tb + 2 * p + 1}")
            L.append(f"v_permlane16_swap_b32 v{ob}, v{ob + 2}")
            L.append("s_nop 0")
            L.append(f"v_permlane16_swap_b32 v{ob + 1}, v{ob + 3}")
        if not self.o["no_store"]:
            L.append(f"buffer_store_dwordx4 v[{ob}:{ob + 3}], v1, s[12:15], s{44 + tm} offen {self.o['saux']}")
        return L

    def prefetch(self):
        e = self.e
        o = self.o
        if not o["pf"]:
            return
        aux = o["pfaux"]
        e("s_lshl_b32 s3, s36, 2")
        e("s_and_b32 s45, s18, 3")
        e("s_add_u32 s3, s3, s45")
        e("s_and_b32 s46, s16, 0xc00")
        e("s_and_b32 s47, s17, 0x200")
        offs = (0,) if o["pfw"] == 1 else (0, 64)
        if o["pf"] == 1:
            e("s_lshl_b32 s45, s3, 2")
            e("s_add_u32 s45, s45, s46")
            e("s_add_u32 s45, s45, s47")
            e("s_lshl_b32 s45, s45, 11")
            e("v_lshl_add_u32 v52, v0, 7, s45")
            e("s_lshr_b32 s45, s46, 2")
            e("s_mul_i32 s45, s45, 3")
            e("s_mul_i32 s3, s3, 6")
            e("s_add_u32 s45, s45, s3")
            e("s_lshl_b32 s45, s45, 10")
            e("s_add_u32 s45, s45, s47")
            e("s_lshl_b32 s45, s45, 1")
            e("v_lshrrev_b32 v53, 3, v0")
            e("v_and_b32 v54, 7, v0")
            e("v_lshlrev_b32 v54, 7, v54")
            e("v_lshl_add_u32 v53, v53, 11, v54")
            e("v_add_u32 v53, s45, v53")
            for of in offs:
                e(f"buffer_load_dword v12, v52, s[4:7], 0 offen offset:{of} {aux}")
            e("s_mov_b32 exec_hi, 0xffff")
            for of in offs:
                e(f"buffer_load_dword v12, v53, s[8:11], 0 offen offset:{of} {aux}")
            e("s_mov_b32 exec_hi, -1")
        else:
            e("s_lshl_b32 s45, s3, 3")
            e("s_add_u32 s45, s45, s46")
            e("s_lshl_b32 s45, s45, 11")
            e("v_lshl_add_u32 v52, v0, 7, s45")
            e("s_mul_i32 s45, s3, 24")
            e("s_lshl_b32 s45, s45, 10")
            e("s_add_u32 s45, s45, s47")
            e("s_lshl_b32 s45, s45, 1")
            e("v_lshrrev_b32 v53, 3, v0")
            e("v_and_b32 v54, 7, v0")
            e("v_lshlrev_b32 v54, 7, v54")
            e("v_lshl_add_u32 v53, v53, 11, v54")
            e("v_add_u32 v53, s45, v53")
            e("s_movk_i32 s45, 0x2000")
            e("s_movk_i32 s46, 0x4000")
            e("s_mov_b32 s47, 0x8000")
            for so in ("0", "s45"):
                for of in offs:
                    e(f"buffer_load_dword v12, v52, s[4:7], {so} offen offset:{of} {aux}")
            for so in ("0", "s46", "s47"):
                for of in offs:
                    e(f"buffer_load_dword v12, v53, s[8:11], {so} offen offset:{of} {aux}")

    def compute(self):
        e = self.e
        o = self.o
        self.lab("L_compute")
        if o["prio_c"]:
            e(f"s_setprio {o['prio_c']}")
        e("s_load_dwordx2 s[12:13], s[0:1], 48")
        e("s_and_b32 s38, s18, 1")
        e("s_bfe_u32 s39, s18, 0x10001")
        e("v_and_b32 v10, 15, v0")
        e("v_lshrrev_b32 v11, 4, v0")
        e("s_mov_b32 s14, 0x800000")
        e("s_mov_b32 s15, 0x20000")
        e("v_lshlrev_b32 v13, 1, v10")
        e("v_cmp_lt_u32 vcc, 3, v10")
        e("v_subrev_u32 v14, 7, v13")
        e("v_subrev_u32 v15, 16, v13")
        e("v_cndmask_b32 v13, v13, v14, vcc")
        e("v_cmp_lt_u32 vcc, 11, v10")
        e("s_lshl_b32 s3, s38, 11")
        e("v_lshrrev_b32 v14, 2, v10")
        e("v_cndmask_b32 v13, v13, v15, vcc")
        e("v_lshl_add_u32 v15, v11, 3, v14")
        e("v_lshlrev_b32 v15, 7, v15")
        e("v_and_b32 v48, 3, v10")
        e("v_lshl_add_u32 v15, v48, 3, v15")
        e("v_lshrrev_b32 v14, 1, v14")
        e("v_and_b32 v48, 1, v11")
        e("v_lshl_or_b32 v14, v48, 1, v14")
        e("s_lshl_b32 s45, s39, 1")
        e("v_xor_b32 v14, s45, v14")
        e("v_lshl_add_u32 v15, v14, 5, v15")
        e(f"v_add_u32 v8, {WBASE}, v15")
        e("v_xor_b32 v9, 32, v8")
        for idx, sh in ((0, 0), (1, 1), (2, -1)):
            e(f"v_add_u32 v14, {sh}, v13")
            e("v_bfe_u32 v15, v14, 1, 3")
            e("v_xor_b32 v15, v15, v11")
            e("v_lshlrev_b32 v15, 4, v15")
            e(f"v_lshl_add_u32 v15, v{13 if sh == -1 else 14}, 7, v15")
            e(f"v_add_u32 v{2 + idx}, s3, v15")
            e(f"v_xor_b32 v{5 + idx}, 64, v{2 + idx}")
        if o["pf"] and o["pfwhen"] == 0:
            e("s_waitcnt lgkmcnt(0)")
            self.prefetch()
        e("s_lshl_b32 s3, s38, 7")
        e("s_add_u32 s3, s3, s16")
        e("s_lshl_b32 s3, s3, 10")
        e("s_lshl_b32 s45, s39, 5")
        e("s_add_u32 s3, s3, s45")
        e("s_add_u32 s3, s3, s17")
        e("s_lshl_b32 s3, s3, 1")
        e("v_lshlrev_b32 v14, 5, v48")
        e("v_lshrrev_b32 v15, 1, v11")
        e("v_lshl_add_u32 v14, v15, 4, v14")
        e("v_lshl_add_u32 v14, v13, 14, v14")
        e("v_add_u32 v1, s3, v14")
        for r in range(ACC, ACC + 64, 2):
            e(f"v_mov_b64 v[{r}:{r + 1}], 0")
        e("s_mov_b32 s40, 0")
        e("s_mov_b32 s41, 1")
        e(f"s_movk_i32 s53, {WBUF}")
        e(f"s_mov_b32 s54, {XBUF}")
        e(f"s_mov_b32 s52, {14 if o['tail'] else 15}")

        e("s_mov_b32 s42, 0x3fb8aa3b")
        e("s_lshl_b32 s3, s39, 7")
        e(f"s_add_u32 s3, s3, {PB}")
        e("v_lshl_add_u32 v10, v11, 4, s3")
        e("s_waitcnt lgkmcnt(0)")
        self.stamp(1)
        e("s_barrier")
        self.stamp(2)
        if o["no_reads"] != 1:
            for r in self.reads(0, 0):
                e(r)
        if o["no_reads"] == 2:
            for r in self.reads(1, 1):
                e(r)
        e("v_add_u32 v8, s53, v8")
        e("v_add_u32 v9, s53, v9")
        if o["pf"] and o["pfwhen"] == 1:
            self.prefetch()

        def wadv():
            return ["s_add_u32 s41, s41, 1",
                    f"s_cmp_eq_u32 s41, {NWB}",
                    f"s_cselect_b32 s43, {-(NWB - 1) * WBUF & 0xffffffff:#x}, s53",
                    "s_cselect_b32 s41, 0, s41",
                    "v_add_u32 v8, s43, v8",
                    "v_add_u32 v9, s43, v9"]

        e(".p2align 6")
        self.lab("L_cloop")
        pre0 = wadv() + ["s_add_u32 s40, s40, 1",
                         f"s_cmp_eq_u32 s40, {NXB}",
                         f"s_cselect_b32 s55, {-(NXB - 1) * XBUF & 0xffffffff:#x}, s54",
                         "s_cselect_b32 s40, 0, s40"] + [f"v_add_u32 v{2 + i}, s55, v{2 + i}" for i in range(3)]
        self.substage(0, pre0)
        pre1 = wadv() + [f"v_add_u32 v{5 + i}, s55, v{5 + i}" for i in range(3)] + ["s_sub_u32 s52, s52, 1"]
        self.substage(1, pre1)
        e("s_cbranch_scc0 L_cloop")
        consts = ["s_mov_b32 s43, s42"] + [f"s_movk_i32 s{44 + tm}, {tm * 2048}" for tm in range(8)]
        self.preads = [f"ds_read_b128 v[{16 + 4 * i}:{19 + 4 * i}], v10 offset:{(i >> 1) * 256 + (i & 1) * 64}" for i in range(4)]
        if not o["tail"]:
            self.stamp(3)
            for c in self.preads + consts:
                e(c)
            e("s_waitcnt lgkmcnt(0)")
            for tm in range(8):
                for x in self.epi_ops(tm, 32 + (tm & 1) * 12):
                    e(x)
        else:
            self.tail(consts)
        if o["stamps"]:
            e("s_waitcnt vmcnt(0)")
        self.stamp(4)
        self.dump_stamps(5, "c")
        e("s_endpgm")

    def tail(self, consts):
        e = self.e
        o = self.o
        e("s_waitcnt lgkmcnt(0)")
        self.barrier()
        R = (self.reads(1, 1) if not o["no_reads"] else []) + self.preads
        M = self.mfmas(0, range(4, 8))
        fill = {}
        for i, r in enumerate(R):
            fill.setdefault(int(i * 0.7), []).append(r)
        for i, c in enumerate(consts):
            fill.setdefault(19 + i // 2, []).append(c)
        self.interleave(M, fill)
        self.stamp(3)
        seq = []
        done_at = {}
        for tm in range(8):
            for t in range(2):
                sts = (0, 1) if tm < 4 else (1,)
                for st in sts:
                    for k in range(3):
                        seq.append(self.mf(st, k, t, tm))
            done_at[tm] = len(seq)
        pend = []
        nxt = 0
        cost = lambda x: 8 if ("v_exp" in x or "v_rcp" in x) else 4
        first = True
        for i, m in enumerate(seq):
            if first and "v[192" in m or first and f"v[{SET[1] + 40}" in m:
                e("s_waitcnt lgkmcnt(0)")
                first = False
            if not o["no_mfma"]:
                e(m)
            while nxt < 8 and done_at[nxt] + 4 <= i + 1:
                pend.append(nxt)
                nxt += 1
            budget = 8
            while budget > 0:
                if not self.cur and pend:
                    tm = pend.pop(0)
                    self.cur = ["s_nop 3"] * (tm == 0) + self.epi_ops(tm, 32 + (tm & 1) * 12)
                if not self.cur:
                    break
                x = self.cur.pop(0)
                e(x)
                budget -= cost(x)
        for x in self.cur:
            e(x)
        for tm in pend + list(range(nxt, 8)):
            for x in self.epi_ops(tm, 32 + (tm & 1) * 12):
                e(x)

    def gen(self):
        e = self.e
        o = self.o
        self.cur = []
        self.l.append(HEADER.rstrip())
        self.l.append(f"; @launch grid=(256,1,1) block=(512,1,1) lds={LDS}")
        self.l.append('.amdgcn_target "amdgcn-amd-amdhsa--gfx950"')
        self.l.append(".text")
        self.l.append(f".globl {KN}")
        self.l.append(".p2align 8")
        self.l.append(f".type {KN},@function")
        self.lab(KN)
        e("s_cmp_ge_u32 s2, 256")
        e("s_cbranch_scc1 L_end")
        self.stamp(0)
        e("s_load_dwordx2 s[4:5], s[0:1], 0")
        e("s_load_dwordx2 s[8:9], s[0:1], 8")
        e("v_readfirstlane_b32 s18, v0")
        e("v_and_b32 v0, 63, v0")
        e("s_lshr_b32 s36, s2, 3")
        e("s_mov_b32 s6, 0x800000")
        e("s_mov_b32 s7, 0x20000")
        e("s_mov_b32 s10, 0x600000")
        e("s_mov_b32 s11, s7")
        e("s_lshr_b32 s18, s18, 6")
        if o["xmap"] == 0:
            e("s_and_b32 s3, s2, 6")
            e("s_lshl_b32 s3, s3, 1")
            e("s_and_b32 s16, s36, 3")
            e("s_add_u32 s16, s16, s3")
            e("s_and_b32 s3, s2, 1")
            e("s_lshl_b32 s3, s3, 3")
            e("s_lshr_b32 s17, s36, 2")
            e("s_add_u32 s17, s17, s3")
        elif o["xmap"] == 3:
            e("s_and_b32 s3, s2, 6")
            e("s_lshl_b32 s3, s3, 1")
            e("s_lshr_b32 s16, s36, 3")
            e("s_add_u32 s16, s16, s3")
            e("s_and_b32 s3, s2, 1")
            e("s_lshl_b32 s3, s3, 3")
            e("s_and_b32 s17, s36, 7")
            e("s_add_u32 s17, s17, s3")
        st = o["stagger"]
        if st == 0:
            e("s_mov_b32 s37, 0")
        elif st == 1:
            e("s_and_b32 s37, s2, 7")
            e("s_lshl_b32 s37, s37, 1")
        elif st == 2:
            e("s_mov_b32 s37, s16")
        elif st == 4:
            e("s_and_b32 s37, s16, 3")
            e("s_lshl_b32 s37, s37, 2")
        elif st == 6:
            e("s_and_b32 s37, s16, 12")
            e("s_add_u32 s37, s37, s3")
            e("s_and_b32 s37, s37, 15")
        elif st == 7:
            e("s_and_b32 s37, s2, 6")
            e("s_add_u32 s37, s37, s3")
        elif st == 8:
            e("s_mov_b32 s37, s3")
        elif st == 9:
            e("s_and_b32 s37, s16, 12")
        elif st == 10:
            e("s_add_u32 s37, s2, 1")
            e("s_bfe_u32 s37, s37, 0x30001")
            e("s_and_b32 s3, s2, 7")
            e("s_add_u32 s37, s3, 1")
            e("s_lshr_b32 s37, s37, 1")
        elif st == 14:
            e("s_lshl_b32 s37, s16, 1")
            e("s_add_u32 s37, s37, s17")
            e("s_lshl_b32 s37, s37, 1")
            e("s_and_b32 s37, s37, 15")
        elif st == 15:
            e("s_lshl_b32 s37, s16, 2")
            e("s_lshr_b32 s3, s3, 2")
            e("s_add_u32 s37, s37, s3")
            e("s_and_b32 s37, s37, 15")
        elif st == 16:
            e("s_lshl_b32 s37, s16, 2")
            e("s_add_u32 s37, s37, s3")
            e("s_bfe_u32 s3, s2, 0x20001")
            e("s_add_u32 s37, s37, s3")
            e("s_and_b32 s37, s37, 15")
        elif st == 17:
            e("s_and_b32 s37, s2, 7")
            e("s_lshl_b32 s37, s37, 1")
            e("s_lshl_b32 s3, s17, 3")
            e("s_add_u32 s37, s37, s3")
            e("s_and_b32 s37, s37, 15")
        elif st == 11:
            e("s_and_b32 s37, s2, 7")
        elif st == 12:
            e("s_bfe_u32 s37, s2, 0x20001")
            e("s_lshr_b32 s3, s3, 2")
            e("s_add_u32 s37, s37, s3")
        elif st == 13:
            e("s_bfe_u32 s37, s2, 0x20001")
            e("s_add_u32 s37, s37, s3")
        e("s_lshl_b32 s16, s16, 8")
        e("s_lshl_b32 s17, s17, 6")
        e(f"s_movk_i32 s59, {230 * 128}")
        e("s_cmp_ge_u32 s18, 4")
        e(("s_cbranch_scc1" if o["lfirst"] else "s_cbranch_scc0") + " L_compute")
        self.loader()
        self.compute()
        self.lab("L_end")
        e("s_endpgm")
        self.l.append(f""".section .rodata,"a"
.p2align 6
.amdhsa_kernel {KN}
  .amdhsa_next_free_vgpr 256
  .amdhsa_next_free_sgpr 96
  .amdhsa_accum_offset 256
  .amdhsa_group_segment_fixed_size 0
  .amdhsa_kernarg_size 72
  .amdhsa_user_sgpr_count 2
  .amdhsa_user_sgpr_kernarg_segment_ptr 1
  .amdhsa_system_sgpr_workgroup_id_x 1
.end_amdhsa_kernel""")
        return "\n".join(self.l) + "\n"


if __name__ == "__main__":
    out = sys.argv[1]
    opts = {}
    for a in sys.argv[2:]:
        k, v = a.split("=")
        try:
            v = int(v)
        except ValueError:
            try:
                v = float(v)
            except ValueError:
                v = v.replace("+", " ")
        opts[k] = v
    open(out, "w").write(G(**opts).gen())
```

```python
import sys

HEADER = open("standalone__batchnorm__prompt.s.ref").read().split("; Override launch")[0]
KN = "standalone__batchnorm__prompt_kernel"

PS = 33 * 128
XBUF = 263 * 128
NXB = 3
WBUF = 3 * 32 * 128
NWB = 5
WBASE = NXB * XBUF
PB = WBASE + NWB * WBUF
LDS = PB + 512
STG = 2 * XBUF

ACC = 64
SET = (128, 192)
TMP = 32


def cnt(i):
    return (3, 5, 4, 3)[i % 4]


def need(u):
    return 2 * u + 3 if u % 2 == 0 else 2 * u + 2


class G:
    def __init__(self, **o):
        self.o = dict(stamps=0, trace=0, no_dma=0, no_reads=0, no_mfma=0, no_epi=0, no_store=0,
                      lastrd=33, prio_c=0, prio_l=0, lfirst=1, order=6, xaux="", waux="", saux="sc1", xmap=0,
                      probe="", xor=1, nt=3, pwg=-1, rrate=1, x0=4, pace=1.04, pk=2, alt=0, lead=6, cum="6",
                      rotx=1, rotk=1, tchk=12, pchk=24, blag=4, cpf=0, pstamp=0, brpos=48)
        self.o.update(o)
        self.l = []
        self.nlab = 0
        self.flow = 0

    def e(self, s):
        self.l.append("    " + s)

    def lab(self, s):
        self.l.append(s + ":")

    def stamp(self, i):
        if self.o["stamps"]:
            self.e(f"s_memtime s[{60 + 4 * i}:{61 + 4 * i}]")
            self.e(f"s_memrealtime s[{62 + 4 * i}:{63 + 4 * i}]")
            self.e("s_waitcnt lgkmcnt(0)")

    def lbarrier(self):
        e = self.e
        e("s_barrier")
        if self.o["trace"]:
            e("s_memtime s[56:57]")
            e("s_memrealtime s[80:81]")
            e("s_mov_b32 m0, s55")
            e("s_waitcnt lgkmcnt(0)")
            e("v_writelane_b32 v62, s56, m0")
            e("v_writelane_b32 v63, s80, m0")
            e("s_add_u32 s55, s55, 1")

    def dump_stamps(self, n, role):
        if not self.o["stamps"]:
            return
        e = self.e
        if self.o["probe"]:
            prole, a, z, kind, mult = self.o["probe"].split(",")
            if prole == role:
                off = 62 if kind == "t" else 60
                e(f"s_sub_u32 s3, s{off + 4 * int(z)}, s{off + 4 * int(a)}")
                if kind == "t":
                    e(f"s_mul_i32 s3, s3, {mult}")
                else:
                    e(f"s_lshr_b32 s3, s3, {mult}")
                e("s_min_u32 s3, s3, 50000")
                if self.o["pwg"] >= 0:
                    e(f"s_cmp_eq_u32 s2, {self.o['pwg']}")
                    e("s_cselect_b32 s3, s3, 0")
                self.lab(f"L_spin_{role}")
                e("s_memrealtime s[56:57]")
                e("s_waitcnt lgkmcnt(0)")
                e(f"s_sub_u32 s56, s56, s{62 + 4 * (n - 1)}")
                e("s_cmp_lt_u32 s56, s3")
                e(f"s_cbranch_scc1 L_spin_{role}")
            return
        e("s_load_dwordx2 s[34:35], s[0:1], 64")
        e("s_waitcnt lgkmcnt(0)")
        e("v_mov_b32 v40, 0")
        for i in range(n):
            e(f"v_writelane_b32 v40, s{60 + 4 * i}, {2 * i}")
            e(f"v_writelane_b32 v40, s{62 + 4 * i}, {2 * i + 1}")
        for i in range(4):
            e(f"v_writelane_b32 v40, s{86 + i}, {12 + i}")
        e("s_lshl_b32 s3, s2, 3")
        e("s_and_b32 s18, s18, 3")
        if role == "l":
            e("s_add_u32 s18, s18, 4")
        e("s_add_u32 s3, s3, s18")
        e("s_lshl_b32 s3, s3, 6")
        e("v_lshl_add_u32 v41, v0, 2, s3")
        if self.o["trace"] and role == "l":
            e("s_lshl_b32 s3, s3, 2")
            e("s_add_u32 s3, s3, 0x100000")
            e("v_lshl_add_u32 v42, v0, 2, s3")
            e("v_subrev_u32 v62, s60, v62")
            e("v_subrev_u32 v63, s62, v63")
            e("v_lshl_or_b32 v63, v63, 18, v62")
            e("global_store_dword v42, v63, s[34:35]")
        e("s_mov_b64 exec, 0xffff")
        e("global_store_dword v41, v40, s[34:35]")

    def issue_x(self, half):
        e = self.e
        aux = self.o["xaux"]
        if not self.o["no_dma"]:
            e(f"s_add_u32 m0, s41, s{86 + half}")
            e(f"s_add_u32 s45, s40, s{88 + half}")
            e(f"buffer_load_dwordx4 v2, s[4:7], s45 offen {aux} lds")
            for p in range(1, 4):
                a, b = (45, 46) if p & 1 else (46, 45)
                e("s_add_u32 m0, m0, s54")
                e(f"s_add_u32 s{b}, s{a}, s53")
                e(f"buffer_load_dwordx4 v2, s[4:7], s{b} offen {aux} lds")
            if half == 0:
                e("s_add_u32 m0, s41, s44")
                e("s_mov_b64 exec, 15")
                e(f"buffer_load_dwordx4 v3, s[4:7], s40 offen {aux} lds")
                e("s_mov_b64 exec, -1")
        if half == 0:
            return
        e("s_add_u32 s82, s82, 128")
        if self.o["x0"]:
            e("s_and_b32 s82, s82, 2047")
        e("s_xor_b32 s40, s82, s84")
        e(f"s_add_u32 s41, s41, {XBUF}")
        e("s_cmp_ge_u32 s41, s51")
        e("s_cselect_b32 s41, s50, s41")

    def issue(self, i):
        if i % 4 in (0, 3):
            self.issue_w()
        else:
            self.issue_x(i % 4 - 1)

    def issue_w(self):
        e = self.e
        if not self.o["no_dma"]:
            aux = self.o["waux"]
            e("s_mov_b32 m0, s43")
            e("s_add_u32 s45, s42, s38")
            e(f"buffer_load_dwordx4 v4, s[8:11], s42 offen {aux} lds")
            e("s_add_u32 m0, m0, s39")
            e("s_add_u32 s46, s45, s38")
            e(f"buffer_load_dwordx4 v4, s[8:11], s45 offen {aux} lds")
            e("s_add_u32 m0, m0, s39")
            e("s_add_u32 s83, s83, 65536")
            e(f"buffer_load_dwordx4 v4, s[8:11], s46 offen {aux} lds")
        else:
            e("s_add_u32 s83, s83, 65536")
        if self.o["x0"]:
            e("s_and_b32 s83, s83, 0x1fffff")
        e("s_xor_b32 s42, s83, s85")
        e(f"s_add_u32 s43, s43, {WBUF}")
        e("s_cmp_ge_u32 s43, s49")
        e("s_cselect_b32 s43, s51, s43")

    def param_load(self):
        e = self.e
        e("s_load_dwordx8 s[24:31], s[0:1], 16")
        e("v_add_lshl_u32 v8, s17, v0, 1")
        e("s_waitcnt lgkmcnt(0)")
        for i in range(4):
            e(f"global_load_ushort v{10 + i}, v8, s[{24 + 2 * i}:{25 + 2 * i}]")

    def param_calc(self):
        e = self.e
        e("s_cmp_lg_u32 s19, 0")
        e("s_cbranch_scc1 L_pc_done")
        for i in range(4):
            e(f"v_lshlrev_b32 v{10 + i}, 16, v{10 + i}")

        def rnd():
            e("v_cvt_pk_bf16_f32 v11, v11, v11")
            e("v_lshlrev_b32 v11, 16, v11")
        e("v_add_f32 v11, 0x3727c5ac, v11")
        rnd()
        e("v_sqrt_f32 v11, v11")
        e("s_nop 0")
        rnd()
        e("v_rcp_f32 v11, v11")
        e("s_nop 0")
        rnd()
        e("v_mul_f32 v11, v12, v11")
        rnd()
        e("v_fma_f32 v13, -v10, v11, v13")
        e("v_mul_f32 v11, 0x3fb8aa3b, v11")
        e("v_mul_f32 v13, 0x3fb8aa3b, v13")
        e("v_lshlrev_b32 v14, 2, v0")
        e(f"v_add_u32 v14, {PB}, v14")
        self.lab("L_pc_done")

    def pi(self, dst, j, t0, t1):
        e = self.e
        e(f"v_lshlrev_b32 v{dst}, 1, v{j}")
        e(f"v_cmp_lt_u32 vcc, 3, v{j}")
        e(f"v_subrev_u32 v{t0}, 7, v{dst}")
        e(f"v_subrev_u32 v{t1}, 16, v{dst}")
        e(f"v_cndmask_b32 v{dst}, v{dst}, v{t0}, vcc")
        e(f"v_cmp_lt_u32 vcc, 11, v{j}")
        e("s_nop 1")
        e(f"v_cndmask_b32 v{dst}, v{dst}, v{t1}, vcc")

    def loader(self):
        e = self.e
        o = self.o
        self.lab("L_loader")
        if o["prio_l"]:
            e(f"s_setprio {o['prio_l']}")
        e("s_and_b32 s19, s18, 3")
        e("v_lshrrev_b32 v5, 3, v0")
        e("v_and_b32 v6, 7, v0")
        e("s_lshl_b32 s45, s19, 2")
        e("s_and_b32 s45, s45, 4")
        e("v_xor_b32 v6, s45, v6")
        e("v_and_b32 v7, 2, v5")
        e("v_xor_b32 v7, v7, v6")
        e("v_lshlrev_b32 v7, 4, v7")
        e("v_lshl_add_u32 v4, v5, 11, v7")
        e("s_lshl_b32 s3, s19, 13")
        e("s_add_u32 s3, s3, s17")
        e("v_lshl_add_u32 v4, s3, 1, v4")
        e("v_lshrrev_b32 v7, 1, v5")
        e("v_xor_b32 v7, v7, v6")
        e("v_lshlrev_b32 v7, 4, v7")
        e("v_lshl_add_u32 v2, v5, 14, v7")
        e("s_lshl_b32 s3, s19, 6")
        e("s_add_u32 s3, s3, s16")
        e("v_lshl_add_u32 v2, s3, 11, v2")
        e("s_lshl_b32 s50, s19, 10")
        e(f"s_movk_i32 s44, {230 * 128}")
        e("s_cmp_lt_u32 s19, 2")
        e("s_cselect_b32 s3, 256, 0")
        e("s_cselect_b32 s46, 256, -1")
        e("s_cselect_b32 s47, 0, 7")
        e(f"s_cmovk_i32 s44, {32 * 128}")
        e("s_add_u32 s3, s3, s16")
        e("s_add_u32 s46, s46, s16")
        e("s_lshl_b32 s46, s46, 11")
        e("s_and_b32 s3, s3, 2047")
        e("s_cselect_b32 s46, s46, 0x80000000")
        e("v_xor_b32 v7, s47, v6")
        e("v_lshl_add_u32 v3, v7, 4, s46")
        e("s_lshl_b32 s45, s45, 4")
        e("s_add_u32 s44, s44, s45")
        e("s_sub_u32 s44, s44, s50")
        xo = o["xor"]
        if xo == 0:
            e("s_mov_b32 s84, 0")
        else:
            e("s_bfe_u32 s84, s2, 0x20001")
            e("s_and_b32 s85, s2, 1")
            e("s_xor_b32 s84, s84, s85")
            if xo == 2:
                e("s_and_b32 s84, s84, 1")
        e("s_lshl_b32 s85, s84, 17")
        e("s_lshl_b32 s84, s84, 7")
        if o["rotk"]:
            e("s_and_b32 s3, s16, 0x100")
            e("s_lshl_b32 s3, s3, 8")
            e("s_or_b32 s85, s85, s3")
        if o["rotx"]:
            e("s_bitcmp1_b32 s17, 6")
            e(f"s_cselect_b32 s86, {4 * PS}, 0")
            e("s_cselect_b32 s88, 0x2000, 0")
            e(f"s_xor_b32 s87, s86, {4 * PS}")
            e("s_xor_b32 s89, s88, 0x2000")
        else:
            e("s_mov_b32 s86, 0")
            e("s_mov_b32 s88, 0")
            e(f"s_movk_i32 s87, {4 * PS}")
            e("s_movk_i32 s89, 0x2000")
        e(f"s_mov_b32 s82, {o['x0'] * 128}")
        e(f"s_mov_b32 s83, {o['x0'] << 17}")
        e("s_xor_b32 s40, s82, s84")
        e("s_xor_b32 s42, s83, s85")
        e(f"s_add_u32 s41, s50, {XBUF}")
        e(f"s_add_u32 s51, s50, {WBASE}")
        e("s_mov_b32 s43, s51")
        e(f"s_add_u32 s49, s51, {NWB * WBUF}")
        e("s_movk_i32 s53, 2048")
        e(f"s_movk_i32 s54, {PS}")
        e("s_mov_b32 s38, 0x200000")
        e("s_movk_i32 s39, 4096")
        e("s_waitcnt lgkmcnt(0)")
        self.stamp(1)
        if o["trace"]:
            e("s_mov_b32 s55, 0")
        lead = o["lead"]
        st = {"issued": 0}

        def upto(c):
            while st["issued"] < min(c, 64):
                self.issue(st["issued"])
                st["issued"] += 1

        def step(u):
            e(f"s_waitcnt vmcnt({sum(cnt(v) for v in range(need(u), st['issued']))})")
            self.lbarrier()

        cum = [int(v) for v in str(o["cum"]).split(",")]
        for u, c in enumerate(cum):
            assert need(u) <= c <= max(2 * u + 8 + (u & 1), 11)
            upto(c)
            if u == 0:
                e("s_cmp_eq_u32 s19, 0")
                e("s_cselect_b32 s48, 6, 64")
            step(u)
            if u == 0:
                self.stamp(2)
        u0 = len(cum)
        assert st["issued"] <= 2 * u0 + lead
        upto(2 * u0 + lead)
        nit = (64 - lead - 2 * u0) // 4
        e(f"s_mov_b32 s52, {nit - 1}")
        self.lab("L_lloop")
        step(u0)
        if o["pstamp"]:
            e(f"s_cmp_lg_u32 s52, {nit - 1 - (o['pstamp'] - u0) // 2}")
            e("s_cbranch_scc1 L_nops")
            self.stamp(1)
            self.lab("L_nops")
        upto(st["issued"] + 2)
        step(u0 + 1)
        upto(st["issued"] + 2)
        e("s_cmp_lg_u32 s52, s48")
        e("s_cbranch_scc1 L_nopl")
        self.param_load()
        self.lab("L_nopl")
        e("s_sub_u32 s52, s52, 1")
        e("s_cbranch_scc0 L_lloop")
        st["issued"] += 4 * (nit - 1)
        e("s_load_dwordx2 s[12:13], s[0:1], 48")
        for u in range(u0 + 2 * nit, 30):
            if u == 29:
                self.param_calc()
                self.store_setup()
            step(u)
            upto(st["issued"] + 2)
        e("s_waitcnt vmcnt(0) lgkmcnt(0)")
        self.lbarrier()
        e("s_cmp_lg_u32 s19, 0")
        e("s_cbranch_scc1 L_pw_done")
        e("ds_write_b32 v14, v11")
        e("ds_write_b32 v14, v13 offset:256")
        e("s_waitcnt lgkmcnt(0)")
        self.lab("L_pw_done")
        self.lbarrier()
        self.stamp(3)
        e("s_mov_b32 s46, 0")
        self.lab("L_sloop")
        self.lbarrier()
        e("ds_read_b128 v[28:31], v17")
        e("v_add_u32 v17, 0x1000, v17")
        e("s_waitcnt lgkmcnt(0)")
        if not o["no_store"]:
            e(f"buffer_store_dwordx4 v[28:31], v16, s[12:15], s46 offen {o['saux']}")
        e("s_add_u32 s46, s46, s53")
        e("s_cmp_lt_u32 s46, 0x4000")
        e("s_cbranch_scc1 L_sloop")
        if o["stamps"]:
            e("s_waitcnt vmcnt(0)")
        self.stamp(4)
        self.dump_stamps(5, "l")
        e("s_endpgm")

    def store_setup(self):
        e = self.e
        e("s_mov_b32 s14, 0x800000")
        e("s_mov_b32 s15, 0x20000")
        e("s_and_b32 s3, s19, 1")
        e("v_lshl_add_u32 v6, s3, 3, v5")
        self.pi(7, 6, 8, 9)
        e("s_lshr_b32 s3, s19, 1")
        e("s_lshl_b32 s3, s3, 7")
        e("s_add_u32 s3, s3, s16")
        e("s_lshl_b32 s3, s3, 10")
        e("s_add_u32 s3, s3, s17")
        e("s_lshl_b32 s3, s3, 1")
        e("v_and_b32 v8, 7, v0")
        e("v_lshl_add_u32 v9, v8, 4, s3")
        e("v_lshl_add_u32 v16, v7, 14, v9")
        e("v_xor_b32 v8, v8, v5")
        e("v_lshlrev_b32 v8, 4, v8")
        e("v_lshl_add_u32 v8, v5, 7, v8")
        e(f"s_add_u32 s3, s50, {STG}")
        e("v_add_u32 v17, s3, v8")

    def rd_f(self, r, kk, dl, off=0):
        a = 2 + 3 * kk
        if dl == 0:
            return [f"ds_read_b128 v[{r}:{r + 3}], v{a + 2} offset:{7 * PS - 128 + off}"]
        if dl == 9:
            return [f"ds_read_b128 v[{r}:{r + 3}], v{a + 1} offset:{off}"]
        return [f"ds_read_b128 v[{r}:{r + 3}], v{a} offset:{(dl - 1) * PS + off}"]

    def rd_g(self, r, k, t, off=0):
        return [f"ds_read_b64_tr_b16 v[{r + 2 * hh}:{r + 2 * hh + 1}], v{8 + t} offset:{k * 4096 + hh * 512 + off}"
                for hh in range(2)]

    def reads(self, st, kk):
        base = SET[st]
        L = []
        for t in range(2):
            for k in range(3):
                L += self.rd_g(base + 40 + (k * 2 + t) * 4, k, t)
        X = []
        for dl in range(10):
            X += self.rd_f(base + 4 * dl, kk, dl)
        out = []
        while L or X:
            if X:
                out.append(X.pop(0))
            if L:
                out.append(L.pop(0))
        return out

    def mf(self, g, f, t, tm):
        acc = ACC + (tm * 2 + t) * 4
        return f"v_mfma_f32_16x16x32_bf16 v[{acc}:{acc + 3}], v[{g}:{g + 3}], v[{f}:{f + 3}], v[{acc}:{acc + 3}]"

    def mfmas(self, st):
        od = self.o["order"]
        if od == 0:
            seq = [(k, t, tm) for k in range(3) for t in range(2) for tm in range(8)]
        else:
            seq = [(k, t, tm) for t in range(2) for tm in range(8) for k in ((0, 1, 2) if tm % 2 == 0 else (2, 1, 0))]
        return [self.mf(SET[st] + 40 + (k * 2 + t) * 4, SET[st] + 4 * (tm + k), t, tm) for k, t, tm in seq]

    def substage(self, st, pre):
        o = self.o
        M = self.mfmas(st)
        R = self.reads(st ^ 1, st ^ 1) if not o["no_reads"] else []
        fill = {}
        sp = o["lastrd"] / 22.0
        for i, r in enumerate(R):
            fill.setdefault(int(i * sp), []).append(r)
        pos = o["lastrd"]
        for i, p in enumerate(pre):
            fill.setdefault(min(pos + i, 47), []).extend(p)
        out = []
        for i, m in enumerate(M):
            out.append((["s_waitcnt lgkmcnt(0)", "s_barrier"] if i == 0 else []) +
                       ([m] if not o["no_mfma"] else []) + fill.get(i, []))
        return out

    def epi_ops(self, un):
        tm, t = un >> 1, un & 1
        a = ACC + un * 4
        tb = TMP + 4 * t
        L = []
        if not self.o["no_epi"] and not (self.o["pk"] == 1 or (self.o["pk"] == 2 and un == 15)):
            for r in range(4):
                L.append(f"v_fma_f32 v{a + r}, v{a + r}, v{16 + 4 * t + r}, v{24 + 4 * t + r}")
            for r in range(4):
                L.append(f"v_exp_f32_e64 v{tb + r}, -v{a + r}")
            for r in range(4):
                L.append(f"v_fma_f32 v{tb + r}, v{tb + r}, s42, s42")
            for r in range(4):
                L.append(f"v_rcp_f32 v{tb + r}, v{tb + r}")
            for r in range(4):
                L.append(f"v_mul_f32 v{tb + r}, v{tb + r}, v{a + r}")
            for p in range(2):
                L.append(f"v_cvt_pk_bf16_f32 v{a + p}, v{tb + 2 * p}, v{tb + 2 * p + 1}")
        elif not self.o["no_epi"]:
            for p in range(2):
                q = 4 * t + 2 * p
                L.append(f"v_pk_fma_f32 v[{a + 2 * p}:{a + 2 * p + 1}], v[{a + 2 * p}:{a + 2 * p + 1}], v[{16 + q}:{17 + q}], v[{24 + q}:{25 + q}]")
            for r in range(4):
                L.append(f"v_exp_f32_e64 v{tb + r}, -v{a + r}")
            for p in range(2):
                L.append(f"v_pk_fma_f32 v[{tb + 2 * p}:{tb + 2 * p + 1}], v[{tb + 2 * p}:{tb + 2 * p + 1}], s[42:43], s[42:43]")
            for r in range(4):
                L.append(f"v_rcp_f32 v{tb + r}, v{tb + r}")
            for p in range(2):
                L.append(f"v_pk_mul_f32 v[{tb + 2 * p}:{tb + 2 * p + 1}], v[{tb + 2 * p}:{tb + 2 * p + 1}], v[{a + 2 * p}:{a + 2 * p + 1}]")
            for p in range(2):
                L.append(f"v_cvt_pk_bf16_f32 v{a + p}, v{tb + 2 * p}, v{tb + 2 * p + 1}")
        L.append(f"ds_write_b64 v{15 if t else 1}, v[{a}:{a + 1}] offset:{tm * 4096}")
        return L

    def tail(self):
        e = self.e
        o = self.o
        nt = o["nt"]
        seq = []
        for u in range(28, 32 - nt):
            for tm in range(8):
                ts = (0, 1) if tm % 2 == 0 else (1, 0)
                seq += [(u, k, ts[0], tm) for k in (0, 1, 2)] + [(u, k, ts[1], tm) for k in (2, 1, 0)]
        done_at = {}
        for tm in range(8):
            if o["alt"]:
                for u in range(32 - nt, 32):
                    seq += [(u, k, t, tm) for k in range(3) for t in range(2)]
                done_at[2 * tm] = len(seq) - 2
                done_at[2 * tm + 1] = len(seq) - 1
                continue
            for t in range(2):
                for u in range(32 - nt, 32):
                    seq += [(u, k, t, tm) for k in range(3)]
                done_at[2 * tm + t] = len(seq) - 1
        first, last = {}, {}
        for i, (u, k, t, tm) in enumerate(seq):
            for nm in (("G", u, k, t), ("F", u, tm + k)):
                first.setdefault(nm, i)
                last[nm] = i
        reg = {}
        for dl in range(10):
            reg[("F", 28, dl)] = SET[0] + 4 * dl
        for k in range(3):
            for t in range(2):
                reg[("G", 28, k, t)] = SET[0] + 40 + (k * 2 + t) * 4
        free = list(range(SET[1], SET[1] + 64, 4)) + list(range(TMP + 8, 64, 4))
        todo = sorted((nm for nm in first if nm not in reg), key=lambda nm: first[nm])
        par = [("P", i) for i in range(4)]
        npar = max(0, len([nm for nm in todo if first[nm] <= done_at[0] + 4]))
        todo = todo[:npar] + par + todo[npar:]
        queue = []

        def lds(op, tag=None):
            e(op)
            queue.append(tag)

        def wait_for(tags):
            idx = max((i for i, tg in enumerate(queue) if tg in tags), default=-1)
            if idx >= 0:
                n = min(len(queue) - 1 - idx, 14)
                e(f"s_waitcnt lgkmcnt({n})")
                del queue[:len(queue) - n]

        def issue_read(nm):
            if nm[0] == "P":
                i = nm[1]
                lds(f"ds_read_b128 v[{16 + 4 * i}:{19 + 4 * i}], v10 offset:{(i >> 1) * 256 + (i & 1) * 64}", nm)
                return 1
            r = free.pop(0)
            reg[nm] = r
            u = nm[1]
            if nm[0] == "F":
                ops = self.rd_f(r, u & 1, nm[2], XBUF * ((u >> 1) - 14))
            else:
                ops = self.rd_g(r, nm[2], nm[3], WBUF * (u % NWB))
            if not o["no_reads"]:
                for op in ops:
                    lds(op, nm)
            return len(ops)

        e("s_waitcnt lgkmcnt(0)")
        self.stamp(3)
        e("s_barrier")
        chk, pchk = o["tchk"], o["pchk"]
        head = {0: [f"v_subrev_u32 v8, {4 * WBUF}, v8", f"v_subrev_u32 v9, {4 * WBUF}, v9", "s_mov_b32 s43, s42"],
                chk: ["s_barrier"], pchk: ["s_barrier"]}
        bar_at = {}
        cost = lambda x: 8 if ("v_exp" in x or "v_rcp" in x) else 4
        cur, pend, nxt = [], [], 0
        mark = {}
        credit = 0.0
        per_gap = sum(cost(x) for x in self.epi_ops(0) + self.epi_ops(1)) / (6.0 * nt) * o['pace'] + 0.5
        stalls = []
        for i, (u, k, t, tm) in enumerate(seq):
            g, f = ("G", u, k, t), ("F", u, tm + k)
            while g in todo or f in todo:
                stalls.append(i)
                issue_read(todo.pop(0))
            wait_for({g, f})
            if not o["no_mfma"]:
                e(self.mf(reg[g], reg[f], t, tm))
            if nxt < 16 and done_at[nxt] == i:
                mark[nxt] = len(self.l)
                pend.append(nxt)
                nxt += 1
            for nm in (g, f):
                if last[nm] == i:
                    free.append(reg[nm])
            for x in head.get(i, []):
                e(x)
            if i in bar_at:
                wait_for({bar_at.pop(i)})
                e("s_barrier")
            if i >= 1:
                n = 0
                while n < o["rrate"]:
                    cand = [nm for nm in todo if (i >= pchk if nm[0] == "P" else
                                                  i >= chk or (nm[1] == 29 and first[nm] <= done_at[1]))]
                    if not cand or not (cand[0][0] == "P" or free):
                        break
                    todo.remove(cand[0])
                    k_ = issue_read(cand[0])
                    n += k_
                    if cur or pend:
                        credit -= 4 * k_
            if cur or pend:
                credit += per_gap
            while credit > 0:
                if not cur:
                    if not pend or len(self.l) - mark[pend[0]] < 8:
                        credit = 0
                        break
                    wait_for(set(par))
                    curun = pend.pop(0)
                    cur = self.epi_ops(curun)
                x = cur.pop(0)
                if x.startswith("ds_"):
                    lds(x, ("W", curun))
                    if curun & 1:
                        bar_at[i + o["blag"]] = ("W", curun)
                else:
                    e(x)
                credit -= cost(x)
        assert not todo
        if stalls:
            print("tail: late reads at", stalls, file=sys.stderr)
        rest = [(curun, cur)] if cur else []
        rest += [(un, None) for un in pend]
        for un, ops in rest:
            if ops is None:
                gap = len(self.l) - mark[un]
                if gap < 8:
                    e(f"s_nop {7 - gap}")
                ops = self.epi_ops(un)
            for x in ops:
                if x.startswith("ds_"):
                    for key in sorted(bar_at):
                        wait_for({bar_at.pop(key)})
                        e("s_barrier")
                    lds(x, ("W", un))
                    if un & 1:
                        bar_at[un] = ("W", un)
                else:
                    e(x)
        for key in sorted(bar_at):
            wait_for({bar_at.pop(key)})
            e("s_barrier")

    def compute(self):
        e = self.e
        o = self.o
        self.lab("L_compute")
        e("s_and_b32 s38, s18, 1")
        e("s_bfe_u32 s39, s18, 0x10001")
        e("v_and_b32 v10, 15, v0")
        e("v_lshrrev_b32 v16, 4, v0")
        if o["cpf"]:
            e("s_getpc_b64 s[20:21]")
            e("v_lshlrev_b32 v12, 7, v0")
            e("v_mov_b32 v13, s21")
            e("v_add_co_u32 v12, vcc, s20, v12")
            e("s_cmp_lt_u32 s36, %d" % o["cpf"])
            e("s_cselect_b32 s3, s18, 1")
            e("v_addc_co_u32 v13, vcc, 0, v13, vcc")
            e("s_and_b32 s3, s3, 3")
            e("s_cbranch_scc1 L_nocpf")
            e("s_mov_b32 exec_hi, (1 << (((L_end - L_compute) >> 7) - 32)) - 1")
            e("global_load_dword v14, v[12:13], off")
            e("s_mov_b32 exec_hi, -1")
            self.lab("L_nocpf")
        self.pi(17, 10, 18, 19)
        e("v_lshrrev_b32 v18, 2, v10")
        e("v_lshl_add_u32 v19, v16, 3, v18")
        e("v_lshlrev_b32 v19, 7, v19")
        e("v_and_b32 v20, 3, v10")
        e("v_lshl_add_u32 v19, v20, 3, v19")
        e("v_lshrrev_b32 v18, 1, v18")
        e("v_and_b32 v20, 1, v16")
        e("v_lshl_or_b32 v18, v20, 1, v18")
        e("s_lshl_b32 s45, s39, 1")
        e("v_xor_b32 v18, s45, v18")
        e("v_lshl_add_u32 v19, v18, 5, v19")
        e(f"v_add_u32 v8, {WBASE}, v19")
        e("v_xor_b32 v9, 32, v8")
        e("s_lshl_b32 s3, s38, 11")
        e(f"s_add_u32 s46, s3, {XBUF}")
        if o["rotk"]:
            e("s_bfe_u32 s47, s16, 0x10008")
            e("v_lshl_or_b32 v21, s47, 2, v16")
        for idx, sh in ((0, 0), (1, 1), (2, -1)):
            e(f"v_add_u32 v18, {sh}, v17")
            e("v_bfe_u32 v19, v18, 1, 3")
            e(f"v_xor_b32 v19, v19, v{21 if o['rotk'] else 16}")
            e("v_lshlrev_b32 v19, 4, v19")
            e(f"v_lshl_add_u32 v19, v{17 if sh == -1 else 18}, 7, v19")
            e(f"v_add_u32 v{2 + idx}, s46, v19")
            e(f"v_xor_b32 v{5 + idx}, 64, v{2 + idx}")
        e("v_lshrrev_b32 v18, 1, v16")
        e("v_lshl_add_u32 v18, s39, 2, v18")
        e("v_and_b32 v19, 7, v10")
        e("v_xor_b32 v18, v18, v19")
        e("v_lshlrev_b32 v18, 4, v18")
        e("v_lshl_add_u32 v18, v20, 3, v18")
        e("v_lshl_add_u32 v18, v10, 7, v18")
        e(f"s_add_u32 s3, s3, {STG}")
        e("v_add_u32 v1, s3, v18")
        e("v_xor_b32 v15, 32, v1")
        e("s_lshl_b32 s3, s39, 7")
        e(f"s_add_u32 s3, s3, {PB}")
        e("v_lshl_add_u32 v10, v16, 4, s3")
        for r in range(ACC, ACC + 64, 2):
            e(f"v_mov_b64 v[{r}:{r + 1}], 0")
        e("s_mov_b32 s40, 1")
        e("s_mov_b32 s41, 1")
        e("s_mov_b32 s42, 0x3fb8aa3b")
        e(f"s_movk_i32 s53, {WBUF}")
        e(f"s_mov_b32 s54, {XBUF}")
        e(f"s_mov_b32 s46, {-(NWB - 1) * WBUF & 0xffffffff:#x}")
        e(f"s_mov_b32 s47, {-(NXB - 1) * XBUF & 0xffffffff:#x}")
        e("s_mov_b32 s52, 13")
        if o["prio_c"]:
            e(f"s_setprio {o['prio_c']}")
        self.stamp(1)
        e("s_barrier")
        self.stamp(2)
        if o["no_reads"] != 1:
            for r in self.reads(0, 0):
                e(r)
        e("v_add_u32 v8, s53, v8")
        e("v_add_u32 v9, s53, v9")

        def wadv():
            return [["s_add_u32 s41, s41, 1", f"s_cmp_eq_u32 s41, {NWB}"],
                    ["s_cselect_b32 s43, s46, s53", "s_cselect_b32 s41, 0, s41"],
                    ["v_add_u32 v8, s43, v8"], ["v_add_u32 v9, s43, v9"]]

        pre0 = wadv() + [["s_add_u32 s40, s40, 1", f"s_cmp_eq_u32 s40, {NXB}"],
                         ["s_cselect_b32 s55, s47, s54", "s_cselect_b32 s40, 0, s40"]] + \
            [[f"v_add_u32 v{2 + i}, s55, v{2 + i}"] for i in range(3)]
        pre1 = wadv() + [[f"v_add_u32 v{5 + i}, s55, v{5 + i}"] for i in range(3)] + [["s_sub_u32 s52, s52, 1"]]
        body = self.substage(0, pre0) + self.substage(1, pre1)
        cut = 48 + o["brpos"]
        if cut < 96:
            e("s_branch L_centry")
        e(".p2align 6")
        self.lab("L_cloop")
        for gap in body[cut:]:
            for x in gap:
                e(x)
        self.lab("L_centry")
        for gap in body[:cut]:
            for x in gap:
                e(x)
        e("s_cbranch_scc0 L_cloop")
        for gap in body[cut:]:
            for x in gap:
                e(x)
        self.tail()
        self.stamp(4)
        self.dump_stamps(5, "c")
        e("s_endpgm")

    def gen(self):
        e = self.e
        o = self.o
        self.l.append(HEADER.rstrip())
        self.l.append(f"; @launch grid=(256,1,1) block=(512,1,1) lds={LDS}")
        self.l.append('.amdgcn_target "amdgcn-amd-amdhsa--gfx950"')
        self.l.append(".text")
        self.l.append(f".globl {KN}")
        self.l.append(".p2align 8")
        self.l.append(f".type {KN},@function")
        self.lab(KN)
        e("s_cmp_ge_u32 s2, 256")
        e("s_cbranch_scc1 L_end")
        if o["stamps"]:
            e("s_memtime s[60:61]")
            e("s_memrealtime s[62:63]")
        e("s_load_dwordx2 s[4:5], s[0:1], 0")
        e("s_load_dwordx2 s[8:9], s[0:1], 8")
        e("v_readfirstlane_b32 s18, v0")
        e("v_and_b32 v0, 63, v0")
        e("s_lshr_b32 s36, s2, 3")
        e("s_mov_b32 s6, 0x800000")
        e("s_mov_b32 s7, 0x20000")
        e("s_mov_b32 s10, 0x600000")
        e("s_mov_b32 s11, s7")
        e("s_lshr_b32 s18, s18, 6")
        a, b = ("s16", "s17") if o["xmap"] == 0 else ("s17", "s16")
        e("s_and_b32 s3, s2, 6")
        e("s_lshl_b32 s3, s3, 1")
        e(f"s_and_b32 {a}, s36, 3")
        e(f"s_add_u32 {a}, {a}, s3")
        e("s_and_b32 s3, s2, 1")
        e("s_lshl_b32 s3, s3, 3")
        e(f"s_lshr_b32 {b}, s36, 2")
        e(f"s_add_u32 {b}, {b}, s3")
        e("s_lshl_b32 s16, s16, 8")
        e("s_lshl_b32 s17, s17, 6")
        e("s_cmp_ge_u32 s18, 4")
        e(("s_cbranch_scc1" if o["lfirst"] else "s_cbranch_scc0") + " L_compute")
        self.loader()
        self.compute()
        self.lab("L_end")
        e("s_endpgm")
        self.l.append(f""".section .rodata,"a"
.p2align 6
.amdhsa_kernel {KN}
  .amdhsa_next_free_vgpr 256
  .amdhsa_next_free_sgpr 96
  .amdhsa_accum_offset 256
  .amdhsa_group_segment_fixed_size 0
  .amdhsa_kernarg_size 72
  .amdhsa_user_sgpr_count 2
  .amdhsa_user_sgpr_kernarg_segment_ptr 1
  .amdhsa_system_sgpr_workgroup_id_x 1
.end_amdhsa_kernel""")
        return "\n".join(self.l) + "\n"


if __name__ == "__main__":
    out = sys.argv[1]
    opts = {}
    for a in sys.argv[2:]:
        k, v = a.split("=")
        try:
            v = int(v)
        except ValueError:
            try:
                v = float(v)
            except ValueError:
                v = v.replace("+", " ")
        opts[k] = v
    open(out, "w").write(G(**opts).gen())
```

```python
import sys

HEADER = open("standalone__batchnorm__prompt.s.ref").read().split("; Override launch")[0]
KN = "standalone__batchnorm__prompt_kernel"

PS = 33 * 128
XBUF = 263 * 128
NXB = 3
WBUF = 3 * 32 * 128
NWB = 5
WBASE = NXB * XBUF
PB = WBASE + NWB * WBUF
LDS = PB + 512
STG = 2 * XBUF

ACC = 64
SET = (128, 192)
TMP = 32


def cnt(i):
    return (3, 5, 4, 3)[i % 4]


def need(u):
    return 2 * u + 3 if u % 2 == 0 else 2 * u + 2


class G:
    def __init__(self, **o):
        self.o = dict(stamps=0, trace=0, no_dma=0, no_reads=0, no_mfma=0, no_epi=0, no_store=0,
                      lastrd=33, prio_c=1, prio_l=0, lfirst=1, order=6, xaux="", waux="", saux="sc1", xmap=0,
                      probe="", xor=1, nt=3, pwg=-1, rrate=0.7, x0=4, pace=1.04, pk=2, alt=0, lead=6, cum="6",
                      rotx=1, rotk=1, tchk=12, pchk=40, blag=7, cpf=0, pstamp=0, brpos=45, pages=2, lpad=0, win=1280, latebar=0)
        self.o.update(o)
        self.l = []
        self.nlab = 0
        self.late = []
        self.flow = 0

    def e(self, s):
        self.l.append("    " + s)

    def lab(self, s):
        self.l.append(s + ":")

    def stamp(self, i):
        if self.o["stamps"]:
            self.e(f"s_memtime s[{60 + 4 * i}:{61 + 4 * i}]")
            self.e(f"s_memrealtime s[{62 + 4 * i}:{63 + 4 * i}]")
            self.e("s_waitcnt lgkmcnt(0)")

    def lbarrier(self):
        e = self.e
        e("s_barrier")
        if self.o["trace"]:
            e("s_memtime s[56:57]")
            e("s_memrealtime s[80:81]")
            e("s_mov_b32 m0, s55")
            e("s_waitcnt lgkmcnt(0)")
            e("v_writelane_b32 v62, s56, m0")
            e("v_writelane_b32 v63, s80, m0")
            e("s_add_u32 s55, s55, 1")

    def dump_stamps(self, n, role):
        if not self.o["stamps"]:
            return
        e = self.e
        if self.o["probe"]:
            prole, a, z, kind, mult = self.o["probe"].split(",")
            if prole == role:
                off = 62 if kind == "t" else 60
                e(f"s_sub_u32 s3, s{off + 4 * int(z)}, s{off + 4 * int(a)}")
                if kind == "t":
                    e(f"s_mul_i32 s3, s3, {mult}")
                else:
                    e(f"s_lshr_b32 s3, s3, {mult}")
                e("s_min_u32 s3, s3, 50000")
                if self.o["pwg"] >= 0:
                    e(f"s_cmp_eq_u32 s2, {self.o['pwg']}")
                    e("s_cselect_b32 s3, s3, 0")
                self.lab(f"L_spin_{role}")
                e("s_memrealtime s[56:57]")
                e("s_waitcnt lgkmcnt(0)")
                e(f"s_sub_u32 s56, s56, s{62 + 4 * (n - 1)}")
                e("s_cmp_lt_u32 s56, s3")
                e(f"s_cbranch_scc1 L_spin_{role}")
            return
        e("s_load_dwordx2 s[34:35], s[0:1], 64")
        e("s_waitcnt lgkmcnt(0)")
        e("v_mov_b32 v40, 0")
        for i in range(n):
            e(f"v_writelane_b32 v40, s{60 + 4 * i}, {2 * i}")
            e(f"v_writelane_b32 v40, s{62 + 4 * i}, {2 * i + 1}")
        for i in range(4):
            e(f"v_writelane_b32 v40, s{86 + i}, {12 + i}")
        e("s_lshl_b32 s3, s2, 3")
        e("s_and_b32 s18, s18, 3")
        if role == "l":
            e("s_add_u32 s18, s18, 4")
        e("s_add_u32 s3, s3, s18")
        e("s_lshl_b32 s3, s3, 6")
        e("v_lshl_add_u32 v41, v0, 2, s3")
        if self.o["trace"] and role == "l":
            e("s_lshl_b32 s3, s3, 2")
            e("s_add_u32 s3, s3, 0x100000")
            e("v_lshl_add_u32 v42, v0, 2, s3")
            e("v_subrev_u32 v62, s60, v62")
            e("v_subrev_u32 v63, s62, v63")
            e("v_lshl_or_b32 v63, v63, 18, v62")
            e("global_store_dword v42, v63, s[34:35]")
        e("s_mov_b64 exec, 0xffff")
        e("global_store_dword v41, v40, s[34:35]")

    def issue_x(self, half):
        e = self.e
        aux = self.o["xaux"]
        if not self.o["no_dma"]:
            e(f"s_add_u32 m0, s41, s{86 + half}")
            e(f"s_add_u32 s45, s40, s{88 + half}")
            e(f"buffer_load_dwordx4 v2, s[4:7], s45 offen {aux} lds")
            for p in range(1, 4):
                a, b = (45, 46) if p & 1 else (46, 45)
                e("s_add_u32 m0, m0, s54")
                e(f"s_add_u32 s{b}, s{a}, s53")
                e(f"buffer_load_dwordx4 v2, s[4:7], s{b} offen {aux} lds")
            if half == 0:
                e("s_add_u32 m0, s41, s44")
                e("s_mov_b64 exec, 15")
                e(f"buffer_load_dwordx4 v3, s[4:7], s40 offen {aux} lds")
                e("s_mov_b64 exec, -1")
        if half == 0:
            return
        e("s_add_u32 s82, s82, 128")
        if self.o["x0"]:
            e("s_and_b32 s82, s82, 2047")
        e("s_xor_b32 s40, s82, s84")
        e(f"s_add_u32 s41, s41, {XBUF}")
        e("s_cmp_ge_u32 s41, s51")
        e("s_cselect_b32 s41, s50, s41")

    def issue(self, i):
        if i % 4 in (0, 3):
            self.issue_w()
        else:
            self.issue_x(i % 4 - 1)

    def issue_w(self):
        e = self.e
        if not self.o["no_dma"]:
            aux = self.o["waux"]
            e("s_mov_b32 m0, s43")
            e("s_add_u32 s45, s42, s38")
            e(f"buffer_load_dwordx4 v4, s[8:11], s42 offen {aux} lds")
            e("s_add_u32 m0, m0, s39")
            e("s_add_u32 s46, s45, s38")
            e(f"buffer_load_dwordx4 v4, s[8:11], s45 offen {aux} lds")
            e("s_add_u32 m0, m0, s39")
            e("s_add_u32 s83, s83, 65536")
            e(f"buffer_load_dwordx4 v4, s[8:11], s46 offen {aux} lds")
        else:
            e("s_add_u32 s83, s83, 65536")
        if self.o["x0"]:
            e("s_and_b32 s83, s83, 0x1fffff")
        e("s_xor_b32 s42, s83, s85")
        e(f"s_add_u32 s43, s43, {WBUF}")
        e("s_cmp_ge_u32 s43, s49")
        e("s_cselect_b32 s43, s51, s43")

    def param_load(self):
        e = self.e
        e("s_load_dwordx8 s[24:31], s[0:1], 16")
        e("v_add_lshl_u32 v8, s17, v0, 1")
        e("s_waitcnt lgkmcnt(0)")
        for i in range(4):
            e(f"global_load_ushort v{10 + i}, v8, s[{24 + 2 * i}:{25 + 2 * i}]")

    def param_calc(self):
        e = self.e
        e("s_cmp_lg_u32 s19, 0")
        e("s_cbranch_scc1 L_pc_done")
        for i in range(4):
            e(f"v_lshlrev_b32 v{10 + i}, 16, v{10 + i}")

        def rnd():
            e("v_cvt_pk_bf16_f32 v11, v11, v11")
            e("v_lshlrev_b32 v11, 16, v11")
        e("v_add_f32 v11, 0x3727c5ac, v11")
        rnd()
        e("v_sqrt_f32 v11, v11")
        e("s_nop 0")
        rnd()
        e("v_rcp_f32 v11, v11")
        e("s_nop 0")
        rnd()
        e("v_mul_f32 v11, v12, v11")
        rnd()
        e("v_fma_f32 v13, -v10, v11, v13")
        e("v_mul_f32 v11, 0x3fb8aa3b, v11")
        e("v_mul_f32 v13, 0x3fb8aa3b, v13")
        e("v_lshlrev_b32 v14, 2, v0")
        e(f"v_add_u32 v14, {PB}, v14")
        e("ds_write_b32 v14, v11")
        e("ds_write_b32 v14, v13 offset:256")
        e("s_waitcnt lgkmcnt(0)")
        self.lab("L_pc_done")

    def pi(self, dst, j, t0, t1):
        e = self.e
        e(f"v_lshlrev_b32 v{dst}, 1, v{j}")
        e(f"v_cmp_lt_u32 vcc, 3, v{j}")
        e(f"v_subrev_u32 v{t0}, 7, v{dst}")
        e(f"v_subrev_u32 v{t1}, 16, v{dst}")
        e(f"v_cndmask_b32 v{dst}, v{dst}, v{t0}, vcc")
        e(f"v_cmp_lt_u32 vcc, 11, v{j}")
        e("s_nop 1")
        e(f"v_cndmask_b32 v{dst}, v{dst}, v{t1}, vcc")

    def loader(self):
        e = self.e
        o = self.o
        self.lab("L_loader")
        if o["prio_l"]:
            e(f"s_setprio {o['prio_l']}")
        e("s_and_b32 s19, s18, 3")
        e("v_lshrrev_b32 v5, 3, v0")
        e("v_and_b32 v6, 7, v0")
        e("s_lshl_b32 s45, s19, 2")
        e("s_and_b32 s45, s45, 4")
        e("v_xor_b32 v6, s45, v6")
        e("v_and_b32 v7, 2, v5")
        e("v_xor_b32 v7, v7, v6")
        e("v_lshlrev_b32 v7, 4, v7")
        e("v_lshl_add_u32 v4, v5, 11, v7")
        e("s_lshl_b32 s3, s19, 13")
        e("s_add_u32 s3, s3, s17")
        e("v_lshl_add_u32 v4, s3, 1, v4")
        e("v_lshrrev_b32 v7, 1, v5")
        e("v_xor_b32 v7, v7, v6")
        e("v_lshlrev_b32 v7, 4, v7")
        e("v_lshl_add_u32 v2, v5, 14, v7")
        e("s_lshl_b32 s3, s19, 6")
        e("s_add_u32 s3, s3, s16")
        e("v_lshl_add_u32 v2, s3, 11, v2")
        e("s_lshl_b32 s50, s19, 10")
        e(f"s_movk_i32 s44, {230 * 128}")
        e("s_cmp_lt_u32 s19, 2")
        e("s_cselect_b32 s3, 256, 0")
        e("s_cselect_b32 s46, 256, -1")
        e("s_cselect_b32 s47, 0, 7")
        e(f"s_cmovk_i32 s44, {32 * 128}")
        e("s_add_u32 s3, s3, s16")
        e("s_add_u32 s46, s46, s16")
        e("s_lshl_b32 s46, s46, 11")
        e("s_and_b32 s3, s3, 2047")
        e("s_cselect_b32 s46, s46, 0x80000000")
        e("v_xor_b32 v7, s47, v6")
        e("v_lshl_add_u32 v3, v7, 4, s46")
        e("s_lshl_b32 s45, s45, 4")
        e("s_add_u32 s44, s44, s45")
        e("s_sub_u32 s44, s44, s50")
        xo = o["xor"]
        if xo == 0:
            e("s_mov_b32 s84, 0")
        else:
            e("s_bfe_u32 s84, s2, 0x20001")
            e("s_and_b32 s85, s2, 1")
            e("s_xor_b32 s84, s84, s85")
            if xo == 2:
                e("s_and_b32 s84, s84, 1")
        e("s_lshl_b32 s85, s84, 17")
        e("s_lshl_b32 s84, s84, 7")
        if o["rotk"]:
            e("s_and_b32 s3, s16, 0x100")
            e("s_lshl_b32 s3, s3, 8")
            e("s_or_b32 s85, s85, s3")
        if o["rotx"]:
            e("s_bitcmp1_b32 s17, 6")
            e(f"s_cselect_b32 s86, {4 * PS}, 0")
            e("s_cselect_b32 s88, 0x2000, 0")
            e(f"s_xor_b32 s87, s86, {4 * PS}")
            e("s_xor_b32 s89, s88, 0x2000")
        else:
            e("s_mov_b32 s86, 0")
            e("s_mov_b32 s88, 0")
            e(f"s_movk_i32 s87, {4 * PS}")
            e("s_movk_i32 s89, 0x2000")
        e(f"s_mov_b32 s82, {o['x0'] * 128}")
        e(f"s_mov_b32 s83, {o['x0'] << 17}")
        e("s_xor_b32 s40, s82, s84")
        e("s_xor_b32 s42, s83, s85")
        e(f"s_add_u32 s41, s50, {XBUF}")
        e(f"s_add_u32 s51, s50, {WBASE}")
        e("s_mov_b32 s43, s51")
        e(f"s_add_u32 s49, s51, {NWB * WBUF}")
        e("s_movk_i32 s53, 2048")
        e(f"s_movk_i32 s54, {PS}")
        e("s_mov_b32 s38, 0x200000")
        e("s_movk_i32 s39, 4096")
        e("s_waitcnt lgkmcnt(0)")
        self.stamp(1)
        if o["trace"]:
            e("s_mov_b32 s55, 0")
        lead = o["lead"]
        st = {"issued": 0}

        def upto(c):
            while st["issued"] < min(c, 64):
                self.issue(st["issued"])
                st["issued"] += 1

        def step(u):
            e(f"s_waitcnt vmcnt({sum(cnt(v) for v in range(need(u), st['issued']))})")
            self.lbarrier()

        cum = [int(v) for v in str(o["cum"]).split(",")]
        for u, c in enumerate(cum):
            assert need(u) <= c <= max(2 * u + 8 + (u & 1), 11)
            upto(c)
            if u == 0:
                e("s_cmp_eq_u32 s19, 0")
                e("s_cselect_b32 s48, 6, 64")
                self.store_setup()
            step(u)
            if u == 0:
                self.stamp(2)
        u0 = len(cum)
        assert st["issued"] <= 2 * u0 + lead
        upto(2 * u0 + lead)
        nit = (64 - lead - 2 * u0) // 4
        e(f"s_mov_b32 s52, {nit - 1}")
        self.lab("L_lloop")
        step(u0)
        if o["pstamp"]:
            e(f"s_cmp_lg_u32 s52, {nit - 1 - (o['pstamp'] - u0) // 2}")
            e("s_cbranch_scc1 L_nops")
            self.stamp(1)
            self.lab("L_nops")
        upto(st["issued"] + 2)
        step(u0 + 1)
        upto(st["issued"] + 2)
        e("s_cmp_lg_u32 s52, s48")
        e("s_cbranch_scc1 L_nopl")
        self.param_load()
        self.lab("L_nopl")
        e("s_sub_u32 s52, s52, 1")
        e("s_cbranch_scc0 L_lloop")
        st["issued"] += 4 * (nit - 1)
        e("s_load_dwordx2 s[12:13], s[0:1], 48")
        for u in range(u0 + 2 * nit, 30):
            step(u)
            upto(st["issued"] + 2)
        e("s_waitcnt vmcnt(0) lgkmcnt(0)")
        self.lbarrier()
        self.param_calc()
        self.lbarrier()
        self.stamp(3)
        e("s_mov_b32 s46, 0")
        self.lab("L_sloop")
        self.lbarrier()
        e("ds_read_b128 v[28:31], v17")
        e("v_add_u32 v17, 0x1000, v17")
        e("s_waitcnt lgkmcnt(0)")
        if not o["no_store"]:
            e(f"buffer_store_dwordx4 v[28:31], v16, s[12:15], s46 offen {o['saux']}")
        e("s_add_u32 s46, s46, s53")
        e("s_cmp_lt_u32 s46, 0x4000")
        e("s_cbranch_scc1 L_sloop")
        if o["stamps"]:
            e("s_waitcnt vmcnt(0)")
        self.stamp(4)
        if o["stamps"]:
            e("s_branch L_ldump")

            def late():
                self.lab("L_ldump")
                self.dump_stamps(5, "l")
                e("s_endpgm")
            self.late.append(late)
        else:
            e("s_endpgm")

    def store_setup(self):
        e = self.e
        e("s_mov_b32 s14, 0x800000")
        e("s_mov_b32 s15, 0x20000")
        e("s_and_b32 s3, s19, 1")
        e("v_lshl_add_u32 v6, s3, 3, v5")
        self.pi(7, 6, 8, 9)
        e("s_lshr_b32 s3, s19, 1")
        e("s_lshl_b32 s3, s3, 7")
        e("s_add_u32 s3, s3, s16")
        e("s_lshl_b32 s3, s3, 10")
        e("s_add_u32 s3, s3, s17")
        e("s_lshl_b32 s3, s3, 1")
        e("v_and_b32 v8, 7, v0")
        e("v_lshl_add_u32 v9, v8, 4, s3")
        e("v_lshl_add_u32 v16, v7, 14, v9")
        e("v_xor_b32 v8, v8, v5")
        e("v_lshlrev_b32 v8, 4, v8")
        e("v_lshl_add_u32 v8, v5, 7, v8")
        e(f"s_add_u32 s3, s50, {STG}")
        e("v_add_u32 v17, s3, v8")

    def rd_f(self, r, kk, dl, off=0):
        a = 2 + 3 * kk
        if dl == 0:
            return [f"ds_read_b128 v[{r}:{r + 3}], v{a + 2} offset:{7 * PS - 128 + off}"]
        if dl == 9:
            return [f"ds_read_b128 v[{r}:{r + 3}], v{a + 1} offset:{off}"]
        return [f"ds_read_b128 v[{r}:{r + 3}], v{a} offset:{(dl - 1) * PS + off}"]

    def rd_g(self, r, k, t, off=0):
        return [f"ds_read_b64_tr_b16 v[{r + 2 * hh}:{r + 2 * hh + 1}], v{8 + t} offset:{k * 4096 + hh * 512 + off}"
                for hh in range(2)]

    def reads(self, st, kk):
        base = SET[st]
        L = []
        for t in range(2):
            for k in range(3):
                L += self.rd_g(base + 40 + (k * 2 + t) * 4, k, t)
        X = []
        for dl in range(10):
            X += self.rd_f(base + 4 * dl, kk, dl)
        out = []
        while L or X:
            if X:
                out.append(X.pop(0))
            if L:
                out.append(L.pop(0))
        return out

    def mf(self, g, f, t, tm):
        acc = ACC + (tm * 2 + t) * 4
        return f"v_mfma_f32_16x16x32_bf16 v[{acc}:{acc + 3}], v[{g}:{g + 3}], v[{f}:{f + 3}], v[{acc}:{acc + 3}]"

    def mfmas(self, st):
        od = self.o["order"]
        if od == 0:
            seq = [(k, t, tm) for k in range(3) for t in range(2) for tm in range(8)]
        else:
            seq = [(k, t, tm) for t in range(2) for tm in range(8) for k in ((0, 1, 2) if tm % 2 == 0 else (2, 1, 0))]
        return [self.mf(SET[st] + 40 + (k * 2 + t) * 4, SET[st] + 4 * (tm + k), t, tm) for k, t, tm in seq]

    def substage(self, st, pre):
        o = self.o
        M = self.mfmas(st)
        R = self.reads(st ^ 1, st ^ 1) if not o["no_reads"] else []
        fill = {}
        sp = o["lastrd"] / 22.0
        for i, r in enumerate(R):
            fill.setdefault(int(i * sp), []).append(r)
        pos = o["lastrd"]
        for i, p in enumerate(pre):
            fill.setdefault(min(pos + i, 47), []).extend(p)
        out = []
        for i, m in enumerate(M):
            out.append((["s_waitcnt lgkmcnt(0)", "s_barrier"] if i == 0 else []) +
                       ([m] if not o["no_mfma"] else []) + fill.get(i, []))
        return out

    def epi_ops(self, un):
        tm, t = un >> 1, un & 1
        a = ACC + un * 4
        tb = TMP + 4 * t
        L = []
        if not self.o["no_epi"] and not (self.o["pk"] == 1 or (self.o["pk"] == 2 and un == 15)):
            for r in range(4):
                L.append(f"v_fma_f32 v{a + r}, v{a + r}, v{16 + 4 * t + r}, v{24 + 4 * t + r}")
            for r in range(4):
                L.append(f"v_exp_f32_e64 v{tb + r}, -v{a + r}")
            for r in range(4):
                L.append(f"v_fma_f32 v{tb + r}, v{tb + r}, s42, s42")
            for r in range(4):
                L.append(f"v_rcp_f32 v{tb + r}, v{tb + r}")
            for r in range(4):
                L.append(f"v_mul_f32 v{tb + r}, v{tb + r}, v{a + r}")
            for p in range(2):
                L.append(f"v_cvt_pk_bf16_f32 v{a + p}, v{tb + 2 * p}, v{tb + 2 * p + 1}")
        elif not self.o["no_epi"]:
            for p in range(2):
                q = 4 * t + 2 * p
                L.append(f"v_pk_fma_f32 v[{a + 2 * p}:{a + 2 * p + 1}], v[{a + 2 * p}:{a + 2 * p + 1}], v[{16 + q}:{17 + q}], v[{24 + q}:{25 + q}]")
            for r in range(4):
                L.append(f"v_exp_f32_e64 v{tb + r}, -v{a + r}")
            for p in range(2):
                L.append(f"v_pk_fma_f32 v[{tb + 2 * p}:{tb + 2 * p + 1}], v[{tb + 2 * p}:{tb + 2 * p + 1}], s[42:43], s[42:43]")
            for r in range(4):
                L.append(f"v_rcp_f32 v{tb + r}, v{tb + r}")
            for p in range(2):
                L.append(f"v_pk_mul_f32 v[{tb + 2 * p}:{tb + 2 * p + 1}], v[{tb + 2 * p}:{tb + 2 * p + 1}], v[{a + 2 * p}:{a + 2 * p + 1}]")
            for p in range(2):
                L.append(f"v_cvt_pk_bf16_f32 v{a + p}, v{tb + 2 * p}, v{tb + 2 * p + 1}")
        L.append(f"ds_write_b64 v{15 if t else 1}, v[{a}:{a + 1}] offset:{tm * 4096}")
        return L

    def tail(self):
        e = self.e
        o = self.o
        nt = o["nt"]
        seq = []
        for u in range(28, 32 - nt):
            for tm in range(8):
                ts = (0, 1) if tm % 2 == 0 else (1, 0)
                seq += [(u, k, ts[0], tm) for k in (0, 1, 2)] + [(u, k, ts[1], tm) for k in (2, 1, 0)]
        done_at = {}
        for tm in range(8):
            if o["alt"]:
                for u in range(32 - nt, 32):
                    seq += [(u, k, t, tm) for k in range(3) for t in range(2)]
                done_at[2 * tm] = len(seq) - 2
                done_at[2 * tm + 1] = len(seq) - 1
                continue
            for t in range(2):
                for u in range(32 - nt, 32):
                    seq += [(u, k, t, tm) for k in range(3)]
                done_at[2 * tm + t] = len(seq) - 1
        first, last = {}, {}
        for i, (u, k, t, tm) in enumerate(seq):
            for nm in (("G", u, k, t), ("F", u, tm + k)):
                first.setdefault(nm, i)
                last[nm] = i
        reg = {}
        for dl in range(10):
            reg[("F", 28, dl)] = SET[0] + 4 * dl
        for k in range(3):
            for t in range(2):
                reg[("G", 28, k, t)] = SET[0] + 40 + (k * 2 + t) * 4
        free = list(range(SET[1], SET[1] + 64, 4)) + list(range(TMP + 8, 64, 4))
        todo = sorted((nm for nm in first if nm not in reg), key=lambda nm: first[nm])
        par = [("P", i) for i in range(4)]
        npar = max(0, len([nm for nm in todo if first[nm] <= done_at[0] + 4]))
        todo = todo[:npar] + par + todo[npar:]
        queue = []

        def lds(op, tag=None):
            e(op)
            queue.append(tag)

        def wait_for(tags):
            idx = max((i for i, tg in enumerate(queue) if tg in tags), default=-1)
            if idx >= 0:
                n = min(len(queue) - 1 - idx, 14)
                e(f"s_waitcnt lgkmcnt({n})")
                del queue[:len(queue) - n]

        def issue_read(nm):
            if nm[0] == "P":
                i = nm[1]
                lds(f"ds_read_b128 v[{16 + 4 * i}:{19 + 4 * i}], v10 offset:{(i >> 1) * 256 + (i & 1) * 64}", nm)
                return 1
            r = free.pop(0)
            reg[nm] = r
            u = nm[1]
            if nm[0] == "F":
                ops = self.rd_f(r, u & 1, nm[2], XBUF * ((u >> 1) - 14))
            else:
                ops = self.rd_g(r, nm[2], nm[3], WBUF * (u % NWB))
            if not o["no_reads"]:
                for op in ops:
                    lds(op, nm)
            return len(ops)

        e("s_waitcnt lgkmcnt(0)")
        self.stamp(3)
        e("s_barrier")
        chk, pchk = o["tchk"], o["pchk"]
        head = {0: [f"v_subrev_u32 v8, {4 * WBUF}, v8", f"v_subrev_u32 v9, {4 * WBUF}, v9", "s_mov_b32 s43, s42"],
                chk: ["s_barrier"], pchk: ["s_barrier"]}
        bar_at = {}
        rcred = 1.0
        cost = lambda x: 8 if ("v_exp" in x or "v_rcp" in x) else 4
        cur, pend, nxt = [], [], 0
        mark = {}
        credit = 0.0
        per_gap = sum(cost(x) for x in self.epi_ops(0) + self.epi_ops(1)) / (6.0 * nt) * o['pace'] + 0.5
        stalls = []
        for i, (u, k, t, tm) in enumerate(seq):
            g, f = ("G", u, k, t), ("F", u, tm + k)
            while g in todo or f in todo:
                stalls.append(i)
                issue_read(todo.pop(0))
            wait_for({g, f})
            if not o["no_mfma"]:
                e(self.mf(reg[g], reg[f], t, tm))
            if nxt < 16 and done_at[nxt] == i:
                mark[nxt] = len(self.l)
                pend.append(nxt)
                nxt += 1
            for nm in (g, f):
                if last[nm] == i:
                    free.append(reg[nm])
            for x in head.get(i, []):
                e(x)
            if i in bar_at and not o["latebar"]:
                wait_for({bar_at.pop(i)})
                e("s_barrier")
            if i >= 1:
                rcred = min(rcred + o["rrate"], 1.99)
                while rcred >= 1.0:
                    cand = [nm for nm in todo if (i >= pchk if nm[0] == "P" else
                                                  i >= chk or (nm[1] == 29 and first[nm] <= done_at[1]))]
                    if not cand or not (cand[0][0] == "P" or free):
                        break
                    todo.remove(cand[0])
                    k_ = issue_read(cand[0])
                    rcred -= 1.0
                    if cur or pend:
                        credit -= 4 * k_
            if cur or pend:
                credit += per_gap
            while credit > 0:
                if not cur:
                    if not pend or len(self.l) - mark[pend[0]] < 8:
                        credit = 0
                        break
                    wait_for(set(par))
                    curun = pend.pop(0)
                    cur = self.epi_ops(curun)
                x = cur.pop(0)
                if x.startswith("ds_"):
                    lds(x, ("W", curun))
                    if curun & 1:
                        bar_at[i + o["blag"]] = ("W", curun)
                else:
                    e(x)
                credit -= cost(x)
        assert not todo
        if stalls:
            print("tail: late reads at", stalls, file=sys.stderr)
        rest = [(curun, cur)] if cur else []
        rest += [(un, None) for un in pend]
        for un, ops in rest:
            if ops is None:
                gap = len(self.l) - mark[un]
                if gap < 8:
                    e(f"s_nop {7 - gap}")
                ops = self.epi_ops(un)
            for x in ops:
                if x.startswith("ds_"):
                    for key in sorted(bar_at):
                        wait_for({bar_at.pop(key)})
                        e("s_barrier")
                    lds(x, ("W", un))
                    if un & 1:
                        bar_at[un] = ("W", un)
                else:
                    e(x)
        for key in sorted(bar_at):
            wait_for({bar_at.pop(key)})
            e("s_barrier")

    def compute(self):
        e = self.e
        o = self.o
        self.lab("L_compute")
        e("s_and_b32 s38, s18, 1")
        e("s_bfe_u32 s39, s18, 0x10001")
        e("v_and_b32 v10, 15, v0")
        e("v_lshrrev_b32 v16, 4, v0")
        if o["cpf"]:
            e("s_getpc_b64 s[20:21]")
            e("v_lshlrev_b32 v12, 7, v0")
            e("v_mov_b32 v13, s21")
            e("v_add_co_u32 v12, vcc, s20, v12")
            e("s_cmp_lt_u32 s36, %d" % o["cpf"])
            e("s_cselect_b32 s3, s18, 1")
            e("v_addc_co_u32 v13, vcc, 0, v13, vcc")
            e("s_and_b32 s3, s3, 3")
            e("s_cbranch_scc1 L_nocpf")
            e("s_mov_b32 exec_hi, (1 << (((L_end - L_compute) >> 7) - 32)) - 1")
            e("global_load_dword v14, v[12:13], off")
            e("s_mov_b32 exec_hi, -1")
            self.lab("L_nocpf")
        self.pi(17, 10, 18, 19)
        e("v_lshrrev_b32 v18, 2, v10")
        e("v_lshl_add_u32 v19, v16, 3, v18")
        e("v_lshlrev_b32 v19, 7, v19")
        e("v_and_b32 v20, 3, v10")
        e("v_lshl_add_u32 v19, v20, 3, v19")
        e("v_lshrrev_b32 v18, 1, v18")
        e("v_and_b32 v20, 1, v16")
        e("v_lshl_or_b32 v18, v20, 1, v18")
        e("s_lshl_b32 s45, s39, 1")
        e("v_xor_b32 v18, s45, v18")
        e("v_lshl_add_u32 v19, v18, 5, v19")
        e(f"v_add_u32 v8, {WBASE}, v19")
        e("v_xor_b32 v9, 32, v8")
        e("s_lshl_b32 s3, s38, 11")
        e(f"s_add_u32 s46, s3, {XBUF}")
        if o["rotk"]:
            e("s_bfe_u32 s47, s16, 0x10008")
            e("v_lshl_or_b32 v21, s47, 2, v16")
        for idx, sh in ((0, 0), (1, 1), (2, -1)):
            e(f"v_add_u32 v18, {sh}, v17")
            e("v_bfe_u32 v19, v18, 1, 3")
            e(f"v_xor_b32 v19, v19, v{21 if o['rotk'] else 16}")
            e("v_lshlrev_b32 v19, 4, v19")
            e(f"v_lshl_add_u32 v19, v{17 if sh == -1 else 18}, 7, v19")
            e(f"v_add_u32 v{2 + idx}, s46, v19")
            e(f"v_xor_b32 v{5 + idx}, 64, v{2 + idx}")
        e("v_lshrrev_b32 v18, 1, v16")
        e("v_lshl_add_u32 v18, s39, 2, v18")
        e("v_and_b32 v19, 7, v10")
        e("v_xor_b32 v18, v18, v19")
        e("v_lshlrev_b32 v18, 4, v18")
        e("v_lshl_add_u32 v18, v20, 3, v18")
        e("v_lshl_add_u32 v18, v10, 7, v18")
        e(f"s_add_u32 s3, s3, {STG}")
        e("v_add_u32 v1, s3, v18")
        e("v_xor_b32 v15, 32, v1")
        e("s_lshl_b32 s3, s39, 7")
        e(f"s_add_u32 s3, s3, {PB}")
        e("v_lshl_add_u32 v10, v16, 4, s3")
        for r in range(ACC, ACC + 64, 2):
            e(f"v_mov_b64 v[{r}:{r + 1}], 0")
        e("s_mov_b32 s40, 1")
        e("s_mov_b32 s41, 1")
        e("s_mov_b32 s42, 0x3fb8aa3b")
        e(f"s_movk_i32 s53, {WBUF}")
        e(f"s_mov_b32 s54, {XBUF}")
        e(f"s_mov_b32 s46, {-(NWB - 1) * WBUF & 0xffffffff:#x}")
        e(f"s_mov_b32 s47, {-(NXB - 1) * XBUF & 0xffffffff:#x}")
        e("s_mov_b32 s52, 13")
        if o["prio_c"]:
            e(f"s_setprio {o['prio_c']}")
        self.stamp(1)
        e("s_barrier")
        self.stamp(2)
        if o["no_reads"] != 1:
            for r in self.reads(0, 0):
                e(r)
        e("v_add_u32 v8, s53, v8")
        e("v_add_u32 v9, s53, v9")

        def wadv():
            return [["s_add_u32 s41, s41, 1", f"s_cmp_eq_u32 s41, {NWB}"],
                    ["s_cselect_b32 s43, s46, s53", "s_cselect_b32 s41, 0, s41"],
                    ["v_add_u32 v8, s43, v8"], ["v_add_u32 v9, s43, v9"]]

        pre0 = wadv() + [["s_add_u32 s40, s40, 1", f"s_cmp_eq_u32 s40, {NXB}"],
                         ["s_cselect_b32 s55, s47, s54", "s_cselect_b32 s40, 0, s40"]] + \
            [[f"v_add_u32 v{2 + i}, s55, v{2 + i}"] for i in range(3)]
        pre1 = wadv() + [[f"v_add_u32 v{5 + i}, s55, v{5 + i}"] for i in range(3)] + [["s_sub_u32 s52, s52, 1"]]
        body = self.substage(0, pre0) + self.substage(1, pre1)
        cut = 48 + o["brpos"]
        if cut < 96 or o["pages"]:
            e("s_branch L_centry")
        if o["pages"]:
            e(".p2align 12")
            self.lab("L_touch0")
            e("s_branch L_touched" if o["pages"] >= 2 else "s_endpgm")
        e(".p2align 6")
        for _ in range(o["lpad"]):
            e("s_nop 0")
        self.lab("L_cloop")
        for gap in body[cut:]:
            for x in gap:
                e(x)
        self.lab("L_centry")
        for gap in body[:cut]:
            for x in gap:
                e(x)
        e("s_cbranch_scc0 L_cloop")
        for gap in body[cut:]:
            for x in gap:
                e(x)
        self.lab("L_tail")
        self.tail()
        self.lab("L_tail_end")
        self.stamp(4)
        self.dump_stamps(5, "c")
        e("s_endpgm")

    def gen(self):
        e = self.e
        o = self.o
        self.l.append(HEADER.rstrip())
        self.l.append(f"; @launch grid=(256,1,1) block=(512,1,1) lds={LDS}")
        self.l.append('.amdgcn_target "amdgcn-amd-amdhsa--gfx950"')
        self.l.append(".text")
        self.l.append(f".globl {KN}")
        if o["pages"]:
            self.l.append(".p2align 12")
        self.l.append(".p2align 8")
        self.l.append(f".type {KN},@function")
        self.lab(KN)
        e("s_cmp_ge_u32 s2, 256")
        e("s_cbranch_scc1 L_end")
        if o["stamps"]:
            e("s_memtime s[60:61]")
            e("s_memrealtime s[62:63]")
        e("s_load_dwordx2 s[4:5], s[0:1], 0")
        e("s_load_dwordx2 s[8:9], s[0:1], 8")
        e("v_readfirstlane_b32 s18, v0")
        e("v_and_b32 v0, 63, v0")
        e("s_lshr_b32 s36, s2, 3")
        e("s_mov_b32 s6, 0x800000")
        e("s_mov_b32 s7, 0x20000")
        e("s_mov_b32 s10, 0x600000")
        e("s_mov_b32 s11, s7")
        e("s_lshr_b32 s18, s18, 6")
        a, b = ("s16", "s17") if o["xmap"] == 0 else ("s17", "s16")
        e("s_and_b32 s3, s2, 6")
        e("s_lshl_b32 s3, s3, 1")
        e(f"s_and_b32 {a}, s36, 3")
        e(f"s_add_u32 {a}, {a}, s3")
        e("s_and_b32 s3, s2, 1")
        e("s_lshl_b32 s3, s3, 3")
        e(f"s_lshr_b32 {b}, s36, 2")
        e(f"s_add_u32 {b}, {b}, s3")
        e("s_lshl_b32 s16, s16, 8")
        e("s_lshl_b32 s17, s17, 6")
        e("s_cmp_ge_u32 s18, 4")
        if o["pages"] >= 2:
            e(("s_cbranch_scc0" if o["lfirst"] else "s_cbranch_scc1") + " L_loader")
            e("s_or_b32 s21, s18, -4")
            self.lab("L_touched")
            e("s_add_u32 s21, s21, 4")
            self.l.append("@DISPATCH")
            e("s_branch L_compute")
        else:
            e(("s_cbranch_scc1" if o["lfirst"] else "s_cbranch_scc0") + " L_compute")
        self.loader()
        self.compute()
        for f in self.late:
            f()
        self.lab("L_end")
        e("s_endpgm")
        self.l.append(f""".section .rodata,"a"
.p2align 6
.amdhsa_kernel {KN}
  .amdhsa_next_free_vgpr 256
  .amdhsa_next_free_sgpr 96
  .amdhsa_accum_offset 256
  .amdhsa_group_segment_fixed_size 0
  .amdhsa_kernarg_size 72
  .amdhsa_user_sgpr_count 2
  .amdhsa_user_sgpr_kernarg_segment_ptr 1
  .amdhsa_system_sgpr_workgroup_id_x 1
.end_amdhsa_kernel""")
        return self.finish()

    def finish(self):
        L = "\n".join(self.l).split("\n")
        if self.o["pages"] < 2:
            return "\n".join(L) + "\n"
        import re
        import subprocess
        i0 = L.index("L_touch0:")
        it, ie = L.index("L_tail:"), L.index("L_tail_end:")
        probe = []
        for i, x in enumerate(L):
            if it < i <= ie:
                probe.append(f"L_pos{i}:")
            if x != "@DISPATCH":
                probe.append(x)
        open("probe.s", "w").write("\n".join(probe) + "\n")
        subprocess.run(["clang", "-x", "assembler", "-target", "amdgcn-amd-amdhsa", "-mcpu=gfx950",
                        "-c", "probe.s", "-o", "probe.o"], check=True)
        sym = subprocess.run(["llvm-readelf", "-s", "probe.o"], capture_output=True, text=True).stdout
        addr = {m.group(2): int(m.group(1), 16) for m in re.finditer(r"^\s*\d+: ([0-9a-f]+)\s.*\s(\S+)$", sym, re.M)}
        base = addr["L_touch0"]
        win = self.o["win"]
        out, n, covered = [], 1, win
        for i, x in enumerate(L):
            if it < i < ie:
                pos = addr[f"L_pos{i}"] - base + 4 * (n - 1)
                if pos >= covered:
                    out += [f"L_touch{n}:", "    s_cbranch_scc0 L_touched"]
                    n += 1
                    covered = min(pos // 64 * 64 + win, (pos // 4096 + 1) * 4096)
            out.append(x)
        disp = []
        for k in range(n):
            disp += [f"    s_cmp_lg_u32 s21, {k}", f"    s_cbranch_scc0 L_touch{k}"]
        j = out.index("@DISPATCH")
        out[j:j + 1] = disp
        return "\n".join(out) + "\n"


if __name__ == "__main__":
    out = sys.argv[1]
    opts = {}
    for a in sys.argv[2:]:
        k, v = a.split("=")
        try:
            v = int(v)
        except ValueError:
            try:
                v = float(v)
            except ValueError:
                v = v.replace("+", " ")
        opts[k] = v
    open(out, "w").write(G(**opts).gen())
```

```python
import sys

HEADER = open("standalone__batchnorm__prompt.s.ref").read().split("; Override launch")[0]
KN = "standalone__batchnorm__prompt_kernel"

PS = 33 * 128
XBUF = 263 * 128
NXB = 3
WBUF = 3 * 32 * 128
NWB = 5
WBASE = NXB * XBUF
PB = WBASE + NWB * WBUF
LDS = PB + 512

ACC = 64
SET = (128, 192)


def cnt(i):
    return (3, 5, 4, 3)[i % 4]


class G:
    def __init__(self, **o):
        self.o = dict(stamps=0, trace=0, no_dma=0, no_reads=0, no_bar=0, no_mfma=0, no_epi=0, no_store=0,
                      spacing=1.5, first=0, stagger=1, prio_c=0, prio_l=0, lfirst=1, order=6,
                      xaux="", waux="", saux="", xmap=0, probe="", cum="6,8,12", pf=0, pfwhen=0, pfw=1, pfaux="",
                      tail=0, wfirst=1)
        self.o.update(o)
        self.l = []

    def e(self, s):
        self.l.append("    " + s)

    def lab(self, s):
        self.l.append(s + ":")

    def stamp(self, i):
        if self.o["stamps"]:
            self.e(f"s_memtime s[{60 + 4 * i}:{61 + 4 * i}]")
            self.e(f"s_memrealtime s[{62 + 4 * i}:{63 + 4 * i}]")

    def dump_stamps(self, n, role):
        if not self.o["stamps"]:
            return
        e = self.e
        if self.o["probe"]:
            prole, a, z, kind, mult = self.o["probe"].split(",")
            if prole == role:
                off = 62 if kind == "t" else 60
                e("s_waitcnt lgkmcnt(0)")
                e(f"s_sub_u32 s3, s{off + 4 * int(z)}, s{off + 4 * int(a)}")
                if kind == "t":
                    e(f"s_mul_i32 s3, s3, {mult}")
                else:
                    e(f"s_lshr_b32 s3, s3, {mult}")
                e("s_min_u32 s3, s3, 50000")
                self.lab(f"L_spin_{role}")
                e("s_memrealtime s[56:57]")
                e("s_waitcnt lgkmcnt(0)")
                e(f"s_sub_u32 s56, s56, s{62 + 4 * (n - 1)}")
                e("s_cmp_lt_u32 s56, s3")
                e(f"s_cbranch_scc1 L_spin_{role}")
            return
        e("s_load_dwordx2 s[34:35], s[0:1], 64")
        e("s_waitcnt lgkmcnt(0)")
        e("v_mov_b32 v40, 0")
        for i in range(n):
            e(f"v_writelane_b32 v40, s{60 + 4 * i}, {2 * i}")
            e(f"v_writelane_b32 v40, s{62 + 4 * i}, {2 * i + 1}")
        e("s_lshl_b32 s3, s2, 3")
        e("s_and_b32 s18, s18, 3")
        if role == "l":
            e("s_add_u32 s18, s18, 4")
        e("s_add_u32 s3, s3, s18")
        e("s_lshl_b32 s3, s3, 6")
        e("v_lshl_add_u32 v41, v0, 2, s3")
        if self.o["trace"] and role == "l":
            e("s_lshl_b32 s3, s3, 2")
            e("s_add_u32 s3, s3, 0x100000")
            e("v_lshl_add_u32 v42, v0, 2, s3")
            e("global_store_dword v42, v20, s[34:35]")
        e("s_mov_b64 exec, 0xffff")
        e("global_store_dword v41, v40, s[34:35]")

    def barrier(self):
        if not self.o["no_bar"]:
            self.e("s_barrier")

    def lbarrier(self, force=0):
        if force or not self.o["no_bar"]:
            self.e("s_barrier")
        if self.o["trace"]:
            self.e("s_memtime s[56:57]")
            self.e("s_waitcnt lgkmcnt(0)")
            self.e("s_sub_u32 s56, s56, s60")
            self.e("s_mov_b32 m0, s55")
            self.e("v_writelane_b32 v20, s56, m0")
            self.e("s_add_u32 s55, s55, 1")

    def issue_x(self, half, pro=0):
        e = self.e
        on = not self.o["no_dma"] or (pro and self.o["no_dma"] == 2)
        aux = self.o["xaux"]
        if half == 0:
            if on:
                e("s_add_u32 m0, s41, s44")
                e("s_mov_b64 exec, 15")
                e(f"buffer_load_dwordx4 v3, s[4:7], s40 offen {aux} lds")
                e("s_mov_b64 exec, -1")
                e("s_mov_b32 m0, s41")
                e("s_add_u32 s45, s40, s53")
                e(f"buffer_load_dwordx4 v2, s[4:7], s40 offen {aux} lds")
                for p in range(1, 4):
                    e("s_add_u32 m0, m0, s54")
                    a, b = ((45, 46), (46, 45), (45, 47))[p - 1]
                    e(f"s_add_u32 s{b}, s{a}, s53")
                    e(f"buffer_load_dwordx4 v2, s[4:7], s{a} offen {aux} lds")
            return
        if on:
            e(f"s_add_u32 m0, s41, {4 * PS}")
            e("s_add_u32 s45, s47, s53")
            e(f"buffer_load_dwordx4 v2, s[4:7], s47 offen {aux} lds")
            for p in range(1, 4):
                e("s_add_u32 m0, m0, s54")
                a, b = (45, 46) if p & 1 else (46, 45)
                e(f"s_add_u32 s{b}, s{a}, s53")
                e(f"buffer_load_dwordx4 v2, s[4:7], s{a} offen {aux} lds")
        e("s_add_u32 s40, s40, 128")
        e("s_and_b32 s40, s40, 2047")
        e(f"s_add_u32 s41, s41, {XBUF}")
        e("s_cmp_ge_u32 s41, s48")
        e("s_cselect_b32 s41, s50, s41")

    def issue_w(self, pro=0):
        e = self.e
        if not self.o["no_dma"] or (pro and self.o["no_dma"] == 2):
            aux = self.o["waux"]
            e("s_mov_b32 m0, s43")
            e("s_add_u32 s45, s42, s38")
            e(f"buffer_load_dwordx4 v4, s[8:11], s42 offen {aux} lds")
            e("s_add_u32 m0, m0, s39")
            e("s_add_u32 s46, s45, s38")
            e(f"buffer_load_dwordx4 v4, s[8:11], s45 offen {aux} lds")
            e("s_add_u32 m0, m0, s39")
            e("s_add_u32 s42, s42, 65536")
            e(f"buffer_load_dwordx4 v4, s[8:11], s46 offen {aux} lds")
        else:
            e("s_add_u32 s42, s42, 65536")
        e("s_and_b32 s42, s42, 0x1fffff")
        e(f"s_add_u32 s43, s43, {WBUF}")
        e("s_cmp_ge_u32 s43, s49")
        e("s_cselect_b32 s43, s51, s43")

    def issue(self, i, pro=0):
        if i % 4 in (0, 3):
            self.issue_w(pro)
        else:
            self.issue_x(i % 4 - 1, pro)

    def param_load(self):
        e = self.e
        e("s_cmp_lg_u32 s19, 0")
        e("s_cbranch_scc1 L_pl_done")
        e("s_load_dwordx8 s[24:31], s[0:1], 16")
        e("v_add_lshl_u32 v8, s17, v0, 1")
        e("s_waitcnt lgkmcnt(0)")
        for i in range(4):
            e(f"global_load_ushort v{10 + i}, v8, s[{24 + 2 * i}:{25 + 2 * i}]")
        self.lab("L_pl_done")

    def param_calc(self):
        e = self.e
        e("s_cmp_lg_u32 s19, 0")
        e("s_cbranch_scc1 L_pc_done")
        for i in range(4):
            e(f"v_lshlrev_b32 v{10 + i}, 16, v{10 + i}")

        def rnd():
            e("v_cvt_pk_bf16_f32 v11, v11, v11")
            e("v_lshlrev_b32 v11, 16, v11")
        e("v_add_f32 v11, 0x3727c5ac, v11")
        rnd()
        e("v_sqrt_f32 v11, v11")
        e("s_nop 0")
        rnd()
        e("v_rcp_f32 v11, v11")
        e("s_nop 0")
        rnd()
        e("v_mul_f32 v11, v12, v11")
        rnd()
        e("v_fma_f32 v13, -v10, v11, v13")
        e("v_mul_f32 v11, 0x3fb8aa3b, v11")
        e("v_mul_f32 v13, 0x3fb8aa3b, v13")
        e("v_lshlrev_b32 v8, 2, v0")
        e(f"v_add_u32 v8, {PB}, v8")
        e("ds_write_b32 v8, v11")
        e("ds_write_b32 v8, v13 offset:256")
        e("s_waitcnt lgkmcnt(0)")
        self.lab("L_pc_done")

    def loader(self):
        e = self.e
        o = self.o
        self.lab("L_loader")
        if o["prio_l"]:
            e(f"s_setprio {o['prio_l']}")
        e("s_and_b32 s19, s18, 3")
        e("v_lshrrev_b32 v5, 3, v0")
        e("v_and_b32 v6, 7, v0")
        e("s_lshl_b32 s45, s19, 2")
        e("s_and_b32 s45, s45, 4")
        e("v_xor_b32 v6, s45, v6")
        e("v_and_b32 v7, 2, v5")
        e("v_xor_b32 v7, v7, v6")
        e("v_lshlrev_b32 v7, 4, v7")
        e("v_lshl_add_u32 v4, v5, 11, v7")
        e("s_lshl_b32 s3, s19, 13")
        e("s_add_u32 s3, s3, s17")
        e("v_lshl_add_u32 v4, s3, 1, v4")
        e("v_lshrrev_b32 v7, 1, v5")
        e("v_xor_b32 v7, v7, v6")
        e("v_lshlrev_b32 v7, 4, v7")
        e("v_lshl_add_u32 v2, v5, 14, v7")
        e("s_lshl_b32 s3, s19, 6")
        e("s_add_u32 s3, s3, s16")
        e("v_lshl_add_u32 v2, s3, 11, v2")
        e("s_lshl_b32 s41, s19, 10")
        e("s_cmp_lt_u32 s19, 2")
        e("s_cselect_b32 s3, 256, 0")
        e("s_cselect_b32 s46, 256, -1")
        e("s_cselect_b32 s47, 0, 7")
        e(f"s_cselect_b32 s44, {32 * 128}, s59")
        e("s_add_u32 s3, s3, s16")
        e("s_add_u32 s46, s46, s16")
        e("s_lshl_b32 s46, s46, 11")
        e("s_and_b32 s3, s3, 2047")
        e("s_cselect_b32 s46, s46, 0x80000000")
        e("v_xor_b32 v7, s47, v6")
        e("v_lshl_add_u32 v3, v7, 4, s46")
        e("s_lshl_b32 s45, s45, 4")
        e("s_add_u32 s44, s44, s45")
        e("s_sub_u32 s44, s44, s41")
        e("s_lshl_b32 s40, s37, 7")
        e("s_lshl_b32 s42, s37, 17")
        e(f"s_add_u32 s43, s41, {WBASE}")
        e("s_mov_b32 s48, s43")
        e(f"s_add_u32 s49, s43, {NWB * WBUF}")
        e("s_mov_b32 s50, s41")
        e("s_mov_b32 s51, s43")
        e("s_movk_i32 s53, 2048")
        e(f"s_movk_i32 s54, {PS}")
        e("s_mov_b32 s38, 0x200000")
        e("s_movk_i32 s39, 4096")
        if o["trace"]:
            e("s_mov_b32 s55, 0")
            e("v_mov_b32 v20, 0")
        e("s_waitcnt lgkmcnt(0)")
        self.stamp(1)
        cum = [int(v) for v in str(o["cum"]).split(",")]
        assert len(cum) % 2 == 1
        issued = 0
        for u, c in enumerate(cum):
            need = 2 * u + 3 if u % 2 == 0 else 2 * u + 2
            assert need <= c <= max(2 * u + 8 + (u & 1), 11)
            while issued < c:
                self.issue(issued, 1)
                issued += 1
            if u == 0:
                self.stamp(2)
            n = sum(cnt(v) for v in range(need, issued))
            if o["no_dma"] == 2:
                n = 0
            e(f"s_waitcnt vmcnt({n})")
            self.lbarrier(u == 0)
            if u == 0:
                self.stamp(3)
        u0 = len(cum)
        assert issued <= 2 * u0 + 8
        while issued < 2 * u0 + 8:
            self.issue(issued, 1)
            issued += 1
        self.param_load()
        e(f"s_mov_b32 s52, {(27 - u0) // 2}")
        self.lab("L_lloop")
        e("s_waitcnt vmcnt(23)")
        self.lbarrier()
        self.issue(2)
        self.issue(3)
        e("s_waitcnt vmcnt(18)")
        self.lbarrier()
        e("s_sub_u32 s52, s52, 1")
        e("s_cbranch_scc1 L_ltail")
        self.issue(0)
        self.issue(1)
        e("s_branch L_lloop")
        self.lab("L_ltail")
        self.param_calc()
        for n in (15, 3, 0):
            e(f"s_waitcnt vmcnt({n})")
            self.lbarrier()
        if not o["tail"]:
            self.lbarrier()
        self.stamp(4)
        self.dump_stamps(5, "l")
        e("s_endpgm")

    def reads(self, st, kk):
        base = SET[st]
        L = []
        a = 2 + 3 * kk
        for t in range(2):
            for k in range(3):
                r = base + 40 + (k * 2 + t) * 4
                for hh in range(2):
                    L.append(f"ds_read_b64_tr_b16 v[{r + 2 * hh}:{r + 2 * hh + 1}], v{8 + t} offset:{k * 4096 + hh * 512}")
        X = []
        for dl in range(10):
            r = base + 4 * dl
            if dl == 0:
                X.append(f"ds_read_b128 v[{r}:{r + 3}], v{a + 2} offset:{7 * PS - 128}")
            elif dl == 9:
                X.append(f"ds_read_b128 v[{r}:{r + 3}], v{a + 1}")
            else:
                X.append(f"ds_read_b128 v[{r}:{r + 3}], v{a} offset:{(dl - 1) * PS}")
        out = []
        while L or X:
            if X:
                out.append(X.pop(0))
            if L:
                out.append(L.pop(0))
        return out

    def mf(self, st, k, t, tm):
        acc = ACC + (tm * 2 + t) * 4
        g = SET[st] + 40 + (k * 2 + t) * 4
        f = SET[st] + 4 * (tm + k)
        return f"v_mfma_f32_16x16x32_bf16 v[{acc}:{acc + 3}], v[{g}:{g + 3}], v[{f}:{f + 3}], v[{acc}:{acc + 3}]"

    def mfmas(self, st, tms=range(8)):
        od = self.o["order"]
        if od == 0:
            seq = [(k, t, tm) for k in range(3) for t in range(2) for tm in tms]
        elif od == 4:
            seq = [(k, t, tm) for t in range(2) for tm in tms for k in range(3)]
        else:
            seq = [(k, t, tm) for t in range(2) for tm in tms for k in ((0, 1, 2) if tm % 2 == 0 else (2, 1, 0))]
        return [self.mf(st, *s) for s in seq]

    def interleave(self, M, fill):
        for i, m in enumerate(M):
            if not self.o["no_mfma"]:
                self.e(m)
            for r in fill.get(i, []):
                self.e(r)

    def substage(self, st, pre):
        o = self.o
        M = self.mfmas(st)
        R = self.reads(st ^ 1, st ^ 1) if not o["no_reads"] else []
        self.e("s_waitcnt lgkmcnt(0)")
        self.barrier()
        fill = {}
        for i, r in enumerate(R):
            fill.setdefault(o["first"] + int(i * o["spacing"]), []).append(r)
        tail_pos = o["first"] + int(22 * o["spacing"]) + 1
        for i, p in enumerate(pre):
            fill.setdefault(min(tail_pos + i, 47), []).append(p)
        self.interleave(M, fill)

    def epi_ops(self, tm, tb):
        a = ACC + tm * 8
        ob = tb + 8
        L = []
        if not self.o["no_epi"]:
            for p in range(4):
                L.append(f"v_pk_fma_f32 v[{a + 2 * p}:{a + 2 * p + 1}], v[{a + 2 * p}:{a + 2 * p + 1}], v[{16 + 2 * p}:{17 + 2 * p}], v[{24 + 2 * p}:{25 + 2 * p}]")
            for r in range(8):
                L.append(f"v_exp_f32_e64 v{tb + r}, -v{a + r}")
            for p in range(4):
                L.append(f"v_pk_fma_f32 v[{tb + 2 * p}:{tb + 2 * p + 1}], v[{tb + 2 * p}:{tb + 2 * p + 1}], s[42:43], s[42:43]")
            for r in range(8):
                L.append(f"v_rcp_f32 v{tb + r}, v{tb + r}")
            for p in range(4):
                L.append(f"v_pk_mul_f32 v[{tb + 2 * p}:{tb + 2 * p + 1}], v[{tb + 2 * p}:{tb + 2 * p + 1}], v[{a + 2 * p}:{a + 2 * p + 1}]")
            for p in (0, 2, 1, 3):
                L.append(f"v_cvt_pk_bf16_f32 v{ob + p}, v{tb + 2 * p}, v{tb + 2 * p + 1}")
            L.append(f"v_permlane16_swap_b32 v{ob}, v{ob + 2}")
            L.append("s_nop 0")
            L.append(f"v_permlane16_swap_b32 v{ob + 1}, v{ob + 3}")
        if not self.o["no_store"]:
            L.append(f"buffer_store_dwordx4 v[{ob}:{ob + 3}], v1, s[12:15], s{44 + tm} offen {self.o['saux']}")
        return L

    def prefetch(self):
        e = self.e
        o = self.o
        if not o["pf"]:
            return
        aux = o["pfaux"]
        e("s_lshl_b32 s3, s36, 2")
        e("s_and_b32 s45, s18, 3")
        e("s_add_u32 s3, s3, s45")
        e("s_and_b32 s46, s16, 0xc00")
        e("s_and_b32 s47, s17, 0x200")
        offs = (0,) if o["pfw"] == 1 else (0, 64)
        if o["pf"] == 1:
            e("s_lshl_b32 s45, s3, 2")
            e("s_add_u32 s45, s45, s46")
            e("s_add_u32 s45, s45, s47")
            e("s_lshl_b32 s45, s45, 11")
            e("v_lshl_add_u32 v52, v0, 7, s45")
            e("s_lshr_b32 s45, s46, 2")
            e("s_mul_i32 s45, s45, 3")
            e("s_mul_i32 s3, s3, 6")
            e("s_add_u32 s45, s45, s3")
            e("s_lshl_b32 s45, s45, 10")
            e("s_add_u32 s45, s45, s47")
            e("s_lshl_b32 s45, s45, 1")
            e("v_lshrrev_b32 v53, 3, v0")
            e("v_and_b32 v54, 7, v0")
            e("v_lshlrev_b32 v54, 7, v54")
            e("v_lshl_add_u32 v53, v53, 11, v54")
            e("v_add_u32 v53, s45, v53")
            for of in offs:
                e(f"buffer_load_dword v12, v52, s[4:7], 0 offen offset:{of} {aux}")
            e("s_mov_b32 exec_hi, 0xffff")
            for of in offs:
                e(f"buffer_load_dword v12, v53, s[8:11], 0 offen offset:{of} {aux}")
            e("s_mov_b32 exec_hi, -1")
        else:
            e("s_lshl_b32 s45, s3, 3")
            e("s_add_u32 s45, s45, s46")
            e("s_lshl_b32 s45, s45, 11")
            e("v_lshl_add_u32 v52, v0, 7, s45")
            e("s_mul_i32 s45, s3, 24")
            e("s_lshl_b32 s45, s45, 10")
            e("s_add_u32 s45, s45, s47")
            e("s_lshl_b32 s45, s45, 1")
            e("v_lshrrev_b32 v53, 3, v0")
            e("v_and_b32 v54, 7, v0")
            e("v_lshlrev_b32 v54, 7, v54")
            e("v_lshl_add_u32 v53, v53, 11, v54")
            e("v_add_u32 v53, s45, v53")
            e("s_movk_i32 s45, 0x2000")
            e("s_movk_i32 s46, 0x4000")
            e("s_mov_b32 s47, 0x8000")
            for so in ("0", "s45"):
                for of in offs:
                    e(f"buffer_load_dword v12, v52, s[4:7], {so} offen offset:{of} {aux}")
            for so in ("0", "s46", "s47"):
                for of in offs:
                    e(f"buffer_load_dword v12, v53, s[8:11], {so} offen offset:{of} {aux}")

    def compute(self):
        e = self.e
        o = self.o
        self.lab("L_compute")
        if o["prio_c"]:
            e(f"s_setprio {o['prio_c']}")
        e("s_load_dwordx2 s[12:13], s[0:1], 48")
        e("s_and_b32 s38, s18, 1")
        e("s_bfe_u32 s39, s18, 0x10001")
        e("v_and_b32 v10, 15, v0")
        e("v_lshrrev_b32 v11, 4, v0")
        e("s_mov_b32 s14, 0x800000")
        e("s_mov_b32 s15, 0x20000")
        e("v_lshlrev_b32 v13, 1, v10")
        e("v_cmp_lt_u32 vcc, 3, v10")
        e("v_subrev_u32 v14, 7, v13")
        e("v_subrev_u32 v15, 16, v13")
        e("v_cndmask_b32 v13, v13, v14, vcc")
        e("v_cmp_lt_u32 vcc, 11, v10")
        e("s_lshl_b32 s3, s38, 11")
        e("v_lshrrev_b32 v14, 2, v10")
        e("v_cndmask_b32 v13, v13, v15, vcc")
        e("v_lshl_add_u32 v15, v11, 3, v14")
        e("v_lshlrev_b32 v15, 7, v15")
        e("v_and_b32 v48, 3, v10")
        e("v_lshl_add_u32 v15, v48, 3, v15")
        e("v_lshrrev_b32 v14, 1, v14")
        e("v_and_b32 v48, 1, v11")
        e("v_lshl_or_b32 v14, v48, 1, v14")
        e("s_lshl_b32 s45, s39, 1")
        e("v_xor_b32 v14, s45, v14")
        e("v_lshl_add_u32 v15, v14, 5, v15")
        e(f"v_add_u32 v8, {WBASE}, v15")
        e("v_xor_b32 v9, 32, v8")
        for idx, sh in ((0, 0), (1, 1), (2, -1)):
            e(f"v_add_u32 v14, {sh}, v13")
            e("v_bfe_u32 v15, v14, 1, 3")
            e("v_xor_b32 v15, v15, v11")
            e("v_lshlrev_b32 v15, 4, v15")
            e(f"v_lshl_add_u32 v15, v{13 if sh == -1 else 14}, 7, v15")
            e(f"v_add_u32 v{2 + idx}, s3, v15")
            e(f"v_xor_b32 v{5 + idx}, 64, v{2 + idx}")
        if o["pf"] and o["pfwhen"] == 0:
            e("s_waitcnt lgkmcnt(0)")
            self.prefetch()
        e("s_lshl_b32 s3, s38, 7")
        e("s_add_u32 s3, s3, s16")
        e("s_lshl_b32 s3, s3, 10")
        e("s_lshl_b32 s45, s39, 5")
        e("s_add_u32 s3, s3, s45")
        e("s_add_u32 s3, s3, s17")
        e("s_lshl_b32 s3, s3, 1")
        e("v_lshlrev_b32 v14, 5, v48")
        e("v_lshrrev_b32 v15, 1, v11")
        e("v_lshl_add_u32 v14, v15, 4, v14")
        e("v_lshl_add_u32 v14, v13, 14, v14")
        e("v_add_u32 v1, s3, v14")
        for r in range(ACC, ACC + 64, 2):
            e(f"v_mov_b64 v[{r}:{r + 1}], 0")
        e("s_mov_b32 s40, 0")
        e("s_mov_b32 s41, 1")
        e(f"s_movk_i32 s53, {WBUF}")
        e(f"s_mov_b32 s54, {XBUF}")
        e(f"s_mov_b32 s52, {14 if o['tail'] else 15}")

        e("s_mov_b32 s42, 0x3fb8aa3b")
        e("s_lshl_b32 s3, s39, 7")
        e(f"s_add_u32 s3, s3, {PB}")
        e("v_lshl_add_u32 v10, v11, 4, s3")
        e("s_waitcnt lgkmcnt(0)")
        self.stamp(1)
        e("s_barrier")
        self.stamp(2)
        if o["no_reads"] != 1:
            for r in self.reads(0, 0):
                e(r)
        if o["no_reads"] == 2:
            for r in self.reads(1, 1):
                e(r)
        e("v_add_u32 v8, s53, v8")
        e("v_add_u32 v9, s53, v9")
        if o["pf"] and o["pfwhen"] == 1:
            self.prefetch()

        def wadv():
            return ["s_add_u32 s41, s41, 1",
                    f"s_cmp_eq_u32 s41, {NWB}",
                    f"s_cselect_b32 s43, {-(NWB - 1) * WBUF & 0xffffffff:#x}, s53",
                    "s_cselect_b32 s41, 0, s41",
                    "v_add_u32 v8, s43, v8",
                    "v_add_u32 v9, s43, v9"]

        e(".p2align 6")
        self.lab("L_cloop")
        pre0 = wadv() + ["s_add_u32 s40, s40, 1",
                         f"s_cmp_eq_u32 s40, {NXB}",
                         f"s_cselect_b32 s55, {-(NXB - 1) * XBUF & 0xffffffff:#x}, s54",
                         "s_cselect_b32 s40, 0, s40"] + [f"v_add_u32 v{2 + i}, s55, v{2 + i}" for i in range(3)]
        self.substage(0, pre0)
        pre1 = wadv() + [f"v_add_u32 v{5 + i}, s55, v{5 + i}" for i in range(3)] + ["s_sub_u32 s52, s52, 1"]
        self.substage(1, pre1)
        e("s_cbranch_scc0 L_cloop")
        consts = ["s_mov_b32 s43, s42"] + [f"s_movk_i32 s{44 + tm}, {tm * 2048}" for tm in range(8)]
        self.preads = [f"ds_read_b128 v[{16 + 4 * i}:{19 + 4 * i}], v10 offset:{(i >> 1) * 256 + (i & 1) * 64}" for i in range(4)]
        if not o["tail"]:
            self.stamp(3)
            for c in self.preads + consts:
                e(c)
            e("s_waitcnt lgkmcnt(0)")
            for tm in range(8):
                for x in self.epi_ops(tm, 32 + (tm & 1) * 12):
                    e(x)
        else:
            self.tail(consts)
        if o["stamps"]:
            e("s_waitcnt vmcnt(0)")
        self.stamp(4)
        self.dump_stamps(5, "c")
        e("s_endpgm")

    def tail(self, consts):
        e = self.e
        o = self.o
        e("s_waitcnt lgkmcnt(0)")
        self.barrier()
        R = (self.reads(1, 1) if not o["no_reads"] else []) + self.preads
        M = self.mfmas(0, range(4, 8))
        fill = {}
        for i, r in enumerate(R):
            fill.setdefault(int(i * 0.7), []).append(r)
        for i, c in enumerate(consts):
            fill.setdefault(19 + i // 2, []).append(c)
        self.interleave(M, fill)
        self.stamp(3)
        seq = []
        done_at = {}
        for tm in range(8):
            for t in range(2):
                sts = (0, 1) if tm < 4 else (1,)
                for st in sts:
                    for k in range(3):
                        seq.append(self.mf(st, k, t, tm))
            done_at[tm] = len(seq)
        pend = []
        nxt = 0
        cost = lambda x: 8 if ("v_exp" in x or "v_rcp" in x) else 4
        first = True
        for i, m in enumerate(seq):
            if first and "v[192" in m or first and f"v[{SET[1] + 40}" in m:
                e("s_waitcnt lgkmcnt(0)")
                first = False
            if not o["no_mfma"]:
                e(m)
            while nxt < 8 and done_at[nxt] + 4 <= i + 1:
                pend.append(nxt)
                nxt += 1
            budget = 8
            while budget > 0:
                if not self.cur and pend:
                    tm = pend.pop(0)
                    self.cur = ["s_nop 3"] * (tm == 0) + self.epi_ops(tm, 32 + (tm & 1) * 12)
                if not self.cur:
                    break
                x = self.cur.pop(0)
                e(x)
                budget -= cost(x)
        for x in self.cur:
            e(x)
        for tm in pend + list(range(nxt, 8)):
            for x in self.epi_ops(tm, 32 + (tm & 1) * 12):
                e(x)

    def gen(self):
        e = self.e
        o = self.o
        self.cur = []
        self.l.append(HEADER.rstrip())
        self.l.append(f"; @launch grid=(256,1,1) block=(512,1,1) lds={LDS}")
        self.l.append('.amdgcn_target "amdgcn-amd-amdhsa--gfx950"')
        self.l.append(".text")
        self.l.append(f".globl {KN}")
        self.l.append(".p2align 8")
        self.l.append(f".type {KN},@function")
        self.lab(KN)
        e("s_cmp_ge_u32 s2, 256")
        e("s_cbranch_scc1 L_end")
        self.stamp(0)
        e("s_load_dwordx2 s[4:5], s[0:1], 0")
        e("s_load_dwordx2 s[8:9], s[0:1], 8")
        e("v_readfirstlane_b32 s18, v0")
        e("v_and_b32 v0, 63, v0")
        e("s_lshr_b32 s36, s2, 3")
        e("s_mov_b32 s6, 0x800000")
        e("s_mov_b32 s7, 0x20000")
        e("s_mov_b32 s10, 0x600000")
        e("s_mov_b32 s11, s7")
        e("s_lshr_b32 s18, s18, 6")
        if o["xmap"] == 0:
            e("s_and_b32 s3, s2, 6")
            e("s_lshl_b32 s3, s3, 1")
            e("s_and_b32 s16, s36, 3")
            e("s_add_u32 s16, s16, s3")
            e("s_and_b32 s3, s2, 1")
            e("s_lshl_b32 s3, s3, 3")
            e("s_lshr_b32 s17, s36, 2")
            e("s_add_u32 s17, s17, s3")
        elif o["xmap"] == 3:
            e("s_and_b32 s3, s2, 6")
            e("s_lshl_b32 s3, s3, 1")
            e("s_lshr_b32 s16, s36, 3")
            e("s_add_u32 s16, s16, s3")
            e("s_and_b32 s3, s2, 1")
            e("s_lshl_b32 s3, s3, 3")
            e("s_and_b32 s17, s36, 7")
            e("s_add_u32 s17, s17, s3")
        st = o["stagger"]
        if st == 0:
            e("s_mov_b32 s37, 0")
        elif st == 1:
            e("s_and_b32 s37, s2, 7")
            e("s_lshl_b32 s37, s37, 1")
        elif st == 2:
            e("s_mov_b32 s37, s16")
        elif st == 4:
            e("s_and_b32 s37, s16, 3")
            e("s_lshl_b32 s37, s37, 2")
        elif st == 6:
            e("s_and_b32 s37, s16, 12")
            e("s_add_u32 s37, s37, s3")
            e("s_and_b32 s37, s37, 15")
        elif st == 7:
            e("s_and_b32 s37, s2, 6")
            e("s_add_u32 s37, s37, s3")
        elif st == 8:
            e("s_mov_b32 s37, s3")
        elif st == 9:
            e("s_and_b32 s37, s16, 12")
        elif st == 10:
            e("s_add_u32 s37, s2, 1")
            e("s_bfe_u32 s37, s37, 0x30001")
            e("s_and_b32 s3, s2, 7")
            e("s_add_u32 s37, s3, 1")
            e("s_lshr_b32 s37, s37, 1")
        elif st == 11:
            e("s_and_b32 s37, s2, 7")
        elif st == 12:
            e("s_bfe_u32 s37, s2, 0x20001")
            e("s_lshr_b32 s3, s3, 2")
            e("s_add_u32 s37, s37, s3")
        elif st == 13:
            e("s_bfe_u32 s37, s2, 0x20001")
            e("s_add_u32 s37, s37, s3")
        e("s_lshl_b32 s16, s16, 8")
        e("s_lshl_b32 s17, s17, 6")
        e(f"s_movk_i32 s59, {230 * 128}")
        e("s_cmp_ge_u32 s18, 4")
        e(("s_cbranch_scc1" if o["lfirst"] else "s_cbranch_scc0") + " L_compute")
        self.loader()
        self.compute()
        self.lab("L_end")
        e("s_endpgm")
        self.l.append(f""".section .rodata,"a"
.p2align 6
.amdhsa_kernel {KN}
  .amdhsa_next_free_vgpr 256
  .amdhsa_next_free_sgpr 96
  .amdhsa_accum_offset 256
  .amdhsa_group_segment_fixed_size 0
  .amdhsa_kernarg_size 72
  .amdhsa_user_sgpr_count 2
  .amdhsa_user_sgpr_kernarg_segment_ptr 1
  .amdhsa_system_sgpr_workgroup_id_x 1
.end_amdhsa_kernel""")
        return "\n".join(self.l) + "\n"


if __name__ == "__main__":
    out = sys.argv[1]
    opts = {}
    for a in sys.argv[2:]:
        k, v = a.split("=")
        try:
            v = int(v)
        except ValueError:
            try:
                v = float(v)
            except ValueError:
                v = v.replace("+", " ")
        opts[k] = v
    open(out, "w").write(G(**opts).gen())
```

```python
import sys

HEADER = open("standalone__batchnorm__prompt.s.ref").read().split("; Override launch")[0]
KN = "standalone__batchnorm__prompt_kernel"

PS = 33 * 128
XBUF = 263 * 128
NXB = 3
WBUF = 3 * 32 * 128
NWB = 5
WBASE = NXB * XBUF
PB = WBASE + NWB * WBUF
LDS = PB + 512
STG = 2 * XBUF

ACC = 64
SET = (128, 192)
TMP = 32


def cnt(i):
    return (3, 5, 4, 3)[i % 4]


def need(u):
    return 2 * u + 3 if u % 2 == 0 else 2 * u + 2


class G:
    def __init__(self, **o):
        self.o = dict(stamps=0, trace=0, no_dma=0, no_reads=0, no_mfma=0, no_epi=0, no_store=0,
                      lastrd=33, prio_c=1, prio_l=0, lfirst=1, order=6, xaux="", waux="", saux="sc1", xmap=0,
                      probe="", xor=1, nt=3, pwg=-1, rrate=0.7, x0=4, pace=1.04, pk=2, alt=0, lead=6, cum="6",
                      rotx=1, rotk=1, tchk=12, pchk=40, blag=7, cpf=0, pstamp=0, brpos=45, pages=2, lpad=0, win=1280, latebar=0, diag=0, wpair=1, cmode=0, base="_456789ABCDEF0123", mask="_3333333333333333")
        self.o.update(o)
        self.l = []
        self.nlab = 0
        self.late = []
        self.flow = 0

    def e(self, s):
        self.l.append("    " + s)

    def lab(self, s):
        self.l.append(s + ":")

    def stamp(self, i):
        if self.o["stamps"]:
            self.e(f"s_memtime s[{60 + 4 * i}:{61 + 4 * i}]")
            self.e(f"s_memrealtime s[{62 + 4 * i}:{63 + 4 * i}]")
            self.e("s_waitcnt lgkmcnt(0)")

    def lbarrier(self):
        e = self.e
        e("s_barrier")
        if self.o["trace"]:
            e("s_memtime s[56:57]")
            e("s_memrealtime s[80:81]")
            e("s_mov_b32 m0, s55")
            e("s_waitcnt lgkmcnt(0)")
            e("v_writelane_b32 v62, s56, m0")
            e("v_writelane_b32 v63, s80, m0")
            e("s_add_u32 s55, s55, 1")

    def dump_stamps(self, n, role):
        if not self.o["stamps"]:
            return
        e = self.e
        if self.o["probe"]:
            prole, a, z, kind, mult = self.o["probe"].split(",")
            if prole == role:
                off = 62 if kind == "t" else 60
                e(f"s_sub_u32 s3, s{off + 4 * int(z)}, s{off + 4 * int(a)}")
                if kind == "t":
                    e(f"s_mul_i32 s3, s3, {mult}")
                else:
                    e(f"s_lshr_b32 s3, s3, {mult}")
                e("s_min_u32 s3, s3, 50000")
                if self.o["pwg"] >= 0:
                    e(f"s_cmp_eq_u32 s2, {self.o['pwg']}")
                    e("s_cselect_b32 s3, s3, 0")
                self.lab(f"L_spin_{role}")
                e("s_memrealtime s[56:57]")
                e("s_waitcnt lgkmcnt(0)")
                e(f"s_sub_u32 s56, s56, s{62 + 4 * (n - 1)}")
                e("s_cmp_lt_u32 s56, s3")
                e(f"s_cbranch_scc1 L_spin_{role}")
            return
        e("s_load_dwordx2 s[34:35], s[0:1], 64")
        e("s_waitcnt lgkmcnt(0)")
        e("v_mov_b32 v40, 0")
        for i in range(n):
            e(f"v_writelane_b32 v40, s{60 + 4 * i}, {2 * i}")
            e(f"v_writelane_b32 v40, s{62 + 4 * i}, {2 * i + 1}")
        for i in range(4):
            e(f"v_writelane_b32 v40, s{86 + i}, {12 + i}")
        e("s_lshl_b32 s3, s2, 3")
        e("s_and_b32 s18, s18, 3")
        if role == "l":
            e("s_add_u32 s18, s18, 4")
        e("s_add_u32 s3, s3, s18")
        e("s_lshl_b32 s3, s3, 6")
        e("v_lshl_add_u32 v41, v0, 2, s3")
        if self.o["trace"] and role == "l":
            e("s_lshl_b32 s3, s3, 2")
            e("s_add_u32 s3, s3, 0x100000")
            e("v_lshl_add_u32 v42, v0, 2, s3")
            e("v_subrev_u32 v62, s60, v62")
            e("v_subrev_u32 v63, s62, v63")
            e("v_lshl_or_b32 v63, v63, 18, v62")
            e("global_store_dword v42, v63, s[34:35]")
        e("s_mov_b64 exec, 0xffff")
        e("global_store_dword v41, v40, s[34:35]")

    def issue_x(self, half):
        e = self.e
        aux = self.o["xaux"]
        if not self.o["no_dma"]:
            e(f"s_add_u32 m0, s41, s{86 + half}")
            e(f"s_add_u32 s45, s40, s{88 + half}")
            e(f"buffer_load_dwordx4 v2, s[4:7], s45 offen {aux} lds")
            for p in range(1, 4):
                a, b = (45, 46) if p & 1 else (46, 45)
                e("s_add_u32 m0, m0, s54")
                e(f"s_add_u32 s{b}, s{a}, s53")
                e(f"buffer_load_dwordx4 v2, s[4:7], s{b} offen {aux} lds")
            if half == 0:
                e("s_add_u32 m0, s41, s44")
                e("s_mov_b64 exec, 15")
                e(f"buffer_load_dwordx4 v3, s[4:7], s40 offen {aux} lds")
                e("s_mov_b64 exec, -1")
        if half == 0:
            return
        e(f"s_add_u32 s41, s41, {XBUF}")
        e("s_cmp_ge_u32 s41, s51")
        e("s_cselect_b32 s41, s50, s41")

    def issue(self, i):
        if i % 4 in (0, 3):
            self.issue_w(i & 1)
        else:
            self.issue_x(i % 4 - 1)

    def issue_w(self, second):
        e = self.e
        if not self.o["no_dma"]:
            aux = self.o["waux"]
            e("s_mov_b32 m0, s43")
            e("s_add_u32 s45, s42, s38")
            e(f"buffer_load_dwordx4 v4, s[8:11], s42 offen {aux} lds")
            e("s_add_u32 m0, m0, s39")
            e("s_add_u32 s46, s45, s38")
            e(f"buffer_load_dwordx4 v4, s[8:11], s45 offen {aux} lds")
            e("s_add_u32 m0, m0, s39")
            e(f"s_addk_i32 s43, {WBUF}")
            e(f"buffer_load_dwordx4 v4, s[8:11], s46 offen {aux} lds")
        else:
            e(f"s_addk_i32 s43, {WBUF}")
        e("s_cmp_ge_u32 s43, s49")
        e("s_cselect_b32 s43, s51, s43")
        if second:
            e("s_lshr_b64 s[82:83], s[82:83], 4")
            self.stage_offsets()
        else:
            e("s_xor_b32 s42, s42, 0x10000")

    def stage_offsets(self):
        e = self.e
        e("s_and_b32 s3, s82, 15")
        e("s_lshl_b32 s40, s3, 7")
        e("s_lshl_b32 s42, s3, 17")
        e("s_or_b32 s42, s42, s85")

    def param_load(self):
        e = self.e
        e("s_load_dwordx8 s[24:31], s[0:1], 16")
        e("v_add_lshl_u32 v8, s17, v0, 1")
        e("s_waitcnt lgkmcnt(0)")
        for i in range(4):
            e(f"global_load_ushort v{10 + i}, v8, s[{24 + 2 * i}:{25 + 2 * i}]")

    def param_calc(self):
        e = self.e
        e("s_cmp_lg_u32 s19, 0")
        e("s_cbranch_scc1 L_pc_done")
        for i in range(4):
            e(f"v_lshlrev_b32 v{10 + i}, 16, v{10 + i}")

        def rnd():
            e("v_cvt_pk_bf16_f32 v11, v11, v11")
            e("v_lshlrev_b32 v11, 16, v11")
        e("v_add_f32 v11, 0x3727c5ac, v11")
        rnd()
        e("v_sqrt_f32 v11, v11")
        e("s_nop 0")
        rnd()
        e("v_rcp_f32 v11, v11")
        e("s_nop 0")
        rnd()
        e("v_mul_f32 v11, v12, v11")
        rnd()
        e("v_fma_f32 v13, -v10, v11, v13")
        e("v_mul_f32 v11, 0x3fb8aa3b, v11")
        e("v_mul_f32 v13, 0x3fb8aa3b, v13")
        e("v_lshlrev_b32 v14, 2, v0")
        e(f"v_add_u32 v14, {PB}, v14")
        e("ds_write_b32 v14, v11")
        e("ds_write_b32 v14, v13 offset:256")
        e("s_waitcnt lgkmcnt(0)")
        self.lab("L_pc_done")

    def pi(self, dst, j, t0, t1):
        e = self.e
        e(f"v_lshlrev_b32 v{dst}, 1, v{j}")
        e(f"v_cmp_lt_u32 vcc, 3, v{j}")
        e(f"v_subrev_u32 v{t0}, 7, v{dst}")
        e(f"v_subrev_u32 v{t1}, 16, v{dst}")
        e(f"v_cndmask_b32 v{dst}, v{dst}, v{t0}, vcc")
        e(f"v_cmp_lt_u32 vcc, 11, v{j}")
        e("s_nop 1")
        e(f"v_cndmask_b32 v{dst}, v{dst}, v{t1}, vcc")

    def loader(self):
        e = self.e
        o = self.o
        self.lab("L_loader")
        if o["prio_l"]:
            e(f"s_setprio {o['prio_l']}")
        e("s_and_b32 s19, s18, 3")
        e("v_lshrrev_b32 v5, 3, v0")
        e("v_and_b32 v6, 7, v0")
        e("s_lshl_b32 s45, s19, 2")
        e("s_and_b32 s45, s45, 4")
        e("v_xor_b32 v6, s45, v6")
        e("v_and_b32 v7, 2, v5")
        e("v_xor_b32 v7, v7, v6")
        e("v_lshlrev_b32 v7, 4, v7")
        e("v_lshl_add_u32 v4, v5, 11, v7")
        e("s_lshl_b32 s3, s19, 13")
        e("s_add_u32 s3, s3, s17")
        e("v_lshl_add_u32 v4, s3, 1, v4")
        e("v_lshrrev_b32 v7, 1, v5")
        e("v_xor_b32 v7, v7, v6")
        e("v_lshlrev_b32 v7, 4, v7")
        e("v_lshl_add_u32 v2, v5, 14, v7")
        e("s_lshl_b32 s3, s19, 6")
        e("s_add_u32 s3, s3, s16")
        e("v_lshl_add_u32 v2, s3, 11, v2")
        e("s_lshl_b32 s50, s19, 10")
        e(f"s_movk_i32 s44, {230 * 128}")
        e("s_cmp_lt_u32 s19, 2")
        e("s_cselect_b32 s3, 256, 0")
        e("s_cselect_b32 s46, 256, -1")
        e("s_cselect_b32 s47, 0, 7")
        e(f"s_cmovk_i32 s44, {32 * 128}")
        e("s_add_u32 s3, s3, s16")
        e("s_add_u32 s46, s46, s16")
        e("s_lshl_b32 s46, s46, 11")
        e("s_and_b32 s3, s3, 2047")
        e("s_cselect_b32 s46, s46, 0x80000000")
        e("v_xor_b32 v7, s47, v6")
        e("v_lshl_add_u32 v3, v7, 4, s46")
        e("s_lshl_b32 s45, s45, 4")
        e("s_add_u32 s44, s44, s45")
        e("s_sub_u32 s44, s44, s50")
        base = [int(ch, 16) for ch in o["base"].lstrip("_")]
        mask = [int(ch, 16) for ch in o["mask"].lstrip("_")]
        for c in range(8):
            assert sorted(b ^ (c & m) for b, m in zip(base, mask)) == list(range(16))
        pack = lambda v: sum(x << (4 * k) for k, x in enumerate(v))
        e("s_bfe_u32 s84, s2, 0x20001")
        e("s_and_b32 s85, s2, 1")
        e("s_xor_b32 s84, s84, s85")
        if o["cmode"] >= 1:
            e("s_lshr_b32 s85, s17, 6")
            e(f"s_and_b32 s85, s85, {2 if o['cmode'] == 1 else 6}")
            e("s_xor_b32 s84, s84, s85")
        if o["cmode"] >= 2:
            e("s_lshr_b32 s85, s16, 7")
            e("s_and_b32 s85, s85, 4")
            e("s_xor_b32 s84, s84, s85")
        e("s_mul_i32 s84, s84, 0x11111111")
        for h in range(2):
            m = pack(mask[8 * h:8 * h + 8])
            if m == (0x77777777 if o['cmode'] >= 2 else 0x33333333):
                e(f"s_xor_b32 s{82 + h}, s84, {pack(base[8 * h:8 * h + 8]):#x}")
            else:
                e(f"s_and_b32 s{82 + h}, s84, {m:#x}")
                e(f"s_xor_b32 s{82 + h}, s{82 + h}, {pack(base[8 * h:8 * h + 8]):#x}")
        if o["rotk"]:
            e("s_and_b32 s85, s16, 0x100")
            e("s_lshl_b32 s85, s85, 8")
        else:
            e("s_mov_b32 s85, 0")
        self.stage_offsets()
        if o["rotx"]:
            e("s_bitcmp1_b32 s17, 6")
            e(f"s_cselect_b32 s86, {4 * PS}, 0")
            e("s_cselect_b32 s88, 0x2000, 0")
            e(f"s_xor_b32 s87, s86, {4 * PS}")
            e("s_xor_b32 s89, s88, 0x2000")
        else:
            e("s_mov_b32 s86, 0")
            e("s_mov_b32 s88, 0")
            e(f"s_movk_i32 s87, {4 * PS}")
            e("s_movk_i32 s89, 0x2000")
        e(f"s_add_u32 s41, s50, {XBUF}")
        e(f"s_add_u32 s51, s50, {WBASE}")
        e("s_mov_b32 s43, s51")
        e(f"s_add_u32 s49, s51, {NWB * WBUF}")
        e("s_movk_i32 s53, 2048")
        e(f"s_movk_i32 s54, {PS}")
        e("s_mov_b32 s38, 0x200000")
        e("s_movk_i32 s39, 4096")
        e("s_waitcnt lgkmcnt(0)")
        self.stamp(1)
        if o["trace"]:
            e("s_mov_b32 s55, 0")
        lead = o["lead"]
        st = {"issued": 0}

        def upto(c):
            while st["issued"] < min(c, 64):
                self.issue(st["issued"])
                st["issued"] += 1

        def step(u):
            e(f"s_waitcnt vmcnt({sum(cnt(v) for v in range(need(u), st['issued']))})")
            self.lbarrier()

        cum = [int(v) for v in str(o["cum"]).split(",")]
        for u, c in enumerate(cum):
            assert need(u) <= c <= max(2 * u + 8 + (u & 1), 11)
            upto(c)
            if u == 0:
                e("s_cmp_eq_u32 s19, 0")
                e("s_cselect_b32 s48, 6, 64")
            step(u)
            if u == 0:
                self.stamp(2)
        u0 = len(cum)
        assert st["issued"] <= 2 * u0 + lead
        upto(2 * u0 + lead)
        nit = (64 - lead - 2 * u0) // 4
        e(f"s_mov_b32 s52, {nit - 1}")
        self.lab("L_lloop")
        step(u0)
        if o["pstamp"]:
            e(f"s_cmp_lg_u32 s52, {nit - 1 - (o['pstamp'] - u0) // 2}")
            e("s_cbranch_scc1 L_nops")
            self.stamp(1)
            self.lab("L_nops")
        upto(st["issued"] + 2)
        step(u0 + 1)
        upto(st["issued"] + 2)
        e("s_cmp_lg_u32 s52, s48")
        e("s_cbranch_scc1 L_nopl")
        self.param_load()
        self.lab("L_nopl")
        e("s_sub_u32 s52, s52, 1")
        e("s_cbranch_scc0 L_lloop")
        st["issued"] += 4 * (nit - 1)
        e("s_load_dwordx2 s[12:13], s[0:1], 48")
        for u in range(u0 + 2 * nit, 30):
            step(u)
            upto(st["issued"] + 2)
        e("s_waitcnt vmcnt(0) lgkmcnt(0)")
        self.lbarrier()
        self.param_calc()
        self.lbarrier()
        self.stamp(3)
        self.store_setup()
        e("s_mov_b32 s46, 0")
        self.lab("L_sloop")
        if not o["diag"] & 1:
            self.lbarrier()
        e("ds_read_b128 v[28:31], v17")
        e("v_add_u32 v17, 0x1000, v17")
        e("s_waitcnt lgkmcnt(0)")
        if not o["no_store"]:
            e(f"buffer_store_dwordx4 v[28:31], v16, s[12:15], s46 offen {o['saux']}")
        e("s_add_u32 s46, s46, s53")
        e("s_cmp_lt_u32 s46, 0x4000")
        e("s_cbranch_scc1 L_sloop")
        if o["stamps"]:
            e("s_waitcnt vmcnt(0)")
        self.stamp(4)
        if o["stamps"]:
            e("s_branch L_ldump")

            def late():
                self.lab("L_ldump")
                self.dump_stamps(5, "l")
                e("s_endpgm")
            self.late.append(late)
        else:
            e("s_endpgm")

    def store_setup(self):
        e = self.e
        e("s_mov_b32 s14, 0x800000")
        e("s_mov_b32 s15, 0x20000")
        e("s_and_b32 s3, s19, 1")
        e("v_lshl_add_u32 v6, s3, 3, v5")
        self.pi(7, 6, 8, 9)
        e("s_lshr_b32 s3, s19, 1")
        e("s_lshl_b32 s3, s3, 7")
        e("s_add_u32 s3, s3, s16")
        e("s_lshl_b32 s3, s3, 10")
        e("s_add_u32 s3, s3, s17")
        e("s_lshl_b32 s3, s3, 1")
        e("v_and_b32 v8, 7, v0")
        e("v_lshl_add_u32 v9, v8, 4, s3")
        e("v_lshl_add_u32 v16, v7, 14, v9")
        e("v_xor_b32 v8, v8, v5")
        e("v_lshlrev_b32 v8, 4, v8")
        e("v_lshl_add_u32 v8, v5, 7, v8")
        e(f"s_add_u32 s3, s50, {STG}")
        e("v_add_u32 v17, s3, v8")

    def rd_f(self, r, kk, dl, off=0):
        a = 2 + 3 * kk
        if dl == 0:
            return [f"ds_read_b128 v[{r}:{r + 3}], v{a + 2} offset:{7 * PS - 128 + off}"]
        if dl == 9:
            return [f"ds_read_b128 v[{r}:{r + 3}], v{a + 1} offset:{off}"]
        return [f"ds_read_b128 v[{r}:{r + 3}], v{a} offset:{(dl - 1) * PS + off}"]

    def rd_g(self, r, k, t, off=0):
        return [f"ds_read_b64_tr_b16 v[{r + 2 * hh}:{r + 2 * hh + 1}], v{8 + t} offset:{k * 4096 + hh * 512 + off}"
                for hh in range(2)]

    def reads(self, st, kk):
        base = SET[st]
        L = []
        for t in range(2):
            for k in range(3):
                L += self.rd_g(base + 40 + (k * 2 + t) * 4, k, t)
        X = []
        for dl in range(10):
            X += self.rd_f(base + 4 * dl, kk, dl)
        out = []
        while L or X:
            if X:
                out.append(X.pop(0))
            if L:
                out.append(L.pop(0))
        return out

    def mf(self, g, f, t, tm):
        acc = ACC + (tm * 2 + t) * 4
        return f"v_mfma_f32_16x16x32_bf16 v[{acc}:{acc + 3}], v[{g}:{g + 3}], v[{f}:{f + 3}], v[{acc}:{acc + 3}]"

    def mfmas(self, st):
        od = self.o["order"]
        if od == 0:
            seq = [(k, t, tm) for k in range(3) for t in range(2) for tm in range(8)]
        else:
            seq = [(k, t, tm) for t in range(2) for tm in range(8) for k in ((0, 1, 2) if tm % 2 == 0 else (2, 1, 0))]
        return [self.mf(SET[st] + 40 + (k * 2 + t) * 4, SET[st] + 4 * (tm + k), t, tm) for k, t, tm in seq]

    def substage(self, st, pre):
        o = self.o
        M = self.mfmas(st)
        R = self.reads(st ^ 1, st ^ 1) if not o["no_reads"] else []
        fill = {}
        sp = o["lastrd"] / 22.0
        for i, r in enumerate(R):
            fill.setdefault(int(i * sp), []).append(r)
        pos = o["lastrd"]
        for i, p in enumerate(pre):
            fill.setdefault(min(pos + i, 47), []).extend(p)
        out = []
        for i, m in enumerate(M):
            out.append((["s_waitcnt lgkmcnt(0)", "s_barrier"] if i == 0 else []) +
                       ([m] if not o["no_mfma"] else []) + fill.get(i, []))
        return out

    def epi_ops(self, un):
        tm, t = un >> 1, un & 1
        a = ACC + un * 4
        tb = TMP + 4 * t
        L = []
        if not self.o["no_epi"] and not (self.o["pk"] == 1 or (self.o["pk"] == 2 and un == 15)):
            for r in range(4):
                L.append(f"v_fma_f32 v{a + r}, v{a + r}, v{16 + 4 * t + r}, v{24 + 4 * t + r}")
            for r in range(4):
                L.append(f"v_exp_f32_e64 v{tb + r}, -v{a + r}")
            for r in range(4):
                L.append(f"v_fma_f32 v{tb + r}, v{tb + r}, s42, s42")
            for r in range(4):
                L.append(f"v_rcp_f32 v{tb + r}, v{tb + r}")
            for r in range(4):
                L.append(f"v_mul_f32 v{tb + r}, v{tb + r}, v{a + r}")
            for p in range(2):
                L.append(f"v_cvt_pk_bf16_f32 v{a + p}, v{tb + 2 * p}, v{tb + 2 * p + 1}")
        elif not self.o["no_epi"]:
            for p in range(2):
                q = 4 * t + 2 * p
                L.append(f"v_pk_fma_f32 v[{a + 2 * p}:{a + 2 * p + 1}], v[{a + 2 * p}:{a + 2 * p + 1}], v[{16 + q}:{17 + q}], v[{24 + q}:{25 + q}]")
            for r in range(4):
                L.append(f"v_exp_f32_e64 v{tb + r}, -v{a + r}")
            for p in range(2):
                L.append(f"v_pk_fma_f32 v[{tb + 2 * p}:{tb + 2 * p + 1}], v[{tb + 2 * p}:{tb + 2 * p + 1}], s[42:43], s[42:43]")
            for r in range(4):
                L.append(f"v_rcp_f32 v{tb + r}, v{tb + r}")
            for p in range(2):
                L.append(f"v_pk_mul_f32 v[{tb + 2 * p}:{tb + 2 * p + 1}], v[{tb + 2 * p}:{tb + 2 * p + 1}], v[{a + 2 * p}:{a + 2 * p + 1}]")
            for p in range(2):
                L.append(f"v_cvt_pk_bf16_f32 v{a + p}, v{tb + 2 * p}, v{tb + 2 * p + 1}")
        if self.o["diag"] & 2:
            L.append("ds_read_b32 v12, v1")
        elif self.o["wpair"]:
            if t:
                L.insert(len(L) - 2, f"DS ds_write_b64 v1, v[{a - 4}:{a - 3}] offset:{tm * 4096}")
                L.append(f"ds_write_b64 v15, v[{a}:{a + 1}] offset:{tm * 4096}")
        else:
            L.append(f"ds_write_b64 v{15 if t else 1}, v[{a}:{a + 1}] offset:{tm * 4096}")
        return L

    def tail(self):
        e = self.e
        o = self.o
        nt = o["nt"]
        seq = []
        for u in range(28, 32 - nt):
            for tm in range(8):
                ts = (0, 1) if tm % 2 == 0 else (1, 0)
                seq += [(u, k, ts[0], tm) for k in (0, 1, 2)] + [(u, k, ts[1], tm) for k in (2, 1, 0)]
        done_at = {}
        for tm in range(8):
            if o["alt"]:
                for u in range(32 - nt, 32):
                    seq += [(u, k, t, tm) for k in range(3) for t in range(2)]
                done_at[2 * tm] = len(seq) - 2
                done_at[2 * tm + 1] = len(seq) - 1
                continue
            for t in range(2):
                for u in range(32 - nt, 32):
                    seq += [(u, k, t, tm) for k in range(3)]
                done_at[2 * tm + t] = len(seq) - 1
        first, last = {}, {}
        for i, (u, k, t, tm) in enumerate(seq):
            for nm in (("G", u, k, t), ("F", u, tm + k)):
                first.setdefault(nm, i)
                last[nm] = i
        reg = {}
        for dl in range(10):
            reg[("F", 28, dl)] = SET[0] + 4 * dl
        for k in range(3):
            for t in range(2):
                reg[("G", 28, k, t)] = SET[0] + 40 + (k * 2 + t) * 4
        free = list(range(SET[1], SET[1] + 64, 4)) + list(range(TMP + 8, 64, 4))
        todo = sorted((nm for nm in first if nm not in reg), key=lambda nm: first[nm])
        par = [("P", i) for i in range(4)]
        npar = max(0, len([nm for nm in todo if first[nm] <= done_at[0] + 4]))
        todo = todo[:npar] + par + todo[npar:]
        queue = []

        def lds(op, tag=None):
            e(op)
            queue.append(tag)

        def wait_for(tags):
            idx = max((i for i, tg in enumerate(queue) if tg in tags), default=-1)
            if idx >= 0:
                n = min(len(queue) - 1 - idx, 14)
                e(f"s_waitcnt lgkmcnt({n})")
                del queue[:len(queue) - n]

        def issue_read(nm):
            if nm[0] == "P":
                i = nm[1]
                lds(f"ds_read_b128 v[{16 + 4 * i}:{19 + 4 * i}], v10 offset:{(i >> 1) * 256 + (i & 1) * 64}", nm)
                return 1
            r = free.pop(0)
            reg[nm] = r
            u = nm[1]
            if nm[0] == "F":
                ops = self.rd_f(r, u & 1, nm[2], XBUF * ((u >> 1) - 14))
            else:
                ops = self.rd_g(r, nm[2], nm[3], WBUF * (u % NWB))
            if not o["no_reads"]:
                for op in ops:
                    lds(op, nm)
            return len(ops)

        e("s_waitcnt lgkmcnt(0)")
        self.stamp(3)
        e("s_barrier")
        chk, pchk = o["tchk"], o["pchk"]
        head = {0: [f"v_subrev_u32 v8, {4 * WBUF}, v8", f"v_subrev_u32 v9, {4 * WBUF}, v9", "s_mov_b32 s43, s42"],
                chk: ["s_barrier"], pchk: ["s_barrier"]}
        bar_at = {}
        rcred = 1.0
        cost = lambda x: 8 if ("v_exp" in x or "v_rcp" in x) else 4
        cur, pend, nxt = [], [], 0
        mark = {}
        credit = 0.0
        per_gap = sum(cost(x) for x in self.epi_ops(0) + self.epi_ops(1)) / (6.0 * nt) * o['pace'] + 0.5
        stalls = []
        for i, (u, k, t, tm) in enumerate(seq):
            g, f = ("G", u, k, t), ("F", u, tm + k)
            while g in todo or f in todo:
                stalls.append(i)
                issue_read(todo.pop(0))
            wait_for({g, f})
            if not o["no_mfma"]:
                e(self.mf(reg[g], reg[f], t, tm))
            if nxt < 16 and done_at[nxt] == i:
                mark[nxt] = len(self.l)
                pend.append(nxt)
                nxt += 1
            for nm in (g, f):
                if last[nm] == i:
                    free.append(reg[nm])
            for x in head.get(i, []):
                e(x)
            if i in bar_at and not o["latebar"]:
                wait_for({bar_at.pop(i)})
                e("s_barrier")
            if i >= 1:
                rcred = min(rcred + o["rrate"], 1.99)
                while rcred >= 1.0:
                    cand = [nm for nm in todo if (i >= pchk if nm[0] == "P" else
                                                  i >= chk or (nm[1] == 29 and first[nm] <= done_at[1]))]
                    if not cand or not (cand[0][0] == "P" or free):
                        break
                    todo.remove(cand[0])
                    k_ = issue_read(cand[0])
                    rcred -= 1.0
                    if cur or pend:
                        credit -= 4 * k_
            if cur or pend:
                credit += per_gap
            while credit > 0:
                if not cur:
                    if not pend or len(self.l) - mark[pend[0]] < 8:
                        credit = 0
                        break
                    wait_for(set(par))
                    curun = pend.pop(0)
                    cur = self.epi_ops(curun)
                x = cur.pop(0)
                if x.startswith("DS "):
                    lds(x[3:])
                elif x.startswith("ds_"):
                    lds(x, ("W", curun))
                    if curun & 1 and not o["diag"] & 1:
                        bar_at[i + o["blag"]] = ("W", curun)
                else:
                    e(x)
                credit -= cost(x)
        assert not todo
        if stalls:
            print("tail: late reads at", stalls, file=sys.stderr)
        rest = [(curun, cur)] if cur else []
        rest += [(un, None) for un in pend]
        for un, ops in rest:
            if ops is None:
                gap = len(self.l) - mark[un]
                if gap < 8:
                    e(f"s_nop {7 - gap}")
                ops = self.epi_ops(un)
            for x in ops:
                if x.startswith("DS "):
                    lds(x[3:])
                elif x.startswith("ds_"):
                    for key in sorted(bar_at):
                        wait_for({bar_at.pop(key)})
                        e("s_barrier")
                    lds(x, ("W", un))
                    if un & 1 and not o["diag"] & 1:
                        bar_at[un] = ("W", un)
                else:
                    e(x)
        for key in sorted(bar_at):
            wait_for({bar_at.pop(key)})
            e("s_barrier")

    def compute(self):
        e = self.e
        o = self.o
        self.lab("L_compute")
        e("s_and_b32 s38, s18, 1")
        e("s_bfe_u32 s39, s18, 0x10001")
        e("v_and_b32 v10, 15, v0")
        e("v_lshrrev_b32 v16, 4, v0")
        if o["cpf"]:
            e("s_getpc_b64 s[20:21]")
            e("v_lshlrev_b32 v12, 7, v0")
            e("v_mov_b32 v13, s21")
            e("v_add_co_u32 v12, vcc, s20, v12")
            e("s_cmp_lt_u32 s36, %d" % o["cpf"])
            e("s_cselect_b32 s3, s18, 1")
            e("v_addc_co_u32 v13, vcc, 0, v13, vcc")
            e("s_and_b32 s3, s3, 3")
            e("s_cbranch_scc1 L_nocpf")
            e("s_mov_b32 exec_hi, (1 << (((L_end - L_compute) >> 7) - 32)) - 1")
            e("global_load_dword v14, v[12:13], off")
            e("s_mov_b32 exec_hi, -1")
            self.lab("L_nocpf")
        self.pi(17, 10, 18, 19)
        e("v_lshrrev_b32 v18, 2, v10")
        e("v_lshl_add_u32 v19, v16, 3, v18")
        e("v_lshlrev_b32 v19, 7, v19")
        e("v_and_b32 v20, 3, v10")
        e("v_lshl_add_u32 v19, v20, 3, v19")
        e("v_lshrrev_b32 v18, 1, v18")
        e("v_and_b32 v20, 1, v16")
        e("v_lshl_or_b32 v18, v20, 1, v18")
        e("s_lshl_b32 s45, s39, 1")
        e("v_xor_b32 v18, s45, v18")
        e("v_lshl_add_u32 v19, v18, 5, v19")
        e(f"v_add_u32 v8, {WBASE}, v19")
        e("v_xor_b32 v9, 32, v8")
        e("s_lshl_b32 s3, s38, 11")
        e(f"s_add_u32 s46, s3, {XBUF}")
        if o["rotk"]:
            e("s_bfe_u32 s47, s16, 0x10008")
            e("v_lshl_or_b32 v21, s47, 2, v16")
        for idx, sh in ((0, 0), (1, 1), (2, -1)):
            e(f"v_add_u32 v18, {sh}, v17")
            e("v_bfe_u32 v19, v18, 1, 3")
            e(f"v_xor_b32 v19, v19, v{21 if o['rotk'] else 16}")
            e("v_lshlrev_b32 v19, 4, v19")
            e(f"v_lshl_add_u32 v19, v{17 if sh == -1 else 18}, 7, v19")
            e(f"v_add_u32 v{2 + idx}, s46, v19")
            e(f"v_xor_b32 v{5 + idx}, 64, v{2 + idx}")
        e("v_lshrrev_b32 v18, 1, v16")
        e("v_lshl_add_u32 v18, s39, 2, v18")
        e("v_and_b32 v19, 7, v10")
        e("v_xor_b32 v18, v18, v19")
        e("v_lshlrev_b32 v18, 4, v18")
        e("v_lshl_add_u32 v18, v20, 3, v18")
        e("v_lshl_add_u32 v18, v10, 7, v18")
        e(f"s_add_u32 s3, s3, {STG}")
        e("v_add_u32 v1, s3, v18")
        e("v_xor_b32 v15, 32, v1")
        e("s_lshl_b32 s3, s39, 7")
        e(f"s_add_u32 s3, s3, {PB}")
        e("v_lshl_add_u32 v10, v16, 4, s3")
        for r in range(ACC, ACC + 64, 2):
            e(f"v_mov_b64 v[{r}:{r + 1}], 0")
        e("s_mov_b32 s40, 1")
        e("s_mov_b32 s41, 1")
        e("s_mov_b32 s42, 0x3fb8aa3b")
        e(f"s_movk_i32 s53, {WBUF}")
        e(f"s_mov_b32 s54, {XBUF}")
        e(f"s_mov_b32 s46, {-(NWB - 1) * WBUF & 0xffffffff:#x}")
        e(f"s_mov_b32 s47, {-(NXB - 1) * XBUF & 0xffffffff:#x}")
        e("s_mov_b32 s52, 13")
        if o["prio_c"]:
            e(f"s_setprio {o['prio_c']}")
        self.stamp(1)
        e("s_barrier")
        self.stamp(2)
        if o["no_reads"] != 1:
            for r in self.reads(0, 0):
                e(r)
        e("v_add_u32 v8, s53, v8")
        e("v_add_u32 v9, s53, v9")

        def wadv():
            return [["s_add_u32 s41, s41, 1", f"s_cmp_eq_u32 s41, {NWB}"],
                    ["s_cselect_b32 s43, s46, s53", "s_cselect_b32 s41, 0, s41"],
                    ["v_add_u32 v8, s43, v8"], ["v_add_u32 v9, s43, v9"]]

        pre0 = wadv() + [["s_add_u32 s40, s40, 1", f"s_cmp_eq_u32 s40, {NXB}"],
                         ["s_cselect_b32 s55, s47, s54", "s_cselect_b32 s40, 0, s40"]] + \
            [[f"v_add_u32 v{2 + i}, s55, v{2 + i}"] for i in range(3)]
        pre1 = wadv() + [[f"v_add_u32 v{5 + i}, s55, v{5 + i}"] for i in range(3)] + [["s_sub_u32 s52, s52, 1"]]
        body = self.substage(0, pre0) + self.substage(1, pre1)
        cut = 48 + o["brpos"]
        if cut < 96 or o["pages"]:
            e("s_branch L_centry")
        if o["pages"]:
            e(".p2align 12")
            self.lab("L_touch0")
            e("s_branch L_touched" if o["pages"] >= 2 else "s_endpgm")
        e(".p2align 6")
        for _ in range(o["lpad"]):
            e("s_nop 0")
        self.lab("L_cloop")
        for gap in body[cut:]:
            for x in gap:
                e(x)
        self.lab("L_centry")
        for gap in body[:cut]:
            for x in gap:
                e(x)
        e("s_cbranch_scc0 L_cloop")
        for gap in body[cut:]:
            for x in gap:
                e(x)
        self.lab("L_tail")
        self.tail()
        self.lab("L_tail_end")
        self.stamp(4)
        self.dump_stamps(5, "c")
        e("s_endpgm")

    def gen(self):
        e = self.e
        o = self.o
        self.l.append(HEADER.rstrip())
        self.l.append(f"; @launch grid=(256,1,1) block=(512,1,1) lds={LDS}")
        self.l.append('.amdgcn_target "amdgcn-amd-amdhsa--gfx950"')
        self.l.append(".text")
        self.l.append(f".globl {KN}")
        if o["pages"]:
            self.l.append(".p2align 12")
        self.l.append(".p2align 8")
        self.l.append(f".type {KN},@function")
        self.lab(KN)
        e("s_cmp_ge_u32 s2, 256")
        e("s_cbranch_scc1 L_end")
        if o["stamps"]:
            e("s_memtime s[60:61]")
            e("s_memrealtime s[62:63]")
        e("s_load_dwordx2 s[4:5], s[0:1], 0")
        e("s_load_dwordx2 s[8:9], s[0:1], 8")
        e("v_readfirstlane_b32 s18, v0")
        e("v_and_b32 v0, 63, v0")
        e("s_lshr_b32 s36, s2, 3")
        e("s_mov_b32 s6, 0x800000")
        e("s_mov_b32 s7, 0x20000")
        e("s_mov_b32 s10, 0x600000")
        e("s_mov_b32 s11, s7")
        e("s_lshr_b32 s18, s18, 6")
        a, b = ("s16", "s17") if o["xmap"] == 0 else ("s17", "s16")
        e("s_and_b32 s3, s2, 6")
        e("s_lshl_b32 s3, s3, 1")
        e(f"s_and_b32 {a}, s36, 3")
        e(f"s_add_u32 {a}, {a}, s3")
        e("s_and_b32 s3, s2, 1")
        e("s_lshl_b32 s3, s3, 3")
        e(f"s_lshr_b32 {b}, s36, 2")
        e(f"s_add_u32 {b}, {b}, s3")
        e("s_lshl_b32 s16, s16, 8")
        e("s_lshl_b32 s17, s17, 6")
        e("s_cmp_ge_u32 s18, 4")
        if o["pages"] >= 2:
            e(("s_cbranch_scc0" if o["lfirst"] else "s_cbranch_scc1") + " L_loader")
            e("s_or_b32 s21, s18, -4")
            self.lab("L_touched")
            e("s_add_u32 s21, s21, 4")
            self.l.append("@DISPATCH")
            e("s_branch L_compute")
        else:
            e(("s_cbranch_scc1" if o["lfirst"] else "s_cbranch_scc0") + " L_compute")
        self.loader()
        self.compute()
        for f in self.late:
            f()
        self.lab("L_end")
        e("s_endpgm")
        self.l.append(f""".section .rodata,"a"
.p2align 6
.amdhsa_kernel {KN}
  .amdhsa_next_free_vgpr 256
  .amdhsa_next_free_sgpr 96
  .amdhsa_accum_offset 256
  .amdhsa_group_segment_fixed_size 0
  .amdhsa_kernarg_size 72
  .amdhsa_user_sgpr_count 2
  .amdhsa_user_sgpr_kernarg_segment_ptr 1
  .amdhsa_system_sgpr_workgroup_id_x 1
.end_amdhsa_kernel""")
        return self.finish()

    def finish(self):
        L = "\n".join(self.l).split("\n")
        if self.o["pages"] < 2:
            return "\n".join(L) + "\n"
        import re
        import subprocess
        i0 = L.index("L_touch0:")
        it, ie = L.index("L_tail:"), L.index("L_tail_end:")
        probe = []
        for i, x in enumerate(L):
            if it < i <= ie:
                probe.append(f"L_pos{i}:")
            if x != "@DISPATCH":
                probe.append(x)
        open("probe.s", "w").write("\n".join(probe) + "\n")
        subprocess.run(["clang", "-x", "assembler", "-target", "amdgcn-amd-amdhsa", "-mcpu=gfx950",
                        "-c", "probe.s", "-o", "probe.o"], check=True)
        sym = subprocess.run(["llvm-readelf", "-s", "probe.o"], capture_output=True, text=True).stdout
        addr = {m.group(2): int(m.group(1), 16) for m in re.finditer(r"^\s*\d+: ([0-9a-f]+)\s.*\s(\S+)$", sym, re.M)}
        base = addr["L_touch0"]
        win = self.o["win"]
        out, n, covered = [], 1, win
        for i, x in enumerate(L):
            if it < i < ie:
                pos = addr[f"L_pos{i}"] - base + 4 * (n - 1)
                if pos >= covered:
                    out += [f"L_touch{n}:", "    s_cbranch_scc0 L_touched"]
                    n += 1
                    covered = min(pos // 64 * 64 + win, (pos // 4096 + 1) * 4096)
            out.append(x)
        disp = []
        for k in range(n):
            disp += [f"    s_cmp_lg_u32 s21, {k}", f"    s_cbranch_scc0 L_touch{k}"]
        j = out.index("@DISPATCH")
        out[j:j + 1] = disp
        return "\n".join(out) + "\n"


if __name__ == "__main__":
    out = sys.argv[1]
    opts = {}
    for a in sys.argv[2:]:
        k, v = a.split("=")
        try:
            v = int(v)
        except ValueError:
            try:
                v = float(v)
            except ValueError:
                v = v.replace("+", " ")
        opts[k] = v
    open(out, "w").write(G(**opts).gen())
```

```python
import sys

HEADER = open("standalone__batchnorm__prompt.s.ref").read().split("; Override launch")[0]
KN = "standalone__batchnorm__prompt_kernel"

PS = 33 * 128
XBUF = 263 * 128
NXB = 3
WBUF = 3 * 32 * 128
NWB = 5
WBASE = NXB * XBUF
PB = WBASE + NWB * WBUF
LDS = PB + 512
STG = 2 * XBUF

ACC = 64
SET = (128, 192)
TMP = 32


def cnt(i):
    return (3, 5, 4, 3)[i % 4]


def need(u):
    return 2 * u + 3 if u % 2 == 0 else 2 * u + 2


class G:
    def __init__(self, **o):
        self.o = dict(stamps=0, trace=0, no_dma=0, no_reads=0, no_mfma=0, no_epi=0, no_store=0,
                      lastrd=33, prio_c=1, prio_l=0, lfirst=1, order=17, xaux="", waux="", saux="sc1", xmap=0,
                      probe="", xor=1, nt=4, fpre=7, fbar=16, flast=38, hold=12, split0=1, touch1=0, pwg=-1, rrate=0.8, x0=4, pace=1.04, pk=2, alt=0, lead=6, cum="6",
                      rotx=1, rotk=1, tchk=26, endq=64, pchk=36, blag=7, cpf=0, pstamp=0, brpos=45, pages=2, lpad=0, win=1280, latebar=0, diag=0, wpair=1, cmode=0, swap=0, base="_456789ABCDEF0123", mask="_3333333333333333")
        self.o.update(o)
        self.l = []
        self.nlab = 0
        self.late = []
        self.inloop = 0
        self.flow = 0

    def e(self, s):
        self.l.append("    " + s)

    def lab(self, s):
        self.l.append(s + ":")

    def stamp(self, i):
        if self.o["stamps"]:
            self.e(f"s_memtime s[{60 + 4 * i}:{61 + 4 * i}]")
            self.e(f"s_memrealtime s[{62 + 4 * i}:{63 + 4 * i}]")
            self.e("s_waitcnt lgkmcnt(0)")

    def lbarrier(self):
        e = self.e
        e("s_barrier")
        if self.o["trace"]:
            e("s_memtime s[56:57]")
            e("s_memrealtime s[80:81]")
            e("s_mov_b32 m0, s55")
            e("s_waitcnt lgkmcnt(0)")
            e("v_writelane_b32 v62, s56, m0")
            e("v_writelane_b32 v63, s80, m0")
            e("s_add_u32 s55, s55, 1")

    def dump_stamps(self, n, role):
        if not self.o["stamps"]:
            return
        e = self.e
        if self.o["probe"]:
            prole, a, z, kind, mult = self.o["probe"].split(",")
            if prole == role:
                off = 62 if kind == "t" else 60
                e(f"s_sub_u32 s3, s{off + 4 * int(z)}, s{off + 4 * int(a)}")
                if kind == "t":
                    e(f"s_mul_i32 s3, s3, {mult}")
                else:
                    e(f"s_lshr_b32 s3, s3, {mult}")
                e("s_min_u32 s3, s3, 50000")
                if self.o["pwg"] >= 0:
                    e(f"s_cmp_eq_u32 s2, {self.o['pwg']}")
                    e("s_cselect_b32 s3, s3, 0")
                self.lab(f"L_spin_{role}")
                e("s_memrealtime s[56:57]")
                e("s_waitcnt lgkmcnt(0)")
                e(f"s_sub_u32 s56, s56, s{62 + 4 * (n - 1)}")
                e("s_cmp_lt_u32 s56, s3")
                e(f"s_cbranch_scc1 L_spin_{role}")
            return
        e("s_load_dwordx2 s[34:35], s[0:1], 64")
        e("s_waitcnt lgkmcnt(0)")
        e("v_mov_b32 v40, 0")
        for i in range(n):
            e(f"v_writelane_b32 v40, s{60 + 4 * i}, {2 * i}")
            e(f"v_writelane_b32 v40, s{62 + 4 * i}, {2 * i + 1}")
        for i in range(4):
            e(f"v_writelane_b32 v40, s{86 + i}, {12 + i}")
        e("s_lshl_b32 s3, s2, 3")
        e("s_and_b32 s18, s18, 3")
        if role == "l":
            e("s_add_u32 s18, s18, 4")
        e("s_add_u32 s3, s3, s18")
        e("s_lshl_b32 s3, s3, 6")
        e("v_lshl_add_u32 v41, v0, 2, s3")
        if self.o["trace"] and role == "l":
            e("s_lshl_b32 s3, s3, 2")
            e("s_add_u32 s3, s3, 0x100000")
            e("v_lshl_add_u32 v42, v0, 2, s3")
            e("v_subrev_u32 v62, s60, v62")
            e("v_subrev_u32 v63, s62, v63")
            e("v_lshl_or_b32 v63, v63, 18, v62")
            e("global_store_dword v42, v63, s[34:35]")
        e("s_mov_b64 exec, 0xffff")
        e("global_store_dword v41, v40, s[34:35]")

    def issue_x(self, half):
        e = self.e
        aux = self.o["xaux"]
        if not self.o["no_dma"] and not (self.o["diag"] & 8 and self.inloop):
            e(f"s_add_u32 m0, s41, s{86 + half}")
            e(f"s_add_u32 s45, s40, s{88 + half}")
            e(f"buffer_load_dwordx4 v2, s[4:7], s45 offen {aux} lds")
            for p in range(1, 4):
                a, b = (45, 46) if p & 1 else (46, 45)
                e("s_add_u32 m0, m0, s54")
                e(f"s_add_u32 s{b}, s{a}, s53")
                e(f"buffer_load_dwordx4 v2, s[4:7], s{b} offen {aux} lds")
            if half == 0:
                e("s_add_u32 m0, s41, s44")
                e("s_mov_b64 exec, 15")
                e(f"buffer_load_dwordx4 v3, s[4:7], s40 offen {aux} lds")
                e("s_mov_b64 exec, -1")
        if half == 0:
            return
        e(f"s_add_u32 s41, s41, {XBUF}")
        e("s_cmp_ge_u32 s41, s51")
        e("s_cselect_b32 s41, s50, s41")

    def issue(self, i):
        if i % 4 in (0, 3):
            self.issue_w(i & 1)
        else:
            self.issue_x(i % 4 - 1)

    def issue_w(self, second):
        e = self.e
        if not self.o["no_dma"] and not (self.o["diag"] & 16 and self.inloop):
            aux = self.o["waux"]
            e("s_mov_b32 m0, s43")
            e("s_add_u32 s45, s42, s38")
            e(f"buffer_load_dwordx4 v4, s[8:11], s42 offen {aux} lds")
            e("s_add_u32 m0, m0, s39")
            e("s_add_u32 s46, s45, s38")
            e(f"buffer_load_dwordx4 v4, s[8:11], s45 offen {aux} lds")
            e("s_add_u32 m0, m0, s39")
            e(f"s_addk_i32 s43, {WBUF}")
            e(f"buffer_load_dwordx4 v4, s[8:11], s46 offen {aux} lds")
        else:
            e(f"s_addk_i32 s43, {WBUF}")
        e("s_cmp_ge_u32 s43, s49")
        e("s_cselect_b32 s43, s51, s43")
        if second:
            e("s_lshr_b64 s[82:83], s[82:83], 4")
            self.stage_offsets()
        else:
            e("s_xor_b32 s42, s42, 0x10000")

    def stage_offsets(self):
        e = self.e
        e("s_and_b32 s3, s82, 15")
        e("s_lshl_b32 s40, s3, 7")
        e("s_lshl_b32 s42, s3, 17")
        e("s_or_b32 s42, s42, s85")

    def param_load(self):
        e = self.e
        e("s_load_dwordx8 s[24:31], s[0:1], 16")
        e("v_add_lshl_u32 v8, s17, v0, 1")
        e("s_waitcnt lgkmcnt(0)")
        for i in range(4):
            e(f"global_load_ushort v{10 + i}, v8, s[{24 + 2 * i}:{25 + 2 * i}]")

    def param_calc(self):
        e = self.e
        e("s_cmp_lg_u32 s19, 0")
        e("s_cbranch_scc1 L_pc_done")
        for i in range(4):
            e(f"v_lshlrev_b32 v{10 + i}, 16, v{10 + i}")

        def rnd():
            e("v_cvt_pk_bf16_f32 v11, v11, v11")
            e("v_lshlrev_b32 v11, 16, v11")
        e("v_add_f32 v11, 0x3727c5ac, v11")
        rnd()
        e("v_sqrt_f32 v11, v11")
        e("s_nop 0")
        rnd()
        e("v_rcp_f32 v11, v11")
        e("s_nop 0")
        rnd()
        e("v_mul_f32 v11, v12, v11")
        rnd()
        e("v_fma_f32 v13, -v10, v11, v13")
        e("v_mul_f32 v11, 0x3fb8aa3b, v11")
        e("v_mul_f32 v13, 0x3fb8aa3b, v13")
        e("v_lshlrev_b32 v14, 2, v0")
        e(f"v_add_u32 v14, {PB}, v14")
        self.lab("L_pc_done")

    def pi(self, dst, j, t0, t1):
        e = self.e
        e(f"v_lshlrev_b32 v{dst}, 1, v{j}")
        e(f"v_cmp_lt_u32 vcc, 3, v{j}")
        e(f"v_subrev_u32 v{t0}, 7, v{dst}")
        e(f"v_subrev_u32 v{t1}, 16, v{dst}")
        e(f"v_cndmask_b32 v{dst}, v{dst}, v{t0}, vcc")
        e(f"v_cmp_lt_u32 vcc, 11, v{j}")
        e("s_nop 1")
        e(f"v_cndmask_b32 v{dst}, v{dst}, v{t1}, vcc")

    def loader(self):
        e = self.e
        o = self.o
        self.lab("L_loader")
        if o["prio_l"]:
            e(f"s_setprio {o['prio_l']}")
        e("s_and_b32 s19, s18, 3")
        e("v_lshrrev_b32 v5, 3, v0")
        e("v_and_b32 v6, 7, v0")
        e("s_lshl_b32 s45, s19, 2")
        e("s_and_b32 s45, s45, 4")
        e("v_xor_b32 v6, s45, v6")
        e("v_and_b32 v7, 2, v5")
        e("v_xor_b32 v7, v7, v6")
        e("v_lshlrev_b32 v7, 4, v7")
        e("v_lshl_add_u32 v4, v5, 11, v7")
        e("s_lshl_b32 s3, s19, 13")
        e("s_add_u32 s3, s3, s17")
        e("v_lshl_add_u32 v4, s3, 1, v4")
        e("v_lshrrev_b32 v7, 1, v5")
        e("v_xor_b32 v7, v7, v6")
        e("v_lshlrev_b32 v7, 4, v7")
        e("v_lshl_add_u32 v2, v5, 14, v7")
        e("s_lshl_b32 s3, s19, 6")
        e("s_add_u32 s3, s3, s16")
        e("v_lshl_add_u32 v2, s3, 11, v2")
        e("s_lshl_b32 s50, s19, 10")
        e(f"s_movk_i32 s44, {230 * 128}")
        e("s_cmp_lt_u32 s19, 2")
        e("s_cselect_b32 s3, 256, 0")
        e("s_cselect_b32 s46, 256, -1")
        e("s_cselect_b32 s47, 0, 7")
        e(f"s_cmovk_i32 s44, {32 * 128}")
        e("s_add_u32 s3, s3, s16")
        e("s_add_u32 s46, s46, s16")
        e("s_lshl_b32 s46, s46, 11")
        e("s_and_b32 s3, s3, 2047")
        e("s_cselect_b32 s46, s46, 0x80000000")
        e("v_xor_b32 v7, s47, v6")
        e("v_lshl_add_u32 v3, v7, 4, s46")
        e("s_lshl_b32 s45, s45, 4")
        e("s_add_u32 s44, s44, s45")
        e("s_sub_u32 s44, s44, s50")
        base = [int(ch, 16) for ch in o["base"].lstrip("_")]
        mask = [int(ch, 16) for ch in o["mask"].lstrip("_")]
        for c in range(8):
            assert sorted(b ^ (c & m) for b, m in zip(base, mask)) == list(range(16))
        pack = lambda v: sum(x << (4 * k) for k, x in enumerate(v))
        e("s_bfe_u32 s84, s2, 0x20001")
        e("s_and_b32 s85, s2, 1")
        e("s_xor_b32 s84, s84, s85")
        if o["cmode"] >= 3:
            e(f"s_and_b32 s84, s84, {1 if o['cmode'] == 3 else 3}")
            e("s_lshl_b32 s84, s84, 1")
            e("s_lshr_b32 s85, s36, 2")
            e("s_xor_b32 s85, s85, s36")
            e("s_bfe_u32 s85, s85, 0x10001")
            e("s_or_b32 s84, s84, s85")
        elif o["cmode"] >= 1:
            e("s_lshr_b32 s85, s17, 6")
            e(f"s_and_b32 s85, s85, {2 if o['cmode'] == 1 else 6}")
            e("s_xor_b32 s84, s84, s85")
        if o["cmode"] == 2:
            e("s_lshr_b32 s85, s16, 7")
            e("s_and_b32 s85, s85, 4")
            e("s_xor_b32 s84, s84, s85")
        e("s_mul_i32 s84, s84, 0x11111111")
        for h in range(2):
            m = pack(mask[8 * h:8 * h + 8])
            if m == (0x77777777 if o['cmode'] in (2, 4) else 0x33333333):
                e(f"s_xor_b32 s{82 + h}, s84, {pack(base[8 * h:8 * h + 8]):#x}")
            else:
                e(f"s_and_b32 s{82 + h}, s84, {m:#x}")
                e(f"s_xor_b32 s{82 + h}, s{82 + h}, {pack(base[8 * h:8 * h + 8]):#x}")
        if o["rotk"]:
            e("s_and_b32 s85, s16, 0x100")
            e("s_lshl_b32 s85, s85, 8")
        else:
            e("s_mov_b32 s85, 0")
        self.stage_offsets()
        if o["rotx"]:
            e("s_bitcmp1_b32 s17, 6")
            e(f"s_cselect_b32 s86, {4 * PS}, 0")
            e("s_cselect_b32 s88, 0x2000, 0")
            e(f"s_xor_b32 s87, s86, {4 * PS}")
            e("s_xor_b32 s89, s88, 0x2000")
        else:
            e("s_mov_b32 s86, 0")
            e("s_mov_b32 s88, 0")
            e(f"s_movk_i32 s87, {4 * PS}")
            e("s_movk_i32 s89, 0x2000")
        e(f"s_add_u32 s41, s50, {XBUF}")
        e(f"s_add_u32 s51, s50, {WBASE}")
        e("s_mov_b32 s43, s51")
        e(f"s_add_u32 s49, s51, {NWB * WBUF}")
        e("s_movk_i32 s53, 2048")
        e(f"s_movk_i32 s54, {PS}")
        e("s_mov_b32 s38, 0x200000")
        e("s_movk_i32 s39, 4096")
        e("s_waitcnt lgkmcnt(0)")
        self.stamp(1)
        if o["trace"]:
            e("s_mov_b32 s55, 0")
        lead = o["lead"]
        st = {"issued": 0}

        def upto(c):
            while st["issued"] < min(c, 64):
                self.issue(st["issued"])
                st["issued"] += 1

        def step(u):
            nd = need(29) if u == 28 else need(u)
            e(f"s_waitcnt vmcnt({sum(cnt(v) for v in range(nd, st['issued']))})")
            self.lbarrier()

        cum = [int(v) for v in str(o["cum"]).split(",")]
        for u, c in enumerate(cum):
            assert need(u) <= c <= max(2 * u + 8 + (u & 1), 11)
            upto(c)
            if u == 0:
                e("s_cmp_eq_u32 s19, 0")
                e("s_cselect_b32 s48, 6, 64")
            step(u)
            if u == 0:
                self.stamp(2)
        u0 = len(cum)
        assert st["issued"] <= 2 * u0 + lead
        upto(2 * u0 + lead)
        nit = (27 - u0) // 2
        e(f"s_mov_b32 s52, {nit - 1}")
        self.lab("L_lloop")
        self.inloop = 1
        step(u0)
        if o["pstamp"]:
            e(f"s_cmp_lg_u32 s52, {nit - 1 - (o['pstamp'] - u0) // 2}")
            e("s_cbranch_scc1 L_nops")
            self.stamp(1)
            self.lab("L_nops")
        upto(st["issued"] + 2)
        step(u0 + 1)
        upto(st["issued"] + 2)
        e("s_cmp_lg_u32 s52, s48")
        e("s_cbranch_scc1 L_nopl")
        self.param_load()
        self.lab("L_nopl")
        e("s_sub_u32 s52, s52, 1")
        e("s_cbranch_scc0 L_lloop")
        st["issued"] += 4 * (nit - 1)
        e("s_load_dwordx2 s[12:13], s[0:1], 48")
        for u in range(u0 + 2 * nit, 29):
            step(u)
            upto(o["endq"] if u == 27 else st["issued"] + 2)
        self.param_calc()
        e("s_waitcnt vmcnt(0) lgkmcnt(0)")
        self.lbarrier()
        e("s_cmp_lg_u32 s19, 0")
        e("s_cbranch_scc1 L_pw_done")
        e("ds_write_b32 v14, v11")
        e("ds_write_b32 v14, v13 offset:256")
        e("s_waitcnt lgkmcnt(0)")
        self.lab("L_pw_done")
        self.lbarrier()
        self.stamp(3)
        self.store_setup()
        e("s_mov_b32 s46, 0")
        self.lab("L_sloop")
        if not o["diag"] & 1:
            self.lbarrier()
        e("ds_read_b128 v[28:31], v17")
        e("v_add_u32 v17, 0x1000, v17")
        e("s_waitcnt lgkmcnt(0)")
        if not o["no_store"]:
            e(f"buffer_store_dwordx4 v[28:31], v16, s[12:15], s46 offen {o['saux']}")
        e("s_add_u32 s46, s46, s53")
        e("s_cmp_lt_u32 s46, 0x4000")
        e("s_cbranch_scc1 L_sloop")
        if o["stamps"]:
            e("s_waitcnt vmcnt(0)")
        self.stamp(4)
        if o["stamps"]:
            e("s_branch L_ldump")

            def late():
                self.lab("L_ldump")
                self.dump_stamps(5, "l")
                e("s_endpgm")
            self.late.append(late)
        else:
            e("s_endpgm")

    def store_setup(self):
        e = self.e
        e("s_mov_b32 s14, 0x800000")
        e("s_mov_b32 s15, 0x20000")
        e("s_and_b32 s3, s19, 1")
        e("v_lshl_add_u32 v6, s3, 3, v5")
        self.pi(7, 6, 8, 9)
        e("s_lshr_b32 s3, s19, 1")
        e("s_lshl_b32 s3, s3, 7")
        e("s_add_u32 s3, s3, s16")
        e("s_lshl_b32 s3, s3, 10")
        e("s_add_u32 s3, s3, s17")
        e("s_lshl_b32 s3, s3, 1")
        e("v_and_b32 v8, 7, v0")
        e("v_lshl_add_u32 v9, v8, 4, s3")
        e("v_lshl_add_u32 v16, v7, 14, v9")
        e("v_xor_b32 v8, v8, v5")
        e("v_lshlrev_b32 v8, 4, v8")
        e("v_lshl_add_u32 v8, v5, 7, v8")
        e(f"s_add_u32 s3, s50, {STG}")
        e("v_add_u32 v17, s3, v8")

    def rd_f(self, r, kk, dl, off=0):
        a = 2 + 3 * kk
        if dl == 0:
            return [f"ds_read_b128 v[{r}:{r + 3}], v{a + 2} offset:{7 * PS - 128 + off}"]
        if dl == 9:
            return [f"ds_read_b128 v[{r}:{r + 3}], v{a + 1} offset:{off}"]
        return [f"ds_read_b128 v[{r}:{r + 3}], v{a} offset:{(dl - 1) * PS + off}"]

    def rd_g(self, r, k, t, off=0):
        return [f"ds_read_b64_tr_b16 v[{r + 2 * hh}:{r + 2 * hh + 1}], v{8 + t} offset:{k * 4096 + hh * 512 + off}"
                for hh in range(2)]

    def reads(self, st, kk):
        base = SET[st]
        L = []
        for t in range(2):
            for k in range(3):
                L += self.rd_g(base + 40 + (k * 2 + t) * 4, k, t)
        X = []
        for dl in range(10):
            X += self.rd_f(base + 4 * dl, kk, dl)
        out = []
        while L or X:
            if X:
                out.append(X.pop(0))
            if L:
                out.append(L.pop(0))
        return out

    def mf(self, g, f, t, tm):
        acc = ACC + (tm * 2 + t) * 4
        return f"v_mfma_f32_16x16x32_bf16 v[{acc}:{acc + 3}], v[{g}:{g + 3}], v[{f}:{f + 3}], v[{acc}:{acc + 3}]"

    def mfmas(self, st, raw=False):
        od = self.o["order"]
        asc, desc = (0, 1, 2), (2, 1, 0)
        up, down = list(range(8)), list(range(7, -1, -1))
        if od == 0:
            seq = [(k, t, tm) for k in range(3) for t in range(2) for tm in range(8)]
        elif od == 4:
            seq = [(k, t, tm) for t in range(2) for tm in up for k in asc]
        elif od == 6:
            seq = [(k, t, tm) for t in range(2) for tm in up for k in (asc if tm % 2 == 0 else desc)]
        elif od == 7:
            seq = []
            for tm in up:
                ts = (0, 1) if tm % 2 == 0 else (1, 0)
                seq += [(k, ts[0], tm) for k in asc] + [(k, ts[1], tm) for k in desc]
        elif od == 9:
            seq = [(k, 0, tm) for tm in up for k in (asc if tm % 2 == 0 else desc)] + \
                  [(k, 1, tm) for tm in down for k in (asc if tm % 2 else desc)]
        elif od == 17:
            seq = [(k, st, tm) for tm in up for k in (asc if tm % 2 == 0 else desc)] + \
                  [(k, st ^ 1, tm) for tm in down for k in (asc if tm % 2 else desc)]
        elif od == 10:
            seq = [(k, t, tm) for t in range(2) for tm in up for k in desc]
        elif od == 11:
            seq = [(k, t, tm) for t in range(2) for tm in up for k in (0, 2, 1)]
        elif od == 12:
            seq = [(k, t, tm) for t in range(2) for tm in up for k in (1, 0, 2)]
        elif od == 13:
            rot = [(0, 1, 2), (2, 0, 1), (1, 2, 0)]
            seq = [(k, t, tm) for t in range(2) for tm in up for k in rot[tm % 3]]
        elif od == 14:
            rot = [(0, 2, 1), (1, 0, 2), (2, 1, 0)]
            seq = [(k, t, tm) for t in range(2) for tm in up for k in rot[tm % 3]]
        elif od == 15:
            seq = [(k, t, tm) for t in range(2) for tm in up for k in ((0, 2, 1) if tm % 2 == 0 else (1, 2, 0))]
        elif od == 16:
            seq = [(k, t, tm) for t in range(2) for tm in up for k in ((2, 0, 1) if tm % 2 == 0 else (1, 0, 2))]
        elif od >= 20:
            out = []
            for tm in up:
                ks = [(0, k) for k in asc] + [(1, k) for k in (asc if od == 20 else desc)]
                if od != 22 and tm % 2:
                    ks = ks[::-1]
                out += [self.mf(SET[s_] + 40 + (k * 2 + st) * 4, SET[s_] + 4 * (tm + k), st, tm) for s_, k in ks]
            return out
        if raw:
            return seq
        M = [(SET[st] + 40 + (k * 2 + t) * 4, SET[st] + 4 * (tm + k), t, tm) for k, t, tm in seq]
        if self.o["swap"]:
            M = [(f, g, t, tm) for g, f, t, tm in M]
        return [self.mf(*m) for m in M]

    def substage(self, st, pre):
        o = self.o
        M = self.mfmas(st)
        R = self.reads(st ^ 1, st ^ 1) if not o["no_reads"] else []
        fill = {}
        sp = o["lastrd"] / 22.0
        for i, r in enumerate(R):
            fill.setdefault(int(i * sp), []).append(r)
        pos = o["lastrd"]
        for i, p in enumerate(pre):
            fill.setdefault(min(pos + i, 47), []).extend(p)
        out = []
        for i, m in enumerate(M):
            out.append((["s_waitcnt lgkmcnt(0)", "s_barrier"] if i == 0 else []) +
                       ([m] if not o["no_mfma"] else []) + fill.get(i, []))
        return out

    def first(self, pre):
        e = self.e
        o = self.o
        seq = self.mfmas(0, raw=True)
        todo, queue, seen = [], [], set()
        for k, t, tm in seq:
            for nm in (("G", k, t), ("F", tm + k)):
                if nm not in todo:
                    todo.append(nm)

        def rd():
            nm = todo.pop(0)
            ops = self.rd_g(SET[0] + 40 + (nm[1] * 2 + nm[2]) * 4, nm[1], nm[2]) if nm[0] == "G" else \
                self.rd_f(SET[0] + 4 * nm[1], 0, nm[1])
            for op in ops:
                e(op)
                queue.append(nm)
        for _ in range(o["fpre"]):
            rd()
        R = self.reads(1, 1)
        bar = o["fbar"]
        sp = (o["flast"] - bar) / 22.0
        fill = {bar - 1: ["v_add_u32 v8, s53, v8", "v_add_u32 v9, s53, v9"], bar: ["s_waitcnt lgkmcnt(0)", "s_barrier"]}
        for i, r in enumerate(R):
            fill.setdefault(bar + int(i * sp), []).append(r)
        for i, p in enumerate(pre):
            fill.setdefault(min(o["flast"] + i, 47), []).extend(p)
        for i, (k, t, tm) in enumerate(seq):
            idx = max((q for q, tg in enumerate(queue) if tg in (("G", k, t), ("F", tm + k))), default=-1)
            if idx >= 0:
                n = min(len(queue) - 1 - idx, 14)
                e(f"s_waitcnt lgkmcnt({n})")
                del queue[:len(queue) - n]
            m = self.mf(SET[0] + 40 + (k * 2 + t) * 4, SET[0] + 4 * (tm + k), t, tm)
            if (t, tm) not in seen:
                seen.add((t, tm))
                m = m[:m.rindex(",")] + ", 0"
            e(m)
            if todo:
                assert i < bar - 1
                rd()
            if i == bar:
                del queue[:]
            for x in fill.get(i, []):
                e(x)

    def epi_ops(self, un):
        tm, t = un >> 1, un & 1
        a = ACC + un * 4
        tb = TMP + 4 * t
        L = []
        if not self.o["no_epi"] and not (self.o["pk"] == 1 or (self.o["pk"] == 2 and un == 15)):
            for r in range(4):
                L.append(f"v_fma_f32 v{a + r}, v{a + r}, v{16 + 4 * t + r}, v{24 + 4 * t + r}")
            for r in range(4):
                L.append(f"v_exp_f32_e64 v{tb + r}, -v{a + r}")
            for r in range(4):
                L.append(f"v_fma_f32 v{tb + r}, v{tb + r}, s42, s42")
            for r in range(4):
                L.append(f"v_rcp_f32 v{tb + r}, v{tb + r}")
            for r in range(4):
                L.append(f"v_mul_f32 v{tb + r}, v{tb + r}, v{a + r}")
            for p in range(2):
                L.append(f"v_cvt_pk_bf16_f32 v{a + p}, v{tb + 2 * p}, v{tb + 2 * p + 1}")
        elif not self.o["no_epi"]:
            for p in range(2):
                q = 4 * t + 2 * p
                L.append(f"v_pk_fma_f32 v[{a + 2 * p}:{a + 2 * p + 1}], v[{a + 2 * p}:{a + 2 * p + 1}], v[{16 + q}:{17 + q}], v[{24 + q}:{25 + q}]")
            for r in range(4):
                L.append(f"v_exp_f32_e64 v{tb + r}, -v{a + r}")
            for p in range(2):
                L.append(f"v_pk_fma_f32 v[{tb + 2 * p}:{tb + 2 * p + 1}], v[{tb + 2 * p}:{tb + 2 * p + 1}], s[42:43], s[42:43]")
            for r in range(4):
                L.append(f"v_rcp_f32 v{tb + r}, v{tb + r}")
            for p in range(2):
                L.append(f"v_pk_mul_f32 v[{tb + 2 * p}:{tb + 2 * p + 1}], v[{tb + 2 * p}:{tb + 2 * p + 1}], v[{a + 2 * p}:{a + 2 * p + 1}]")
            for p in range(2):
                L.append(f"v_cvt_pk_bf16_f32 v{a + p}, v{tb + 2 * p}, v{tb + 2 * p + 1}")
        if self.o["diag"] & 2:
            L.append("ds_read_b32 v12, v1")
        elif self.o["wpair"]:
            if t:
                L.insert(len(L) - 2, f"DS ds_write_b64 v1, v[{a - 4}:{a - 3}] offset:{tm * 4096}")
                L.append(f"ds_write_b64 v11, v[{a}:{a + 1}] offset:{tm * 4096}")
        else:
            L.append(f"ds_write_b64 v{11 if t else 1}, v[{a}:{a + 1}] offset:{tm * 4096}")
        return L

    def tail(self):
        e = self.e
        o = self.o
        nt = o["nt"]
        seq = []
        for u in range(27, 32 - nt):
            for tm in range(8):
                ts = (0, 1) if tm % 2 else (1, 0)
                seq += [(u, k, ts[0], tm) for k in (0, 1, 2)] + [(u, k, ts[1], tm) for k in (2, 1, 0)]
        done_at = {}
        for tm in range(8):
            if o["alt"]:
                for u in range(32 - nt, 32):
                    seq += [(u, k, t, tm) for k in range(3) for t in range(2)]
                done_at[2 * tm] = len(seq) - 2
                done_at[2 * tm + 1] = len(seq) - 1
                continue
            lo = 32 - nt
            if tm == 0 and nt == 4 and o["split0"]:
                seq += [(u, k, t, tm) for t in range(2) for u in (28, 29) for k in range(3)]
                lo = 30
            for t in range(2):
                for u in range(lo, 32):
                    seq += [(u, k, t, tm) for k in range(3)]
                done_at[2 * tm + t] = len(seq) - 1
        first, last = {}, {}
        for i, (u, k, t, tm) in enumerate(seq):
            for nm in (("G", u, k, t), ("F", u, tm + k)):
                first.setdefault(nm, i)
                last[nm] = i
        reg = {}
        for dl in range(10):
            reg[("F", 27, dl)] = SET[1] + 4 * dl
        for k in range(3):
            for t in range(2):
                reg[("G", 27, k, t)] = SET[1] + 40 + (k * 2 + t) * 4
        free = list(range(SET[0], SET[0] + 64, 4)) + list(range(TMP + 8, 64, 4)) + [12]
        todo = sorted((nm for nm in first if nm not in reg), key=lambda nm: first[nm])
        par = [("P", i) for i in range(4)]
        npar = max(0, len([nm for nm in todo if first[nm] <= done_at[0] + 4]))
        todo = todo[:npar] + par + todo[npar:]
        queue = []

        def lds(op, tag=None):
            e(op)
            queue.append(tag)

        def wait_for(tags):
            idx = max((i for i, tg in enumerate(queue) if tg in tags), default=-1)
            if idx >= 0:
                n = min(len(queue) - 1 - idx, 14)
                e(f"s_waitcnt lgkmcnt({n})")
                del queue[:len(queue) - n]

        def issue_read(nm):
            if nm[0] == "P":
                i = nm[1]
                lds(f"ds_read_b128 v[{16 + 4 * i}:{19 + 4 * i}], v10 offset:{(i >> 1) * 256 + (i & 1) * 64}", nm)
                return 1
            r = free.pop(0)
            reg[nm] = r
            u = nm[1]
            if nm[0] == "F":
                ops = self.rd_f(r, u & 1, nm[2], XBUF * ((u >> 1) - 14))
            else:
                ops = self.rd_g(r, nm[2], nm[3], WBUF * (u % NWB))
            if not o["no_reads"]:
                for op in ops:
                    lds(op, nm)
            return len(ops)

        e("s_waitcnt lgkmcnt(0)")
        self.stamp(3)
        e("s_barrier")
        chk, pchk = o["tchk"], o["pchk"]
        head = {0: [f"v_subrev_u32 v8, {3 * WBUF}, v8", f"v_subrev_u32 v9, {3 * WBUF}, v9", "s_mov_b32 s43, s42"],
                1: ["v_add_u32 v5, s55, v5"], 2: ["v_add_u32 v6, s55, v6"], 3: ["v_add_u32 v7, s55, v7"],
                chk: ["s_barrier"], pchk: ["s_barrier"]}
        avail = {28: 1, 29: 4, 30: chk, 31: chk}
        bar_at = {}
        rcred = 1.0
        cost = lambda x: 8 if ("v_exp" in x or "v_rcp" in x) else 4
        cur, pend, nxt = [], [], 0
        mark = {}
        credit = 0.0
        per_gap = sum(cost(x) for x in self.epi_ops(0) + self.epi_ops(1)) / (6.0 * nt) * o['pace'] + 0.5
        stalls = []
        for i, (u, k, t, tm) in enumerate(seq):
            g, f = ("G", u, k, t), ("F", u, tm + k)
            while g in todo or f in todo:
                stalls.append(i)
                issue_read(todo.pop(0))
            wait_for({g, f})
            if not o["no_mfma"]:
                e(self.mf(reg[g], reg[f], t, tm))
            if nxt < 16 and done_at[nxt] == i:
                mark[nxt] = len(self.l)
                pend.append(nxt)
                nxt += 1
            for nm in (g, f):
                if last[nm] == i:
                    free.append(reg[nm])
            for x in head.get(i, []):
                e(x)
            if i in bar_at and not o["latebar"]:
                wait_for({bar_at.pop(i)})
                e("s_barrier")
            if i >= 1:
                rcred = min(rcred + o["rrate"], 1.99)
                while rcred >= 1.0:
                    hold = min([first[nm] for nm in todo if nm[0] != "P" and i < avail[nm[1]]], default=999)
                    cand = [nm for nm in todo if (i >= pchk if nm[0] == "P" else
                                                  i >= avail[nm[1]] and first[nm] <= hold + o["hold"])]
                    if not cand or not (cand[0][0] == "P" or free):
                        break
                    todo.remove(cand[0])
                    k_ = issue_read(cand[0])
                    rcred -= 1.0
                    if cur or pend:
                        credit -= 4 * k_
            if cur or pend:
                credit += per_gap
            while credit > 0:
                if not cur:
                    if not pend or len(self.l) - mark[pend[0]] < 8:
                        credit = 0
                        break
                    wait_for(set(par))
                    curun = pend.pop(0)
                    cur = self.epi_ops(curun)
                x = cur.pop(0)
                if x.startswith("DS "):
                    lds(x[3:])
                elif x.startswith("ds_"):
                    lds(x, ("W", curun))
                    if curun & 1:
                        free.extend([ACC + 4 * curun - 4, ACC + 4 * curun])
                    if curun & 1 and not o["diag"] & 1:
                        bar_at[i + o["blag"]] = ("W", curun)
                else:
                    e(x)
                credit -= cost(x)
        assert not todo
        if stalls:
            print("tail: late reads at", stalls, file=sys.stderr)
        rest = [(curun, cur)] if cur else []
        rest += [(un, None) for un in pend]
        for un, ops in rest:
            if ops is None:
                gap = len(self.l) - mark[un]
                if gap < 8:
                    e(f"s_nop {7 - gap}")
                ops = self.epi_ops(un)
            for x in ops:
                if x.startswith("DS "):
                    lds(x[3:])
                elif x.startswith("ds_"):
                    for key in sorted(bar_at):
                        wait_for({bar_at.pop(key)})
                        e("s_barrier")
                    lds(x, ("W", un))
                    if un & 1 and not o["diag"] & 1:
                        bar_at[un] = ("W", un)
                else:
                    e(x)
        for key in sorted(bar_at):
            wait_for({bar_at.pop(key)})
            e("s_barrier")

    def compute(self):
        e = self.e
        o = self.o
        self.lab("L_compute")
        e("s_and_b32 s38, s18, 1")
        e("s_bfe_u32 s39, s18, 0x10001")
        e("v_and_b32 v10, 15, v0")
        e("v_lshrrev_b32 v16, 4, v0")
        if o["cpf"]:
            e("s_getpc_b64 s[20:21]")
            e("v_lshlrev_b32 v12, 7, v0")
            e("v_mov_b32 v13, s21")
            e("v_add_co_u32 v12, vcc, s20, v12")
            e("s_cmp_lt_u32 s36, %d" % o["cpf"])
            e("s_cselect_b32 s3, s18, 1")
            e("v_addc_co_u32 v13, vcc, 0, v13, vcc")
            e("s_and_b32 s3, s3, 3")
            e("s_cbranch_scc1 L_nocpf")
            e("s_mov_b32 exec_hi, (1 << (((L_end - L_compute) >> 7) - 32)) - 1")
            e("global_load_dword v14, v[12:13], off")
            e("s_mov_b32 exec_hi, -1")
            self.lab("L_nocpf")
        self.pi(17, 10, 18, 19)
        e("v_lshrrev_b32 v18, 2, v10")
        e("v_lshl_add_u32 v19, v16, 3, v18")
        e("v_lshlrev_b32 v19, 7, v19")
        e("v_and_b32 v20, 3, v10")
        e("v_lshl_add_u32 v19, v20, 3, v19")
        e("v_lshrrev_b32 v18, 1, v18")
        e("v_and_b32 v20, 1, v16")
        e("v_lshl_or_b32 v18, v20, 1, v18")
        e("s_lshl_b32 s45, s39, 1")
        e("v_xor_b32 v18, s45, v18")
        e("v_lshl_add_u32 v19, v18, 5, v19")
        e(f"v_add_u32 v8, {WBASE}, v19")
        e("v_xor_b32 v9, 32, v8")
        e("s_lshl_b32 s3, s38, 11")
        e(f"s_add_u32 s46, s3, {XBUF}")
        if o["rotk"]:
            e("s_bfe_u32 s47, s16, 0x10008")
            e("v_lshl_or_b32 v21, s47, 2, v16")
        for idx, sh in ((0, 0), (1, 1), (2, -1)):
            e(f"v_add_u32 v18, {sh}, v17")
            e("v_bfe_u32 v19, v18, 1, 3")
            e(f"v_xor_b32 v19, v19, v{21 if o['rotk'] else 16}")
            e("v_lshlrev_b32 v19, 4, v19")
            e(f"v_lshl_add_u32 v19, v{17 if sh == -1 else 18}, 7, v19")
            e(f"v_add_u32 v{2 + idx}, s46, v19")
            e(f"v_xor_b32 v{5 + idx}, 64, v{2 + idx}")
        e("v_lshrrev_b32 v18, 1, v16")
        e("v_lshl_add_u32 v18, s39, 2, v18")
        e("v_and_b32 v19, 7, v10")
        e("v_xor_b32 v18, v18, v19")
        e("v_lshlrev_b32 v18, 4, v18")
        e("v_lshl_add_u32 v18, v20, 3, v18")
        e("v_lshl_add_u32 v18, v10, 7, v18")
        e(f"s_add_u32 s3, s3, {STG}")
        e("v_add_u32 v1, s3, v18")
        e("v_xor_b32 v11, 32, v1")
        e("s_lshl_b32 s3, s39, 7")
        e(f"s_add_u32 s3, s3, {PB}")
        e("v_lshl_add_u32 v10, v16, 4, s3")
        e("s_mov_b32 s40, 1")
        e("s_mov_b32 s41, 1")
        e("s_mov_b32 s42, 0x3fb8aa3b")
        e(f"s_movk_i32 s53, {WBUF}")
        e(f"s_mov_b32 s54, {XBUF}")
        e(f"s_mov_b32 s46, {-(NWB - 1) * WBUF & 0xffffffff:#x}")
        e(f"s_mov_b32 s47, {-(NXB - 1) * XBUF & 0xffffffff:#x}")
        e("s_mov_b32 s52, 12")
        if o["prio_c"]:
            e(f"s_setprio {o['prio_c']}")
        self.stamp(1)
        if o["pages"]:
            e("s_branch L_first")
            e(".p2align 12")
            self.lab("L_page1")
            e("s_branch L_touched")
            self.lab("L_first")
        e("s_barrier")
        self.stamp(2)

        def wadv():
            return [["s_add_u32 s41, s41, 1", f"s_cmp_eq_u32 s41, {NWB}"],
                    ["s_cselect_b32 s43, s46, s53", "s_cselect_b32 s41, 0, s41"],
                    ["v_add_u32 v8, s43, v8"], ["v_add_u32 v9, s43, v9"]]

        pre0 = wadv() + [["s_add_u32 s40, s40, 1", f"s_cmp_eq_u32 s40, {NXB}"],
                         ["s_cselect_b32 s55, s47, s54", "s_cselect_b32 s40, 0, s40"]] + \
            [[f"v_add_u32 v{2 + i}, s55, v{2 + i}"] for i in range(3)]
        pre1 = wadv() + [[f"v_add_u32 v{5 + i}, s55, v{5 + i}"] for i in range(3)]
        self.first(pre0)
        body = self.substage(1, pre1) + self.substage(0, pre0 + [["s_sub_u32 s52, s52, 1"]])
        cut = 48 + o["brpos"]
        if cut < 96 or o["pages"]:
            e("s_branch L_centry")
        if o["pages"]:
            self.lab("L_touch0")
            e("s_branch L_touched")
        e(".p2align 6")
        for _ in range(o["lpad"]):
            e("s_nop 0")
        self.lab("L_cloop")
        for gap in body[cut:]:
            for x in gap:
                e(x)
        self.lab("L_centry")
        for gap in body[:cut]:
            for x in gap:
                e(x)
        e("s_cbranch_scc0 L_cloop")
        for gap in body[cut:]:
            for x in gap:
                e(x)
        self.lab("L_tail")
        self.tail()
        self.lab("L_tail_end")
        self.stamp(4)
        self.dump_stamps(5, "c")
        e("s_endpgm")

    def gen(self):
        e = self.e
        o = self.o
        self.l.append(HEADER.rstrip())
        self.l.append(f"; @launch grid=(256,1,1) block=(512,1,1) lds={LDS}")
        self.l.append('.amdgcn_target "amdgcn-amd-amdhsa--gfx950"')
        self.l.append(".text")
        self.l.append(f".globl {KN}")
        if o["pages"]:
            self.l.append(".p2align 12")
        self.l.append(".p2align 8")
        self.l.append(f".type {KN},@function")
        self.lab(KN)
        e("s_cmp_ge_u32 s2, 256")
        e("s_cbranch_scc1 L_end")
        if o["stamps"]:
            e("s_memtime s[60:61]")
            e("s_memrealtime s[62:63]")
        e("s_load_dwordx2 s[4:5], s[0:1], 0")
        e("s_load_dwordx2 s[8:9], s[0:1], 8")
        e("v_readfirstlane_b32 s18, v0")
        e("v_and_b32 v0, 63, v0")
        e("s_lshr_b32 s36, s2, 3")
        e("s_mov_b32 s6, 0x800000")
        e("s_mov_b32 s7, 0x20000")
        e("s_mov_b32 s10, 0x600000")
        e("s_mov_b32 s11, s7")
        e("s_lshr_b32 s18, s18, 6")
        a, b = ("s16", "s17") if o["xmap"] == 0 else ("s17", "s16")
        e("s_and_b32 s3, s2, 6")
        e("s_lshl_b32 s3, s3, 1")
        e(f"s_and_b32 {a}, s36, 3")
        e(f"s_add_u32 {a}, {a}, s3")
        e("s_and_b32 s3, s2, 1")
        e("s_lshl_b32 s3, s3, 3")
        e(f"s_lshr_b32 {b}, s36, 2")
        e(f"s_add_u32 {b}, {b}, s3")
        if o["diag"] & 4:
            e("s_and_b32 s16, s16, 1")
            e("s_and_b32 s17, s17, 1")
        e("s_lshl_b32 s16, s16, 8")
        e("s_lshl_b32 s17, s17, 6")
        e("s_cmp_ge_u32 s18, 4")
        if o["pages"] >= 2:
            e(("s_cbranch_scc0" if o["lfirst"] else "s_cbranch_scc1") + " L_loader")
            e("s_or_b32 s21, s18, -4")
            self.lab("L_touched")
            e("s_add_u32 s21, s21, 4")
            self.l.append("@DISPATCH")
            e("s_branch L_compute")
        else:
            e(("s_cbranch_scc1" if o["lfirst"] else "s_cbranch_scc0") + " L_compute")
        self.loader()
        self.compute()
        for f in self.late:
            f()
        self.lab("L_end")
        e("s_endpgm")
        self.l.append(f""".section .rodata,"a"
.p2align 6
.amdhsa_kernel {KN}
  .amdhsa_next_free_vgpr 256
  .amdhsa_next_free_sgpr 96
  .amdhsa_accum_offset 256
  .amdhsa_group_segment_fixed_size 0
  .amdhsa_kernarg_size 72
  .amdhsa_user_sgpr_count 2
  .amdhsa_user_sgpr_kernarg_segment_ptr 1
  .amdhsa_system_sgpr_workgroup_id_x 1
.end_amdhsa_kernel""")
        return self.finish()

    def finish(self):
        L = "\n".join(self.l).split("\n")
        if self.o["pages"] < 2:
            return "\n".join(L) + "\n"
        import re
        import subprocess
        i0 = L.index("L_touch0:")
        it, ie = L.index("L_tail:"), L.index("L_tail_end:")
        probe = []
        for i, x in enumerate(L):
            if it < i <= ie:
                probe.append(f"L_pos{i}:")
            if x != "@DISPATCH":
                probe.append(x)
        open("probe.s", "w").write("\n".join(probe) + "\n")
        subprocess.run(["clang", "-x", "assembler", "-target", "amdgcn-amd-amdhsa", "-mcpu=gfx950",
                        "-c", "probe.s", "-o", "probe.o"], check=True)
        sym = subprocess.run(["llvm-readelf", "-s", "probe.o"], capture_output=True, text=True).stdout
        addr = {m.group(2): int(m.group(1), 16) for m in re.finditer(r"^\s*\d+: ([0-9a-f]+)\s.*\s(\S+)$", sym, re.M)}
        base = addr["L_page1"]
        win = self.o["win"]
        out, n, covered = [], 1, (addr["L_touch0"] - base) // 64 * 64 + win
        if not self.o["touch1"]:
            covered = 4096
        for i, x in enumerate(L):
            if it < i < ie:
                pos = addr[f"L_pos{i}"] - base + 4 * (n - 1)
                if pos >= covered:
                    out += [f"L_touch{n}:", "    s_cbranch_scc0 L_touched"]
                    n += 1
                    covered = min(pos // 64 * 64 + win, (pos // 4096 + 1) * 4096)
            out.append(x)
        disp = []
        for k, t in enumerate(["L_page1"] + [f"L_touch{k}" for k in range(0 if self.o["touch1"] else 1, n)]):
            disp += [f"    s_cmp_lg_u32 s21, {k}", f"    s_cbranch_scc0 {t}"]
        j = out.index("@DISPATCH")
        out[j:j + 1] = disp
        return "\n".join(out) + "\n"


if __name__ == "__main__":
    out = sys.argv[1]
    opts = {}
    for a in sys.argv[2:]:
        k, v = a.split("=")
        try:
            v = int(v)
        except ValueError:
            try:
                v = float(v)
            except ValueError:
                v = v.replace("+", " ")
        opts[k] = v
    open(out, "w").write(G(**opts).gen())
```

```python
import sys

HEADER = open("standalone__batchnorm__prompt.s.ref").read().split("; Override launch")[0]
KN = "standalone__batchnorm__prompt_kernel"

PS = 33 * 128
XBUF = 263 * 128
NXB = 3
WBUF = 3 * 32 * 128
NWB = 5
WBASE = NXB * XBUF
PB = WBASE + NWB * WBUF
LDS = PB + 512
STG = 2 * XBUF

ACC = 64
SET = (128, 192)
TMP = 32


def cnt(i):
    return (3, 5, 4, 3)[i % 4]


def need(u):
    return 2 * u + 3 if u % 2 == 0 else 2 * u + 2


class G:
    def __init__(self, **o):
        self.o = dict(stamps=0, trace=0, no_dma=0, no_reads=0, no_mfma=0, no_epi=0, no_store=0,
                      lastrd=33, prio_c=1, prio_l=0, lfirst=1, order=17, xaux="", waux="", saux="sc1", xmap=0,
                      probe="", xor=1, nt=4, fpre=7, fbar=16, flast=38, hold=12, split0=1, touch1=0, direct=0, bars='01234567', wq=1, modeb=0, fall=0, rord=0, lbar=0, topw=6, tbar=4, idle=0, nsc=8, saux2='', pat='8,10,12,14', pwg=-1, rrate=0.8, x0=4, pace=1.04, pk=2, alt=0, lead=6, cum="6",
                      rotx=1, rotk=1, tchk=31, endq="61,64", pchk=50, blag=7, cpf=0, pstamp=0, brpos=45, pages=2, lpad=0, win=1280, latebar=0, diag=0, wpair=1, cmode=0, swap=0, base="_456789AB0123CDEF", mask="_3333333333333333", maskb="_0000000000000000")
        self.o.update(o)
        self.l = []
        self.nlab = 0
        self.late = []
        self.late_table = None
        self.inloop = 0
        self.flow = 0

    def e(self, s):
        self.l.append("    " + s)

    def lab(self, s):
        self.l.append(s + ":")

    def stamp(self, i):
        if self.o["stamps"]:
            self.e(f"s_memtime s[{60 + 4 * i}:{61 + 4 * i}]")
            self.e(f"s_memrealtime s[{62 + 4 * i}:{63 + 4 * i}]")
            self.e("s_waitcnt lgkmcnt(0)")

    def lbarrier(self):
        e = self.e
        e("s_barrier")
        if self.o["trace"]:
            e("s_memtime s[56:57]")
            e("s_memrealtime s[80:81]")
            e("s_mov_b32 m0, s55")
            e("s_waitcnt lgkmcnt(0)")
            e("v_writelane_b32 v62, s56, m0")
            e("v_writelane_b32 v63, s80, m0")
            e("s_add_u32 s55, s55, 1")

    def dump_stamps(self, n, role):
        if not self.o["stamps"]:
            return
        e = self.e
        if self.o["probe"]:
            prole, a, z, kind, mult = self.o["probe"].split(",")
            if prole == role:
                off = 62 if kind == "t" else 60
                e(f"s_sub_u32 s3, s{off + 4 * int(z)}, s{off + 4 * int(a)}")
                if kind == "t":
                    e(f"s_mul_i32 s3, s3, {mult}")
                else:
                    e(f"s_lshr_b32 s3, s3, {mult}")
                e("s_min_u32 s3, s3, 50000")
                if self.o["pwg"] >= 0:
                    e(f"s_cmp_eq_u32 s2, {self.o['pwg']}")
                    e("s_cselect_b32 s3, s3, 0")
                self.lab(f"L_spin_{role}")
                e("s_memrealtime s[56:57]")
                e("s_waitcnt lgkmcnt(0)")
                e(f"s_sub_u32 s56, s56, s{62 + 4 * (n - 1)}")
                e("s_cmp_lt_u32 s56, s3")
                e(f"s_cbranch_scc1 L_spin_{role}")
            return
        e("s_load_dwordx2 s[34:35], s[0:1], 64")
        e("s_waitcnt lgkmcnt(0)")
        e("v_mov_b32 v40, 0")
        for i in range(n):
            e(f"v_writelane_b32 v40, s{60 + 4 * i}, {2 * i}")
            e(f"v_writelane_b32 v40, s{62 + 4 * i}, {2 * i + 1}")
        for i in range(4):
            e(f"v_writelane_b32 v40, s{86 + i}, {12 + i}")
        e("s_lshl_b32 s3, s2, 3")
        e("s_and_b32 s18, s18, 3")
        if role == "l":
            e("s_add_u32 s18, s18, 4")
        e("s_add_u32 s3, s3, s18")
        e("s_lshl_b32 s3, s3, 6")
        e("v_lshl_add_u32 v41, v0, 2, s3")
        if self.o["trace"] and role == "l":
            e("s_lshl_b32 s3, s3, 2")
            e("s_add_u32 s3, s3, 0x100000")
            e("v_lshl_add_u32 v42, v0, 2, s3")
            e("v_subrev_u32 v62, s60, v62")
            e("v_subrev_u32 v63, s62, v63")
            e("v_lshl_or_b32 v63, v63, 18, v62")
            e("global_store_dword v42, v63, s[34:35]")
        e("s_mov_b64 exec, 0xffff")
        e("global_store_dword v41, v40, s[34:35]")

    def issue_x(self, half):
        e = self.e
        aux = self.o["xaux"]
        self.hooks.pop("x", lambda: None)()
        if self.o["no_dma"]:
            self.hooks.pop("halo", lambda: None)()
        if not self.o["no_dma"] and not (self.o["diag"] & 8 and self.inloop):
            e(f"s_add_u32 m0, s41, s{86 + half}")
            e(f"s_add_u32 s45, s40, s{88 + half}")
            e(f"buffer_load_dwordx4 v2, s[4:7], s45 offen {aux} lds")
            for p in range(1, 4):
                a, b = (45, 46) if p & 1 else (46, 45)
                e("s_add_u32 m0, m0, s54")
                e(f"s_add_u32 s{b}, s{a}, s53")
                e(f"buffer_load_dwordx4 v2, s[4:7], s{b} offen {aux} lds")
            self.hooks.pop("halo", lambda: None)()
            if half == 0 and not self.o["diag"] & 64:
                e("s_add_u32 m0, s41, s44")
                e("s_mov_b64 exec, 15")
                e(f"buffer_load_dwordx4 v3, s[4:7], s40 offen {aux} lds")
                e("s_mov_b64 exec, -1")
        if half == 0:
            return
        e(f"s_add_u32 s41, s41, {XBUF}")
        e("s_cmp_ge_u32 s41, s51")
        e("s_cselect_b32 s41, s50, s41")

    def issue(self, i):
        if i % 4 in (0, 3):
            self.issue_w(i & 1)
        else:
            self.issue_x(i % 4 - 1)

    def issue_w(self, second):
        e = self.e
        if not self.o["no_dma"] and not (self.o["diag"] & 16 and self.inloop):
            aux = self.o["waux"]
            e("s_mov_b32 m0, s43")
            e("s_add_u32 s45, s42, s38")
            e(f"buffer_load_dwordx4 v4, s[8:11], s42 offen {aux} lds")
            e("s_add_u32 m0, m0, s39")
            e("s_add_u32 s46, s45, s38")
            e(f"buffer_load_dwordx4 v4, s[8:11], s45 offen {aux} lds")
            e("s_add_u32 m0, m0, s39")
            e(f"s_addk_i32 s43, {WBUF}")
            e(f"buffer_load_dwordx4 v4, s[8:11], s46 offen {aux} lds")
        else:
            e(f"s_addk_i32 s43, {WBUF}")
        e("s_cmp_ge_u32 s43, s49")
        e("s_cselect_b32 s43, s51, s43")
        if second:
            self.hooks.pop("table", lambda: None)()
            e("s_lshr_b64 s[82:83], s[82:83], 4")
            self.stage_offsets()
        else:
            e("s_xor_b32 s42, s42, 0x10000")

    def stage_offsets(self):
        e = self.e
        e("s_and_b32 s3, s82, 15")
        e("s_lshl_b32 s40, s3, 7")
        e("s_lshl_b32 s42, s3, 17")
        e("s_or_b32 s42, s42, s85")

    def param_load(self):
        e = self.e
        e("s_load_dwordx8 s[24:31], s[0:1], 16")
        e("v_add_lshl_u32 v8, s17, v0, 1")
        e("s_waitcnt lgkmcnt(0)")
        for i in range(4):
            e(f"global_load_ushort v{10 + i}, v8, s[{24 + 2 * i}:{25 + 2 * i}]")

    def param_calc(self):
        e = self.e
        if self.o["diag"] & 256:
            e(f"v_mov_b32 v14, {PB}")
            return
        e("s_cmp_lg_u32 s18, 0")
        e("s_cbranch_scc1 L_pc_done")
        for i in range(4):
            e(f"v_lshlrev_b32 v{10 + i}, 16, v{10 + i}")

        def rnd():
            e("v_cvt_pk_bf16_f32 v11, v11, v11")
            e("v_lshlrev_b32 v11, 16, v11")
        e("v_add_f32 v11, 0x3727c5ac, v11")
        rnd()
        e("v_sqrt_f32 v11, v11")
        e("s_nop 0")
        rnd()
        e("v_rcp_f32 v11, v11")
        e("s_nop 0")
        rnd()
        e("v_mul_f32 v11, v12, v11")
        rnd()
        e("v_fma_f32 v13, -v10, v11, v13")
        e("v_mul_f32 v11, 0xbfb8aa3b, v11")
        e("v_mul_f32 v13, 0xbfb8aa3b, v13")
        e("v_lshlrev_b32 v14, 2, v0")
        e(f"v_add_u32 v14, {PB}, v14")
        self.lab("L_pc_done")

    def pi(self, dst, j, t0, t1):
        e = self.e
        e(f"v_lshlrev_b32 v{dst}, 1, v{j}")
        e(f"v_cmp_lt_u32 vcc, 3, v{j}")
        e(f"v_subrev_u32 v{t0}, 7, v{dst}")
        e(f"v_subrev_u32 v{t1}, 16, v{dst}")
        e(f"v_cndmask_b32 v{dst}, v{dst}, v{t0}, vcc")
        e(f"v_cmp_lt_u32 vcc, 11, v{j}")
        e("s_nop 1")
        e(f"v_cndmask_b32 v{dst}, v{dst}, v{t1}, vcc")

    def loader(self):
        e = self.e
        o = self.o
        self.lab("L_loader")
        if o["prio_l"]:
            e(f"s_setprio {o['prio_l']}")
        base = [int(ch, 16) for ch in o["base"].lstrip("_")]
        mask = [int(ch, 16) for ch in o["mask"].lstrip("_")]
        maskb = [int(ch, 16) for ch in o["maskb"].lstrip("_")]
        for c in range(4):
            for cb in range(4):
                assert sorted(b ^ (c & m) ^ (cb & mb) for b, m, mb in zip(base, mask, maskb)) == list(range(16))
        assert mask[0] == 3 and o["rotk"] and o["rotx"] == 1 and o["lfirst"]
        pack = lambda v: sum(x << (4 * k) for k, x in enumerate(v))
        e("v_lshrrev_b32 v5, 3, v0")
        e("s_lshl_b32 s47, s18, 2")
        e("v_xor_b32 v6, s47, v0")
        e("s_xor_b32 s84, s22, s20")
        e("v_and_b32 v7, 2, v5")
        e("v_and_b32 v6, 7, v6")
        e(f"s_xor_b32 s3, s84, {base[0]}")
        e("s_lshl_b32 s85, s2, 13")
        e("v_xor_b32 v7, v7, v6")
        e("s_and_b32 s85, s85, 0x10000")
        e("s_lshl_b32 s42, s3, 17")
        e("v_lshlrev_b32 v7, 4, v7")
        e("s_or_b32 s42, s42, s85")
        e("s_lshl_b32 s50, s18, 10")
        e("v_lshl_add_u32 v4, v5, 11, v7")
        e("s_lshl3_add_u32 s45, s50, s17")
        e(f"s_add_u32 s51, s50, {WBASE}")
        e("v_lshl_add_u32 v4, s45, 1, v4")
        e("s_mov_b32 s10, 0x600000")
        e("s_mov_b32 s11, 0x20000")
        e("s_mov_b32 s43, s51")
        e("s_mov_b32 s38, 0x200000")
        e("s_movk_i32 s39, 4096")
        e(f"s_add_u32 s49, s51, {NWB * WBUF}")
        e("s_lshl_b32 s40, s3, 7")
        e("s_waitcnt lgkmcnt(0)")
        self.stamp(1)

        def x_setup():
            e("v_lshrrev_b32 v7, 1, v5")
            e("s_mov_b32 s6, 0x800000")
            e("v_xor_b32 v7, v7, v6")
            e("s_mov_b32 s7, s11")
            e("v_lshlrev_b32 v7, 4, v7")
            e("s_lshl4_add_u32 s3, s47, s16")
            e("v_lshl_add_u32 v2, v5, 14, v7")
            e("s_bitcmp1_b32 s17, 6")
            e(f"s_cselect_b32 s86, {4 * PS}, 0")
            e("v_lshl_add_u32 v2, s3, 11, v2")
            e("s_cselect_b32 s88, 0x2000, 0")
            e(f"s_add_u32 s41, s50, {XBUF}")
            e("s_movk_i32 s53, 2048")
            e(f"s_movk_i32 s54, {PS}")

        def halo_setup():
            e(f"s_xor_b32 s87, s86, {4 * PS}")
            e("s_xor_b32 s89, s88, 0x2000")
            e(f"s_movk_i32 s44, {230 * 128}")
            e("s_cmp_lt_u32 s18, 2")
            e("s_cselect_b32 s3, 256, 0")
            e("s_cselect_b32 s23, 256, -1")
            e("s_cselect_b32 s24, 0, 7")
            e(f"s_cmovk_i32 s44, {32 * 128}")
            e("s_add_u32 s3, s3, s16")
            e("s_add_u32 s23, s23, s16")
            e("s_lshl_b32 s23, s23, 11")
            e("s_and_b32 s3, s3, 2047")
            e("s_cselect_b32 s23, s23, 0x80000000")
            e("v_xor_b32 v7, s24, v6")
            e("s_and_b32 s47, s47, 4")
            e("v_lshl_add_u32 v3, v7, 4, s23")
            e("s_lshl4_add_u32 s44, s47, s44")
            e("s_sub_u32 s44, s44, s50")

        def table_setup():
            e("s_mul_i32 s3, s84, 0x11111111")
            for h in range(2):
                m = pack(mask[8 * h:8 * h + 8])
                if m == 0x33333333:
                    e(f"s_xor_b32 s{82 + h}, s3, {pack(base[8 * h:8 * h + 8]):#x}")
                else:
                    e(f"s_and_b32 s{82 + h}, s3, {m:#x}")
                    e(f"s_xor_b32 s{82 + h}, s{82 + h}, {pack(base[8 * h:8 * h + 8]):#x}")
            if any(maskb):
                if o["modeb"] == 0:
                    e("s_and_b32 s84, s84, 1")
                    e("s_lshr_b32 s3, s2, 2")
                    e("s_xor_b32 s3, s3, s2")
                    e("s_bfe_u32 s3, s3, 0x10004")
                    e("s_lshl1_add_u32 s84, s84, s3")
                elif o["modeb"] == 1:
                    e("s_lshl_b32 s3, s20, 1")
                    e("s_xor_b32 s84, s22, s3")
                else:
                    e("s_lshr_b32 s3, s2, 5")
                    e("s_and_b32 s3, s3, 2")
                    e("s_xor_b32 s84, s84, s3")
                e("s_mul_i32 s84, s84, 0x11111111")
                for h in range(2):
                    m = pack(maskb[8 * h:8 * h + 8])
                    if m:
                        e(f"s_and_b32 s3, s84, {m:#x}")
                        e(f"s_xor_b32 s{82 + h}, s{82 + h}, s3")
        self.hooks = {"x": x_setup, "halo": halo_setup, "table": table_setup}
        if o["trace"]:
            e("s_mov_b32 s55, 0")
        lead = o["lead"]
        st = {"issued": 0}

        def upto(c):
            while st["issued"] < min(c, 64):
                self.issue(st["issued"])
                st["issued"] += 1

        def step(u):
            nd = need(29) if u == 28 else need(u)
            e(f"s_waitcnt vmcnt({sum(cnt(v) for v in range(nd, st['issued']))})")
            self.lbarrier()

        cum = [int(v) for v in str(o["cum"]).split(",")]
        for u, c in enumerate(cum):
            assert need(u) <= c <= max(2 * u + 8 + (u & 1), 11)
            upto(c)
            if u == 0:
                e("s_cmp_eq_u32 s18, 0")
                e("s_cselect_b32 s48, 2, 64")
            step(u)
            if u == 0:
                self.stamp(2)
        u0 = len(cum)
        pat = [int(v) for v in str(o["pat"]).split(",")]
        per = 2 if pat[2] == pat[0] + 4 and pat[3] == pat[1] + 4 else 4
        after = lambda u: 8 * (u // 4) + pat[u % 4]
        legal = lambda u: 2 * u + 11 - (u & 1)
        assert all(after(u) <= legal(u) for u in range(4))
        assert st["issued"] <= after(u0 - 1)
        upto(after(u0 - 1))
        endq = [int(v) for v in str(o["endq"]).split(",") if v]
        nit = (28 - len(endq) - u0) // per
        e(f"s_mov_b32 s52, {nit - 1}")
        self.lab("L_lloop")
        self.inloop = 1
        for k in range(per):
            step(u0 + k)
            upto(after(u0 + k))
        e("s_cmp_lg_u32 s52, s48")
        e("s_cbranch_scc1 L_nopl")
        self.param_load()
        self.lab("L_nopl")
        e("s_sub_u32 s52, s52, 1")
        e("s_cbranch_scc0 L_lloop")
        st["issued"] += 2 * per * (nit - 1)
        e("s_load_dwordx2 s[12:13], s[0:1], 48")
        for u in range(u0 + per * nit, 29):
            step(u)
            k = u - (28 - len(endq))
            c = endq[k] if 0 <= k < len(endq) else after(u)
            assert c <= legal(u)
            upto(c)
        assert st["issued"] == 64
        self.param_calc()
        e("s_waitcnt vmcnt(0) lgkmcnt(0)")
        self.lbarrier()
        e("s_cmp_lg_u32 s18, 0")
        e("s_cbranch_scc1 L_pw_done")
        if not o["diag"] & 512:
            e("ds_write_b32 v14, v11")
            e("ds_write_b32 v14, v13 offset:256")
        e("s_waitcnt lgkmcnt(0)")
        self.lab("L_pw_done")
        self.lbarrier()
        self.stamp(3)
        self.store_setup()
        if o["diag"] & 32:
            e("s_movk_i32 s53, 2048")
        e("s_mov_b32 s46, 0")
        bars = [int(ch) for ch in str(o["bars"])]
        assert bars[-1] == (6 if o["direct"] else 7)
        tm = 0
        for b in bars:
            if not o["diag"] & 1:
                self.lbarrier()
            grp = list(range(tm, b + 1))
            for q, t2 in enumerate(grp):
                e(f"ds_read_b128 v[{28 + 4 * q}:{31 + 4 * q}], v17 offset:{t2 * 4096}")
            for q, t2 in enumerate(grp):
                e(f"s_waitcnt lgkmcnt({len(grp) - 1 - q})")
                if not o["no_store"]:
                    e(f"buffer_store_dwordx4 v[{28 + 4 * q}:{31 + 4 * q}], v16, s[12:15], s46 offen {o['saux'] if t2 < o['nsc'] else o['saux2']}")
                e("s_add_u32 s46, s46, s53")
            tm = b + 1
        if o["stamps"]:
            e("s_waitcnt vmcnt(0)")
        self.stamp(4)
        if o["stamps"]:
            e("s_branch L_ldump")

            def late():
                self.lab("L_ldump")
                self.dump_stamps(5, "l")
                e("s_endpgm")
            self.late.append(late)
        else:
            e("s_endpgm")

    def store_setup(self):
        e = self.e
        e("s_mov_b32 s14, 0x800000")
        e("s_mov_b32 s15, 0x20000")
        e("s_and_b32 s3, s18, 1")
        e("v_lshl_add_u32 v6, s3, 3, v5")
        self.pi(7, 6, 8, 9)
        e("s_lshr_b32 s3, s18, 1")
        e("s_lshl_b32 s3, s3, 7")
        e("s_add_u32 s3, s3, s16")
        e("s_lshl_b32 s3, s3, 10")
        e("s_add_u32 s3, s3, s17")
        e("s_lshl_b32 s3, s3, 1")
        e("v_and_b32 v8, 7, v0")
        e("v_lshl_add_u32 v9, v8, 4, s3")
        e("v_lshl_add_u32 v16, v7, 14, v9")
        e("v_xor_b32 v8, v8, v5")
        e("v_lshlrev_b32 v8, 4, v8")
        e("v_lshl_add_u32 v8, v5, 7, v8")
        e(f"s_add_u32 s3, s50, {STG}")
        e("v_add_u32 v17, s3, v8")

    def rd_f(self, r, kk, dl, off=0):
        a = 2 + 3 * kk
        if dl == 0:
            return [f"ds_read_b128 v[{r}:{r + 3}], v{a + 2} offset:{7 * PS - 128 + off}"]
        if dl == 9:
            return [f"ds_read_b128 v[{r}:{r + 3}], v{a + 1} offset:{off}"]
        return [f"ds_read_b128 v[{r}:{r + 3}], v{a} offset:{(dl - 1) * PS + off}"]

    def rd_g(self, r, k, t, off=0):
        return [f"ds_read_b64_tr_b16 v[{r + 2 * hh}:{r + 2 * hh + 1}], v{8 + t} offset:{k * 4096 + hh * 512 + off}"
                for hh in range(2)]

    def reads(self, st, kk):
        base = SET[st]
        if self.o["rord"] == 2:
            return [x for dl in range(10) for x in self.rd_f(base + 4 * dl, kk, dl)] + \
                   [x for t in range(2) for k in range(3) for x in self.rd_g(base + 40 + (k * 2 + t) * 4, k, t)]
        if self.o["lbar"] or self.o["rord"] == 1:
            out, seen = [], set()
            for k, t, tm in self.mfmas(st, raw=True):
                for nm in (("G", k, t), ("F", tm + k)):
                    if nm not in seen:
                        seen.add(nm)
                        out += self.rd_g(base + 40 + (k * 2 + t) * 4, k, t) if nm[0] == "G" else \
                            self.rd_f(base + 4 * nm[1], kk, nm[1])
            return out
        L = []
        for t in range(2):
            for k in range(3):
                L += self.rd_g(base + 40 + (k * 2 + t) * 4, k, t)
        X = []
        for dl in range(10):
            X += self.rd_f(base + 4 * dl, kk, dl)
        out = []
        while L or X:
            if X:
                out.append(X.pop(0))
            if L:
                out.append(L.pop(0))
        return out

    def mf(self, g, f, t, tm):
        acc = ACC + (tm * 2 + t) * 4
        return f"v_mfma_f32_16x16x32_bf16 v[{acc}:{acc + 3}], v[{g}:{g + 3}], v[{f}:{f + 3}], v[{acc}:{acc + 3}]"

    def mfmas(self, st, raw=False):
        od = self.o["order"]
        asc, desc = (0, 1, 2), (2, 1, 0)
        up, down = list(range(8)), list(range(7, -1, -1))
        if od == 0:
            seq = [(k, t, tm) for k in range(3) for t in range(2) for tm in range(8)]
        elif od == 4:
            seq = [(k, t, tm) for t in range(2) for tm in up for k in asc]
        elif od == 6:
            seq = [(k, t, tm) for t in range(2) for tm in up for k in (asc if tm % 2 == 0 else desc)]
        elif od == 7:
            seq = []
            for tm in up:
                ts = (0, 1) if tm % 2 == 0 else (1, 0)
                seq += [(k, ts[0], tm) for k in asc] + [(k, ts[1], tm) for k in desc]
        elif od == 9:
            seq = [(k, 0, tm) for tm in up for k in (asc if tm % 2 == 0 else desc)] + \
                  [(k, 1, tm) for tm in down for k in (asc if tm % 2 else desc)]
        elif od == 17:
            seq = [(k, st, tm) for tm in up for k in (asc if tm % 2 == 0 else desc)] + \
                  [(k, st ^ 1, tm) for tm in down for k in (asc if tm % 2 else desc)]
        elif od == 10:
            seq = [(k, t, tm) for t in range(2) for tm in up for k in desc]
        elif od == 11:
            seq = [(k, t, tm) for t in range(2) for tm in up for k in (0, 2, 1)]
        elif od == 12:
            seq = [(k, t, tm) for t in range(2) for tm in up for k in (1, 0, 2)]
        elif od == 13:
            rot = [(0, 1, 2), (2, 0, 1), (1, 2, 0)]
            seq = [(k, t, tm) for t in range(2) for tm in up for k in rot[tm % 3]]
        elif od == 14:
            rot = [(0, 2, 1), (1, 0, 2), (2, 1, 0)]
            seq = [(k, t, tm) for t in range(2) for tm in up for k in rot[tm % 3]]
        elif od == 15:
            seq = [(k, t, tm) for t in range(2) for tm in up for k in ((0, 2, 1) if tm % 2 == 0 else (1, 2, 0))]
        elif od == 16:
            seq = [(k, t, tm) for t in range(2) for tm in up for k in ((2, 0, 1) if tm % 2 == 0 else (1, 0, 2))]
        elif od >= 20:
            out = []
            for tm in up:
                ks = [(0, k) for k in asc] + [(1, k) for k in (asc if od == 20 else desc)]
                if od != 22 and tm % 2:
                    ks = ks[::-1]
                out += [self.mf(SET[s_] + 40 + (k * 2 + st) * 4, SET[s_] + 4 * (tm + k), st, tm) for s_, k in ks]
            return out
        if raw:
            return seq
        M = [(SET[st] + 40 + (k * 2 + t) * 4, SET[st] + 4 * (tm + k), t, tm) for k, t, tm in seq]
        if self.o["swap"]:
            M = [(f, g, t, tm) for g, f, t, tm in M]
        return [self.mf(*m) for m in M]

    def substage(self, st, pre):
        o = self.o
        M = self.mfmas(st)
        R = self.reads(st ^ 1, st ^ 1) if not o["no_reads"] else []
        if o["diag"] & 1024:
            R = [r for r in R if "tr" not in r]
        if o["diag"] & 2048:
            R = [r for r in R if "tr" in r]
        if o["diag"] & 4096:
            R = [r.replace("b64_tr_b16", "b64") for r in R]
        fill = {}
        lb = o["lbar"]
        sp = (o["lastrd"] - lb) / 22.0
        if lb:
            fill[lb - 1] = ["s_waitcnt lgkmcnt(0)", "s_barrier"]
        for i, r in enumerate(R):
            fill.setdefault(lb + int(i * sp), []).append(r)
        pos = 0 if lb else o["lastrd"]
        for i, p in enumerate(pre):
            fill.setdefault(min(pos + i, 47), []).extend(p)
        top = [f"s_waitcnt lgkmcnt({o['topw']})"] if lb else ["s_waitcnt lgkmcnt(0)", "s_barrier"] + ["s_nop 15"] * o["idle"]
        if lb and o["topw"] > 6:
            fill.setdefault({7: 20, 8: 19, 9: 14, 10: 13, 11: 8, 12: 7}[o["topw"]] - 1, []).append("s_waitcnt lgkmcnt(6)")
        out = []
        for i, m in enumerate(M):
            out.append((top if i == 0 else []) + ([m] if not o["no_mfma"] else []) + fill.get(i, []))
        return out

    def first(self, pre, nm_=48):
        e = self.e
        o = self.o
        seq = self.mfmas(0, raw=True)
        todo, queue, seen = [], [], set()
        for k, t, tm in seq:
            for nm in (("G", k, t), ("F", tm + k)):
                if nm not in todo:
                    todo.append(nm)

        def rd():
            nm = todo.pop(0)
            ops = self.rd_g(SET[0] + 40 + (nm[1] * 2 + nm[2]) * 4, nm[1], nm[2]) if nm[0] == "G" else \
                self.rd_f(SET[0] + 4 * nm[1], 0, nm[1])
            for op in ops:
                e(op)
                queue.append(nm)
        for _ in range(o["fpre"]):
            rd()
        R = self.reads(1, 1)
        bar = o["fbar"]
        sp = (o["flast"] - bar) / 22.0
        fill = {bar - 1: ["v_add_u32 v8, s53, v8", "v_add_u32 v9, s53, v9"], bar: ["s_waitcnt lgkmcnt(0)", "s_barrier"]}
        for i, r in enumerate(R):
            fill.setdefault(bar + int(i * sp), []).append(r)
        for i, p in enumerate(pre):
            fill.setdefault(min(o["flast"] + i * 2 // 3, nm_ - 1), []).extend(p)
        for i, (k, t, tm) in enumerate(seq[:nm_]):
            idx = max((q for q, tg in enumerate(queue) if tg in (("G", k, t), ("F", tm + k))), default=-1)
            if idx >= 0:
                n = min(len(queue) - 1 - idx, 14)
                e(f"s_waitcnt lgkmcnt({n})")
                del queue[:len(queue) - n]
            m = self.mf(SET[0] + 40 + (k * 2 + t) * 4, SET[0] + 4 * (tm + k), t, tm)
            if (t, tm) not in seen:
                seen.add((t, tm))
                m = m[:m.rindex(",")] + ", 0"
            e(m)
            if todo:
                assert i < bar - 1
                rd()
            if i == bar:
                del queue[:]
            for x in fill.get(i, []):
                e(x)

    def epi_ops(self, un):
        tm, t = un >> 1, un & 1
        a = ACC + un * 4
        tb = TMP + 4 * t
        L = []
        if not self.o["no_epi"] and not (self.o["pk"] == 1 or (self.o["pk"] == 2 and un == 15)):
            for r in range(4):
                L.append(f"v_fma_f32 v{a + r}, v{a + r}, v{16 + 4 * t + r}, v{24 + 4 * t + r}")
            for r in range(4):
                L.append(f"v_exp_f32 v{tb + r}, v{a + r}")
            for r in range(4):
                L.append(f"v_fma_f32 v{tb + r}, v{tb + r}, s42, s42")
            for r in range(4):
                L.append(f"v_rcp_f32 v{tb + r}, v{tb + r}")
            for r in range(4):
                L.append(f"v_mul_f32 v{tb + r}, v{tb + r}, v{a + r}")
            for p in range(2):
                L.append(f"v_cvt_pk_bf16_f32 v{a + p}, v{tb + 2 * p}, v{tb + 2 * p + 1}")
        elif not self.o["no_epi"]:
            for p in range(2):
                q = 4 * t + 2 * p
                L.append(f"v_pk_fma_f32 v[{a + 2 * p}:{a + 2 * p + 1}], v[{a + 2 * p}:{a + 2 * p + 1}], v[{16 + q}:{17 + q}], v[{24 + q}:{25 + q}]")
            for r in range(4):
                L.append(f"v_exp_f32 v{tb + r}, v{a + r}")
            for p in range(2):
                L.append(f"v_pk_fma_f32 v[{tb + 2 * p}:{tb + 2 * p + 1}], v[{tb + 2 * p}:{tb + 2 * p + 1}], s[42:43], s[42:43]")
            for r in range(4):
                L.append(f"v_rcp_f32 v{tb + r}, v{tb + r}")
            for p in range(2):
                L.append(f"v_pk_mul_f32 v[{tb + 2 * p}:{tb + 2 * p + 1}], v[{tb + 2 * p}:{tb + 2 * p + 1}], v[{a + 2 * p}:{a + 2 * p + 1}]")
            for p in range(2):
                L.append(f"v_cvt_pk_bf16_f32 v{a + p}, v{tb + 2 * p}, v{tb + 2 * p + 1}")
        if self.o["direct"] and tm == 7:
            if t:
                L = [x.replace(f"v_cvt_pk_bf16_f32 v{a},", f"v_cvt_pk_bf16_f32 v{a - 2},")
                      .replace(f"v_cvt_pk_bf16_f32 v{a + 1},", f"v_cvt_pk_bf16_f32 v{a - 1},") for x in L]
                L += ["s_nop 0", f"v_permlane16_swap_b32 v{a - 4}, v{a - 2}", f"v_permlane16_swap_b32 v{a - 3}, v{a - 1}"]
                if not self.o["no_store"]:
                    L.append(f"buffer_store_dwordx4 v[{a - 4}:{a - 1}], v0, s[12:15], 0 offen {self.o['saux']}")
        elif self.o["diag"] & 2:
            L.append("ds_read_b32 v12, v1")
        elif self.o["wpair"]:
            if t:
                L.insert(len(L) - 2, f"DS ds_write_b64 v1, v[{a - 4}:{a - 3}] offset:{tm * 4096}")
                L.append(f"ds_write_b64 v11, v[{a}:{a + 1}] offset:{tm * 4096}")
        else:
            L.append(f"ds_write_b64 v{11 if t else 1}, v[{a}:{a + 1}] offset:{tm * 4096}")
        return L

    def tail(self):
        e = self.e
        o = self.o
        nt = o["nt"]
        seq = []
        for u in range(27, 32 - nt):
            for tm in range(8):
                ts = (0, 1) if tm % 2 else (1, 0)
                seq += [(u, k, ts[0], tm) for k in (0, 1, 2)] + [(u, k, ts[1], tm) for k in (2, 1, 0)]
        done_at = {}
        for tm in range(8):
            if o["alt"]:
                for u in range(32 - nt, 32):
                    seq += [(u, k, t, tm) for k in range(3) for t in range(2)]
                done_at[2 * tm] = len(seq) - 2
                done_at[2 * tm + 1] = len(seq) - 1
                continue
            lo = 32 - nt
            if tm == 0 and nt == 4 and o["split0"]:
                seq += [(u, k, t, tm) for t in range(2) for u in (28, 29) for k in range(3)]
                lo = 30
            for t in range(2):
                for u in range(lo, 32):
                    seq += [(u, k, t, tm) for k in range(3)]
                done_at[2 * tm + t] = len(seq) - 1
        first, last = {}, {}
        for i, (u, k, t, tm) in enumerate(seq):
            for nm in (("G", u, k, t), ("F", u, tm + k)):
                first.setdefault(nm, i)
                last[nm] = i
        reg = {}
        for dl in range(10):
            reg[("F", 27, dl)] = SET[1] + 4 * dl
        for k in range(3):
            for t in range(2):
                reg[("G", 27, k, t)] = SET[1] + 40 + (k * 2 + t) * 4
        free = list(range(SET[0], SET[0] + 64, 4)) + list(range(TMP + 8, 64, 4)) + [12]
        todo = sorted((nm for nm in first if nm not in reg), key=lambda nm: first[nm])
        par = [("P", i) for i in range(4)]
        npar = max(0, len([nm for nm in todo if first[nm] <= done_at[0] + 4]))
        todo = todo[:npar] + par + todo[npar:]
        queue = []

        def lds(op, tag=None):
            e(op)
            queue.append(tag)

        def wait_for(tags):
            idx = max((i for i, tg in enumerate(queue) if tg in tags), default=-1)
            if idx >= 0:
                n = min(len(queue) - 1 - idx, 14)
                e(f"s_waitcnt lgkmcnt({n})")
                del queue[:len(queue) - n]

        half = []

        def issue_read(nm):
            if nm[0] == "P":
                i = nm[1]
                lds(f"ds_read_b128 v[{16 + 4 * i}:{19 + 4 * i}], v10 offset:{(i >> 1) * 256 + (i & 1) * 64}", nm)
                return
            r = free.pop(0)
            reg[nm] = r
            u = nm[1]
            if nm[0] == "F":
                ops = self.rd_f(r, u & 1, nm[2], XBUF * ((u >> 1) - 14))
            else:
                ops = self.rd_g(r, nm[2], nm[3], WBUF * (u % NWB))
            if not o["no_reads"]:
                lds(ops[0], nm)
                half.extend((op, nm) for op in ops[1:])

        e("s_waitcnt lgkmcnt(0)")
        self.stamp(3)
        if not o["lbar"]:
            e("s_barrier")
        chk, pchk = o["tchk"], o["pchk"]
        head = {0: [f"v_subrev_u32 v8, {3 * WBUF}, v8", "s_mov_b32 s43, s42"], 1: [f"v_subrev_u32 v9, {3 * WBUF}, v9"],
                2: ["v_add_u32 v5, s55, v5"], 3: ["v_add_u32 v6, s55, v6"], 4: ["v_add_u32 v7, s55, v7"],
                chk: ["s_barrier"], pchk: ["s_barrier"]}
        avail = {28: 1, 29: 5, 30: chk, 31: chk}
        if o["lbar"]:
            tb = o["tbar"]
            head = {0: [f"v_subrev_u32 v8, {2 * WBUF}, v8", f"v_subrev_u32 v9, {2 * WBUF}, v9", "s_mov_b32 s43, s42"],
                    1: ["v_add_u32 v2, s47, v2", "v_add_u32 v3, s47, v3"], 2: ["v_add_u32 v4, s47, v4", "v_add_u32 v5, s47, v5"],
                    3: ["v_add_u32 v6, s47, v6", "v_add_u32 v7, s47, v7"],
                    tb: ["s_barrier"], chk: ["s_barrier"], pchk: ["s_barrier"]}
            avail = {28: tb + 1, 29: tb + 1, 30: chk, 31: chk}
        bar_at = {}
        quiet = -1
        bars = [int(ch) for ch in str(o["bars"])]
        cost = lambda x: 8 if ("v_exp" in x or "v_rcp" in x) else 12 if "ds_write" in x else 4
        cur, pend, nxt = [], [], 0
        mark = {}
        credit = 0.0
        per_gap = sum(cost(x) for x in self.epi_ops(0) + self.epi_ops(1)) / (6.0 * nt) * o['pace'] + 0.5
        stalls = []
        for i, (u, k, t, tm) in enumerate(seq):
            g, f = ("G", u, k, t), ("F", u, tm + k)
            while g in todo or f in todo or any(nm == g for _, nm in half):
                stalls.append(i)
                if half:
                    lds(*half.pop(0))
                else:
                    issue_read(todo.pop(0))
            wait_for({g, f})
            if not o["no_mfma"]:
                e(self.mf(reg[g], reg[f], t, tm))
            if nxt < 16 and done_at[nxt] == i:
                mark[nxt] = len(self.l)
                pend.append(nxt)
                nxt += 1
            for nm in (g, f):
                if last[nm] == i:
                    free.append(reg[nm])
            for x in head.get(i, []):
                e(x)
            if i in bar_at and not o["latebar"]:
                wait_for({bar_at.pop(i)})
                e("s_barrier")
            wnext = cur and any(x[:2].lower() == "ds" for x in cur[:3])
            if i >= 1 and i not in (chk, pchk) and not (wnext and not half) and i > quiet:
                if half:
                    lds(*half.pop(0))
                    credit -= 4 * bool(cur or pend)
                else:
                    hold = min([first[nm] for nm in todo if nm[0] != "P" and i < avail[nm[1]]], default=999)
                    cand = [nm for nm in todo if (i >= pchk if nm[0] == "P" else
                                                  i >= avail[nm[1]] and first[nm] <= hold + o["hold"])]
                    if cand and (cand[0][0] == "P" or free):
                        todo.remove(cand[0])
                        issue_read(cand[0])
                        credit -= 4 * bool(cur or pend)
            if cur or pend:
                credit += per_gap
            while credit > 0:
                if not cur:
                    if not pend or len(self.l) - mark[pend[0]] < 8:
                        credit = 0
                        break
                    wait_for(set(par))
                    curun = pend.pop(0)
                    cur = self.epi_ops(curun)
                x = cur.pop(0)
                if x.startswith("DS "):
                    lds(x[3:])
                elif x.startswith("ds_"):
                    lds(x, ("W", curun))
                    if curun & 1:
                        free.extend([ACC + 4 * curun - 4, ACC + 4 * curun])
                    quiet = i + o["wq"]
                    if curun & 1 and curun >> 1 in bars and not o["diag"] & 1:
                        bar_at[i + o["blag"]] = ("W", curun)
                else:
                    e(x)
                credit -= cost(x)
        assert not todo
        if stalls:
            print("tail: late reads at", stalls, file=sys.stderr)
        rest = [(curun, cur)] if cur else []
        rest += [(un, None) for un in pend]
        for un, ops in rest:
            if ops is None:
                gap = len(self.l) - mark[un]
                if gap < 8:
                    e(f"s_nop {7 - gap}")
                ops = self.epi_ops(un)
            for x in ops:
                if x.startswith("DS "):
                    lds(x[3:])
                elif x.startswith("ds_"):
                    for key in sorted(bar_at):
                        wait_for({bar_at.pop(key)})
                        e("s_barrier")
                    lds(x, ("W", un))
                    if un & 1 and un >> 1 in bars and not o["diag"] & 1:
                        bar_at[un] = ("W", un)
                else:
                    e(x)
        for key in sorted(bar_at):
            wait_for({bar_at.pop(key)})
            e("s_barrier")

    def compute(self):
        e = self.e
        o = self.o
        if o["pages"]:
            e(".p2align 12")
            self.lab("L_page1")
        self.lab("L_compute")
        e("s_and_b32 s38, s18, 1")
        e("s_bfe_u32 s39, s18, 0x10001")
        e("v_and_b32 v10, 15, v0")
        e("v_lshrrev_b32 v16, 4, v0")
        if o["cpf"]:
            e("s_getpc_b64 s[20:21]")
            e("v_lshlrev_b32 v12, 7, v0")
            e("v_mov_b32 v13, s21")
            e("v_add_co_u32 v12, vcc, s20, v12")
            e("s_cmp_lt_u32 s36, %d" % o["cpf"])
            e("s_cselect_b32 s3, s18, 1")
            e("v_addc_co_u32 v13, vcc, 0, v13, vcc")
            e("s_and_b32 s3, s3, 3")
            e("s_cbranch_scc1 L_nocpf")
            e("s_mov_b32 exec_hi, (1 << (((L_end - L_compute) >> 7) - 32)) - 1")
            e("global_load_dword v14, v[12:13], off")
            e("s_mov_b32 exec_hi, -1")
            self.lab("L_nocpf")
        self.pi(17, 10, 18, 19)
        e("v_lshrrev_b32 v18, 2, v10")
        e("v_lshl_add_u32 v19, v16, 3, v18")
        e("v_lshlrev_b32 v19, 7, v19")
        e("v_and_b32 v20, 3, v10")
        e("v_lshl_add_u32 v19, v20, 3, v19")
        e("v_lshrrev_b32 v18, 1, v18")
        e("v_and_b32 v20, 1, v16")
        e("v_lshl_or_b32 v18, v20, 1, v18")
        e("s_lshl_b32 s45, s39, 1")
        e("v_xor_b32 v18, s45, v18")
        e("v_lshl_add_u32 v19, v18, 5, v19")
        e(f"v_add_u32 v8, {WBASE}, v19")
        e("v_xor_b32 v9, 32, v8")
        e("s_lshl_b32 s3, s38, 11")
        e(f"s_add_u32 s46, s3, {XBUF}")
        if o["rotk"]:
            e("s_bfe_u32 s47, s16, 0x10008")
            e("v_lshl_or_b32 v21, s47, 2, v16")
        for idx, sh in ((0, 0), (1, 1), (2, -1)):
            e(f"v_add_u32 v18, {sh}, v17")
            e("v_bfe_u32 v19, v18, 1, 3")
            e(f"v_xor_b32 v19, v19, v{21 if o['rotk'] else 16}")
            e("v_lshlrev_b32 v19, 4, v19")
            e(f"v_lshl_add_u32 v19, v{17 if sh == -1 else 18}, 7, v19")
            e(f"v_add_u32 v{2 + idx}, s46, v19")
            e(f"v_xor_b32 v{5 + idx}, 64, v{2 + idx}")
        e("v_lshrrev_b32 v18, 1, v16")
        e("v_lshl_add_u32 v18, s39, 2, v18")
        e("v_and_b32 v19, 7, v10")
        e("v_xor_b32 v18, v18, v19")
        e("v_lshlrev_b32 v18, 4, v18")
        e("v_lshl_add_u32 v18, v20, 3, v18")
        e("v_lshl_add_u32 v18, v10, 7, v18")
        e(f"s_add_u32 s3, s3, {STG}")
        e("v_add_u32 v1, s3, v18")
        e("v_xor_b32 v11, 32, v1")
        if o["direct"]:
            e("s_lshl_b32 s3, s38, 7")
            e("s_add_u32 s3, s3, s16")
            e("s_add_u32 s3, s3, 7")
            e("s_lshl_b32 s3, s3, 10")
            e("s_lshl_b32 s45, s39, 5")
            e("s_add_u32 s3, s3, s45")
            e("s_add_u32 s3, s3, s17")
            e("s_lshl_b32 s3, s3, 1")
            e("v_lshl_add_u32 v18, v20, 5, s3")
            e("v_lshrrev_b32 v19, 1, v16")
            e("v_lshl_add_u32 v18, v19, 4, v18")
            e("v_lshl_add_u32 v0, v17, 14, v18")
            e("s_waitcnt lgkmcnt(0)")
        e("s_lshl_b32 s3, s39, 7")
        e(f"s_add_u32 s3, s3, {PB}")
        e("v_lshl_add_u32 v10, v16, 4, s3")
        if o["fall"]:
            seq = self.mfmas(0, raw=True)
            for t, tm in sorted({(t, tm) for k, t, tm in seq[o["brpos"]:]} - {(t, tm) for k, t, tm in seq[:o["brpos"]]}):
                for h in range(2):
                    r = ACC + (tm * 2 + t) * 4 + 2 * h
                    e(f"v_mov_b64 v[{r}:{r + 1}], 0")
            for _ in range(o["lpad"]):
                e("s_nop 0")
        e("s_mov_b32 s40, 1")
        e("s_mov_b32 s41, 1")
        e("s_mov_b32 s42, 0xbfb8aa3b")
        e(f"s_movk_i32 s53, {WBUF}")
        e(f"s_mov_b32 s54, {XBUF}")
        e(f"s_mov_b32 s46, {-(NWB - 1) * WBUF & 0xffffffff:#x}")
        e(f"s_mov_b32 s47, {-(NXB - 1) * XBUF & 0xffffffff:#x}")
        e("s_mov_b32 s52, 12")
        if o["prio_c"]:
            e(f"s_setprio {o['prio_c']}")
        self.stamp(1)
        e("s_barrier")
        self.stamp(2)

        def wadv():
            return [["s_add_u32 s41, s41, 1", f"s_cmp_eq_u32 s41, {NWB}"],
                    ["s_cselect_b32 s43, s46, s53", "s_cselect_b32 s41, 0, s41"],
                    ["v_add_u32 v8, s43, v8"], ["v_add_u32 v9, s43, v9"]]

        pre0 = wadv() + [["s_add_u32 s40, s40, 1", f"s_cmp_eq_u32 s40, {NXB}"],
                         ["s_cselect_b32 s55, s47, s54", "s_cselect_b32 s40, 0, s40"]] + \
            [[f"v_add_u32 v{2 + i}, s55, v{2 + i}"] for i in range(3)]
        pre1 = wadv() + [[f"v_add_u32 v{5 + i}, s55, v{5 + i}"] for i in range(3)]
        if o["lbar"]:
            assert o["topw"] <= 6 or o["lbar"] > {7: 20, 8: 19, 9: 14, 10: 13, 11: 8, 12: 7}[o["topw"]]
            self.first([], 48)
            body = self.substage(1, pre0) + self.substage(0, pre1 + [["s_sub_u32 s52, s52, 1"]])
        else:
            self.first(pre0, o["brpos"] if o["fall"] else 48)
            body = self.substage(1, pre1) + self.substage(0, pre0 + [["s_sub_u32 s52, s52, 1"]])
        cut = 48 + o["brpos"]
        if not o["fall"]:
            e("s_branch L_centry")
        if o["pages"]:
            self.lab("L_touch0")
        if not o["fall"]:
            e(".p2align 6")
            for _ in range(o["lpad"]):
                e("s_nop 0")
        self.lab("L_cloop")
        for gap in body[cut:]:
            for x in gap:
                e(x)
        self.lab("L_centry")
        for gap in body[:cut]:
            for x in gap:
                e(x)
        e("s_cbranch_scc0 L_cloop")
        for gap in body[cut:]:
            for x in gap:
                e(x)
        self.lab("L_tail")
        self.tail()
        self.lab("L_tail_end")
        if o["stamps"] and o["direct"]:
            e("s_waitcnt vmcnt(0)")
            e("v_mbcnt_lo_u32_b32 v0, -1, 0")
            e("v_mbcnt_hi_u32_b32 v0, -1, v0")
        self.stamp(4)
        self.dump_stamps(5, "c")
        e("s_endpgm")

    def gen(self):
        e = self.e
        o = self.o
        self.l.append(HEADER.rstrip())
        self.l.append(f"; @launch grid=(256,1,1) block=(512,1,1) lds={LDS}")
        self.l.append('.amdgcn_target "amdgcn-amd-amdhsa--gfx950"')
        self.l.append(".text")
        self.l.append(f".globl {KN}")
        if o["pages"]:
            self.l.append(".p2align 12")
        self.l.append(".p2align 8")
        self.l.append(f".type {KN},@function")
        self.lab(KN)
        e("s_cmp_ge_u32 s2, 256")
        e("s_cbranch_scc1 L_end")
        if o["stamps"]:
            e("s_memtime s[60:61]")
            e("s_memrealtime s[62:63]")
        e("s_load_dwordx2 s[8:9], s[0:1], 8")
        e("s_load_dwordx2 s[4:5], s[0:1], 0")
        e("v_readfirstlane_b32 s18, v0")
        e("v_and_b32 v0, 63, v0")
        e("s_lshr_b32 s17, s2, 5")
        e("s_and_b32 s20, s2, 1")
        e("s_lshl3_add_u32 s17, s20, s17")
        e("s_bfe_u32 s22, s2, 0x20001")
        e("s_bfe_u32 s16, s2, 0x20003")
        e("s_lshl2_add_u32 s16, s22, s16")
        e("s_lshr_b32 s18, s18, 6")
        e("s_lshl_b32 s17, s17, 6")
        e("s_lshl_b32 s16, s16, 8")
        e("s_cmp_ge_u32 s18, 4")
        if o["pages"] >= 2:
            e("s_cbranch_scc0 L_loader")
            self.l.append("@DISPATCH")
            e("s_branch L_compute")
        else:
            e(("s_cbranch_scc1" if o["lfirst"] else "s_cbranch_scc0") + " L_compute")
        self.loader()
        self.compute()
        for f in self.late:
            f()
        self.lab("L_end")
        e("s_endpgm")
        self.l.append(f""".section .rodata,"a"
.p2align 6
.amdhsa_kernel {KN}
  .amdhsa_next_free_vgpr 256
  .amdhsa_next_free_sgpr 96
  .amdhsa_accum_offset 256
  .amdhsa_group_segment_fixed_size 0
  .amdhsa_kernarg_size 72
  .amdhsa_user_sgpr_count 2
  .amdhsa_user_sgpr_kernarg_segment_ptr 1
  .amdhsa_system_sgpr_workgroup_id_x 1
.end_amdhsa_kernel""")
        return self.finish()

    def finish(self):
        L = "\n".join(self.l).split("\n")
        if self.o["pages"] < 2:
            return "\n".join(L) + "\n"
        import re
        import subprocess
        i0 = L.index("L_touch0:")
        it, ie = L.index("L_tail:"), L.index("L_tail_end:")
        probe = []
        for i, x in enumerate(L):
            if it < i <= ie:
                probe.append(f"L_pos{i}:")
            if x != "@DISPATCH":
                probe.append(x)
        open("probe.s", "w").write("\n".join(probe) + "\n")
        subprocess.run(["clang", "-x", "assembler", "-target", "amdgcn-amd-amdhsa", "-mcpu=gfx950",
                        "-c", "probe.s", "-o", "probe.o"], check=True)
        sym = subprocess.run(["llvm-readelf", "-s", "probe.o"], capture_output=True, text=True).stdout
        addr = {m.group(2): int(m.group(1), 16) for m in re.finditer(r"^\s*\d+: ([0-9a-f]+)\s.*\s(\S+)$", sym, re.M)}
        base = addr["L_page1"]
        win = self.o["win"]
        out, n, covered = [], 1, (addr["L_touch0"] - base) // 64 * 64 + win
        if not self.o["touch1"]:
            covered = 4096
        for i, x in enumerate(L):
            if it < i < ie:
                pos = addr[f"L_pos{i}"] - base + 4 * (n - 1)
                if pos >= covered:
                    out += [f"L_touch{n}:", "    s_cbranch_scc0 L_compute"]
                    n += 1
                    covered = min(pos // 64 * 64 + win, (pos // 4096 + 1) * 4096)
            out.append(x)
        disp = []
        for k, t in enumerate([f"L_touch{k}" for k in range(0 if self.o["touch1"] else 1, n)]):
            assert k < 3
            disp += [f"    s_cmp_lg_u32 s18, {4 + k}", f"    s_cbranch_scc0 {t}"]
        j = out.index("@DISPATCH")
        out[j:j + 1] = disp
        return "\n".join(out) + "\n"


if __name__ == "__main__":
    out = sys.argv[1]
    opts = {}
    for a in sys.argv[2:]:
        k, v = a.split("=")
        if k == "bars":
            opts[k] = v
            continue
        try:
            v = int(v)
        except ValueError:
            try:
                v = float(v)
            except ValueError:
                v = v.replace("+", " ")
        opts[k] = v
    open(out, "w").write(G(**opts).gen())
```

```python
import sys

HEADER = open("standalone__batchnorm__prompt.s.ref").read().split("; Override launch")[0]
KN = "standalone__batchnorm__prompt_kernel"

PS = 33 * 128
XBUF = 263 * 128
NXB = 3
WBUF = 3 * 32 * 128
NWB = 5
WBASE = NXB * XBUF
PB = WBASE + NWB * WBUF
LDS = PB + 512
STG = 2 * XBUF

ACC = 64
SET = (128, 192)
TMP = 32


def cnt(i):
    return (3, 5, 4, 3)[i % 4]


def need(u):
    return 2 * u + 3 if u % 2 == 0 else 2 * u + 2


class G:
    def __init__(self, **o):
        self.o = dict(stamps=0, trace=0, no_dma=0, no_reads=0, no_mfma=0, no_epi=0, no_store=0,
                      lastrd=33, prio_c=1, prio_l=0, lfirst=1, order=17, xaux="", waux="", saux="sc1", xmap=0,
                      probe="", xor=1, nt=4, fpre=7, fbar=16, flast=38, hold=12, split0=1, touch1=0, direct=0, bars='01234567', wq=1, modeb=0, fall=0, rord=0, lbar=0, topw=6, tbar=4, idle=0, nsc=8, saux2='', pat='32,39,43,53', pwg=-1, rrate=0.8, x0=4, pace=1.04, pk=2, alt=0, lead=6, cum="23,30",
                      rotx=1, rotk=1, tchk=31, endq="229,240", pchk=50, blag=7, cpf=0, pstamp=0, brpos=45, pages=2, lpad=0, win=1280, latebar=0, diag=0, wpair=1, cmode=0, swap=0, base="_456789AB0123CDEF", mask="_3333333333333333", maskb="_0000000000000000")
        self.o.update(o)
        self.l = []
        self.nlab = 0
        self.late = []
        self.late_table = None
        self.inloop = 0
        self.flow = 0

    def e(self, s):
        self.l.append("    " + s)

    def lab(self, s):
        self.l.append(s + ":")

    def stamp(self, i):
        if self.o["stamps"]:
            self.e(f"s_memtime s[{60 + 4 * i}:{61 + 4 * i}]")
            self.e(f"s_memrealtime s[{62 + 4 * i}:{63 + 4 * i}]")
            self.e("s_waitcnt lgkmcnt(0)")

    def lbarrier(self):
        e = self.e
        e("s_barrier")
        if self.o["trace"]:
            e("s_memtime s[56:57]")
            e("s_memrealtime s[80:81]")
            e("s_mov_b32 s90, m0")
            e("s_mov_b32 m0, s55")
            e("s_waitcnt lgkmcnt(0)")
            e("v_writelane_b32 v62, s56, m0")
            e("v_writelane_b32 v63, s80, m0")
            e("s_add_u32 s55, s55, 1")
            e("s_mov_b32 m0, s90")

    def dump_stamps(self, n, role):
        if not self.o["stamps"]:
            return
        e = self.e
        if self.o["probe"]:
            prole, a, z, kind, mult = self.o["probe"].split(",")
            if prole == role:
                off = 60 if kind == "c" else 62
                e(f"s_sub_u32 s3, s{off + 4 * int(z)}, s{off + 4 * int(a)}")
                if kind == "g":
                    e("v_mov_b32 v50, 0")
                    e("global_load_dword v51, v50, s[92:93] sc1")
                    e("s_waitcnt vmcnt(0)")
                    e("v_readfirstlane_b32 s3, v51")
                    e("s_not_b32 s3, s3")
                    e(f"s_sub_u32 s3, s{62 + 4 * int(z)}, s3")
                if kind != "c":
                    e(f"s_mul_i32 s3, s3, {mult}")
                else:
                    e(f"s_lshr_b32 s3, s3, {mult}")
                e("s_min_u32 s3, s3, 50000")
                if self.o["pwg"] >= 0:
                    e("s_and_b32 s56, s2, 7")
                    e(f"s_cmp_eq_u32 s56, {self.o['pwg']}")
                    e("s_cselect_b32 s3, s3, 0")
                self.lab(f"L_spin_{role}")
                e("s_memrealtime s[56:57]")
                e("s_waitcnt lgkmcnt(0)")
                e(f"s_sub_u32 s56, s56, s{62 + 4 * (n - 1)}")
                e("s_cmp_lt_u32 s56, s3")
                e(f"s_cbranch_scc1 L_spin_{role}")
            return
        e("s_load_dwordx2 s[34:35], s[0:1], 64")
        e("s_waitcnt lgkmcnt(0)")
        e("v_mov_b32 v40, 0")
        for i in range(n):
            e(f"v_writelane_b32 v40, s{60 + 4 * i}, {2 * i}")
            e(f"v_writelane_b32 v40, s{62 + 4 * i}, {2 * i + 1}")
        for i in range(4):
            e(f"v_writelane_b32 v40, s{86 + i}, {12 + i}")
        e("s_lshl_b32 s3, s2, 3")
        e("s_and_b32 s18, s18, 3")
        if role == "l":
            e("s_add_u32 s18, s18, 4")
        e("s_add_u32 s3, s3, s18")
        e("s_lshl_b32 s3, s3, 6")
        e("v_lshl_add_u32 v41, v0, 2, s3")
        if self.o["trace"] and role == "l":
            e("s_lshl_b32 s3, s3, 2")
            e("s_add_u32 s3, s3, 0x100000")
            e("v_lshl_add_u32 v42, v0, 2, s3")
            e("v_subrev_u32 v62, s60, v62")
            e("v_subrev_u32 v63, s62, v63")
            e("v_lshl_or_b32 v63, v63, 18, v62")
            e("global_store_dword v42, v63, s[34:35]")
        e("s_mov_b64 exec, 0xffff")
        e("global_store_dword v41, v40, s[34:35]")

    def issue_x(self, half):
        e = self.e
        aux = self.o["xaux"]
        self.hooks.pop("x", lambda: None)()
        if self.o["no_dma"]:
            self.hooks.pop("halo", lambda: None)()
        if not self.o["no_dma"] and not (self.o["diag"] & 8 and self.inloop):
            e(f"s_add_u32 m0, s41, s{86 + half}")
            e(f"s_add_u32 s45, s40, s{88 + half}")
            e(f"buffer_load_dwordx4 v2, s[4:7], s45 offen {aux} lds")
            for p in range(1, 4):
                a, b = (45, 46) if p & 1 else (46, 45)
                e("s_add_u32 m0, m0, s54")
                e(f"s_add_u32 s{b}, s{a}, s53")
                e(f"buffer_load_dwordx4 v2, s[4:7], s{b} offen {aux} lds")
            self.hooks.pop("halo", lambda: None)()
            if half == 0 and not self.o["diag"] & 64:
                e("s_add_u32 m0, s41, s44")
                e("s_mov_b64 exec, 15")
                e(f"buffer_load_dwordx4 v3, s[4:7], s40 offen {aux} lds")
                e("s_mov_b64 exec, -1")
        if half == 0:
            return
        e(f"s_add_u32 s41, s41, {XBUF}")
        e("s_cmp_ge_u32 s41, s51")
        e("s_cselect_b32 s41, s50, s41")

    def issue(self, i):
        if i % 4 in (0, 3):
            self.issue_w(i & 1)
        else:
            self.issue_x(i % 4 - 1)

    def issue_w(self, second):
        e = self.e
        if not self.o["no_dma"] and not (self.o["diag"] & 16 and self.inloop):
            aux = self.o["waux"]
            e("s_mov_b32 m0, s43")
            e("s_add_u32 s45, s42, s38")
            e(f"buffer_load_dwordx4 v4, s[8:11], s42 offen {aux} lds")
            e("s_add_u32 m0, m0, s39")
            e("s_add_u32 s46, s45, s38")
            e(f"buffer_load_dwordx4 v4, s[8:11], s45 offen {aux} lds")
            e("s_add_u32 m0, m0, s39")
            e(f"s_addk_i32 s43, {WBUF}")
            e(f"buffer_load_dwordx4 v4, s[8:11], s46 offen {aux} lds")
        else:
            e(f"s_addk_i32 s43, {WBUF}")
        e("s_cmp_ge_u32 s43, s49")
        e("s_cselect_b32 s43, s51, s43")
        if second:
            self.hooks.pop("table", lambda: None)()
            e("s_lshr_b64 s[82:83], s[82:83], 4")
            self.stage_offsets()
        else:
            e("s_xor_b32 s42, s42, 0x10000")

    def stage_offsets(self):
        e = self.e
        e("s_and_b32 s3, s82, 15")
        e("s_lshl_b32 s40, s3, 7")
        e("s_lshl_b32 s42, s3, 17")
        e("s_or_b32 s42, s42, s85")

    def param_load(self):
        e = self.e
        e("s_load_dwordx8 s[24:31], s[0:1], 16")
        e("v_add_lshl_u32 v8, s17, v0, 1")
        e("s_waitcnt lgkmcnt(0)")
        for i in range(4):
            e(f"global_load_ushort v{10 + i}, v8, s[{24 + 2 * i}:{25 + 2 * i}]")

    def param_calc(self):
        e = self.e
        if self.o["diag"] & 256:
            e(f"v_mov_b32 v14, {PB}")
            return
        e("s_cmp_lg_u32 s18, 0")
        e("s_cbranch_scc1 L_pc_done")
        for i in range(4):
            e(f"v_lshlrev_b32 v{10 + i}, 16, v{10 + i}")

        def rnd():
            e("v_cvt_pk_bf16_f32 v11, v11, v11")
            e("v_lshlrev_b32 v11, 16, v11")
        e("v_add_f32 v11, 0x3727c5ac, v11")
        rnd()
        e("v_sqrt_f32 v11, v11")
        e("s_nop 0")
        rnd()
        e("v_rcp_f32 v11, v11")
        e("s_nop 0")
        rnd()
        e("v_mul_f32 v11, v12, v11")
        rnd()
        e("v_fma_f32 v13, -v10, v11, v13")
        e("v_mul_f32 v11, 0xbfb8aa3b, v11")
        e("v_mul_f32 v13, 0xbfb8aa3b, v13")
        e("v_lshlrev_b32 v14, 2, v0")
        e(f"v_add_u32 v14, {PB}, v14")
        self.lab("L_pc_done")

    def pi(self, dst, j, t0, t1):
        e = self.e
        e(f"v_lshlrev_b32 v{dst}, 1, v{j}")
        e(f"v_cmp_lt_u32 vcc, 3, v{j}")
        e(f"v_subrev_u32 v{t0}, 7, v{dst}")
        e(f"v_subrev_u32 v{t1}, 16, v{dst}")
        e(f"v_cndmask_b32 v{dst}, v{dst}, v{t0}, vcc")
        e(f"v_cmp_lt_u32 vcc, 11, v{j}")
        e("s_nop 1")
        e(f"v_cndmask_b32 v{dst}, v{dst}, v{t1}, vcc")

    def loader(self):
        e = self.e
        o = self.o
        self.lab("L_loader")
        if o["prio_l"]:
            e(f"s_setprio {o['prio_l']}")
        base = [int(ch, 16) for ch in o["base"].lstrip("_")]
        mask = [int(ch, 16) for ch in o["mask"].lstrip("_")]
        maskb = [int(ch, 16) for ch in o["maskb"].lstrip("_")]
        for c in range(4):
            for cb in range(4):
                assert sorted(b ^ (c & m) ^ (cb & mb) for b, m, mb in zip(base, mask, maskb)) == list(range(16))
        assert not maskb[0] and o["rotk"] and o["rotx"] == 1 and o["lfirst"]
        pack = lambda v: sum(x << (4 * k) for k, x in enumerate(v))
        e("v_lshrrev_b32 v5, 3, v0")
        e("s_lshl_b32 s47, s18, 2")
        e("v_xor_b32 v6, s47, v0")
        e("s_xor_b32 s84, s22, s20")
        e("v_and_b32 v7, 2, v5")
        e("v_and_b32 v6, 7, v6")
        if mask[0] == 3:
            e(f"s_xor_b32 s3, s84, {base[0]}")
        else:
            e(f"s_and_b32 s3, s84, {mask[0]}")
            e(f"s_xor_b32 s3, s3, {base[0]}")
        e("s_lshl_b32 s85, s2, 13")
        e("v_xor_b32 v7, v7, v6")
        e("s_and_b32 s85, s85, 0x10000")
        e("s_lshl_b32 s42, s3, 17")
        e("v_lshlrev_b32 v7, 4, v7")
        e("s_or_b32 s42, s42, s85")
        e("s_lshl_b32 s50, s18, 10")
        e("v_lshl_add_u32 v4, v5, 11, v7")
        e("s_lshl3_add_u32 s45, s50, s17")
        e(f"s_add_u32 s51, s50, {WBASE}")
        e("v_lshl_add_u32 v4, s45, 1, v4")
        e("s_mov_b32 s10, 0x600000")
        e("s_mov_b32 s11, 0x20000")
        e("s_mov_b32 s43, s51")
        e("s_mov_b32 s38, 0x200000")
        e("s_movk_i32 s39, 4096")
        e(f"s_add_u32 s49, s51, {NWB * WBUF}")
        e("s_lshl_b32 s40, s3, 7")
        e("s_waitcnt lgkmcnt(0)")
        self.stamp(1)
        if ",g," in o["probe"]:
            e("s_load_dwordx2 s[92:93], s[0:1], 56")
            e("s_not_b32 s3, s62")
            e("v_mov_b32 v50, 0")
            e("v_mov_b32 v51, s3")
            e("s_waitcnt lgkmcnt(0)")
            e("s_mov_b64 exec, 1")
            e("global_atomic_umax v50, v51, s[92:93] sc1")
            e("s_mov_b64 exec, -1")

        def x_setup():
            e("v_lshrrev_b32 v7, 1, v5")
            e("s_mov_b32 s6, 0x800000")
            e("v_xor_b32 v7, v7, v6")
            e("s_mov_b32 s7, s11")
            e("v_lshlrev_b32 v7, 4, v7")
            e("s_lshl4_add_u32 s3, s47, s16")
            e("v_lshl_add_u32 v2, v5, 14, v7")
            e("s_bitcmp1_b32 s17, 6")
            e(f"s_cselect_b32 s86, {4 * PS}, 0")
            e("v_lshl_add_u32 v2, s3, 11, v2")
            e("s_cselect_b32 s88, 0x2000, 0")
            e(f"s_add_u32 s41, s50, {XBUF}")
            e("s_movk_i32 s53, 2048")
            e(f"s_movk_i32 s54, {PS}")

        def halo_setup():
            e(f"s_xor_b32 s87, s86, {4 * PS}")
            e("s_xor_b32 s89, s88, 0x2000")
            e(f"s_movk_i32 s44, {230 * 128}")
            e("s_cmp_lt_u32 s18, 2")
            e("s_cselect_b32 s3, 256, 0")
            e("s_cselect_b32 s23, 256, -1")
            e("s_cselect_b32 s24, 0, 7")
            e(f"s_cmovk_i32 s44, {32 * 128}")
            e("s_add_u32 s3, s3, s16")
            e("s_add_u32 s23, s23, s16")
            e("s_lshl_b32 s23, s23, 11")
            e("s_and_b32 s3, s3, 2047")
            e("s_cselect_b32 s23, s23, 0x80000000")
            e("v_xor_b32 v7, s24, v6")
            e("s_and_b32 s47, s47, 4")
            e("v_lshl_add_u32 v3, v7, 4, s23")
            e("s_lshl4_add_u32 s44, s47, s44")
            e("s_sub_u32 s44, s44, s50")

        def table_setup():
            e("s_mul_i32 s3, s84, 0x11111111")
            for h in range(2):
                m = pack(mask[8 * h:8 * h + 8])
                if m == 0x33333333:
                    e(f"s_xor_b32 s{82 + h}, s3, {pack(base[8 * h:8 * h + 8]):#x}")
                else:
                    e(f"s_and_b32 s{82 + h}, s3, {m:#x}")
                    e(f"s_xor_b32 s{82 + h}, s{82 + h}, {pack(base[8 * h:8 * h + 8]):#x}")
            if any(maskb):
                if o["modeb"] == 0:
                    e("s_and_b32 s84, s84, 1")
                    e("s_lshr_b32 s3, s2, 2")
                    e("s_xor_b32 s3, s3, s2")
                    e("s_bfe_u32 s3, s3, 0x10004")
                    e("s_lshl1_add_u32 s84, s84, s3")
                elif o["modeb"] == 1:
                    e("s_lshl_b32 s3, s20, 1")
                    e("s_xor_b32 s84, s22, s3")
                else:
                    e("s_lshr_b32 s3, s2, 5")
                    e("s_and_b32 s3, s3, 2")
                    e("s_xor_b32 s84, s84, s3")
                e("s_mul_i32 s84, s84, 0x11111111")
                for h in range(2):
                    m = pack(maskb[8 * h:8 * h + 8])
                    if m:
                        e(f"s_and_b32 s3, s84, {m:#x}")
                        e(f"s_xor_b32 s{82 + h}, s{82 + h}, s3")
        self.hooks = {"x": x_setup, "halo": halo_setup, "table": table_setup}
        if o["trace"]:
            e("s_mov_b32 s55, 0")
        st = {"issued": 0, "chunks": []}

        def upto(c):
            while st["issued"] < min(c, 240):
                if not st["chunks"]:
                    keep, self.l = self.l, []
                    pos = st["issued"] % 15
                    self.issue({0: 0, 3: 1, 8: 2, 12: 3}[pos])
                    lines, self.l = self.l, keep
                    n = {0: 3, 3: 5, 8: 4, 12: 3}[pos]
                    cuts = [k + 1 for k, x in enumerate(lines) if x.endswith(" lds")][:n - 1]
                    cuts = cuts + [len(lines)] * (n - len(cuts))
                    st["chunks"] = [lines[a:b] for a, b in zip([0] + cuts, cuts)]
                self.l += st["chunks"].pop(0)
                st["issued"] += 1

        needi = lambda u: 15 * (u // 2) + (15 if u & 1 else 12)
        legal = lambda u: needi(u + 4)

        def step(u):
            nd = needi(29) if u == 28 else needi(u)
            assert nd <= st["issued"]
            e(f"s_waitcnt vmcnt({st['issued'] - nd})")
            self.lbarrier()

        cum = [int(v) for v in str(o["cum"]).split(",")]
        for u, c in enumerate(cum):
            assert c <= legal(max(u - 1, 0))
            upto(c)
            if u == 0:
                e("s_cmp_eq_u32 s18, 0")
                e("s_cselect_b32 s48, 2, 64")
            step(u)
            if u == 0:
                self.stamp(2)
        u0 = len(cum)
        pat = [int(v) for v in str(o["pat"]).split(",")]
        per = 2 if pat[2] == pat[0] + 15 and pat[3] == pat[1] + 15 else 4
        after = lambda u: 30 * (u // 4) + pat[u % 4]
        assert all(after(u) <= legal(u) for u in range(4))
        assert st["issued"] <= after(u0 - 1)
        upto(after(u0 - 1))
        endq = [int(v) for v in str(o["endq"]).split(",") if v]
        nit = (28 - len(endq) - u0) // per
        e(f"s_mov_b32 s52, {nit - 1}")
        self.lab("L_lloop")
        self.inloop = 1
        for k in range(per):
            step(u0 + k)
            upto(after(u0 + k))
        e("s_cmp_lg_u32 s52, s48")
        e("s_cbranch_scc1 L_nopl")
        self.param_load()
        self.lab("L_nopl")
        e("s_sub_u32 s52, s52, 1")
        e("s_cbranch_scc0 L_lloop")
        st["issued"] += 15 * per // 2 * (nit - 1)
        e("s_load_dwordx2 s[12:13], s[0:1], 48")
        for u in range(u0 + per * nit, 29):
            step(u)
            k = u - (28 - len(endq))
            c = endq[k] if 0 <= k < len(endq) else after(u)
            assert c <= legal(u)
            upto(c)
        assert st["issued"] == 240
        self.param_calc()
        e("s_waitcnt vmcnt(0) lgkmcnt(0)")
        self.lbarrier()
        e("s_cmp_lg_u32 s18, 0")
        e("s_cbranch_scc1 L_pw_done")
        if not o["diag"] & 512:
            e("ds_write_b32 v14, v11")
            e("ds_write_b32 v14, v13 offset:256")
        e("s_waitcnt lgkmcnt(0)")
        self.lab("L_pw_done")
        self.lbarrier()
        self.stamp(3)
        self.store_setup()
        if o["diag"] & 32:
            e("s_movk_i32 s53, 2048")
        e("s_mov_b32 s46, 0")
        bars = [int(ch) for ch in str(o["bars"])]
        assert bars[-1] == (6 if o["direct"] else 7)
        tm = 0
        for b in bars:
            if not o["diag"] & 1:
                self.lbarrier()
            grp = list(range(tm, b + 1))
            for q, t2 in enumerate(grp):
                e(f"ds_read_b128 v[{28 + 4 * q}:{31 + 4 * q}], v17 offset:{t2 * 4096}")
            for q, t2 in enumerate(grp):
                e(f"s_waitcnt lgkmcnt({len(grp) - 1 - q})")
                if not o["no_store"]:
                    e(f"buffer_store_dwordx4 v[{28 + 4 * q}:{31 + 4 * q}], v16, s[12:15], s46 offen {o['saux'] if t2 < o['nsc'] else o['saux2']}")
                e("s_add_u32 s46, s46, s53")
            tm = b + 1
        if o["stamps"]:
            e("s_waitcnt vmcnt(0)")
        self.stamp(4)
        if o["stamps"]:
            e("s_branch L_ldump")

            def late():
                self.lab("L_ldump")
                self.dump_stamps(5, "l")
                e("s_endpgm")
            self.late.append(late)
        else:
            e("s_endpgm")

    def store_setup(self):
        e = self.e
        e("s_mov_b32 s14, 0x800000")
        e("s_mov_b32 s15, 0x20000")
        e("s_and_b32 s3, s18, 1")
        e("v_lshl_add_u32 v6, s3, 3, v5")
        self.pi(7, 6, 8, 9)
        e("s_lshr_b32 s3, s18, 1")
        e("s_lshl_b32 s3, s3, 7")
        e("s_add_u32 s3, s3, s16")
        e("s_lshl_b32 s3, s3, 10")
        e("s_add_u32 s3, s3, s17")
        e("s_lshl_b32 s3, s3, 1")
        e("v_and_b32 v8, 7, v0")
        e("v_lshl_add_u32 v9, v8, 4, s3")
        e("v_lshl_add_u32 v16, v7, 14, v9")
        e("v_xor_b32 v8, v8, v5")
        e("v_lshlrev_b32 v8, 4, v8")
        e("v_lshl_add_u32 v8, v5, 7, v8")
        e(f"s_add_u32 s3, s50, {STG}")
        e("v_add_u32 v17, s3, v8")

    def rd_f(self, r, kk, dl, off=0):
        a = 2 + 3 * kk
        if dl == 0:
            return [f"ds_read_b128 v[{r}:{r + 3}], v{a + 2} offset:{7 * PS - 128 + off}"]
        if dl == 9:
            return [f"ds_read_b128 v[{r}:{r + 3}], v{a + 1} offset:{off}"]
        return [f"ds_read_b128 v[{r}:{r + 3}], v{a} offset:{(dl - 1) * PS + off}"]

    def rd_g(self, r, k, t, off=0):
        return [f"ds_read_b64_tr_b16 v[{r + 2 * hh}:{r + 2 * hh + 1}], v{8 + t} offset:{k * 4096 + hh * 512 + off}"
                for hh in range(2)]

    def reads(self, st, kk):
        base = SET[st]
        if self.o["rord"] == 2:
            return [x for dl in range(10) for x in self.rd_f(base + 4 * dl, kk, dl)] + \
                   [x for t in range(2) for k in range(3) for x in self.rd_g(base + 40 + (k * 2 + t) * 4, k, t)]
        if self.o["lbar"] or self.o["rord"] == 1:
            out, seen = [], set()
            for k, t, tm in self.mfmas(st, raw=True):
                for nm in (("G", k, t), ("F", tm + k)):
                    if nm not in seen:
                        seen.add(nm)
                        out += self.rd_g(base + 40 + (k * 2 + t) * 4, k, t) if nm[0] == "G" else \
                            self.rd_f(base + 4 * nm[1], kk, nm[1])
            return out
        L = []
        for t in range(2):
            for k in range(3):
                L += self.rd_g(base + 40 + (k * 2 + t) * 4, k, t)
        X = []
        for dl in range(10):
            X += self.rd_f(base + 4 * dl, kk, dl)
        out = []
        while L or X:
            if X:
                out.append(X.pop(0))
            if L:
                out.append(L.pop(0))
        return out

    def mf(self, g, f, t, tm):
        acc = ACC + (tm * 2 + t) * 4
        return f"v_mfma_f32_16x16x32_bf16 v[{acc}:{acc + 3}], v[{g}:{g + 3}], v[{f}:{f + 3}], v[{acc}:{acc + 3}]"

    def mfmas(self, st, raw=False):
        od = self.o["order"]
        asc, desc = (0, 1, 2), (2, 1, 0)
        up, down = list(range(8)), list(range(7, -1, -1))
        if od == 0:
            seq = [(k, t, tm) for k in range(3) for t in range(2) for tm in range(8)]
        elif od == 4:
            seq = [(k, t, tm) for t in range(2) for tm in up for k in asc]
        elif od == 6:
            seq = [(k, t, tm) for t in range(2) for tm in up for k in (asc if tm % 2 == 0 else desc)]
        elif od == 7:
            seq = []
            for tm in up:
                ts = (0, 1) if tm % 2 == 0 else (1, 0)
                seq += [(k, ts[0], tm) for k in asc] + [(k, ts[1], tm) for k in desc]
        elif od == 9:
            seq = [(k, 0, tm) for tm in up for k in (asc if tm % 2 == 0 else desc)] + \
                  [(k, 1, tm) for tm in down for k in (asc if tm % 2 else desc)]
        elif od == 17:
            seq = [(k, st, tm) for tm in up for k in (asc if tm % 2 == 0 else desc)] + \
                  [(k, st ^ 1, tm) for tm in down for k in (asc if tm % 2 else desc)]
        elif od == 10:
            seq = [(k, t, tm) for t in range(2) for tm in up for k in desc]
        elif od == 11:
            seq = [(k, t, tm) for t in range(2) for tm in up for k in (0, 2, 1)]
        elif od == 12:
            seq = [(k, t, tm) for t in range(2) for tm in up for k in (1, 0, 2)]
        elif od == 13:
            rot = [(0, 1, 2), (2, 0, 1), (1, 2, 0)]
            seq = [(k, t, tm) for t in range(2) for tm in up for k in rot[tm % 3]]
        elif od == 14:
            rot = [(0, 2, 1), (1, 0, 2), (2, 1, 0)]
            seq = [(k, t, tm) for t in range(2) for tm in up for k in rot[tm % 3]]
        elif od == 15:
            seq = [(k, t, tm) for t in range(2) for tm in up for k in ((0, 2, 1) if tm % 2 == 0 else (1, 2, 0))]
        elif od == 16:
            seq = [(k, t, tm) for t in range(2) for tm in up for k in ((2, 0, 1) if tm % 2 == 0 else (1, 0, 2))]
        elif od >= 20:
            out = []
            for tm in up:
                ks = [(0, k) for k in asc] + [(1, k) for k in (asc if od == 20 else desc)]
                if od != 22 and tm % 2:
                    ks = ks[::-1]
                out += [self.mf(SET[s_] + 40 + (k * 2 + st) * 4, SET[s_] + 4 * (tm + k), st, tm) for s_, k in ks]
            return out
        if raw:
            return seq
        M = [(SET[st] + 40 + (k * 2 + t) * 4, SET[st] + 4 * (tm + k), t, tm) for k, t, tm in seq]
        if self.o["swap"]:
            M = [(f, g, t, tm) for g, f, t, tm in M]
        return [self.mf(*m) for m in M]

    def substage(self, st, pre):
        o = self.o
        M = self.mfmas(st)
        R = self.reads(st ^ 1, st ^ 1) if not o["no_reads"] else []
        if o["diag"] & 1024:
            R = [r for r in R if "tr" not in r]
        if o["diag"] & 2048:
            R = [r for r in R if "tr" in r]
        if o["diag"] & 4096:
            R = [r.replace("b64_tr_b16", "b64") for r in R]
        fill = {}
        lb = o["lbar"]
        sp = (o["lastrd"] - lb) / 22.0
        if lb:
            fill[lb - 1] = ["s_waitcnt lgkmcnt(0)", "s_barrier"]
        for i, r in enumerate(R):
            fill.setdefault(lb + int(i * sp), []).append(r)
        pos = 0 if lb else o["lastrd"]
        for i, p in enumerate(pre):
            fill.setdefault(min(pos + i, 47), []).extend(p)
        top = [f"s_waitcnt lgkmcnt({o['topw']})"] if lb else ["s_waitcnt lgkmcnt(0)", "s_barrier"] + ["s_nop 15"] * o["idle"]
        if lb and o["topw"] > 6:
            fill.setdefault({7: 20, 8: 19, 9: 14, 10: 13, 11: 8, 12: 7}[o["topw"]] - 1, []).append("s_waitcnt lgkmcnt(6)")
        out = []
        for i, m in enumerate(M):
            out.append((top if i == 0 else []) + ([m] if not o["no_mfma"] else []) + fill.get(i, []))
        return out

    def first(self, pre, nm_=48):
        e = self.e
        o = self.o
        seq = self.mfmas(0, raw=True)
        todo, queue, seen = [], [], set()
        for k, t, tm in seq:
            for nm in (("G", k, t), ("F", tm + k)):
                if nm not in todo:
                    todo.append(nm)

        def rd():
            nm = todo.pop(0)
            ops = self.rd_g(SET[0] + 40 + (nm[1] * 2 + nm[2]) * 4, nm[1], nm[2]) if nm[0] == "G" else \
                self.rd_f(SET[0] + 4 * nm[1], 0, nm[1])
            for op in ops:
                e(op)
                queue.append(nm)
        for _ in range(o["fpre"]):
            rd()
        R = self.reads(1, 1)
        bar = o["fbar"]
        sp = (o["flast"] - bar) / 22.0
        fill = {bar - 1: ["v_add_u32 v8, s53, v8", "v_add_u32 v9, s53, v9"], bar: ["s_waitcnt lgkmcnt(0)", "s_barrier"]}
        for i, r in enumerate(R):
            fill.setdefault(bar + int(i * sp), []).append(r)
        for i, p in enumerate(pre):
            fill.setdefault(min(o["flast"] + i * 2 // 3, nm_ - 1), []).extend(p)
        for i, (k, t, tm) in enumerate(seq[:nm_]):
            idx = max((q for q, tg in enumerate(queue) if tg in (("G", k, t), ("F", tm + k))), default=-1)
            if idx >= 0:
                n = min(len(queue) - 1 - idx, 14)
                e(f"s_waitcnt lgkmcnt({n})")
                del queue[:len(queue) - n]
            m = self.mf(SET[0] + 40 + (k * 2 + t) * 4, SET[0] + 4 * (tm + k), t, tm)
            if (t, tm) not in seen:
                seen.add((t, tm))
                m = m[:m.rindex(",")] + ", 0"
            e(m)
            if todo:
                assert i < bar - 1
                rd()
            if i == bar:
                del queue[:]
            for x in fill.get(i, []):
                e(x)

    def epi_ops(self, un):
        tm, t = un >> 1, un & 1
        a = ACC + un * 4
        tb = TMP + 4 * t
        L = []
        if not self.o["no_epi"] and not (self.o["pk"] == 1 or (self.o["pk"] == 2 and un == 15)):
            for r in range(4):
                L.append(f"v_fma_f32 v{a + r}, v{a + r}, v{16 + 4 * t + r}, v{24 + 4 * t + r}")
            for r in range(4):
                L.append(f"v_exp_f32 v{tb + r}, v{a + r}")
            for r in range(4):
                L.append(f"v_fma_f32 v{tb + r}, v{tb + r}, s42, s42")
            for r in range(4):
                L.append(f"v_rcp_f32 v{tb + r}, v{tb + r}")
            for r in range(4):
                L.append(f"v_mul_f32 v{tb + r}, v{tb + r}, v{a + r}")
            for p in range(2):
                L.append(f"v_cvt_pk_bf16_f32 v{a + p}, v{tb + 2 * p}, v{tb + 2 * p + 1}")
        elif not self.o["no_epi"]:
            for p in range(2):
                q = 4 * t + 2 * p
                L.append(f"v_pk_fma_f32 v[{a + 2 * p}:{a + 2 * p + 1}], v[{a + 2 * p}:{a + 2 * p + 1}], v[{16 + q}:{17 + q}], v[{24 + q}:{25 + q}]")
            for r in range(4):
                L.append(f"v_exp_f32 v{tb + r}, v{a + r}")
            for p in range(2):
                L.append(f"v_pk_fma_f32 v[{tb + 2 * p}:{tb + 2 * p + 1}], v[{tb + 2 * p}:{tb + 2 * p + 1}], s[42:43], s[42:43]")
            for r in range(4):
                L.append(f"v_rcp_f32 v{tb + r}, v{tb + r}")
            for p in range(2):
                L.append(f"v_pk_mul_f32 v[{tb + 2 * p}:{tb + 2 * p + 1}], v[{tb + 2 * p}:{tb + 2 * p + 1}], v[{a + 2 * p}:{a + 2 * p + 1}]")
            for p in range(2):
                L.append(f"v_cvt_pk_bf16_f32 v{a + p}, v{tb + 2 * p}, v{tb + 2 * p + 1}")
        if self.o["direct"] and tm == 7:
            if t:
                L = [x.replace(f"v_cvt_pk_bf16_f32 v{a},", f"v_cvt_pk_bf16_f32 v{a - 2},")
                      .replace(f"v_cvt_pk_bf16_f32 v{a + 1},", f"v_cvt_pk_bf16_f32 v{a - 1},") for x in L]
                L += ["s_nop 0", f"v_permlane16_swap_b32 v{a - 4}, v{a - 2}", f"v_permlane16_swap_b32 v{a - 3}, v{a - 1}"]
                if not self.o["no_store"]:
                    L.append(f"buffer_store_dwordx4 v[{a - 4}:{a - 1}], v0, s[12:15], 0 offen {self.o['saux']}")
        elif self.o["diag"] & 2:
            L.append("ds_read_b32 v12, v1")
        elif self.o["wpair"]:
            if t:
                L.insert(len(L) - 2, f"DS ds_write_b64 v1, v[{a - 4}:{a - 3}] offset:{tm * 4096}")
                L.append(f"ds_write_b64 v11, v[{a}:{a + 1}] offset:{tm * 4096}")
        else:
            L.append(f"ds_write_b64 v{11 if t else 1}, v[{a}:{a + 1}] offset:{tm * 4096}")
        return L

    def tail(self):
        e = self.e
        o = self.o
        nt = o["nt"]
        seq = []
        for u in range(27, 32 - nt):
            for tm in range(8):
                ts = (0, 1) if tm % 2 else (1, 0)
                seq += [(u, k, ts[0], tm) for k in (0, 1, 2)] + [(u, k, ts[1], tm) for k in (2, 1, 0)]
        done_at = {}
        for tm in range(8):
            if o["alt"]:
                for u in range(32 - nt, 32):
                    seq += [(u, k, t, tm) for k in range(3) for t in range(2)]
                done_at[2 * tm] = len(seq) - 2
                done_at[2 * tm + 1] = len(seq) - 1
                continue
            lo = 32 - nt
            if tm == 0 and nt == 4 and o["split0"]:
                seq += [(u, k, t, tm) for t in range(2) for u in (28, 29) for k in range(3)]
                lo = 30
            for t in range(2):
                for u in range(lo, 32):
                    seq += [(u, k, t, tm) for k in range(3)]
                done_at[2 * tm + t] = len(seq) - 1
        first, last = {}, {}
        for i, (u, k, t, tm) in enumerate(seq):
            for nm in (("G", u, k, t), ("F", u, tm + k)):
                first.setdefault(nm, i)
                last[nm] = i
        reg = {}
        for dl in range(10):
            reg[("F", 27, dl)] = SET[1] + 4 * dl
        for k in range(3):
            for t in range(2):
                reg[("G", 27, k, t)] = SET[1] + 40 + (k * 2 + t) * 4
        free = list(range(SET[0], SET[0] + 64, 4)) + list(range(TMP + 8, 64, 4)) + [12]
        todo = sorted((nm for nm in first if nm not in reg), key=lambda nm: first[nm])
        par = [("P", i) for i in range(4)]
        npar = max(0, len([nm for nm in todo if first[nm] <= done_at[0] + 4]))
        todo = todo[:npar] + par + todo[npar:]
        queue = []

        def lds(op, tag=None):
            e(op)
            queue.append(tag)

        def wait_for(tags):
            idx = max((i for i, tg in enumerate(queue) if tg in tags), default=-1)
            if idx >= 0:
                n = min(len(queue) - 1 - idx, 14)
                e(f"s_waitcnt lgkmcnt({n})")
                del queue[:len(queue) - n]

        half = []

        def issue_read(nm):
            if nm[0] == "P":
                i = nm[1]
                lds(f"ds_read_b128 v[{16 + 4 * i}:{19 + 4 * i}], v10 offset:{(i >> 1) * 256 + (i & 1) * 64}", nm)
                return
            r = free.pop(0)
            reg[nm] = r
            u = nm[1]
            if nm[0] == "F":
                ops = self.rd_f(r, u & 1, nm[2], XBUF * ((u >> 1) - 14))
            else:
                ops = self.rd_g(r, nm[2], nm[3], WBUF * (u % NWB))
            if not o["no_reads"]:
                lds(ops[0], nm)
                half.extend((op, nm) for op in ops[1:])

        e("s_waitcnt lgkmcnt(0)")
        self.stamp(3)
        if not o["lbar"]:
            e("s_barrier")
        chk, pchk = o["tchk"], o["pchk"]
        head = {0: [f"v_subrev_u32 v8, {3 * WBUF}, v8", "s_mov_b32 s43, s42"], 1: [f"v_subrev_u32 v9, {3 * WBUF}, v9"],
                2: ["v_add_u32 v5, s55, v5"], 3: ["v_add_u32 v6, s55, v6"], 4: ["v_add_u32 v7, s55, v7"],
                chk: ["s_barrier"], pchk: ["s_barrier"]}
        avail = {28: 1, 29: 5, 30: chk, 31: chk}
        if o["lbar"]:
            tb = o["tbar"]
            head = {0: [f"v_subrev_u32 v8, {2 * WBUF}, v8", f"v_subrev_u32 v9, {2 * WBUF}, v9", "s_mov_b32 s43, s42"],
                    1: ["v_add_u32 v2, s47, v2", "v_add_u32 v3, s47, v3"], 2: ["v_add_u32 v4, s47, v4", "v_add_u32 v5, s47, v5"],
                    3: ["v_add_u32 v6, s47, v6", "v_add_u32 v7, s47, v7"],
                    tb: ["s_barrier"], chk: ["s_barrier"], pchk: ["s_barrier"]}
            avail = {28: tb + 1, 29: tb + 1, 30: chk, 31: chk}
        bar_at = {}
        quiet = -1
        bars = [int(ch) for ch in str(o["bars"])]
        cost = lambda x: 8 if ("v_exp" in x or "v_rcp" in x) else 12 if "ds_write" in x else 4
        cur, pend, nxt = [], [], 0
        mark = {}
        credit = 0.0
        per_gap = sum(cost(x) for x in self.epi_ops(0) + self.epi_ops(1)) / (6.0 * nt) * o['pace'] + 0.5
        stalls = []
        for i, (u, k, t, tm) in enumerate(seq):
            g, f = ("G", u, k, t), ("F", u, tm + k)
            while g in todo or f in todo or any(nm == g for _, nm in half):
                stalls.append(i)
                if half:
                    lds(*half.pop(0))
                else:
                    issue_read(todo.pop(0))
            wait_for({g, f})
            if not o["no_mfma"]:
                e(self.mf(reg[g], reg[f], t, tm))
            if nxt < 16 and done_at[nxt] == i:
                mark[nxt] = len(self.l)
                pend.append(nxt)
                nxt += 1
            for nm in (g, f):
                if last[nm] == i:
                    free.append(reg[nm])
            for x in head.get(i, []):
                e(x)
            if i in bar_at and not o["latebar"]:
                wait_for({bar_at.pop(i)})
                e("s_barrier")
            wnext = cur and any(x[:2].lower() == "ds" for x in cur[:3])
            if i >= 1 and i not in (chk, pchk) and not (wnext and not half) and i > quiet:
                if half:
                    lds(*half.pop(0))
                    credit -= 4 * bool(cur or pend)
                else:
                    hold = min([first[nm] for nm in todo if nm[0] != "P" and i < avail[nm[1]]], default=999)
                    cand = [nm for nm in todo if (i >= pchk if nm[0] == "P" else
                                                  i >= avail[nm[1]] and first[nm] <= hold + o["hold"])]
                    if cand and (cand[0][0] == "P" or free):
                        todo.remove(cand[0])
                        issue_read(cand[0])
                        credit -= 4 * bool(cur or pend)
            if cur or pend:
                credit += per_gap
            while credit > 0:
                if not cur:
                    if not pend or len(self.l) - mark[pend[0]] < 8:
                        credit = 0
                        break
                    wait_for(set(par))
                    curun = pend.pop(0)
                    cur = self.epi_ops(curun)
                x = cur.pop(0)
                if x.startswith("DS "):
                    lds(x[3:])
                elif x.startswith("ds_"):
                    lds(x, ("W", curun))
                    if curun & 1:
                        free.extend([ACC + 4 * curun - 4, ACC + 4 * curun])
                    quiet = i + o["wq"]
                    if curun & 1 and curun >> 1 in bars and not o["diag"] & 1:
                        bar_at[i + o["blag"]] = ("W", curun)
                else:
                    e(x)
                credit -= cost(x)
        assert not todo
        if stalls:
            print("tail: late reads at", stalls, file=sys.stderr)
        rest = [(curun, cur)] if cur else []
        rest += [(un, None) for un in pend]
        for un, ops in rest:
            if ops is None:
                gap = len(self.l) - mark[un]
                if gap < 8:
                    e(f"s_nop {7 - gap}")
                ops = self.epi_ops(un)
            for x in ops:
                if x.startswith("DS "):
                    lds(x[3:])
                elif x.startswith("ds_"):
                    for key in sorted(bar_at):
                        wait_for({bar_at.pop(key)})
                        e("s_barrier")
                    lds(x, ("W", un))
                    if un & 1 and un >> 1 in bars and not o["diag"] & 1:
                        bar_at[un] = ("W", un)
                else:
                    e(x)
        for key in sorted(bar_at):
            wait_for({bar_at.pop(key)})
            e("s_barrier")

    def compute(self):
        e = self.e
        o = self.o
        if o["pages"]:
            e(".p2align 12")
            self.lab("L_page1")
        self.lab("L_compute")
        e("s_and_b32 s38, s18, 1")
        e("s_bfe_u32 s39, s18, 0x10001")
        e("v_and_b32 v10, 15, v0")
        e("v_lshrrev_b32 v16, 4, v0")
        if o["cpf"]:
            e("s_getpc_b64 s[20:21]")
            e("v_lshlrev_b32 v12, 7, v0")
            e("v_mov_b32 v13, s21")
            e("v_add_co_u32 v12, vcc, s20, v12")
            e("s_cmp_lt_u32 s36, %d" % o["cpf"])
            e("s_cselect_b32 s3, s18, 1")
            e("v_addc_co_u32 v13, vcc, 0, v13, vcc")
            e("s_and_b32 s3, s3, 3")
            e("s_cbranch_scc1 L_nocpf")
            e("s_mov_b32 exec_hi, (1 << (((L_end - L_compute) >> 7) - 32)) - 1")
            e("global_load_dword v14, v[12:13], off")
            e("s_mov_b32 exec_hi, -1")
            self.lab("L_nocpf")
        self.pi(17, 10, 18, 19)
        e("v_lshrrev_b32 v18, 2, v10")
        e("v_lshl_add_u32 v19, v16, 3, v18")
        e("v_lshlrev_b32 v19, 7, v19")
        e("v_and_b32 v20, 3, v10")
        e("v_lshl_add_u32 v19, v20, 3, v19")
        e("v_lshrrev_b32 v18, 1, v18")
        e("v_and_b32 v20, 1, v16")
        e("v_lshl_or_b32 v18, v20, 1, v18")
        e("s_lshl_b32 s45, s39, 1")
        e("v_xor_b32 v18, s45, v18")
        e("v_lshl_add_u32 v19, v18, 5, v19")
        e(f"v_add_u32 v8, {WBASE}, v19")
        e("v_xor_b32 v9, 32, v8")
        e("s_lshl_b32 s3, s38, 11")
        e(f"s_add_u32 s46, s3, {XBUF}")
        if o["rotk"]:
            e("s_bfe_u32 s47, s16, 0x10008")
            e("v_lshl_or_b32 v21, s47, 2, v16")
        for idx, sh in ((0, 0), (1, 1), (2, -1)):
            e(f"v_add_u32 v18, {sh}, v17")
            e("v_bfe_u32 v19, v18, 1, 3")
            e(f"v_xor_b32 v19, v19, v{21 if o['rotk'] else 16}")
            e("v_lshlrev_b32 v19, 4, v19")
            e(f"v_lshl_add_u32 v19, v{17 if sh == -1 else 18}, 7, v19")
            e(f"v_add_u32 v{2 + idx}, s46, v19")
            e(f"v_xor_b32 v{5 + idx}, 64, v{2 + idx}")
        e("v_lshrrev_b32 v18, 1, v16")
        e("v_lshl_add_u32 v18, s39, 2, v18")
        e("v_and_b32 v19, 7, v10")
        e("v_xor_b32 v18, v18, v19")
        e("v_lshlrev_b32 v18, 4, v18")
        e("v_lshl_add_u32 v18, v20, 3, v18")
        e("v_lshl_add_u32 v18, v10, 7, v18")
        e(f"s_add_u32 s3, s3, {STG}")
        e("v_add_u32 v1, s3, v18")
        e("v_xor_b32 v11, 32, v1")
        if o["direct"]:
            e("s_lshl_b32 s3, s38, 7")
            e("s_add_u32 s3, s3, s16")
            e("s_add_u32 s3, s3, 7")
            e("s_lshl_b32 s3, s3, 10")
            e("s_lshl_b32 s45, s39, 5")
            e("s_add_u32 s3, s3, s45")
            e("s_add_u32 s3, s3, s17")
            e("s_lshl_b32 s3, s3, 1")
            e("v_lshl_add_u32 v18, v20, 5, s3")
            e("v_lshrrev_b32 v19, 1, v16")
            e("v_lshl_add_u32 v18, v19, 4, v18")
            e("v_lshl_add_u32 v0, v17, 14, v18")
            e("s_waitcnt lgkmcnt(0)")
        e("s_lshl_b32 s3, s39, 7")
        e(f"s_add_u32 s3, s3, {PB}")
        e("v_lshl_add_u32 v10, v16, 4, s3")
        if o["fall"]:
            seq = self.mfmas(0, raw=True)
            for t, tm in sorted({(t, tm) for k, t, tm in seq[o["brpos"]:]} - {(t, tm) for k, t, tm in seq[:o["brpos"]]}):
                for h in range(2):
                    r = ACC + (tm * 2 + t) * 4 + 2 * h
                    e(f"v_mov_b64 v[{r}:{r + 1}], 0")
            for _ in range(o["lpad"]):
                e("s_nop 0")
        e("s_mov_b32 s40, 1")
        e("s_mov_b32 s41, 1")
        e("s_mov_b32 s42, 0xbfb8aa3b")
        e(f"s_movk_i32 s53, {WBUF}")
        e(f"s_mov_b32 s54, {XBUF}")
        e(f"s_mov_b32 s46, {-(NWB - 1) * WBUF & 0xffffffff:#x}")
        e(f"s_mov_b32 s47, {-(NXB - 1) * XBUF & 0xffffffff:#x}")
        e("s_mov_b32 s52, 12")
        if o["prio_c"]:
            e(f"s_setprio {o['prio_c']}")
        self.stamp(1)
        e("s_barrier")
        self.stamp(2)

        def wadv():
            return [["s_add_u32 s41, s41, 1", f"s_cmp_eq_u32 s41, {NWB}"],
                    ["s_cselect_b32 s43, s46, s53", "s_cselect_b32 s41, 0, s41"],
                    ["v_add_u32 v8, s43, v8"], ["v_add_u32 v9, s43, v9"]]

        pre0 = wadv() + [["s_add_u32 s40, s40, 1", f"s_cmp_eq_u32 s40, {NXB}"],
                         ["s_cselect_b32 s55, s47, s54", "s_cselect_b32 s40, 0, s40"]] + \
            [[f"v_add_u32 v{2 + i}, s55, v{2 + i}"] for i in range(3)]
        pre1 = wadv() + [[f"v_add_u32 v{5 + i}, s55, v{5 + i}"] for i in range(3)]
        if o["lbar"]:
            assert o["topw"] <= 6 or o["lbar"] > {7: 20, 8: 19, 9: 14, 10: 13, 11: 8, 12: 7}[o["topw"]]
            self.first([], 48)
            body = self.substage(1, pre0) + self.substage(0, pre1 + [["s_sub_u32 s52, s52, 1"]])
        else:
            self.first(pre0, o["brpos"] if o["fall"] else 48)
            body = self.substage(1, pre1) + self.substage(0, pre0 + [["s_sub_u32 s52, s52, 1"]])
        cut = 48 + o["brpos"]
        if not o["fall"]:
            e("s_branch L_centry")
        if o["pages"]:
            self.lab("L_touch0")
        if not o["fall"]:
            e(".p2align 6")
            for _ in range(o["lpad"]):
                e("s_nop 0")
        self.lab("L_cloop")
        for gap in body[cut:]:
            for x in gap:
                e(x)
        self.lab("L_centry")
        for gap in body[:cut]:
            for x in gap:
                e(x)
        e("s_cbranch_scc0 L_cloop")
        for gap in body[cut:]:
            for x in gap:
                e(x)
        self.lab("L_tail")
        self.tail()
        self.lab("L_tail_end")
        if o["stamps"] and o["direct"]:
            e("s_waitcnt vmcnt(0)")
            e("v_mbcnt_lo_u32_b32 v0, -1, 0")
            e("v_mbcnt_hi_u32_b32 v0, -1, v0")
        self.stamp(4)
        self.dump_stamps(5, "c")
        e("s_endpgm")

    def gen(self):
        e = self.e
        o = self.o
        self.l.append(HEADER.rstrip())
        self.l.append(f"; @launch grid=(256,1,1) block=(512,1,1) lds={LDS}")
        self.l.append('.amdgcn_target "amdgcn-amd-amdhsa--gfx950"')
        self.l.append(".text")
        self.l.append(f".globl {KN}")
        if o["pages"]:
            self.l.append(".p2align 12")
        self.l.append(".p2align 8")
        self.l.append(f".type {KN},@function")
        self.lab(KN)
        e("s_cmp_ge_u32 s2, 256")
        e("s_cbranch_scc1 L_end")
        if o["stamps"]:
            e("s_memtime s[60:61]")
            e("s_memrealtime s[62:63]")
        e("s_load_dwordx2 s[8:9], s[0:1], 8")
        e("s_load_dwordx2 s[4:5], s[0:1], 0")
        e("v_readfirstlane_b32 s18, v0")
        e("v_and_b32 v0, 63, v0")
        e("s_lshr_b32 s17, s2, 5")
        e("s_and_b32 s20, s2, 1")
        e("s_lshl3_add_u32 s17, s20, s17")
        e("s_bfe_u32 s22, s2, 0x20001")
        e("s_bfe_u32 s16, s2, 0x20003")
        e("s_lshl2_add_u32 s16, s22, s16")
        e("s_lshr_b32 s18, s18, 6")
        e("s_lshl_b32 s17, s17, 6")
        e("s_lshl_b32 s16, s16, 8")
        e("s_cmp_ge_u32 s18, 4")
        if o["pages"] >= 2:
            e("s_cbranch_scc0 L_loader")
            self.l.append("@DISPATCH")
            e("s_branch L_compute")
        else:
            e(("s_cbranch_scc1" if o["lfirst"] else "s_cbranch_scc0") + " L_compute")
        self.loader()
        self.compute()
        for f in self.late:
            f()
        self.lab("L_end")
        e("s_endpgm")
        self.l.append(f""".section .rodata,"a"
.p2align 6
.amdhsa_kernel {KN}
  .amdhsa_next_free_vgpr 256
  .amdhsa_next_free_sgpr 96
  .amdhsa_accum_offset 256
  .amdhsa_group_segment_fixed_size 0
  .amdhsa_kernarg_size 72
  .amdhsa_user_sgpr_count 2
  .amdhsa_user_sgpr_kernarg_segment_ptr 1
  .amdhsa_system_sgpr_workgroup_id_x 1
.end_amdhsa_kernel""")
        return self.finish()

    def finish(self):
        L = "\n".join(self.l).split("\n")
        if self.o["pages"] < 2:
            return "\n".join(L) + "\n"
        import re
        import subprocess
        i0 = L.index("L_touch0:")
        it, ie = L.index("L_tail:"), L.index("L_tail_end:")
        probe = []
        for i, x in enumerate(L):
            if it < i <= ie:
                probe.append(f"L_pos{i}:")
            if x != "@DISPATCH":
                probe.append(x)
        open("probe.s", "w").write("\n".join(probe) + "\n")
        subprocess.run(["clang", "-x", "assembler", "-target", "amdgcn-amd-amdhsa", "-mcpu=gfx950",
                        "-c", "probe.s", "-o", "probe.o"], check=True)
        sym = subprocess.run(["llvm-readelf", "-s", "probe.o"], capture_output=True, text=True).stdout
        addr = {m.group(2): int(m.group(1), 16) for m in re.finditer(r"^\s*\d+: ([0-9a-f]+)\s.*\s(\S+)$", sym, re.M)}
        base = addr["L_page1"]
        win = self.o["win"]
        out, n, covered = [], 1, (addr["L_touch0"] - base) // 64 * 64 + win
        if not self.o["touch1"]:
            covered = 4096
        for i, x in enumerate(L):
            if it < i < ie:
                pos = addr[f"L_pos{i}"] - base + 4 * (n - 1)
                if pos >= covered:
                    out += [f"L_touch{n}:", "    s_cbranch_scc0 L_compute"]
                    n += 1
                    covered = min(pos // 64 * 64 + win, (pos // 4096 + 1) * 4096)
            out.append(x)
        disp = []
        for k, t in enumerate([f"L_touch{k}" for k in range(0 if self.o["touch1"] else 1, n)]):
            assert k < 3
            disp += [f"    s_cmp_lg_u32 s18, {4 + k}", f"    s_cbranch_scc0 {t}"]
        j = out.index("@DISPATCH")
        out[j:j + 1] = disp
        return "\n".join(out) + "\n"


if __name__ == "__main__":
    out = sys.argv[1]
    opts = {}
    for a in sys.argv[2:]:
        k, v = a.split("=")
        if k == "bars":
            opts[k] = v
            continue
        try:
            v = int(v)
        except ValueError:
            try:
                v = float(v)
            except ValueError:
                v = v.replace("+", " ")
        opts[k] = v
    open(out, "w").write(G(**opts).gen())
```

```python
import sys

HEADER = open("standalone__batchnorm__prompt.s.ref").read().split("; Override launch")[0]
KN = "standalone__batchnorm__prompt_kernel"

PS = 33 * 128
XBUF = 263 * 128
NXB = 3
WBUF = 3 * 32 * 128
NWB = 5
WBASE = NXB * XBUF
PB = WBASE + NWB * WBUF
LDS = PB + 512
STG = 2 * XBUF

ACC = 64
SET = (128, 192)
TMP = 32


def cnt(i):
    return (3, 5, 4, 3)[i % 4]


def need(u):
    return 2 * u + 3 if u % 2 == 0 else 2 * u + 2


DOC = """;
; One workgroup owns a 256 x 64 output tile. Waves 0-3 stream x and w into LDS rings with LDS-DMA loads, waves 4-7
; each compute 128 x 32 with v_mfma_f32_16x16x32_bf16 (A = w^T through transposed LDS reads, B = x).
; in LDS and written as whole 128-byte lines by waves 0-3."""

NOTES = {
    "L_loader": "DMA waves: addresses, first loads",
    "L_lloop": "DMA waves: steady state, two 64-channel stages per trip",
    "L_pc_done": "all loads landed; wave 0 publishes the folded BN scale and shift",
    "L_pw_done": "DMA waves: store the staged output rows",
    "L_compute": "MFMA waves: addresses, first 32-channel step",
    "L_cloop": "MFMA waves: steady state, two 32-channel steps per trip",
    "L_tail": "MFMA waves: last five steps and the epilogue; the scc0 branches are only taken by the entry-time jumps that pull this code into the instruction cache",
}


class G:
    def __init__(self, **o):
        self.o = dict(stamps=0, trace=0, no_dma=0, no_reads=0, no_mfma=0, no_epi=0, no_store=0,
                      lastrd=33, prio_c=1, prio_l=0, lfirst=1, order=17, xaux="", waux="", saux="sc1", xmap=0,
                      probe="", xor=1, nt=4, fpre=7, fbar=16, flast=38, hold=12, split0=1, touch1=0, direct=0, bars='01234567', wq=1, modeb=0, fall=0, rord=0, lbar=0, topw=6, tbar=4, idle=0, nsc=8, saux2='', pat='32,39,43,53', pwg=-1, rrate=0.8, x0=4, pace=1.04, pk=2, alt=0, lead=6, cum="23,30",
                      rotx=1, rotk=1, tchk=31, endq="229,240", pchk=50, blag=7, cpf=0, pstamp=0, brpos=45, pages=2, lpad=0, win=1280, latebar=0, diag=0, wpair=1, cmode=0, swap=0, base="_456789AB0123CDEF", mask="_3333333333333333", maskb="_0000000000000000")
        self.o.update(o)
        self.l = []
        self.nlab = 0
        self.late = []
        self.late_table = None
        self.inloop = 0
        self.flow = 0

    def e(self, s):
        self.l.append("    " + s)

    def lab(self, s):
        if s in NOTES:
            self.l.append("; " + NOTES[s])
        self.l.append(s + ":")

    def stamp(self, i):
        if self.o["stamps"]:
            self.e(f"s_memtime s[{60 + 4 * i}:{61 + 4 * i}]")
            self.e(f"s_memrealtime s[{62 + 4 * i}:{63 + 4 * i}]")
            self.e("s_waitcnt lgkmcnt(0)")

    def lbarrier(self):
        e = self.e
        e("s_barrier")
        if self.o["trace"]:
            e("s_memtime s[56:57]")
            e("s_memrealtime s[80:81]")
            e("s_mov_b32 s90, m0")
            e("s_mov_b32 m0, s55")
            e("s_waitcnt lgkmcnt(0)")
            e("v_writelane_b32 v62, s56, m0")
            e("v_writelane_b32 v63, s80, m0")
            e("s_add_u32 s55, s55, 1")
            e("s_mov_b32 m0, s90")

    def dump_stamps(self, n, role):
        if not self.o["stamps"]:
            return
        e = self.e
        if self.o["probe"]:
            prole, a, z, kind, mult = self.o["probe"].split(",")
            if prole == role:
                off = 60 if kind == "c" else 62
                e(f"s_sub_u32 s3, s{off + 4 * int(z)}, s{off + 4 * int(a)}")
                if kind == "g":
                    e("v_mov_b32 v50, 0")
                    e("global_load_dword v51, v50, s[92:93] sc1")
                    e("s_waitcnt vmcnt(0)")
                    e("v_readfirstlane_b32 s3, v51")
                    e("s_not_b32 s3, s3")
                    e(f"s_sub_u32 s3, s{62 + 4 * int(z)}, s3")
                if kind != "c":
                    e(f"s_mul_i32 s3, s3, {mult}")
                else:
                    e(f"s_lshr_b32 s3, s3, {mult}")
                e("s_min_u32 s3, s3, 50000")
                if self.o["pwg"] >= 0:
                    e("s_and_b32 s56, s2, 7")
                    e(f"s_cmp_eq_u32 s56, {self.o['pwg']}")
                    e("s_cselect_b32 s3, s3, 0")
                self.lab(f"L_spin_{role}")
                e("s_memrealtime s[56:57]")
                e("s_waitcnt lgkmcnt(0)")
                e(f"s_sub_u32 s56, s56, s{62 + 4 * (n - 1)}")
                e("s_cmp_lt_u32 s56, s3")
                e(f"s_cbranch_scc1 L_spin_{role}")
            return
        e("s_load_dwordx2 s[34:35], s[0:1], 64")
        e("s_waitcnt lgkmcnt(0)")
        e("v_mov_b32 v40, 0")
        for i in range(n):
            e(f"v_writelane_b32 v40, s{60 + 4 * i}, {2 * i}")
            e(f"v_writelane_b32 v40, s{62 + 4 * i}, {2 * i + 1}")
        for i in range(4):
            e(f"v_writelane_b32 v40, s{86 + i}, {12 + i}")
        e("s_lshl_b32 s3, s2, 3")
        e("s_and_b32 s18, s18, 3")
        if role == "l":
            e("s_add_u32 s18, s18, 4")
        e("s_add_u32 s3, s3, s18")
        e("s_lshl_b32 s3, s3, 6")
        e("v_lshl_add_u32 v41, v0, 2, s3")
        if self.o["trace"] and role == "l":
            e("s_lshl_b32 s3, s3, 2")
            e("s_add_u32 s3, s3, 0x100000")
            e("v_lshl_add_u32 v42, v0, 2, s3")
            e("v_subrev_u32 v62, s60, v62")
            e("v_subrev_u32 v63, s62, v63")
            e("v_lshl_or_b32 v63, v63, 18, v62")
            e("global_store_dword v42, v63, s[34:35]")
        e("s_mov_b64 exec, 0xffff")
        e("global_store_dword v41, v40, s[34:35]")

    def issue_x(self, half):
        e = self.e
        aux = self.o["xaux"]
        self.hooks.pop("x", lambda: None)()
        if self.o["no_dma"]:
            self.hooks.pop("halo", lambda: None)()
        if not self.o["no_dma"] and not (self.o["diag"] & 8 and self.inloop):
            e(f"s_add_u32 m0, s41, s{86 + half}")
            e(f"s_add_u32 s45, s40, s{88 + half}")
            e(f"buffer_load_dwordx4 v2, s[4:7], s45 offen {aux} lds")
            for p in range(1, 4):
                a, b = (45, 46) if p & 1 else (46, 45)
                e("s_add_u32 m0, m0, s54")
                e(f"s_add_u32 s{b}, s{a}, s53")
                e(f"buffer_load_dwordx4 v2, s[4:7], s{b} offen {aux} lds")
            self.hooks.pop("halo", lambda: None)()
            if half == 0 and not self.o["diag"] & 64:
                e("s_add_u32 m0, s41, s44")
                e("s_mov_b64 exec, 15")
                e(f"buffer_load_dwordx4 v3, s[4:7], s40 offen {aux} lds")
                e("s_mov_b64 exec, -1")
        if half == 0:
            return
        e(f"s_add_u32 s41, s41, {XBUF}")
        e("s_cmp_ge_u32 s41, s51")
        e("s_cselect_b32 s41, s50, s41")

    def issue(self, i):
        if i % 4 in (0, 3):
            self.issue_w(i & 1)
        else:
            self.issue_x(i % 4 - 1)

    def issue_w(self, second):
        e = self.e
        if not self.o["no_dma"] and not (self.o["diag"] & 16 and self.inloop):
            aux = self.o["waux"]
            e("s_mov_b32 m0, s43")
            e("s_add_u32 s45, s42, s38")
            e(f"buffer_load_dwordx4 v4, s[8:11], s42 offen {aux} lds")
            e("s_add_u32 m0, m0, s39")
            e("s_add_u32 s46, s45, s38")
            e(f"buffer_load_dwordx4 v4, s[8:11], s45 offen {aux} lds")
            e("s_add_u32 m0, m0, s39")
            e(f"s_addk_i32 s43, {WBUF}")
            e(f"buffer_load_dwordx4 v4, s[8:11], s46 offen {aux} lds")
        else:
            e(f"s_addk_i32 s43, {WBUF}")
        e("s_cmp_ge_u32 s43, s49")
        e("s_cselect_b32 s43, s51, s43")
        if second:
            self.hooks.pop("table", lambda: None)()
            e("s_lshr_b64 s[82:83], s[82:83], 4")
            self.stage_offsets()
        else:
            e("s_xor_b32 s42, s42, 0x10000")

    def stage_offsets(self):
        e = self.e
        e("s_and_b32 s3, s82, 15")
        e("s_lshl_b32 s40, s3, 7")
        e("s_lshl_b32 s42, s3, 17")
        e("s_or_b32 s42, s42, s85")

    def param_load(self):
        e = self.e
        e("s_load_dwordx8 s[24:31], s[0:1], 16")
        e("v_add_lshl_u32 v8, s17, v0, 1")
        e("s_waitcnt lgkmcnt(0)")
        for i in range(4):
            e(f"global_load_ushort v{10 + i}, v8, s[{24 + 2 * i}:{25 + 2 * i}]")

    def param_calc(self):
        e = self.e
        if self.o["diag"] & 256:
            e(f"v_mov_b32 v14, {PB}")
            return
        e("s_cmp_lg_u32 s18, 0")
        e("s_cbranch_scc1 L_pc_done")
        for i in range(4):
            e(f"v_lshlrev_b32 v{10 + i}, 16, v{10 + i}")

        def rnd():
            e("v_cvt_pk_bf16_f32 v11, v11, v11")
            e("v_lshlrev_b32 v11, 16, v11")
        e("v_add_f32 v11, 0x3727c5ac, v11")
        rnd()
        e("v_sqrt_f32 v11, v11")
        e("s_nop 0")
        rnd()
        e("v_rcp_f32 v11, v11")
        e("s_nop 0")
        rnd()
        e("v_mul_f32 v11, v12, v11")
        rnd()
        e("v_fma_f32 v13, -v10, v11, v13")
        e("v_mul_f32 v11, 0xbfb8aa3b, v11")
        e("v_mul_f32 v13, 0xbfb8aa3b, v13")
        e("v_lshlrev_b32 v14, 2, v0")
        e(f"v_add_u32 v14, {PB}, v14")
        self.lab("L_pc_done")

    def pi(self, dst, j, t0, t1):
        e = self.e
        e(f"v_lshlrev_b32 v{dst}, 1, v{j}")
        e(f"v_cmp_lt_u32 vcc, 3, v{j}")
        e(f"v_subrev_u32 v{t0}, 7, v{dst}")
        e(f"v_subrev_u32 v{t1}, 16, v{dst}")
        e(f"v_cndmask_b32 v{dst}, v{dst}, v{t0}, vcc")
        e(f"v_cmp_lt_u32 vcc, 11, v{j}")
        e("s_nop 1")
        e(f"v_cndmask_b32 v{dst}, v{dst}, v{t1}, vcc")

    def loader(self):
        e = self.e
        o = self.o
        self.lab("L_loader")
        if o["prio_l"]:
            e(f"s_setprio {o['prio_l']}")
        base = [int(ch, 16) for ch in o["base"].lstrip("_")]
        mask = [int(ch, 16) for ch in o["mask"].lstrip("_")]
        maskb = [int(ch, 16) for ch in o["maskb"].lstrip("_")]
        for c in range(4):
            for cb in range(4):
                assert sorted(b ^ (c & m) ^ (cb & mb) for b, m, mb in zip(base, mask, maskb)) == list(range(16))
        assert not maskb[0] and o["rotk"] and o["rotx"] == 1 and o["lfirst"]
        pack = lambda v: sum(x << (4 * k) for k, x in enumerate(v))
        e("v_lshrrev_b32 v5, 3, v0")
        e("s_lshl_b32 s47, s18, 2")
        e("v_xor_b32 v6, s47, v0")
        e("s_xor_b32 s84, s22, s20")
        e("v_and_b32 v7, 2, v5")
        e("v_and_b32 v6, 7, v6")
        if mask[0] == 3:
            e(f"s_xor_b32 s3, s84, {base[0]}")
        else:
            e(f"s_and_b32 s3, s84, {mask[0]}")
            e(f"s_xor_b32 s3, s3, {base[0]}")
        e("s_lshl_b32 s85, s2, 13")
        e("v_xor_b32 v7, v7, v6")
        e("s_and_b32 s85, s85, 0x10000")
        e("s_lshl_b32 s42, s3, 17")
        e("v_lshlrev_b32 v7, 4, v7")
        e("s_or_b32 s42, s42, s85")
        e("s_lshl_b32 s50, s18, 10")
        e("v_lshl_add_u32 v4, v5, 11, v7")
        e("s_lshl3_add_u32 s45, s50, s17")
        e(f"s_add_u32 s51, s50, {WBASE}")
        e("v_lshl_add_u32 v4, s45, 1, v4")
        e("s_mov_b32 s10, 0x600000")
        e("s_mov_b32 s11, 0x20000")
        e("s_mov_b32 s43, s51")
        e("s_mov_b32 s38, 0x200000")
        e("s_movk_i32 s39, 4096")
        e(f"s_add_u32 s49, s51, {NWB * WBUF}")
        e("s_lshl_b32 s40, s3, 7")
        e("s_waitcnt lgkmcnt(0)")
        self.stamp(1)
        if ",g," in o["probe"]:
            e("s_load_dwordx2 s[92:93], s[0:1], 56")
            e("s_not_b32 s3, s62")
            e("v_mov_b32 v50, 0")
            e("v_mov_b32 v51, s3")
            e("s_waitcnt lgkmcnt(0)")
            e("s_mov_b64 exec, 1")
            e("global_atomic_umax v50, v51, s[92:93] sc1")
            e("s_mov_b64 exec, -1")

        def x_setup():
            e("v_lshrrev_b32 v7, 1, v5")
            e("s_mov_b32 s6, 0x800000")
            e("v_xor_b32 v7, v7, v6")
            e("s_mov_b32 s7, s11")
            e("v_lshlrev_b32 v7, 4, v7")
            e("s_lshl4_add_u32 s3, s47, s16")
            e("v_lshl_add_u32 v2, v5, 14, v7")
            e("s_bitcmp1_b32 s17, 6")
            e(f"s_cselect_b32 s86, {4 * PS}, 0")
            e("v_lshl_add_u32 v2, s3, 11, v2")
            e("s_cselect_b32 s88, 0x2000, 0")
            e(f"s_add_u32 s41, s50, {XBUF}")
            e("s_movk_i32 s53, 2048")
            e(f"s_movk_i32 s54, {PS}")

        def halo_setup():
            e(f"s_xor_b32 s87, s86, {4 * PS}")
            e("s_xor_b32 s89, s88, 0x2000")
            e(f"s_movk_i32 s44, {230 * 128}")
            e("s_cmp_lt_u32 s18, 2")
            e("s_cselect_b32 s3, 256, 0")
            e("s_cselect_b32 s23, 256, -1")
            e("s_cselect_b32 s24, 0, 7")
            e(f"s_cmovk_i32 s44, {32 * 128}")
            e("s_add_u32 s3, s3, s16")
            e("s_add_u32 s23, s23, s16")
            e("s_lshl_b32 s23, s23, 11")
            e("s_and_b32 s3, s3, 2047")
            e("s_cselect_b32 s23, s23, 0x80000000")
            e("v_xor_b32 v7, s24, v6")
            e("s_and_b32 s47, s47, 4")
            e("v_lshl_add_u32 v3, v7, 4, s23")
            e("s_lshl4_add_u32 s44, s47, s44")
            e("s_sub_u32 s44, s44, s50")

        def table_setup():
            e("s_mul_i32 s3, s84, 0x11111111")
            for h in range(2):
                m = pack(mask[8 * h:8 * h + 8])
                if m == 0x33333333:
                    e(f"s_xor_b32 s{82 + h}, s3, {pack(base[8 * h:8 * h + 8]):#x}")
                else:
                    e(f"s_and_b32 s{82 + h}, s3, {m:#x}")
                    e(f"s_xor_b32 s{82 + h}, s{82 + h}, {pack(base[8 * h:8 * h + 8]):#x}")
            if any(maskb):
                if o["modeb"] == 0:
                    e("s_and_b32 s84, s84, 1")
                    e("s_lshr_b32 s3, s2, 2")
                    e("s_xor_b32 s3, s3, s2")
                    e("s_bfe_u32 s3, s3, 0x10004")
                    e("s_lshl1_add_u32 s84, s84, s3")
                elif o["modeb"] == 1:
                    e("s_lshl_b32 s3, s20, 1")
                    e("s_xor_b32 s84, s22, s3")
                else:
                    e("s_lshr_b32 s3, s2, 5")
                    e("s_and_b32 s3, s3, 2")
                    e("s_xor_b32 s84, s84, s3")
                e("s_mul_i32 s84, s84, 0x11111111")
                for h in range(2):
                    m = pack(maskb[8 * h:8 * h + 8])
                    if m:
                        e(f"s_and_b32 s3, s84, {m:#x}")
                        e(f"s_xor_b32 s{82 + h}, s{82 + h}, s3")
        self.hooks = {"x": x_setup, "halo": halo_setup, "table": table_setup}
        if o["trace"]:
            e("s_mov_b32 s55, 0")
        st = {"issued": 0, "chunks": []}

        def upto(c):
            while st["issued"] < min(c, 240):
                if not st["chunks"]:
                    keep, self.l = self.l, []
                    pos = st["issued"] % 15
                    self.issue({0: 0, 3: 1, 8: 2, 12: 3}[pos])
                    lines, self.l = self.l, keep
                    n = {0: 3, 3: 5, 8: 4, 12: 3}[pos]
                    cuts = [k + 1 for k, x in enumerate(lines) if x.endswith(" lds")][:n - 1]
                    cuts = cuts + [len(lines)] * (n - len(cuts))
                    st["chunks"] = [lines[a:b] for a, b in zip([0] + cuts, cuts)]
                self.l += st["chunks"].pop(0)
                st["issued"] += 1

        needi = lambda u: 15 * (u // 2) + (15 if u & 1 else 12)
        legal = lambda u: needi(u + 4)

        def step(u):
            nd = needi(29) if u == 28 else needi(u)
            assert nd <= st["issued"]
            e(f"s_waitcnt vmcnt({st['issued'] - nd})")
            self.lbarrier()

        cum = [int(v) for v in str(o["cum"]).split(",")]
        for u, c in enumerate(cum):
            assert c <= legal(max(u - 1, 0))
            upto(c)
            if u == 0:
                e("s_cmp_eq_u32 s18, 0")
                e("s_cselect_b32 s48, 2, 64")
            step(u)
            if u == 0:
                self.stamp(2)
        u0 = len(cum)
        pat = [int(v) for v in str(o["pat"]).split(",")]
        per = 2 if pat[2] == pat[0] + 15 and pat[3] == pat[1] + 15 else 4
        after = lambda u: 30 * (u // 4) + pat[u % 4]
        assert all(after(u) <= legal(u) for u in range(4))
        assert st["issued"] <= after(u0 - 1)
        upto(after(u0 - 1))
        endq = [int(v) for v in str(o["endq"]).split(",") if v]
        nit = (28 - len(endq) - u0) // per
        e(f"s_mov_b32 s52, {nit - 1}")
        self.lab("L_lloop")
        self.inloop = 1
        for k in range(per):
            step(u0 + k)
            upto(after(u0 + k))
        e("s_cmp_lg_u32 s52, s48")
        e("s_cbranch_scc1 L_nopl")
        self.param_load()
        self.lab("L_nopl")
        e("s_sub_u32 s52, s52, 1")
        e("s_cbranch_scc0 L_lloop")
        st["issued"] += 15 * per // 2 * (nit - 1)
        e("s_load_dwordx2 s[12:13], s[0:1], 48")
        for u in range(u0 + per * nit, 29):
            step(u)
            k = u - (28 - len(endq))
            c = endq[k] if 0 <= k < len(endq) else after(u)
            assert c <= legal(u)
            upto(c)
        assert st["issued"] == 240
        self.param_calc()
        e("s_waitcnt vmcnt(0) lgkmcnt(0)")
        self.lbarrier()
        e("s_cmp_lg_u32 s18, 0")
        e("s_cbranch_scc1 L_pw_done")
        if not o["diag"] & 512:
            e("ds_write_b32 v14, v11")
            e("ds_write_b32 v14, v13 offset:256")
        e("s_waitcnt lgkmcnt(0)")
        self.lab("L_pw_done")
        self.lbarrier()
        self.stamp(3)
        self.store_setup()
        if o["diag"] & 32:
            e("s_movk_i32 s53, 2048")
        e("s_mov_b32 s46, 0")
        bars = [int(ch) for ch in str(o["bars"])]
        assert bars[-1] == (6 if o["direct"] else 7)
        tm = 0
        for b in bars:
            if not o["diag"] & 1:
                self.lbarrier()
            grp = list(range(tm, b + 1))
            for q, t2 in enumerate(grp):
                e(f"ds_read_b128 v[{28 + 4 * q}:{31 + 4 * q}], v17 offset:{t2 * 4096}")
            for q, t2 in enumerate(grp):
                e(f"s_waitcnt lgkmcnt({len(grp) - 1 - q})")
                if not o["no_store"]:
                    e(f"buffer_store_dwordx4 v[{28 + 4 * q}:{31 + 4 * q}], v16, s[12:15], s46 offen {o['saux'] if t2 < o['nsc'] else o['saux2']}")
                e("s_add_u32 s46, s46, s53")
            tm = b + 1
        if o["stamps"]:
            e("s_waitcnt vmcnt(0)")
        self.stamp(4)
        if o["stamps"]:
            e("s_branch L_ldump")

            def late():
                self.lab("L_ldump")
                self.dump_stamps(5, "l")
                e("s_endpgm")
            self.late.append(late)
        else:
            e("s_endpgm")

    def store_setup(self):
        e = self.e
        e("s_mov_b32 s14, 0x800000")
        e("s_mov_b32 s15, 0x20000")
        e("s_and_b32 s3, s18, 1")
        e("v_lshl_add_u32 v6, s3, 3, v5")
        self.pi(7, 6, 8, 9)
        e("s_lshr_b32 s3, s18, 1")
        e("s_lshl_b32 s3, s3, 7")
        e("s_add_u32 s3, s3, s16")
        e("s_lshl_b32 s3, s3, 10")
        e("s_add_u32 s3, s3, s17")
        e("s_lshl_b32 s3, s3, 1")
        e("v_and_b32 v8, 7, v0")
        e("v_lshl_add_u32 v9, v8, 4, s3")
        e("v_lshl_add_u32 v16, v7, 14, v9")
        e("v_xor_b32 v8, v8, v5")
        e("v_lshlrev_b32 v8, 4, v8")
        e("v_lshl_add_u32 v8, v5, 7, v8")
        e(f"s_add_u32 s3, s50, {STG}")
        e("v_add_u32 v17, s3, v8")

    def rd_f(self, r, kk, dl, off=0):
        a = 2 + 3 * kk
        if dl == 0:
            return [f"ds_read_b128 v[{r}:{r + 3}], v{a + 2} offset:{7 * PS - 128 + off}"]
        if dl == 9:
            return [f"ds_read_b128 v[{r}:{r + 3}], v{a + 1} offset:{off}"]
        return [f"ds_read_b128 v[{r}:{r + 3}], v{a} offset:{(dl - 1) * PS + off}"]

    def rd_g(self, r, k, t, off=0):
        return [f"ds_read_b64_tr_b16 v[{r + 2 * hh}:{r + 2 * hh + 1}], v{8 + t} offset:{k * 4096 + hh * 512 + off}"
                for hh in range(2)]

    def reads(self, st, kk):
        base = SET[st]
        if self.o["rord"] == 2:
            return [x for dl in range(10) for x in self.rd_f(base + 4 * dl, kk, dl)] + \
                   [x for t in range(2) for k in range(3) for x in self.rd_g(base + 40 + (k * 2 + t) * 4, k, t)]
        if self.o["lbar"] or self.o["rord"] == 1:
            out, seen = [], set()
            for k, t, tm in self.mfmas(st, raw=True):
                for nm in (("G", k, t), ("F", tm + k)):
                    if nm not in seen:
                        seen.add(nm)
                        out += self.rd_g(base + 40 + (k * 2 + t) * 4, k, t) if nm[0] == "G" else \
                            self.rd_f(base + 4 * nm[1], kk, nm[1])
            return out
        L = []
        for t in range(2):
            for k in range(3):
                L += self.rd_g(base + 40 + (k * 2 + t) * 4, k, t)
        X = []
        for dl in range(10):
            X += self.rd_f(base + 4 * dl, kk, dl)
        out = []
        while L or X:
            if X:
                out.append(X.pop(0))
            if L:
                out.append(L.pop(0))
        return out

    def mf(self, g, f, t, tm):
        acc = ACC + (tm * 2 + t) * 4
        return f"v_mfma_f32_16x16x32_bf16 v[{acc}:{acc + 3}], v[{g}:{g + 3}], v[{f}:{f + 3}], v[{acc}:{acc + 3}]"

    def mfmas(self, st, raw=False):
        od = self.o["order"]
        asc, desc = (0, 1, 2), (2, 1, 0)
        up, down = list(range(8)), list(range(7, -1, -1))
        if od == 0:
            seq = [(k, t, tm) for k in range(3) for t in range(2) for tm in range(8)]
        elif od == 4:
            seq = [(k, t, tm) for t in range(2) for tm in up for k in asc]
        elif od == 6:
            seq = [(k, t, tm) for t in range(2) for tm in up for k in (asc if tm % 2 == 0 else desc)]
        elif od == 7:
            seq = []
            for tm in up:
                ts = (0, 1) if tm % 2 == 0 else (1, 0)
                seq += [(k, ts[0], tm) for k in asc] + [(k, ts[1], tm) for k in desc]
        elif od == 9:
            seq = [(k, 0, tm) for tm in up for k in (asc if tm % 2 == 0 else desc)] + \
                  [(k, 1, tm) for tm in down for k in (asc if tm % 2 else desc)]
        elif od == 17:
            seq = [(k, st, tm) for tm in up for k in (asc if tm % 2 == 0 else desc)] + \
                  [(k, st ^ 1, tm) for tm in down for k in (asc if tm % 2 else desc)]
        elif od == 10:
            seq = [(k, t, tm) for t in range(2) for tm in up for k in desc]
        elif od == 11:
            seq = [(k, t, tm) for t in range(2) for tm in up for k in (0, 2, 1)]
        elif od == 12:
            seq = [(k, t, tm) for t in range(2) for tm in up for k in (1, 0, 2)]
        elif od == 13:
            rot = [(0, 1, 2), (2, 0, 1), (1, 2, 0)]
            seq = [(k, t, tm) for t in range(2) for tm in up for k in rot[tm % 3]]
        elif od == 14:
            rot = [(0, 2, 1), (1, 0, 2), (2, 1, 0)]
            seq = [(k, t, tm) for t in range(2) for tm in up for k in rot[tm % 3]]
        elif od == 15:
            seq = [(k, t, tm) for t in range(2) for tm in up for k in ((0, 2, 1) if tm % 2 == 0 else (1, 2, 0))]
        elif od == 16:
            seq = [(k, t, tm) for t in range(2) for tm in up for k in ((2, 0, 1) if tm % 2 == 0 else (1, 0, 2))]
        elif od >= 20:
            out = []
            for tm in up:
                ks = [(0, k) for k in asc] + [(1, k) for k in (asc if od == 20 else desc)]
                if od != 22 and tm % 2:
                    ks = ks[::-1]
                out += [self.mf(SET[s_] + 40 + (k * 2 + st) * 4, SET[s_] + 4 * (tm + k), st, tm) for s_, k in ks]
            return out
        if raw:
            return seq
        M = [(SET[st] + 40 + (k * 2 + t) * 4, SET[st] + 4 * (tm + k), t, tm) for k, t, tm in seq]
        if self.o["swap"]:
            M = [(f, g, t, tm) for g, f, t, tm in M]
        return [self.mf(*m) for m in M]

    def substage(self, st, pre):
        o = self.o
        M = self.mfmas(st)
        R = self.reads(st ^ 1, st ^ 1) if not o["no_reads"] else []
        if o["diag"] & 1024:
            R = [r for r in R if "tr" not in r]
        if o["diag"] & 2048:
            R = [r for r in R if "tr" in r]
        if o["diag"] & 4096:
            R = [r.replace("b64_tr_b16", "b64") for r in R]
        fill = {}
        lb = o["lbar"]
        sp = (o["lastrd"] - lb) / 22.0
        if lb:
            fill[lb - 1] = ["s_waitcnt lgkmcnt(0)", "s_barrier"]
        for i, r in enumerate(R):
            fill.setdefault(lb + int(i * sp), []).append(r)
        pos = 0 if lb else o["lastrd"]
        for i, p in enumerate(pre):
            fill.setdefault(min(pos + i, 47), []).extend(p)
        top = [f"s_waitcnt lgkmcnt({o['topw']})"] if lb else ["s_waitcnt lgkmcnt(0)", "s_barrier"] + ["s_nop 15"] * o["idle"]
        if lb and o["topw"] > 6:
            fill.setdefault({7: 20, 8: 19, 9: 14, 10: 13, 11: 8, 12: 7}[o["topw"]] - 1, []).append("s_waitcnt lgkmcnt(6)")
        out = []
        for i, m in enumerate(M):
            out.append((top if i == 0 else []) + ([m] if not o["no_mfma"] else []) + fill.get(i, []))
        return out

    def first(self, pre, nm_=48):
        e = self.e
        o = self.o
        seq = self.mfmas(0, raw=True)
        todo, queue, seen = [], [], set()
        for k, t, tm in seq:
            for nm in (("G", k, t), ("F", tm + k)):
                if nm not in todo:
                    todo.append(nm)

        def rd():
            nm = todo.pop(0)
            ops = self.rd_g(SET[0] + 40 + (nm[1] * 2 + nm[2]) * 4, nm[1], nm[2]) if nm[0] == "G" else \
                self.rd_f(SET[0] + 4 * nm[1], 0, nm[1])
            for op in ops:
                e(op)
                queue.append(nm)
        for _ in range(o["fpre"]):
            rd()
        R = self.reads(1, 1)
        bar = o["fbar"]
        sp = (o["flast"] - bar) / 22.0
        fill = {bar - 1: ["v_add_u32 v8, s53, v8", "v_add_u32 v9, s53, v9"], bar: ["s_waitcnt lgkmcnt(0)", "s_barrier"]}
        for i, r in enumerate(R):
            fill.setdefault(bar + int(i * sp), []).append(r)
        for i, p in enumerate(pre):
            fill.setdefault(min(o["flast"] + i * 2 // 3, nm_ - 1), []).extend(p)
        for i, (k, t, tm) in enumerate(seq[:nm_]):
            idx = max((q for q, tg in enumerate(queue) if tg in (("G", k, t), ("F", tm + k))), default=-1)
            if idx >= 0:
                n = min(len(queue) - 1 - idx, 14)
                e(f"s_waitcnt lgkmcnt({n})")
                del queue[:len(queue) - n]
            m = self.mf(SET[0] + 40 + (k * 2 + t) * 4, SET[0] + 4 * (tm + k), t, tm)
            if (t, tm) not in seen:
                seen.add((t, tm))
                m = m[:m.rindex(",")] + ", 0"
            e(m)
            if todo:
                assert i < bar - 1
                rd()
            if i == bar:
                del queue[:]
            for x in fill.get(i, []):
                e(x)

    def epi_ops(self, un):
        tm, t = un >> 1, un & 1
        a = ACC + un * 4
        tb = TMP + 4 * t
        L = []
        if not self.o["no_epi"] and not (self.o["pk"] == 1 or (self.o["pk"] == 2 and un == 15)):
            for r in range(4):
                L.append(f"v_fma_f32 v{a + r}, v{a + r}, v{16 + 4 * t + r}, v{24 + 4 * t + r}")
            for r in range(4):
                L.append(f"v_exp_f32 v{tb + r}, v{a + r}")
            for r in range(4):
                L.append(f"v_fma_f32 v{tb + r}, v{tb + r}, s42, s42")
            for r in range(4):
                L.append(f"v_rcp_f32 v{tb + r}, v{tb + r}")
            for r in range(4):
                L.append(f"v_mul_f32 v{tb + r}, v{tb + r}, v{a + r}")
            for p in range(2):
                L.append(f"v_cvt_pk_bf16_f32 v{a + p}, v{tb + 2 * p}, v{tb + 2 * p + 1}")
        elif not self.o["no_epi"]:
            for p in range(2):
                q = 4 * t + 2 * p
                L.append(f"v_pk_fma_f32 v[{a + 2 * p}:{a + 2 * p + 1}], v[{a + 2 * p}:{a + 2 * p + 1}], v[{16 + q}:{17 + q}], v[{24 + q}:{25 + q}]")
            for r in range(4):
                L.append(f"v_exp_f32 v{tb + r}, v{a + r}")
            for p in range(2):
                L.append(f"v_pk_fma_f32 v[{tb + 2 * p}:{tb + 2 * p + 1}], v[{tb + 2 * p}:{tb + 2 * p + 1}], s[42:43], s[42:43]")
            for r in range(4):
                L.append(f"v_rcp_f32 v{tb + r}, v{tb + r}")
            for p in range(2):
                L.append(f"v_pk_mul_f32 v[{tb + 2 * p}:{tb + 2 * p + 1}], v[{tb + 2 * p}:{tb + 2 * p + 1}], v[{a + 2 * p}:{a + 2 * p + 1}]")
            for p in range(2):
                L.append(f"v_cvt_pk_bf16_f32 v{a + p}, v{tb + 2 * p}, v{tb + 2 * p + 1}")
        if self.o["direct"] and tm == 7:
            if t:
                L = [x.replace(f"v_cvt_pk_bf16_f32 v{a},", f"v_cvt_pk_bf16_f32 v{a - 2},")
                      .replace(f"v_cvt_pk_bf16_f32 v{a + 1},", f"v_cvt_pk_bf16_f32 v{a - 1},") for x in L]
                L += ["s_nop 0", f"v_permlane16_swap_b32 v{a - 4}, v{a - 2}", f"v_permlane16_swap_b32 v{a - 3}, v{a - 1}"]
                if not self.o["no_store"]:
                    L.append(f"buffer_store_dwordx4 v[{a - 4}:{a - 1}], v0, s[12:15], 0 offen {self.o['saux']}")
        elif self.o["diag"] & 2:
            L.append("ds_read_b32 v12, v1")
        elif self.o["wpair"]:
            if t:
                L.insert(len(L) - 2, f"DS ds_write_b64 v1, v[{a - 4}:{a - 3}] offset:{tm * 4096}")
                L.append(f"ds_write_b64 v11, v[{a}:{a + 1}] offset:{tm * 4096}")
        else:
            L.append(f"ds_write_b64 v{11 if t else 1}, v[{a}:{a + 1}] offset:{tm * 4096}")
        return L

    def tail(self):
        e = self.e
        o = self.o
        nt = o["nt"]
        seq = []
        for u in range(27, 32 - nt):
            for tm in range(8):
                ts = (0, 1) if tm % 2 else (1, 0)
                seq += [(u, k, ts[0], tm) for k in (0, 1, 2)] + [(u, k, ts[1], tm) for k in (2, 1, 0)]
        done_at = {}
        for tm in range(8):
            if o["alt"]:
                for u in range(32 - nt, 32):
                    seq += [(u, k, t, tm) for k in range(3) for t in range(2)]
                done_at[2 * tm] = len(seq) - 2
                done_at[2 * tm + 1] = len(seq) - 1
                continue
            lo = 32 - nt
            if tm == 0 and nt == 4 and o["split0"]:
                seq += [(u, k, t, tm) for t in range(2) for u in (28, 29) for k in range(3)]
                lo = 30
            for t in range(2):
                for u in range(lo, 32):
                    seq += [(u, k, t, tm) for k in range(3)]
                done_at[2 * tm + t] = len(seq) - 1
        first, last = {}, {}
        for i, (u, k, t, tm) in enumerate(seq):
            for nm in (("G", u, k, t), ("F", u, tm + k)):
                first.setdefault(nm, i)
                last[nm] = i
        reg = {}
        for dl in range(10):
            reg[("F", 27, dl)] = SET[1] + 4 * dl
        for k in range(3):
            for t in range(2):
                reg[("G", 27, k, t)] = SET[1] + 40 + (k * 2 + t) * 4
        free = list(range(SET[0], SET[0] + 64, 4)) + list(range(TMP + 8, 64, 4)) + [12]
        todo = sorted((nm for nm in first if nm not in reg), key=lambda nm: first[nm])
        par = [("P", i) for i in range(4)]
        npar = max(0, len([nm for nm in todo if first[nm] <= done_at[0] + 4]))
        todo = todo[:npar] + par + todo[npar:]
        queue = []

        def lds(op, tag=None):
            e(op)
            queue.append(tag)

        def wait_for(tags):
            idx = max((i for i, tg in enumerate(queue) if tg in tags), default=-1)
            if idx >= 0:
                n = min(len(queue) - 1 - idx, 14)
                e(f"s_waitcnt lgkmcnt({n})")
                del queue[:len(queue) - n]

        half = []

        def issue_read(nm):
            if nm[0] == "P":
                i = nm[1]
                lds(f"ds_read_b128 v[{16 + 4 * i}:{19 + 4 * i}], v10 offset:{(i >> 1) * 256 + (i & 1) * 64}", nm)
                return
            r = free.pop(0)
            reg[nm] = r
            u = nm[1]
            if nm[0] == "F":
                ops = self.rd_f(r, u & 1, nm[2], XBUF * ((u >> 1) - 14))
            else:
                ops = self.rd_g(r, nm[2], nm[3], WBUF * (u % NWB))
            if not o["no_reads"]:
                lds(ops[0], nm)
                half.extend((op, nm) for op in ops[1:])

        e("s_waitcnt lgkmcnt(0)")
        self.stamp(3)
        if not o["lbar"]:
            e("s_barrier")
        chk, pchk = o["tchk"], o["pchk"]
        head = {0: [f"v_subrev_u32 v8, {3 * WBUF}, v8", "s_mov_b32 s43, s42"], 1: [f"v_subrev_u32 v9, {3 * WBUF}, v9"],
                2: ["v_add_u32 v5, s55, v5"], 3: ["v_add_u32 v6, s55, v6"], 4: ["v_add_u32 v7, s55, v7"],
                chk: ["s_barrier"], pchk: ["s_barrier"]}
        avail = {28: 1, 29: 5, 30: chk, 31: chk}
        if o["lbar"]:
            tb = o["tbar"]
            head = {0: [f"v_subrev_u32 v8, {2 * WBUF}, v8", f"v_subrev_u32 v9, {2 * WBUF}, v9", "s_mov_b32 s43, s42"],
                    1: ["v_add_u32 v2, s47, v2", "v_add_u32 v3, s47, v3"], 2: ["v_add_u32 v4, s47, v4", "v_add_u32 v5, s47, v5"],
                    3: ["v_add_u32 v6, s47, v6", "v_add_u32 v7, s47, v7"],
                    tb: ["s_barrier"], chk: ["s_barrier"], pchk: ["s_barrier"]}
            avail = {28: tb + 1, 29: tb + 1, 30: chk, 31: chk}
        bar_at = {}
        quiet = -1
        bars = [int(ch) for ch in str(o["bars"])]
        cost = lambda x: 8 if ("v_exp" in x or "v_rcp" in x) else 12 if "ds_write" in x else 4
        cur, pend, nxt = [], [], 0
        mark = {}
        credit = 0.0
        per_gap = sum(cost(x) for x in self.epi_ops(0) + self.epi_ops(1)) / (6.0 * nt) * o['pace'] + 0.5
        stalls = []
        for i, (u, k, t, tm) in enumerate(seq):
            g, f = ("G", u, k, t), ("F", u, tm + k)
            while g in todo or f in todo or any(nm == g for _, nm in half):
                stalls.append(i)
                if half:
                    lds(*half.pop(0))
                else:
                    issue_read(todo.pop(0))
            wait_for({g, f})
            if not o["no_mfma"]:
                e(self.mf(reg[g], reg[f], t, tm))
            if nxt < 16 and done_at[nxt] == i:
                mark[nxt] = len(self.l)
                pend.append(nxt)
                nxt += 1
            for nm in (g, f):
                if last[nm] == i:
                    free.append(reg[nm])
            for x in head.get(i, []):
                e(x)
            if i in bar_at and not o["latebar"]:
                wait_for({bar_at.pop(i)})
                e("s_barrier")
            wnext = cur and any(x[:2].lower() == "ds" for x in cur[:3])
            if i >= 1 and i not in (chk, pchk) and not (wnext and not half) and i > quiet:
                if half:
                    lds(*half.pop(0))
                    credit -= 4 * bool(cur or pend)
                else:
                    hold = min([first[nm] for nm in todo if nm[0] != "P" and i < avail[nm[1]]], default=999)
                    cand = [nm for nm in todo if (i >= pchk if nm[0] == "P" else
                                                  i >= avail[nm[1]] and first[nm] <= hold + o["hold"])]
                    if cand and (cand[0][0] == "P" or free):
                        todo.remove(cand[0])
                        issue_read(cand[0])
                        credit -= 4 * bool(cur or pend)
            if cur or pend:
                credit += per_gap
            while credit > 0:
                if not cur:
                    if not pend or len(self.l) - mark[pend[0]] < 8:
                        credit = 0
                        break
                    wait_for(set(par))
                    curun = pend.pop(0)
                    cur = self.epi_ops(curun)
                x = cur.pop(0)
                if x.startswith("DS "):
                    lds(x[3:])
                elif x.startswith("ds_"):
                    lds(x, ("W", curun))
                    if curun & 1:
                        free.extend([ACC + 4 * curun - 4, ACC + 4 * curun])
                    quiet = i + o["wq"]
                    if curun & 1 and curun >> 1 in bars and not o["diag"] & 1:
                        bar_at[i + o["blag"]] = ("W", curun)
                else:
                    e(x)
                credit -= cost(x)
        assert not todo
        if stalls:
            print("tail: late reads at", stalls, file=sys.stderr)
        rest = [(curun, cur)] if cur else []
        rest += [(un, None) for un in pend]
        for un, ops in rest:
            if ops is None:
                gap = len(self.l) - mark[un]
                if gap < 8:
                    e(f"s_nop {7 - gap}")
                ops = self.epi_ops(un)
            for x in ops:
                if x.startswith("DS "):
                    lds(x[3:])
                elif x.startswith("ds_"):
                    for key in sorted(bar_at):
                        wait_for({bar_at.pop(key)})
                        e("s_barrier")
                    lds(x, ("W", un))
                    if un & 1 and un >> 1 in bars and not o["diag"] & 1:
                        bar_at[un] = ("W", un)
                else:
                    e(x)
        for key in sorted(bar_at):
            wait_for({bar_at.pop(key)})
            e("s_barrier")

    def compute(self):
        e = self.e
        o = self.o
        if o["pages"]:
            e(".p2align 12")
            self.lab("L_page1")
        self.lab("L_compute")
        e("s_and_b32 s38, s18, 1")
        e("s_bfe_u32 s39, s18, 0x10001")
        e("v_and_b32 v10, 15, v0")
        e("v_lshrrev_b32 v16, 4, v0")
        if o["cpf"]:
            e("s_getpc_b64 s[20:21]")
            e("v_lshlrev_b32 v12, 7, v0")
            e("v_mov_b32 v13, s21")
            e("v_add_co_u32 v12, vcc, s20, v12")
            e("s_cmp_lt_u32 s36, %d" % o["cpf"])
            e("s_cselect_b32 s3, s18, 1")
            e("v_addc_co_u32 v13, vcc, 0, v13, vcc")
            e("s_and_b32 s3, s3, 3")
            e("s_cbranch_scc1 L_nocpf")
            e("s_mov_b32 exec_hi, (1 << (((L_end - L_compute) >> 7) - 32)) - 1")
            e("global_load_dword v14, v[12:13], off")
            e("s_mov_b32 exec_hi, -1")
            self.lab("L_nocpf")
        self.pi(17, 10, 18, 19)
        e("v_lshrrev_b32 v18, 2, v10")
        e("v_lshl_add_u32 v19, v16, 3, v18")
        e("v_lshlrev_b32 v19, 7, v19")
        e("v_and_b32 v20, 3, v10")
        e("v_lshl_add_u32 v19, v20, 3, v19")
        e("v_lshrrev_b32 v18, 1, v18")
        e("v_and_b32 v20, 1, v16")
        e("v_lshl_or_b32 v18, v20, 1, v18")
        e("s_lshl_b32 s45, s39, 1")
        e("v_xor_b32 v18, s45, v18")
        e("v_lshl_add_u32 v19, v18, 5, v19")
        e(f"v_add_u32 v8, {WBASE}, v19")
        e("v_xor_b32 v9, 32, v8")
        e("s_lshl_b32 s3, s38, 11")
        e(f"s_add_u32 s46, s3, {XBUF}")
        if o["rotk"]:
            e("s_bfe_u32 s47, s16, 0x10008")
            e("v_lshl_or_b32 v21, s47, 2, v16")
        for idx, sh in ((0, 0), (1, 1), (2, -1)):
            e(f"v_add_u32 v18, {sh}, v17")
            e("v_bfe_u32 v19, v18, 1, 3")
            e(f"v_xor_b32 v19, v19, v{21 if o['rotk'] else 16}")
            e("v_lshlrev_b32 v19, 4, v19")
            e(f"v_lshl_add_u32 v19, v{17 if sh == -1 else 18}, 7, v19")
            e(f"v_add_u32 v{2 + idx}, s46, v19")
            e(f"v_xor_b32 v{5 + idx}, 64, v{2 + idx}")
        e("v_lshrrev_b32 v18, 1, v16")
        e("v_lshl_add_u32 v18, s39, 2, v18")
        e("v_and_b32 v19, 7, v10")
        e("v_xor_b32 v18, v18, v19")
        e("v_lshlrev_b32 v18, 4, v18")
        e("v_lshl_add_u32 v18, v20, 3, v18")
        e("v_lshl_add_u32 v18, v10, 7, v18")
        e(f"s_add_u32 s3, s3, {STG}")
        e("v_add_u32 v1, s3, v18")
        e("v_xor_b32 v11, 32, v1")
        if o["direct"]:
            e("s_lshl_b32 s3, s38, 7")
            e("s_add_u32 s3, s3, s16")
            e("s_add_u32 s3, s3, 7")
            e("s_lshl_b32 s3, s3, 10")
            e("s_lshl_b32 s45, s39, 5")
            e("s_add_u32 s3, s3, s45")
            e("s_add_u32 s3, s3, s17")
            e("s_lshl_b32 s3, s3, 1")
            e("v_lshl_add_u32 v18, v20, 5, s3")
            e("v_lshrrev_b32 v19, 1, v16")
            e("v_lshl_add_u32 v18, v19, 4, v18")
            e("v_lshl_add_u32 v0, v17, 14, v18")
            e("s_waitcnt lgkmcnt(0)")
        e("s_lshl_b32 s3, s39, 7")
        e(f"s_add_u32 s3, s3, {PB}")
        e("v_lshl_add_u32 v10, v16, 4, s3")
        if o["fall"]:
            seq = self.mfmas(0, raw=True)
            for t, tm in sorted({(t, tm) for k, t, tm in seq[o["brpos"]:]} - {(t, tm) for k, t, tm in seq[:o["brpos"]]}):
                for h in range(2):
                    r = ACC + (tm * 2 + t) * 4 + 2 * h
                    e(f"v_mov_b64 v[{r}:{r + 1}], 0")
            for _ in range(o["lpad"]):
                e("s_nop 0")
        e("s_mov_b32 s40, 1")
        e("s_mov_b32 s41, 1")
        e("s_mov_b32 s42, 0xbfb8aa3b")
        e(f"s_movk_i32 s53, {WBUF}")
        e(f"s_mov_b32 s54, {XBUF}")
        e(f"s_mov_b32 s46, {-(NWB - 1) * WBUF & 0xffffffff:#x}")
        e(f"s_mov_b32 s47, {-(NXB - 1) * XBUF & 0xffffffff:#x}")
        e("s_mov_b32 s52, 12")
        if o["prio_c"]:
            e(f"s_setprio {o['prio_c']}")
        self.stamp(1)
        e("s_barrier")
        self.stamp(2)

        def wadv():
            return [["s_add_u32 s41, s41, 1", f"s_cmp_eq_u32 s41, {NWB}"],
                    ["s_cselect_b32 s43, s46, s53", "s_cselect_b32 s41, 0, s41"],
                    ["v_add_u32 v8, s43, v8"], ["v_add_u32 v9, s43, v9"]]

        pre0 = wadv() + [["s_add_u32 s40, s40, 1", f"s_cmp_eq_u32 s40, {NXB}"],
                         ["s_cselect_b32 s55, s47, s54", "s_cselect_b32 s40, 0, s40"]] + \
            [[f"v_add_u32 v{2 + i}, s55, v{2 + i}"] for i in range(3)]
        pre1 = wadv() + [[f"v_add_u32 v{5 + i}, s55, v{5 + i}"] for i in range(3)]
        if o["lbar"]:
            assert o["topw"] <= 6 or o["lbar"] > {7: 20, 8: 19, 9: 14, 10: 13, 11: 8, 12: 7}[o["topw"]]
            self.first([], 48)
            body = self.substage(1, pre0) + self.substage(0, pre1 + [["s_sub_u32 s52, s52, 1"]])
        else:
            self.first(pre0, o["brpos"] if o["fall"] else 48)
            body = self.substage(1, pre1) + self.substage(0, pre0 + [["s_sub_u32 s52, s52, 1"]])
        cut = 48 + o["brpos"]
        if not o["fall"]:
            e("s_branch L_centry")
        if o["pages"]:
            self.lab("L_touch0")
        if not o["fall"]:
            e(".p2align 6")
            for _ in range(o["lpad"]):
                e("s_nop 0")
        self.lab("L_cloop")
        for gap in body[cut:]:
            for x in gap:
                e(x)
        self.lab("L_centry")
        for gap in body[:cut]:
            for x in gap:
                e(x)
        e("s_cbranch_scc0 L_cloop")
        for gap in body[cut:]:
            for x in gap:
                e(x)
        self.lab("L_tail")
        self.tail()
        self.lab("L_tail_end")
        if o["stamps"] and o["direct"]:
            e("s_waitcnt vmcnt(0)")
            e("v_mbcnt_lo_u32_b32 v0, -1, 0")
            e("v_mbcnt_hi_u32_b32 v0, -1, v0")
        self.stamp(4)
        self.dump_stamps(5, "c")
        e("s_endpgm")

    def gen(self):
        e = self.e
        o = self.o
        self.l.append(HEADER.rstrip())
        self.l.append(f"; @launch grid=(256,1,1) block=(512,1,1) lds={LDS}")
        self.l.append(DOC)
        self.l.append('.amdgcn_target "amdgcn-amd-amdhsa--gfx950"')
        self.l.append(".text")
        self.l.append(f".globl {KN}")
        if o["pages"]:
            self.l.append(".p2align 12")
        self.l.append(".p2align 8")
        self.l.append(f".type {KN},@function")
        self.lab(KN)
        e("s_cmp_ge_u32 s2, 256")
        e("s_cbranch_scc1 L_end")
        if o["stamps"]:
            e("s_memtime s[60:61]")
            e("s_memrealtime s[62:63]")
        e("s_load_dwordx2 s[8:9], s[0:1], 8")
        e("s_load_dwordx2 s[4:5], s[0:1], 0")
        e("v_readfirstlane_b32 s18, v0")
        e("v_and_b32 v0, 63, v0")
        e("s_lshr_b32 s17, s2, 5")
        e("s_and_b32 s20, s2, 1")
        e("s_lshl3_add_u32 s17, s20, s17")
        e("s_bfe_u32 s22, s2, 0x20001")
        e("s_bfe_u32 s16, s2, 0x20003")
        e("s_lshl2_add_u32 s16, s22, s16")
        e("s_lshr_b32 s18, s18, 6")
        e("s_lshl_b32 s17, s17, 6")
        e("s_lshl_b32 s16, s16, 8")
        e("s_cmp_ge_u32 s18, 4")
        if o["pages"] >= 2:
            e("s_cbranch_scc0 L_loader")
            self.l.append("@DISPATCH")
            e("s_branch L_compute")
        else:
            e(("s_cbranch_scc1" if o["lfirst"] else "s_cbranch_scc0") + " L_compute")
        self.loader()
        self.compute()
        for f in self.late:
            f()
        self.lab("L_end")
        e("s_endpgm")
        self.l.append(f""".section .rodata,"a"
.p2align 6
.amdhsa_kernel {KN}
  .amdhsa_next_free_vgpr 256
  .amdhsa_next_free_sgpr 96
  .amdhsa_accum_offset 256
  .amdhsa_group_segment_fixed_size 0
  .amdhsa_kernarg_size 72
  .amdhsa_user_sgpr_count 2
  .amdhsa_user_sgpr_kernarg_segment_ptr 1
  .amdhsa_system_sgpr_workgroup_id_x 1
.end_amdhsa_kernel""")
        return self.finish()

    def finish(self):
        L = "\n".join(self.l).split("\n")
        if self.o["pages"] < 2:
            return "\n".join(L) + "\n"
        import re
        import subprocess
        i0 = L.index("L_touch0:")
        it, ie = L.index("L_tail:"), L.index("L_tail_end:")
        probe = []
        for i, x in enumerate(L):
            if it < i <= ie:
                probe.append(f"L_pos{i}:")
            if x != "@DISPATCH":
                probe.append(x)
        open("probe.s", "w").write("\n".join(probe) + "\n")
        subprocess.run(["clang", "-x", "assembler", "-target", "amdgcn-amd-amdhsa", "-mcpu=gfx950",
                        "-c", "probe.s", "-o", "probe.o"], check=True)
        sym = subprocess.run(["llvm-readelf", "-s", "probe.o"], capture_output=True, text=True).stdout
        addr = {m.group(2): int(m.group(1), 16) for m in re.finditer(r"^\s*\d+: ([0-9a-f]+)\s.*\s(\S+)$", sym, re.M)}
        base = addr["L_page1"]
        win = self.o["win"]
        out, n, covered = [], 1, (addr["L_touch0"] - base) // 64 * 64 + win
        if not self.o["touch1"]:
            covered = 4096
        for i, x in enumerate(L):
            if it < i < ie:
                pos = addr[f"L_pos{i}"] - base + 4 * (n - 1)
                if pos >= covered:
                    out += [f"L_touch{n}:", "    s_cbranch_scc0 L_compute"]
                    n += 1
                    covered = min(pos // 64 * 64 + win, (pos // 4096 + 1) * 4096)
            out.append(x)
        disp = []
        for k, t in enumerate([f"L_touch{k}" for k in range(0 if self.o["touch1"] else 1, n)]):
            assert k < 3
            disp += [f"    s_cmp_lg_u32 s18, {4 + k}", f"    s_cbranch_scc0 {t}"]
        j = out.index("@DISPATCH")
        out[j:j + 1] = disp
        return "\n".join(out) + "\n"


if __name__ == "__main__":
    out = sys.argv[1]
    opts = {}
    for a in sys.argv[2:]:
        k, v = a.split("=")
        if k == "bars":
            opts[k] = v
            continue
        try:
            v = int(v)
        except ValueError:
            try:
                v = float(v)
            except ValueError:
                v = v.replace("+", " ")
        opts[k] = v
    open(out, "w").write(G(**opts).gen())
```

```python
import sys

HEADER = open("standalone__batchnorm__prompt.s.ref").read().split("; Override launch")[0]
KN = "standalone__batchnorm__prompt_kernel"

PS = 33 * 128
XBUF = 263 * 128
NXB = 3
WBUF = 3 * 32 * 128
NWB = 5
WBASE = NXB * XBUF
PB = WBASE + NWB * WBUF
LDS = PB + 512
STG = 2 * XBUF

ACC = 64
SET = (128, 192)
TMP = 32


def cnt(i):
    return (3, 5, 4, 3)[i % 4]


def need(u):
    return 2 * u + 3 if u % 2 == 0 else 2 * u + 2


DOC = """;
; One workgroup owns a 256 x 64 output tile. Waves 0-3 stream x and w into LDS rings with LDS-DMA loads, waves 4-7
; each compute 128 x 32 with v_mfma_f32_16x16x32_bf16 (A = w^T through transposed LDS reads, B = x).
; in LDS and written as whole 128-byte lines by waves 0-3."""

NOTES = {
    "L_loader": "DMA waves: addresses, first loads",
    "L_lloop": "DMA waves: steady state, two 64-channel stages per trip",
    "L_pc_done": "all loads landed; wave 0 publishes the folded BN scale and shift",
    "L_pw_done": "DMA waves: store the staged output rows",
    "L_compute": "MFMA waves: addresses, first 32-channel step",
    "L_cloop": "MFMA waves: steady state, two 32-channel steps per trip",
    "L_tail": "MFMA waves: last five steps and the epilogue; the scc0 branches are only taken by the entry-time jumps that pull this code into the instruction cache",
}


class G:
    def __init__(self, **o):
        self.o = dict(stamps=0, trace=0, no_dma=0, no_reads=0, no_mfma=0, no_epi=0, no_store=0,
                      lastrd=33, prio_c=1, prio_l=0, lfirst=1, order=17, xaux="", waux="", saux="sc1", xmap=0,
                      probe="", xor=1, nt=4, fpre=7, fbar=16, flast=38, hold=12, split0=1, touch1=0, direct=0, bars='01234567', wq=1, modeb=0, fall=0, cinit=0, cvar=0, rord=0, lbar=0, topw=6, tbar=4, idle=0, nsc=8, saux2='', pat='32,39,43,53', pwg=-1, rrate=0.8, x0=4, pace=1.04, pk=2, alt=0, lead=6, cum="23,30",
                      rotx=1, rotk=1, tchk=31, endq="229,240", pchk=50, blag=7, cpf=0, pstamp=0, brpos=45, pages=2, lpad=0, win=1280, latebar=0, diag=0, wpair=1, cmode=0, swap=0, base="_456789AB0123CDEF", mask="_3333333333333333", maskb="_0000000000000000")
        self.o.update(o)
        self.l = []
        self.nlab = 0
        self.late = []
        self.late_table = None
        self.inloop = 0
        self.flow = 0

    def e(self, s):
        self.l.append("    " + s)

    def lab(self, s):
        if s in NOTES:
            self.l.append("; " + NOTES[s])
        self.l.append(s + ":")

    def stamp(self, i):
        if self.o["stamps"]:
            self.e(f"s_memtime s[{60 + 4 * i}:{61 + 4 * i}]")
            self.e(f"s_memrealtime s[{62 + 4 * i}:{63 + 4 * i}]")
            self.e("s_waitcnt lgkmcnt(0)")

    def lbarrier(self):
        e = self.e
        e("s_barrier")
        if self.o["trace"]:
            e("s_memtime s[56:57]")
            e("s_memrealtime s[80:81]")
            e("s_mov_b32 s90, m0")
            e("s_mov_b32 m0, s55")
            e("s_waitcnt lgkmcnt(0)")
            e("v_writelane_b32 v62, s56, m0")
            e("v_writelane_b32 v63, s80, m0")
            e("s_add_u32 s55, s55, 1")
            e("s_mov_b32 m0, s90")

    def dump_stamps(self, n, role):
        if not self.o["stamps"]:
            return
        e = self.e
        if self.o["probe"]:
            prole, a, z, kind, mult = self.o["probe"].split(",")
            if prole == role:
                off = 60 if kind == "c" else 62
                e(f"s_sub_u32 s3, s{off + 4 * int(z)}, s{off + 4 * int(a)}")
                if kind == "g":
                    e("v_mov_b32 v50, 0")
                    e("global_load_dword v51, v50, s[92:93] sc1")
                    e("s_waitcnt vmcnt(0)")
                    e("v_readfirstlane_b32 s3, v51")
                    e("s_not_b32 s3, s3")
                    e(f"s_sub_u32 s3, s{62 + 4 * int(z)}, s3")
                if kind != "c":
                    e(f"s_mul_i32 s3, s3, {mult}")
                else:
                    e(f"s_lshr_b32 s3, s3, {mult}")
                e("s_min_u32 s3, s3, 50000")
                if self.o["pwg"] >= 0:
                    e("s_and_b32 s56, s2, 7")
                    e(f"s_cmp_eq_u32 s56, {self.o['pwg']}")
                    e("s_cselect_b32 s3, s3, 0")
                self.lab(f"L_spin_{role}")
                e("s_memrealtime s[56:57]")
                e("s_waitcnt lgkmcnt(0)")
                e(f"s_sub_u32 s56, s56, s{62 + 4 * (n - 1)}")
                e("s_cmp_lt_u32 s56, s3")
                e(f"s_cbranch_scc1 L_spin_{role}")
            return
        e("s_load_dwordx2 s[34:35], s[0:1], 64")
        e("s_waitcnt lgkmcnt(0)")
        e("v_mov_b32 v40, 0")
        for i in range(n):
            e(f"v_writelane_b32 v40, s{60 + 4 * i}, {2 * i}")
            e(f"v_writelane_b32 v40, s{62 + 4 * i}, {2 * i + 1}")
        for i in range(4):
            e(f"v_writelane_b32 v40, s{86 + i}, {12 + i}")
        e("s_lshl_b32 s3, s2, 3")
        e("s_and_b32 s18, s18, 3")
        if role == "l":
            e("s_add_u32 s18, s18, 4")
        e("s_add_u32 s3, s3, s18")
        e("s_lshl_b32 s3, s3, 6")
        e("v_lshl_add_u32 v41, v0, 2, s3")
        if self.o["trace"] and role == "l":
            e("s_lshl_b32 s3, s3, 2")
            e("s_add_u32 s3, s3, 0x100000")
            e("v_lshl_add_u32 v42, v0, 2, s3")
            e("v_subrev_u32 v62, s60, v62")
            e("v_subrev_u32 v63, s62, v63")
            e("v_lshl_or_b32 v63, v63, 18, v62")
            e("global_store_dword v42, v63, s[34:35]")
        e("s_mov_b64 exec, 0xffff")
        e("global_store_dword v41, v40, s[34:35]")

    def issue_x(self, half):
        e = self.e
        aux = self.o["xaux"]
        self.hooks.pop("x", lambda: None)()
        if self.o["no_dma"]:
            self.hooks.pop("halo", lambda: None)()
        if not self.o["no_dma"] and not (self.o["diag"] & 8 and self.inloop):
            e(f"s_add_u32 m0, s41, s{86 + half}")
            e(f"s_add_u32 s45, s40, s{88 + half}")
            e(f"buffer_load_dwordx4 v2, s[4:7], s45 offen {aux} lds")
            for p in range(1, 4):
                a, b = (45, 46) if p & 1 else (46, 45)
                e("s_add_u32 m0, m0, s54")
                e(f"s_add_u32 s{b}, s{a}, s53")
                e(f"buffer_load_dwordx4 v2, s[4:7], s{b} offen {aux} lds")
            self.hooks.pop("halo", lambda: None)()
            if half == 0 and not self.o["diag"] & 64:
                e("s_add_u32 m0, s41, s44")
                e("s_mov_b64 exec, 15")
                e(f"buffer_load_dwordx4 v3, s[4:7], s40 offen {aux} lds")
                e("s_mov_b64 exec, -1")
        if half == 0:
            return
        e(f"s_add_u32 s41, s41, {XBUF}")
        e("s_cmp_ge_u32 s41, s51")
        e("s_cselect_b32 s41, s50, s41")

    def issue(self, i):
        if i % 4 in (0, 3):
            self.issue_w(i & 1)
        else:
            self.issue_x(i % 4 - 1)

    def issue_w(self, second):
        e = self.e
        if not self.o["no_dma"] and not (self.o["diag"] & 16 and self.inloop):
            aux = self.o["waux"]
            e("s_mov_b32 m0, s43")
            e("s_add_u32 s45, s42, s38")
            e(f"buffer_load_dwordx4 v4, s[8:11], s42 offen {aux} lds")
            e("s_add_u32 m0, m0, s39")
            e("s_add_u32 s46, s45, s38")
            e(f"buffer_load_dwordx4 v4, s[8:11], s45 offen {aux} lds")
            e("s_add_u32 m0, m0, s39")
            e(f"s_addk_i32 s43, {WBUF}")
            e(f"buffer_load_dwordx4 v4, s[8:11], s46 offen {aux} lds")
        else:
            e(f"s_addk_i32 s43, {WBUF}")
        e("s_cmp_ge_u32 s43, s49")
        e("s_cselect_b32 s43, s51, s43")
        if second:
            self.hooks.pop("table", lambda: None)()
            e("s_lshr_b64 s[82:83], s[82:83], 4")
            self.stage_offsets()
        else:
            e("s_xor_b32 s42, s42, 0x10000")

    def stage_offsets(self):
        e = self.e
        e("s_and_b32 s3, s82, 15")
        e("s_lshl_b32 s40, s3, 7")
        e("s_lshl_b32 s42, s3, 17")
        e("s_or_b32 s42, s42, s85")

    def param_load(self):
        e = self.e
        e("s_load_dwordx8 s[24:31], s[0:1], 16")
        e("v_add_lshl_u32 v8, s17, v0, 1")
        e("s_waitcnt lgkmcnt(0)")
        for i in range(4):
            e(f"global_load_ushort v{10 + i}, v8, s[{24 + 2 * i}:{25 + 2 * i}]")

    def param_calc(self):
        e = self.e
        if self.o["diag"] & 256:
            e(f"v_mov_b32 v14, {PB}")
            return
        e("s_cmp_lg_u32 s18, 0")
        e("s_cbranch_scc1 L_pc_done")
        for i in range(4):
            e(f"v_lshlrev_b32 v{10 + i}, 16, v{10 + i}")

        def rnd():
            e("v_cvt_pk_bf16_f32 v11, v11, v11")
            e("v_lshlrev_b32 v11, 16, v11")
        e("v_add_f32 v11, 0x3727c5ac, v11")
        rnd()
        e("v_sqrt_f32 v11, v11")
        e("s_nop 0")
        rnd()
        e("v_rcp_f32 v11, v11")
        e("s_nop 0")
        rnd()
        e("v_mul_f32 v11, v12, v11")
        rnd()
        if self.o["cinit"] and not self.o["cvar"]:
            import struct
            e(f"v_add_f32 v10, {struct.unpack('<I', struct.pack('<f', self.o['cinit']))[0]:#x}, v10")
        e("v_fma_f32 v13, -v10, v11, v13")
        e("v_mul_f32 v11, 0xbfb8aa3b, v11")
        e("v_mul_f32 v13, 0xbfb8aa3b, v13")
        e("v_lshlrev_b32 v14, 2, v0")
        e(f"v_add_u32 v14, {PB}, v14")
        self.lab("L_pc_done")

    def pi(self, dst, j, t0, t1):
        e = self.e
        e(f"v_lshlrev_b32 v{dst}, 1, v{j}")
        e(f"v_cmp_lt_u32 vcc, 3, v{j}")
        e(f"v_subrev_u32 v{t0}, 7, v{dst}")
        e(f"v_subrev_u32 v{t1}, 16, v{dst}")
        e(f"v_cndmask_b32 v{dst}, v{dst}, v{t0}, vcc")
        e(f"v_cmp_lt_u32 vcc, 11, v{j}")
        e("s_nop 1")
        e(f"v_cndmask_b32 v{dst}, v{dst}, v{t1}, vcc")

    def loader(self):
        e = self.e
        o = self.o
        self.lab("L_loader")
        if o["prio_l"]:
            e(f"s_setprio {o['prio_l']}")
        base = [int(ch, 16) for ch in o["base"].lstrip("_")]
        mask = [int(ch, 16) for ch in o["mask"].lstrip("_")]
        maskb = [int(ch, 16) for ch in o["maskb"].lstrip("_")]
        for c in range(4):
            for cb in range(4):
                assert sorted(b ^ (c & m) ^ (cb & mb) for b, m, mb in zip(base, mask, maskb)) == list(range(16))
        assert not maskb[0] and o["rotk"] and o["rotx"] == 1 and o["lfirst"]
        pack = lambda v: sum(x << (4 * k) for k, x in enumerate(v))
        e("v_lshrrev_b32 v5, 3, v0")
        e("s_lshl_b32 s47, s18, 2")
        e("v_xor_b32 v6, s47, v0")
        e("s_xor_b32 s84, s22, s20")
        e("v_and_b32 v7, 2, v5")
        e("v_and_b32 v6, 7, v6")
        if mask[0] == 3:
            e(f"s_xor_b32 s3, s84, {base[0]}")
        else:
            e(f"s_and_b32 s3, s84, {mask[0]}")
            e(f"s_xor_b32 s3, s3, {base[0]}")
        e("s_lshl_b32 s85, s2, 13")
        e("v_xor_b32 v7, v7, v6")
        e("s_and_b32 s85, s85, 0x10000")
        e("s_lshl_b32 s42, s3, 17")
        e("v_lshlrev_b32 v7, 4, v7")
        e("s_or_b32 s42, s42, s85")
        e("s_lshl_b32 s50, s18, 10")
        e("v_lshl_add_u32 v4, v5, 11, v7")
        e("s_lshl3_add_u32 s45, s50, s17")
        e(f"s_add_u32 s51, s50, {WBASE}")
        e("v_lshl_add_u32 v4, s45, 1, v4")
        e("s_mov_b32 s10, 0x600000")
        e("s_mov_b32 s11, 0x20000")
        e("s_mov_b32 s43, s51")
        e("s_mov_b32 s38, 0x200000")
        e("s_movk_i32 s39, 4096")
        e(f"s_add_u32 s49, s51, {NWB * WBUF}")
        e("s_lshl_b32 s40, s3, 7")
        e("s_waitcnt lgkmcnt(0)")
        self.stamp(1)
        if ",g," in o["probe"]:
            e("s_load_dwordx2 s[92:93], s[0:1], 56")
            e("s_not_b32 s3, s62")
            e("v_mov_b32 v50, 0")
            e("v_mov_b32 v51, s3")
            e("s_waitcnt lgkmcnt(0)")
            e("s_mov_b64 exec, 1")
            e("global_atomic_umax v50, v51, s[92:93] sc1")
            e("s_mov_b64 exec, -1")

        def x_setup():
            e("v_lshrrev_b32 v7, 1, v5")
            e("s_mov_b32 s6, 0x800000")
            e("v_xor_b32 v7, v7, v6")
            e("s_mov_b32 s7, s11")
            e("v_lshlrev_b32 v7, 4, v7")
            e("s_lshl4_add_u32 s3, s47, s16")
            e("v_lshl_add_u32 v2, v5, 14, v7")
            e("s_bitcmp1_b32 s17, 6")
            e(f"s_cselect_b32 s86, {4 * PS}, 0")
            e("v_lshl_add_u32 v2, s3, 11, v2")
            e("s_cselect_b32 s88, 0x2000, 0")
            e(f"s_add_u32 s41, s50, {XBUF}")
            e("s_movk_i32 s53, 2048")
            e(f"s_movk_i32 s54, {PS}")

        def halo_setup():
            e(f"s_xor_b32 s87, s86, {4 * PS}")
            e("s_xor_b32 s89, s88, 0x2000")
            e(f"s_movk_i32 s44, {230 * 128}")
            e("s_cmp_lt_u32 s18, 2")
            e("s_cselect_b32 s3, 256, 0")
            e("s_cselect_b32 s23, 256, -1")
            e("s_cselect_b32 s24, 0, 7")
            e(f"s_cmovk_i32 s44, {32 * 128}")
            e("s_add_u32 s3, s3, s16")
            e("s_add_u32 s23, s23, s16")
            e("s_lshl_b32 s23, s23, 11")
            e("s_and_b32 s3, s3, 2047")
            e("s_cselect_b32 s23, s23, 0x80000000")
            e("v_xor_b32 v7, s24, v6")
            e("s_and_b32 s47, s47, 4")
            e("v_lshl_add_u32 v3, v7, 4, s23")
            e("s_lshl4_add_u32 s44, s47, s44")
            e("s_sub_u32 s44, s44, s50")

        def table_setup():
            e("s_mul_i32 s3, s84, 0x11111111")
            for h in range(2):
                m = pack(mask[8 * h:8 * h + 8])
                if m == 0x33333333:
                    e(f"s_xor_b32 s{82 + h}, s3, {pack(base[8 * h:8 * h + 8]):#x}")
                else:
                    e(f"s_and_b32 s{82 + h}, s3, {m:#x}")
                    e(f"s_xor_b32 s{82 + h}, s{82 + h}, {pack(base[8 * h:8 * h + 8]):#x}")
            if any(maskb):
                if o["modeb"] == 0:
                    e("s_and_b32 s84, s84, 1")
                    e("s_lshr_b32 s3, s2, 2")
                    e("s_xor_b32 s3, s3, s2")
                    e("s_bfe_u32 s3, s3, 0x10004")
                    e("s_lshl1_add_u32 s84, s84, s3")
                elif o["modeb"] == 1:
                    e("s_lshl_b32 s3, s20, 1")
                    e("s_xor_b32 s84, s22, s3")
                else:
                    e("s_lshr_b32 s3, s2, 5")
                    e("s_and_b32 s3, s3, 2")
                    e("s_xor_b32 s84, s84, s3")
                e("s_mul_i32 s84, s84, 0x11111111")
                for h in range(2):
                    m = pack(maskb[8 * h:8 * h + 8])
                    if m:
                        e(f"s_and_b32 s3, s84, {m:#x}")
                        e(f"s_xor_b32 s{82 + h}, s{82 + h}, s3")
        self.hooks = {"x": x_setup, "halo": halo_setup, "table": table_setup}
        if o["trace"]:
            e("s_mov_b32 s55, 0")
        st = {"issued": 0, "chunks": []}

        def upto(c):
            while st["issued"] < min(c, 240):
                if not st["chunks"]:
                    keep, self.l = self.l, []
                    pos = st["issued"] % 15
                    self.issue({0: 0, 3: 1, 8: 2, 12: 3}[pos])
                    lines, self.l = self.l, keep
                    n = {0: 3, 3: 5, 8: 4, 12: 3}[pos]
                    cuts = [k + 1 for k, x in enumerate(lines) if x.endswith(" lds")][:n - 1]
                    cuts = cuts + [len(lines)] * (n - len(cuts))
                    st["chunks"] = [lines[a:b] for a, b in zip([0] + cuts, cuts)]
                self.l += st["chunks"].pop(0)
                st["issued"] += 1

        needi = lambda u: 15 * (u // 2) + (15 if u & 1 else 12)
        legal = lambda u: needi(u + 4)

        def step(u):
            nd = needi(29) if u == 28 else needi(u)
            assert nd <= st["issued"]
            e(f"s_waitcnt vmcnt({st['issued'] - nd})")
            self.lbarrier()

        cum = [int(v) for v in str(o["cum"]).split(",")]
        for u, c in enumerate(cum):
            assert c <= legal(max(u - 1, 0))
            upto(c)
            if u == 0:
                e("s_cmp_eq_u32 s18, 0")
                e("s_cselect_b32 s48, 2, 64")
            step(u)
            if u == 0:
                self.stamp(2)
        u0 = len(cum)
        pat = [int(v) for v in str(o["pat"]).split(",")]
        per = 2 if pat[2] == pat[0] + 15 and pat[3] == pat[1] + 15 else 4
        after = lambda u: 30 * (u // 4) + pat[u % 4]
        assert all(after(u) <= legal(u) for u in range(4))
        assert st["issued"] <= after(u0 - 1)
        upto(after(u0 - 1))
        endq = [int(v) for v in str(o["endq"]).split(",") if v]
        nit = (28 - len(endq) - u0) // per
        e(f"s_mov_b32 s52, {nit - 1}")
        self.lab("L_lloop")
        self.inloop = 1
        for k in range(per):
            step(u0 + k)
            upto(after(u0 + k))
        e("s_cmp_lg_u32 s52, s48")
        e("s_cbranch_scc1 L_nopl")
        self.param_load()
        self.lab("L_nopl")
        e("s_sub_u32 s52, s52, 1")
        e("s_cbranch_scc0 L_lloop")
        st["issued"] += 15 * per // 2 * (nit - 1)
        e("s_load_dwordx2 s[12:13], s[0:1], 48")
        for u in range(u0 + per * nit, 29):
            step(u)
            k = u - (28 - len(endq))
            c = endq[k] if 0 <= k < len(endq) else after(u)
            assert c <= legal(u)
            upto(c)
        assert st["issued"] == 240
        self.param_calc()
        e("s_waitcnt vmcnt(0) lgkmcnt(0)")
        self.lbarrier()
        e("s_cmp_lg_u32 s18, 0")
        e("s_cbranch_scc1 L_pw_done")
        if not o["diag"] & 512:
            e("ds_write_b32 v14, v11")
            e("ds_write_b32 v14, v13 offset:256")
        e("s_waitcnt lgkmcnt(0)")
        self.lab("L_pw_done")
        self.lbarrier()
        self.stamp(3)
        self.store_setup()
        if o["diag"] & 32:
            e("s_movk_i32 s53, 2048")
        e("s_mov_b32 s46, 0")
        bars = [int(ch) for ch in str(o["bars"])]
        assert bars[-1] == (6 if o["direct"] else 7)
        tm = 0
        for b in bars:
            if not o["diag"] & 1:
                self.lbarrier()
            grp = list(range(tm, b + 1))
            for q, t2 in enumerate(grp):
                e(f"ds_read_b128 v[{28 + 4 * q}:{31 + 4 * q}], v17 offset:{t2 * 4096}")
            for q, t2 in enumerate(grp):
                e(f"s_waitcnt lgkmcnt({len(grp) - 1 - q})")
                if not o["no_store"]:
                    e(f"buffer_store_dwordx4 v[{28 + 4 * q}:{31 + 4 * q}], v16, s[12:15], s46 offen {o['saux'] if t2 < o['nsc'] else o['saux2']}")
                e("s_add_u32 s46, s46, s53")
            tm = b + 1
        if o["stamps"]:
            e("s_waitcnt vmcnt(0)")
        self.stamp(4)
        if o["stamps"]:
            e("s_branch L_ldump")

            def late():
                self.lab("L_ldump")
                self.dump_stamps(5, "l")
                e("s_endpgm")
            self.late.append(late)
        else:
            e("s_endpgm")

    def store_setup(self):
        e = self.e
        e("s_mov_b32 s14, 0x800000")
        e("s_mov_b32 s15, 0x20000")
        e("s_and_b32 s3, s18, 1")
        e("v_lshl_add_u32 v6, s3, 3, v5")
        self.pi(7, 6, 8, 9)
        e("s_lshr_b32 s3, s18, 1")
        e("s_lshl_b32 s3, s3, 7")
        e("s_add_u32 s3, s3, s16")
        e("s_lshl_b32 s3, s3, 10")
        e("s_add_u32 s3, s3, s17")
        e("s_lshl_b32 s3, s3, 1")
        e("v_and_b32 v8, 7, v0")
        e("v_lshl_add_u32 v9, v8, 4, s3")
        e("v_lshl_add_u32 v16, v7, 14, v9")
        e("v_xor_b32 v8, v8, v5")
        e("v_lshlrev_b32 v8, 4, v8")
        e("v_lshl_add_u32 v8, v5, 7, v8")
        e(f"s_add_u32 s3, s50, {STG}")
        e("v_add_u32 v17, s3, v8")

    def rd_f(self, r, kk, dl, off=0):
        a = 2 + 3 * kk
        if dl == 0:
            return [f"ds_read_b128 v[{r}:{r + 3}], v{a + 2} offset:{7 * PS - 128 + off}"]
        if dl == 9:
            return [f"ds_read_b128 v[{r}:{r + 3}], v{a + 1} offset:{off}"]
        return [f"ds_read_b128 v[{r}:{r + 3}], v{a} offset:{(dl - 1) * PS + off}"]

    def rd_g(self, r, k, t, off=0):
        return [f"ds_read_b64_tr_b16 v[{r + 2 * hh}:{r + 2 * hh + 1}], v{8 + t} offset:{k * 4096 + hh * 512 + off}"
                for hh in range(2)]

    def reads(self, st, kk):
        base = SET[st]
        if self.o["rord"] == 2:
            return [x for dl in range(10) for x in self.rd_f(base + 4 * dl, kk, dl)] + \
                   [x for t in range(2) for k in range(3) for x in self.rd_g(base + 40 + (k * 2 + t) * 4, k, t)]
        if self.o["lbar"] or self.o["rord"] == 1:
            out, seen = [], set()
            for k, t, tm in self.mfmas(st, raw=True):
                for nm in (("G", k, t), ("F", tm + k)):
                    if nm not in seen:
                        seen.add(nm)
                        out += self.rd_g(base + 40 + (k * 2 + t) * 4, k, t) if nm[0] == "G" else \
                            self.rd_f(base + 4 * nm[1], kk, nm[1])
            return out
        L = []
        for t in range(2):
            for k in range(3):
                L += self.rd_g(base + 40 + (k * 2 + t) * 4, k, t)
        X = []
        for dl in range(10):
            X += self.rd_f(base + 4 * dl, kk, dl)
        out = []
        while L or X:
            if X:
                out.append(X.pop(0))
            if L:
                out.append(L.pop(0))
        return out

    def mf(self, g, f, t, tm):
        acc = ACC + (tm * 2 + t) * 4
        return f"v_mfma_f32_16x16x32_bf16 v[{acc}:{acc + 3}], v[{g}:{g + 3}], v[{f}:{f + 3}], v[{acc}:{acc + 3}]"

    def mfmas(self, st, raw=False):
        od = self.o["order"]
        asc, desc = (0, 1, 2), (2, 1, 0)
        up, down = list(range(8)), list(range(7, -1, -1))
        if od == 0:
            seq = [(k, t, tm) for k in range(3) for t in range(2) for tm in range(8)]
        elif od == 4:
            seq = [(k, t, tm) for t in range(2) for tm in up for k in asc]
        elif od == 6:
            seq = [(k, t, tm) for t in range(2) for tm in up for k in (asc if tm % 2 == 0 else desc)]
        elif od == 7:
            seq = []
            for tm in up:
                ts = (0, 1) if tm % 2 == 0 else (1, 0)
                seq += [(k, ts[0], tm) for k in asc] + [(k, ts[1], tm) for k in desc]
        elif od == 9:
            seq = [(k, 0, tm) for tm in up for k in (asc if tm % 2 == 0 else desc)] + \
                  [(k, 1, tm) for tm in down for k in (asc if tm % 2 else desc)]
        elif od == 17:
            seq = [(k, st, tm) for tm in up for k in (asc if tm % 2 == 0 else desc)] + \
                  [(k, st ^ 1, tm) for tm in down for k in (asc if tm % 2 else desc)]
        elif od == 10:
            seq = [(k, t, tm) for t in range(2) for tm in up for k in desc]
        elif od == 11:
            seq = [(k, t, tm) for t in range(2) for tm in up for k in (0, 2, 1)]
        elif od == 12:
            seq = [(k, t, tm) for t in range(2) for tm in up for k in (1, 0, 2)]
        elif od == 13:
            rot = [(0, 1, 2), (2, 0, 1), (1, 2, 0)]
            seq = [(k, t, tm) for t in range(2) for tm in up for k in rot[tm % 3]]
        elif od == 14:
            rot = [(0, 2, 1), (1, 0, 2), (2, 1, 0)]
            seq = [(k, t, tm) for t in range(2) for tm in up for k in rot[tm % 3]]
        elif od == 15:
            seq = [(k, t, tm) for t in range(2) for tm in up for k in ((0, 2, 1) if tm % 2 == 0 else (1, 2, 0))]
        elif od == 16:
            seq = [(k, t, tm) for t in range(2) for tm in up for k in ((2, 0, 1) if tm % 2 == 0 else (1, 0, 2))]
        elif od >= 20:
            out = []
            for tm in up:
                ks = [(0, k) for k in asc] + [(1, k) for k in (asc if od == 20 else desc)]
                if od != 22 and tm % 2:
                    ks = ks[::-1]
                out += [self.mf(SET[s_] + 40 + (k * 2 + st) * 4, SET[s_] + 4 * (tm + k), st, tm) for s_, k in ks]
            return out
        if raw:
            return seq
        M = [(SET[st] + 40 + (k * 2 + t) * 4, SET[st] + 4 * (tm + k), t, tm) for k, t, tm in seq]
        if self.o["swap"]:
            M = [(f, g, t, tm) for g, f, t, tm in M]
        return [self.mf(*m) for m in M]

    def substage(self, st, pre):
        o = self.o
        M = self.mfmas(st)
        R = self.reads(st ^ 1, st ^ 1) if not o["no_reads"] else []
        if o["diag"] & 1024:
            R = [r for r in R if "tr" not in r]
        if o["diag"] & 2048:
            R = [r for r in R if "tr" in r]
        if o["diag"] & 4096:
            R = [r.replace("b64_tr_b16", "b64") for r in R]
        fill = {}
        lb = o["lbar"]
        sp = (o["lastrd"] - lb) / 22.0
        if lb:
            fill[lb - 1] = ["s_waitcnt lgkmcnt(0)", "s_barrier"]
        for i, r in enumerate(R):
            fill.setdefault(lb + int(i * sp), []).append(r)
        pos = 0 if lb else o["lastrd"]
        for i, p in enumerate(pre):
            fill.setdefault(min(pos + i, 47), []).extend(p)
        top = [f"s_waitcnt lgkmcnt({o['topw']})"] if lb else ["s_waitcnt lgkmcnt(0)", "s_barrier"] + ["s_nop 15"] * o["idle"]
        if lb and o["topw"] > 6:
            fill.setdefault({7: 20, 8: 19, 9: 14, 10: 13, 11: 8, 12: 7}[o["topw"]] - 1, []).append("s_waitcnt lgkmcnt(6)")
        out = []
        for i, m in enumerate(M):
            out.append((top if i == 0 else []) + ([m] if not o["no_mfma"] else []) + fill.get(i, []))
        return out

    def first(self, pre, nm_=48):
        e = self.e
        o = self.o
        seq = self.mfmas(0, raw=True)
        todo, queue, seen = [], [], set()
        for k, t, tm in seq:
            for nm in (("G", k, t), ("F", tm + k)):
                if nm not in todo:
                    todo.append(nm)

        def rd():
            nm = todo.pop(0)
            ops = self.rd_g(SET[0] + 40 + (nm[1] * 2 + nm[2]) * 4, nm[1], nm[2]) if nm[0] == "G" else \
                self.rd_f(SET[0] + 4 * nm[1], 0, nm[1])
            for op in ops:
                e(op)
                queue.append(nm)
        for _ in range(o["fpre"]):
            rd()
        R = self.reads(1, 1)
        bar = o["fbar"]
        sp = (o["flast"] - bar) / 22.0
        fill = {bar - 1: ["v_add_u32 v8, s53, v8", "v_add_u32 v9, s53, v9"], bar: ["s_waitcnt lgkmcnt(0)", "s_barrier"]}
        for i, r in enumerate(R):
            fill.setdefault(bar + int(i * sp), []).append(r)
        for i, p in enumerate(pre):
            fill.setdefault(min(o["flast"] + i * 2 // 3, nm_ - 1), []).extend(p)
        for i, (k, t, tm) in enumerate(seq[:nm_]):
            idx = max((q for q, tg in enumerate(queue) if tg in (("G", k, t), ("F", tm + k))), default=-1)
            if idx >= 0:
                n = min(len(queue) - 1 - idx, 14)
                e(f"s_waitcnt lgkmcnt({n})")
                del queue[:len(queue) - n]
            m = self.mf(SET[0] + 40 + (k * 2 + t) * 4, SET[0] + 4 * (tm + k), t, tm)
            if (t, tm) not in seen:
                seen.add((t, tm))
                m = m[:m.rindex(",")] + (", v[40:43]" if o["cinit"] else ", 0")
            e(m)
            if todo:
                assert i < bar - 1
                rd()
            if i == bar:
                del queue[:]
            for x in fill.get(i, []):
                e(x)

    def epi_ops(self, un):
        tm, t = un >> 1, un & 1
        a = ACC + un * 4
        tb = TMP + 4 * t
        L = []
        if not self.o["no_epi"] and not (self.o["pk"] == 1 or (self.o["pk"] == 2 and un == 15)):
            for r in range(4):
                L.append(f"v_fma_f32 v{a + r}, v{a + r}, v{16 + 4 * t + r}, v{24 + 4 * t + r}")
            for r in range(4):
                L.append(f"v_exp_f32 v{tb + r}, v{a + r}")
            for r in range(4):
                L.append(f"v_fma_f32 v{tb + r}, v{tb + r}, s42, s42")
            for r in range(4):
                L.append(f"v_rcp_f32 v{tb + r}, v{tb + r}")
            for r in range(4):
                L.append(f"v_mul_f32 v{tb + r}, v{tb + r}, v{a + r}")
            for p in range(2):
                L.append(f"v_cvt_pk_bf16_f32 v{a + p}, v{tb + 2 * p}, v{tb + 2 * p + 1}")
        elif not self.o["no_epi"]:
            for p in range(2):
                q = 4 * t + 2 * p
                L.append(f"v_pk_fma_f32 v[{a + 2 * p}:{a + 2 * p + 1}], v[{a + 2 * p}:{a + 2 * p + 1}], v[{16 + q}:{17 + q}], v[{24 + q}:{25 + q}]")
            for r in range(4):
                L.append(f"v_exp_f32 v{tb + r}, v{a + r}")
            for p in range(2):
                L.append(f"v_pk_fma_f32 v[{tb + 2 * p}:{tb + 2 * p + 1}], v[{tb + 2 * p}:{tb + 2 * p + 1}], s[42:43], s[42:43]")
            for r in range(4):
                L.append(f"v_rcp_f32 v{tb + r}, v{tb + r}")
            for p in range(2):
                L.append(f"v_pk_mul_f32 v[{tb + 2 * p}:{tb + 2 * p + 1}], v[{tb + 2 * p}:{tb + 2 * p + 1}], v[{a + 2 * p}:{a + 2 * p + 1}]")
            for p in range(2):
                L.append(f"v_cvt_pk_bf16_f32 v{a + p}, v{tb + 2 * p}, v{tb + 2 * p + 1}")
        if self.o["direct"] and tm == 7:
            if t:
                L = [x.replace(f"v_cvt_pk_bf16_f32 v{a},", f"v_cvt_pk_bf16_f32 v{a - 2},")
                      .replace(f"v_cvt_pk_bf16_f32 v{a + 1},", f"v_cvt_pk_bf16_f32 v{a - 1},") for x in L]
                L += ["s_nop 0", f"v_permlane16_swap_b32 v{a - 4}, v{a - 2}", f"v_permlane16_swap_b32 v{a - 3}, v{a - 1}"]
                if not self.o["no_store"]:
                    L.append(f"buffer_store_dwordx4 v[{a - 4}:{a - 1}], v0, s[12:15], 0 offen {self.o['saux']}")
        elif self.o["diag"] & 2:
            L.append("ds_read_b32 v12, v1")
        elif self.o["wpair"]:
            if t:
                L.insert(len(L) - 2, f"DS ds_write_b64 v1, v[{a - 4}:{a - 3}] offset:{tm * 4096}")
                L.append(f"ds_write_b64 v11, v[{a}:{a + 1}] offset:{tm * 4096}")
        else:
            L.append(f"ds_write_b64 v{11 if t else 1}, v[{a}:{a + 1}] offset:{tm * 4096}")
        return L

    def tail(self):
        e = self.e
        o = self.o
        nt = o["nt"]
        seq = []
        for u in range(27, 32 - nt):
            for tm in range(8):
                ts = (0, 1) if tm % 2 else (1, 0)
                seq += [(u, k, ts[0], tm) for k in (0, 1, 2)] + [(u, k, ts[1], tm) for k in (2, 1, 0)]
        done_at = {}
        for tm in range(8):
            if o["alt"]:
                for u in range(32 - nt, 32):
                    seq += [(u, k, t, tm) for k in range(3) for t in range(2)]
                done_at[2 * tm] = len(seq) - 2
                done_at[2 * tm + 1] = len(seq) - 1
                continue
            lo = 32 - nt
            if tm == 0 and nt == 4 and o["split0"]:
                seq += [(u, k, t, tm) for t in range(2) for u in (28, 29) for k in range(3)]
                lo = 30
            for t in range(2):
                for u in range(lo, 32):
                    seq += [(u, k, t, tm) for k in range(3)]
                done_at[2 * tm + t] = len(seq) - 1
        first, last = {}, {}
        for i, (u, k, t, tm) in enumerate(seq):
            for nm in (("G", u, k, t), ("F", u, tm + k)):
                first.setdefault(nm, i)
                last[nm] = i
        reg = {}
        for dl in range(10):
            reg[("F", 27, dl)] = SET[1] + 4 * dl
        for k in range(3):
            for t in range(2):
                reg[("G", 27, k, t)] = SET[1] + 40 + (k * 2 + t) * 4
        free = list(range(SET[0], SET[0] + 64, 4)) + list(range(TMP + 8, 64, 4)) + [12]
        todo = sorted((nm for nm in first if nm not in reg), key=lambda nm: first[nm])
        par = [("P", i) for i in range(4)]
        npar = max(0, len([nm for nm in todo if first[nm] <= done_at[0] + 4]))
        todo = todo[:npar] + par + todo[npar:]
        queue = []

        def lds(op, tag=None):
            e(op)
            queue.append(tag)

        def wait_for(tags):
            idx = max((i for i, tg in enumerate(queue) if tg in tags), default=-1)
            if idx >= 0:
                n = min(len(queue) - 1 - idx, 14)
                e(f"s_waitcnt lgkmcnt({n})")
                del queue[:len(queue) - n]

        half = []

        def issue_read(nm):
            if nm[0] == "P":
                i = nm[1]
                lds(f"ds_read_b128 v[{16 + 4 * i}:{19 + 4 * i}], v10 offset:{(i >> 1) * 256 + (i & 1) * 64}", nm)
                return
            r = free.pop(0)
            reg[nm] = r
            u = nm[1]
            if nm[0] == "F":
                ops = self.rd_f(r, u & 1, nm[2], XBUF * ((u >> 1) - 14))
            else:
                ops = self.rd_g(r, nm[2], nm[3], WBUF * (u % NWB))
            if not o["no_reads"]:
                lds(ops[0], nm)
                half.extend((op, nm) for op in ops[1:])

        e("s_waitcnt lgkmcnt(0)")
        self.stamp(3)
        if not o["lbar"]:
            e("s_barrier")
        chk, pchk = o["tchk"], o["pchk"]
        head = {0: [f"v_subrev_u32 v8, {3 * WBUF}, v8", "s_mov_b32 s43, s42"], 1: [f"v_subrev_u32 v9, {3 * WBUF}, v9"],
                2: ["v_add_u32 v5, s55, v5"], 3: ["v_add_u32 v6, s55, v6"], 4: ["v_add_u32 v7, s55, v7"],
                chk: ["s_barrier"], pchk: ["s_barrier"]}
        avail = {28: 1, 29: 5, 30: chk, 31: chk}
        if o["lbar"]:
            tb = o["tbar"]
            head = {0: [f"v_subrev_u32 v8, {2 * WBUF}, v8", f"v_subrev_u32 v9, {2 * WBUF}, v9", "s_mov_b32 s43, s42"],
                    1: ["v_add_u32 v2, s47, v2", "v_add_u32 v3, s47, v3"], 2: ["v_add_u32 v4, s47, v4", "v_add_u32 v5, s47, v5"],
                    3: ["v_add_u32 v6, s47, v6", "v_add_u32 v7, s47, v7"],
                    tb: ["s_barrier"], chk: ["s_barrier"], pchk: ["s_barrier"]}
            avail = {28: tb + 1, 29: tb + 1, 30: chk, 31: chk}
        bar_at = {}
        quiet = -1
        bars = [int(ch) for ch in str(o["bars"])]
        cost = lambda x: 8 if ("v_exp" in x or "v_rcp" in x) else 12 if "ds_write" in x else 4
        cur, pend, nxt = [], [], 0
        mark = {}
        credit = 0.0
        per_gap = sum(cost(x) for x in self.epi_ops(0) + self.epi_ops(1)) / (6.0 * nt) * o['pace'] + 0.5
        stalls = []
        for i, (u, k, t, tm) in enumerate(seq):
            g, f = ("G", u, k, t), ("F", u, tm + k)
            while g in todo or f in todo or any(nm == g for _, nm in half):
                stalls.append(i)
                if half:
                    lds(*half.pop(0))
                else:
                    issue_read(todo.pop(0))
            wait_for({g, f})
            if not o["no_mfma"]:
                e(self.mf(reg[g], reg[f], t, tm))
            if nxt < 16 and done_at[nxt] == i:
                mark[nxt] = len(self.l)
                pend.append(nxt)
                nxt += 1
            for nm in (g, f):
                if last[nm] == i:
                    free.append(reg[nm])
            for x in head.get(i, []):
                e(x)
            if i in bar_at and not o["latebar"]:
                wait_for({bar_at.pop(i)})
                e("s_barrier")
            wnext = cur and any(x[:2].lower() == "ds" for x in cur[:3])
            if i >= 1 and i not in (chk, pchk) and not (wnext and not half) and i > quiet:
                if half:
                    lds(*half.pop(0))
                    credit -= 4 * bool(cur or pend)
                else:
                    hold = min([first[nm] for nm in todo if nm[0] != "P" and i < avail[nm[1]]], default=999)
                    cand = [nm for nm in todo if (i >= pchk if nm[0] == "P" else
                                                  i >= avail[nm[1]] and first[nm] <= hold + o["hold"])]
                    if cand and (cand[0][0] == "P" or free):
                        todo.remove(cand[0])
                        issue_read(cand[0])
                        credit -= 4 * bool(cur or pend)
            if cur or pend:
                credit += per_gap
            while credit > 0:
                if not cur:
                    if not pend or len(self.l) - mark[pend[0]] < 8:
                        credit = 0
                        break
                    wait_for(set(par))
                    curun = pend.pop(0)
                    cur = self.epi_ops(curun)
                x = cur.pop(0)
                if x.startswith("DS "):
                    lds(x[3:])
                elif x.startswith("ds_"):
                    lds(x, ("W", curun))
                    if curun & 1:
                        free.extend([ACC + 4 * curun - 4, ACC + 4 * curun])
                    quiet = i + o["wq"]
                    if curun & 1 and curun >> 1 in bars and not o["diag"] & 1:
                        bar_at[i + o["blag"]] = ("W", curun)
                else:
                    e(x)
                credit -= cost(x)
        assert not todo
        if stalls:
            print("tail: late reads at", stalls, file=sys.stderr)
        rest = [(curun, cur)] if cur else []
        rest += [(un, None) for un in pend]
        for un, ops in rest:
            if ops is None:
                gap = len(self.l) - mark[un]
                if gap < 8:
                    e(f"s_nop {7 - gap}")
                ops = self.epi_ops(un)
            for x in ops:
                if x.startswith("DS "):
                    lds(x[3:])
                elif x.startswith("ds_"):
                    for key in sorted(bar_at):
                        wait_for({bar_at.pop(key)})
                        e("s_barrier")
                    lds(x, ("W", un))
                    if un & 1 and un >> 1 in bars and not o["diag"] & 1:
                        bar_at[un] = ("W", un)
                else:
                    e(x)
        for key in sorted(bar_at):
            wait_for({bar_at.pop(key)})
            e("s_barrier")

    def compute(self):
        e = self.e
        o = self.o
        if o["pages"]:
            e(".p2align 12")
            self.lab("L_page1")
        self.lab("L_compute")
        e("s_and_b32 s38, s18, 1")
        e("s_bfe_u32 s39, s18, 0x10001")
        e("v_and_b32 v10, 15, v0")
        e("v_lshrrev_b32 v16, 4, v0")
        if o["cpf"]:
            e("s_getpc_b64 s[20:21]")
            e("v_lshlrev_b32 v12, 7, v0")
            e("v_mov_b32 v13, s21")
            e("v_add_co_u32 v12, vcc, s20, v12")
            e("s_cmp_lt_u32 s36, %d" % o["cpf"])
            e("s_cselect_b32 s3, s18, 1")
            e("v_addc_co_u32 v13, vcc, 0, v13, vcc")
            e("s_and_b32 s3, s3, 3")
            e("s_cbranch_scc1 L_nocpf")
            e("s_mov_b32 exec_hi, (1 << (((L_end - L_compute) >> 7) - 32)) - 1")
            e("global_load_dword v14, v[12:13], off")
            e("s_mov_b32 exec_hi, -1")
            self.lab("L_nocpf")
        self.pi(17, 10, 18, 19)
        e("v_lshrrev_b32 v18, 2, v10")
        e("v_lshl_add_u32 v19, v16, 3, v18")
        e("v_lshlrev_b32 v19, 7, v19")
        e("v_and_b32 v20, 3, v10")
        e("v_lshl_add_u32 v19, v20, 3, v19")
        e("v_lshrrev_b32 v18, 1, v18")
        e("v_and_b32 v20, 1, v16")
        e("v_lshl_or_b32 v18, v20, 1, v18")
        e("s_lshl_b32 s45, s39, 1")
        e("v_xor_b32 v18, s45, v18")
        e("v_lshl_add_u32 v19, v18, 5, v19")
        e(f"v_add_u32 v8, {WBASE}, v19")
        e("v_xor_b32 v9, 32, v8")
        e("s_lshl_b32 s3, s38, 11")
        e(f"s_add_u32 s46, s3, {XBUF}")
        if o["rotk"]:
            e("s_bfe_u32 s47, s16, 0x10008")
            e("v_lshl_or_b32 v21, s47, 2, v16")
        for idx, sh in ((0, 0), (1, 1), (2, -1)):
            e(f"v_add_u32 v18, {sh}, v17")
            e("v_bfe_u32 v19, v18, 1, 3")
            e(f"v_xor_b32 v19, v19, v{21 if o['rotk'] else 16}")
            e("v_lshlrev_b32 v19, 4, v19")
            e(f"v_lshl_add_u32 v19, v{17 if sh == -1 else 18}, 7, v19")
            e(f"v_add_u32 v{2 + idx}, s46, v19")
            e(f"v_xor_b32 v{5 + idx}, 64, v{2 + idx}")
        e("v_lshrrev_b32 v18, 1, v16")
        e("v_lshl_add_u32 v18, s39, 2, v18")
        e("v_and_b32 v19, 7, v10")
        e("v_xor_b32 v18, v18, v19")
        e("v_lshlrev_b32 v18, 4, v18")
        e("v_lshl_add_u32 v18, v20, 3, v18")
        e("v_lshl_add_u32 v18, v10, 7, v18")
        e(f"s_add_u32 s3, s3, {STG}")
        e("v_add_u32 v1, s3, v18")
        e("v_xor_b32 v11, 32, v1")
        if o["direct"]:
            e("s_lshl_b32 s3, s38, 7")
            e("s_add_u32 s3, s3, s16")
            e("s_add_u32 s3, s3, 7")
            e("s_lshl_b32 s3, s3, 10")
            e("s_lshl_b32 s45, s39, 5")
            e("s_add_u32 s3, s3, s45")
            e("s_add_u32 s3, s3, s17")
            e("s_lshl_b32 s3, s3, 1")
            e("v_lshl_add_u32 v18, v20, 5, s3")
            e("v_lshrrev_b32 v19, 1, v16")
            e("v_lshl_add_u32 v18, v19, 4, v18")
            e("v_lshl_add_u32 v0, v17, 14, v18")
            e("s_waitcnt lgkmcnt(0)")
        e("s_lshl_b32 s3, s39, 7")
        e(f"s_add_u32 s3, s3, {PB}")
        e("v_lshl_add_u32 v10, v16, 4, s3")
        if o["fall"]:
            seq = self.mfmas(0, raw=True)
            for t, tm in sorted({(t, tm) for k, t, tm in seq[o["brpos"]:]} - {(t, tm) for k, t, tm in seq[:o["brpos"]]}):
                for h in range(2):
                    r = ACC + (tm * 2 + t) * 4 + 2 * h
                    e(f"v_mov_b64 v[{r}:{r + 1}], 0")
            for _ in range(o["lpad"]):
                e("s_nop 0")
        if o["cinit"]:
            import struct
            bits = struct.unpack("<I", struct.pack("<f", o["cinit"]))[0]
            for r in range(40, 44):
                e(f"v_mov_b32 v{r}, {bits + (((r & 3) << 24) if o['cvar'] & 1 else 0) + ((r & 1) << 31 if o['cvar'] & 4 else 0):#x}")
                if o["cvar"] & 2:
                    e(f"v_lshl_add_u32 v{r}, v16, 24, v{r}")
                if o["cvar"] & 8:
                    e(f"v_lshl_add_u32 v{r}, v0, 23, v{r}")
        e("s_mov_b32 s40, 1")
        e("s_mov_b32 s41, 1")
        e("s_mov_b32 s42, 0xbfb8aa3b")
        e(f"s_movk_i32 s53, {WBUF}")
        e(f"s_mov_b32 s54, {XBUF}")
        e(f"s_mov_b32 s46, {-(NWB - 1) * WBUF & 0xffffffff:#x}")
        e(f"s_mov_b32 s47, {-(NXB - 1) * XBUF & 0xffffffff:#x}")
        e("s_mov_b32 s52, 12")
        if o["prio_c"]:
            e(f"s_setprio {o['prio_c']}")
        self.stamp(1)
        e("s_barrier")
        self.stamp(2)

        def wadv():
            return [["s_add_u32 s41, s41, 1", f"s_cmp_eq_u32 s41, {NWB}"],
                    ["s_cselect_b32 s43, s46, s53", "s_cselect_b32 s41, 0, s41"],
                    ["v_add_u32 v8, s43, v8"], ["v_add_u32 v9, s43, v9"]]

        pre0 = wadv() + [["s_add_u32 s40, s40, 1", f"s_cmp_eq_u32 s40, {NXB}"],
                         ["s_cselect_b32 s55, s47, s54", "s_cselect_b32 s40, 0, s40"]] + \
            [[f"v_add_u32 v{2 + i}, s55, v{2 + i}"] for i in range(3)]
        pre1 = wadv() + [[f"v_add_u32 v{5 + i}, s55, v{5 + i}"] for i in range(3)]
        if o["lbar"]:
            assert o["topw"] <= 6 or o["lbar"] > {7: 20, 8: 19, 9: 14, 10: 13, 11: 8, 12: 7}[o["topw"]]
            self.first([], 48)
            body = self.substage(1, pre0) + self.substage(0, pre1 + [["s_sub_u32 s52, s52, 1"]])
        else:
            self.first(pre0, o["brpos"] if o["fall"] else 48)
            body = self.substage(1, pre1) + self.substage(0, pre0 + [["s_sub_u32 s52, s52, 1"]])
        cut = 48 + o["brpos"]
        if not o["fall"]:
            e("s_branch L_centry")
        if o["pages"]:
            self.lab("L_touch0")
        if not o["fall"]:
            e(".p2align 6")
            for _ in range(o["lpad"]):
                e("s_nop 0")
        self.lab("L_cloop")
        for gap in body[cut:]:
            for x in gap:
                e(x)
        self.lab("L_centry")
        for gap in body[:cut]:
            for x in gap:
                e(x)
        e("s_cbranch_scc0 L_cloop")
        for gap in body[cut:]:
            for x in gap:
                e(x)
        self.lab("L_tail")
        self.tail()
        self.lab("L_tail_end")
        if o["stamps"] and o["direct"]:
            e("s_waitcnt vmcnt(0)")
            e("v_mbcnt_lo_u32_b32 v0, -1, 0")
            e("v_mbcnt_hi_u32_b32 v0, -1, v0")
        self.stamp(4)
        self.dump_stamps(5, "c")
        e("s_endpgm")

    def gen(self):
        e = self.e
        o = self.o
        self.l.append(HEADER.rstrip())
        self.l.append(f"; @launch grid=(256,1,1) block=(512,1,1) lds={LDS}")
        self.l.append(DOC)
        self.l.append('.amdgcn_target "amdgcn-amd-amdhsa--gfx950"')
        self.l.append(".text")
        self.l.append(f".globl {KN}")
        if o["pages"]:
            self.l.append(".p2align 12")
        self.l.append(".p2align 8")
        self.l.append(f".type {KN},@function")
        self.lab(KN)
        e("s_cmp_ge_u32 s2, 256")
        e("s_cbranch_scc1 L_end")
        if o["stamps"]:
            e("s_memtime s[60:61]")
            e("s_memrealtime s[62:63]")
        e("s_load_dwordx2 s[8:9], s[0:1], 8")
        e("s_load_dwordx2 s[4:5], s[0:1], 0")
        e("v_readfirstlane_b32 s18, v0")
        e("v_and_b32 v0, 63, v0")
        e("s_lshr_b32 s17, s2, 5")
        e("s_and_b32 s20, s2, 1")
        e("s_lshl3_add_u32 s17, s20, s17")
        e("s_bfe_u32 s22, s2, 0x20001")
        e("s_bfe_u32 s16, s2, 0x20003")
        e("s_lshl2_add_u32 s16, s22, s16")
        e("s_lshr_b32 s18, s18, 6")
        e("s_lshl_b32 s17, s17, 6")
        e("s_lshl_b32 s16, s16, 8")
        e("s_cmp_ge_u32 s18, 4")
        if o["pages"] >= 2:
            e("s_cbranch_scc0 L_loader")
            self.l.append("@DISPATCH")
            e("s_branch L_compute")
        else:
            e(("s_cbranch_scc1" if o["lfirst"] else "s_cbranch_scc0") + " L_compute")
        self.loader()
        self.compute()
        for f in self.late:
            f()
        self.lab("L_end")
        e("s_endpgm")
        self.l.append(f""".section .rodata,"a"
.p2align 6
.amdhsa_kernel {KN}
  .amdhsa_next_free_vgpr 256
  .amdhsa_next_free_sgpr 96
  .amdhsa_accum_offset 256
  .amdhsa_group_segment_fixed_size 0
  .amdhsa_kernarg_size 72
  .amdhsa_user_sgpr_count 2
  .amdhsa_user_sgpr_kernarg_segment_ptr 1
  .amdhsa_system_sgpr_workgroup_id_x 1
.end_amdhsa_kernel""")
        return self.finish()

    def finish(self):
        L = "\n".join(self.l).split("\n")
        if self.o["pages"] < 2:
            return "\n".join(L) + "\n"
        import re
        import subprocess
        i0 = L.index("L_touch0:")
        it, ie = L.index("L_tail:"), L.index("L_tail_end:")
        probe = []
        for i, x in enumerate(L):
            if it < i <= ie:
                probe.append(f"L_pos{i}:")
            if x != "@DISPATCH":
                probe.append(x)
        open("probe.s", "w").write("\n".join(probe) + "\n")
        subprocess.run(["clang", "-x", "assembler", "-target", "amdgcn-amd-amdhsa", "-mcpu=gfx950",
                        "-c", "probe.s", "-o", "probe.o"], check=True)
        sym = subprocess.run(["llvm-readelf", "-s", "probe.o"], capture_output=True, text=True).stdout
        addr = {m.group(2): int(m.group(1), 16) for m in re.finditer(r"^\s*\d+: ([0-9a-f]+)\s.*\s(\S+)$", sym, re.M)}
        base = addr["L_page1"]
        win = self.o["win"]
        out, n, covered = [], 1, (addr["L_touch0"] - base) // 64 * 64 + win
        if not self.o["touch1"]:
            covered = 4096
        for i, x in enumerate(L):
            if it < i < ie:
                pos = addr[f"L_pos{i}"] - base + 4 * (n - 1)
                if pos >= covered:
                    out += [f"L_touch{n}:", "    s_cbranch_scc0 L_compute"]
                    n += 1
                    covered = min(pos // 64 * 64 + win, (pos // 4096 + 1) * 4096)
            out.append(x)
        disp = []
        for k, t in enumerate([f"L_touch{k}" for k in range(0 if self.o["touch1"] else 1, n)]):
            assert k < 3
            disp += [f"    s_cmp_lg_u32 s18, {4 + k}", f"    s_cbranch_scc0 {t}"]
        j = out.index("@DISPATCH")
        out[j:j + 1] = disp
        return "\n".join(out) + "\n"


if __name__ == "__main__":
    out = sys.argv[1]
    opts = {}
    for a in sys.argv[2:]:
        k, v = a.split("=")
        if k == "bars":
            opts[k] = v
            continue
        try:
            v = int(v)
        except ValueError:
            try:
                v = float(v)
            except ValueError:
                v = v.replace("+", " ")
        opts[k] = v
    open(out, "w").write(G(**opts).gen())
```

```python
import sys

HEADER = open("standalone__batchnorm__prompt.s.ref").read().split("; Override launch")[0]
KN = "standalone__batchnorm__prompt_kernel"

PS = 33 * 128
XBUF = 263 * 128
NXB = 3
WBUF = 3 * 32 * 128
NWB = 5
WBASE = NXB * XBUF
PB = WBASE + NWB * WBUF
LDS = PB + 512
STG = 2 * XBUF

ACC = 64
SET = (128, 192)
TMP = 32


def cnt(i):
    return (3, 5, 4, 3)[i % 4]


def need(u):
    return 2 * u + 3 if u % 2 == 0 else 2 * u + 2


DOC = """;
; One workgroup owns a 256 x 64 output tile. Waves 0-3 stream x and w into LDS rings with LDS-DMA loads, waves 4-7
; each compute 128 x 32 with v_mfma_f32_16x16x32_bf16 (A = w^T through transposed LDS reads, B = x).
; One barrier per 32 channels. The 64-channel stages are visited in an order that differs between workgroup groups, so
; in LDS and written as whole 128-byte lines by waves 0-3."""

NOTES = {
    "L_loader": "DMA waves: addresses, first loads",
    "L_lloop": "DMA waves: steady state, two 64-channel stages per trip",
    "L_store": "DMA waves: store the staged output rows",
    "L_compute": "MFMA waves: addresses, first 32-channel step",
    "L_cloop": "MFMA waves: steady state, two 32-channel steps per trip",
    "L_tail": "MFMA waves: last five steps and the epilogue; the scc0 branches are only taken by the entry-time jumps that pull this code into the instruction cache",
}


class G:
    def __init__(self, **o):
        self.o = dict(stamps=0, trace=0, no_dma=0, no_reads=0, no_mfma=0, no_epi=0, no_store=0,
                      lastrd=33, prio_c=1, prio_l=0, lfirst=1, order=17, xaux="", waux="", saux="sc1", xmap=0,
                      probe="", xor=1, nt=4, fpre=7, fbar=16, flast=38, hold=12, split0=1, touch1=0, direct=0, bars='01234567', wq=1, modeb=0, fall=0, off=5, pbar=14, rord=0, lbar=0, topw=6, tbar=4, idle=0, nsc=8, saux2='', pat='32,39,43,53', pwg=-1, rrate=0.8, x0=4, pace=1.04, pk=2, alt=0, lead=6, cum="23,30",
                      rotx=1, rotk=1, tchk=34, endq="229,240", pchk=50, blag=7, cpf=0, pstamp=0, brpos=45, pages=2, lpad=0, win=1280, latebar=0, diag=0, wpair=1, cmode=0, swap=0, base="_456789AB0123CDEF", mask="_3333333333333333", maskb="_0000000000000000")
        self.o.update(o)
        self.l = []
        self.nlab = 0
        self.late = []
        self.late_table = None
        self.inloop = 0
        self.flow = 0

    def e(self, s):
        self.l.append("    " + s)

    def lab(self, s):
        if s in NOTES:
            self.l.append("; " + NOTES[s])
        self.l.append(s + ":")

    def stamp(self, i):
        if self.o["stamps"]:
            self.e(f"s_memtime s[{60 + 4 * i}:{61 + 4 * i}]")
            self.e(f"s_memrealtime s[{62 + 4 * i}:{63 + 4 * i}]")
            self.e("s_waitcnt lgkmcnt(0)")

    def lbarrier(self):
        e = self.e
        e("s_barrier")
        if self.o["trace"]:
            e("s_memtime s[56:57]")
            e("s_memrealtime s[80:81]")
            e("s_mov_b32 s90, m0")
            e("s_mov_b32 m0, s55")
            e("s_waitcnt lgkmcnt(0)")
            e("v_writelane_b32 v62, s56, m0")
            e("v_writelane_b32 v63, s80, m0")
            e("s_add_u32 s55, s55, 1")
            e("s_mov_b32 m0, s90")

    def dump_stamps(self, n, role):
        if not self.o["stamps"]:
            return
        e = self.e
        if self.o["probe"]:
            prole, a, z, kind, mult = self.o["probe"].split(",")
            if prole == role:
                off = 60 if kind == "c" else 62
                e(f"s_sub_u32 s3, s{off + 4 * int(z)}, s{off + 4 * int(a)}")
                if kind == "g":
                    e("v_mov_b32 v50, 0")
                    e("global_load_dword v51, v50, s[92:93] sc1")
                    e("s_waitcnt vmcnt(0)")
                    e("v_readfirstlane_b32 s3, v51")
                    e("s_not_b32 s3, s3")
                    e(f"s_sub_u32 s3, s{62 + 4 * int(z)}, s3")
                if kind != "c":
                    e(f"s_mul_i32 s3, s3, {mult}")
                else:
                    e(f"s_lshr_b32 s3, s3, {mult}")
                e("s_min_u32 s3, s3, 50000")
                if self.o["pwg"] >= 0:
                    e("s_and_b32 s56, s2, 7")
                    e(f"s_cmp_eq_u32 s56, {self.o['pwg']}")
                    e("s_cselect_b32 s3, s3, 0")
                self.lab(f"L_spin_{role}")
                e("s_memrealtime s[56:57]")
                e("s_waitcnt lgkmcnt(0)")
                e(f"s_sub_u32 s56, s56, s{62 + 4 * (n - 1)}")
                e("s_cmp_lt_u32 s56, s3")
                e(f"s_cbranch_scc1 L_spin_{role}")
            return
        e("s_load_dwordx2 s[34:35], s[0:1], 64")
        e("s_waitcnt lgkmcnt(0)")
        e("v_mov_b32 v40, 0")
        for i in range(n):
            e(f"v_writelane_b32 v40, s{60 + 4 * i}, {2 * i}")
            e(f"v_writelane_b32 v40, s{62 + 4 * i}, {2 * i + 1}")
        for i in range(4):
            e(f"v_writelane_b32 v40, s{86 + i}, {12 + i}")
        e("s_lshl_b32 s3, s2, 3")
        e("s_and_b32 s18, s18, 3")
        if role == "l":
            e("s_add_u32 s18, s18, 4")
        e("s_add_u32 s3, s3, s18")
        e("s_lshl_b32 s3, s3, 6")
        e("v_lshl_add_u32 v41, v0, 2, s3")
        if self.o["trace"] and role == "l":
            e("s_lshl_b32 s3, s3, 2")
            e("s_add_u32 s3, s3, 0x100000")
            e("v_lshl_add_u32 v42, v0, 2, s3")
            e("v_subrev_u32 v62, s60, v62")
            e("v_subrev_u32 v63, s62, v63")
            e("v_lshl_or_b32 v63, v63, 18, v62")
            e("global_store_dword v42, v63, s[34:35]")
        e("s_mov_b64 exec, 0xffff")
        e("global_store_dword v41, v40, s[34:35]")

    def issue_x(self, half):
        e = self.e
        aux = self.o["xaux"]
        self.hooks.pop("x", lambda: None)()
        if self.o["no_dma"]:
            self.hooks.pop("halo", lambda: None)()
        if not self.o["no_dma"] and not (self.o["diag"] & 8 and self.inloop):
            e(f"s_add_u32 m0, s41, s{86 + half}")
            e(f"s_add_u32 s45, s40, s{88 + half}")
            e(f"buffer_load_dwordx4 v2, s[4:7], s45 offen {aux} lds")
            for p in range(1, 4):
                a, b = (45, 46) if p & 1 else (46, 45)
                e("s_add_u32 m0, m0, s54")
                e(f"s_add_u32 s{b}, s{a}, s53")
                e(f"buffer_load_dwordx4 v2, s[4:7], s{b} offen {aux} lds")
            self.hooks.pop("halo", lambda: None)()
            if half == 0 and not self.o["diag"] & 64:
                e("s_add_u32 m0, s41, s44")
                e("s_mov_b64 exec, 15")
                e(f"buffer_load_dwordx4 v3, s[4:7], s40 offen {aux} lds")
                e("s_mov_b64 exec, -1")
        if half == 0:
            return
        e(f"s_add_u32 s41, s41, {XBUF}")
        e("s_cmp_ge_u32 s41, s51")
        e("s_cselect_b32 s41, s50, s41")

    def issue(self, i):
        if i % 4 in (0, 3):
            self.issue_w(i & 1)
        else:
            self.issue_x(i % 4 - 1)

    def issue_w(self, second):
        e = self.e
        if not self.o["no_dma"] and not (self.o["diag"] & 16 and self.inloop):
            aux = self.o["waux"]
            e("s_mov_b32 m0, s43")
            e("s_add_u32 s45, s42, s38")
            e(f"buffer_load_dwordx4 v4, s[8:11], s42 offen {aux} lds")
            e("s_add_u32 m0, m0, s39")
            e("s_add_u32 s46, s45, s38")
            e(f"buffer_load_dwordx4 v4, s[8:11], s45 offen {aux} lds")
            e("s_add_u32 m0, m0, s39")
            e(f"s_addk_i32 s43, {WBUF}")
            e(f"buffer_load_dwordx4 v4, s[8:11], s46 offen {aux} lds")
        else:
            e(f"s_addk_i32 s43, {WBUF}")
        e("s_cmp_ge_u32 s43, s49")
        e("s_cselect_b32 s43, s51, s43")
        if second:
            self.hooks.pop("table", lambda: None)()
            e("s_lshr_b64 s[82:83], s[82:83], 4")
            self.stage_offsets()
        else:
            e("s_xor_b32 s42, s42, 0x10000")

    def stage_offsets(self):
        e = self.e
        e("s_and_b32 s3, s82, 15")
        e("s_lshl_b32 s40, s3, 7")
        e("s_lshl_b32 s42, s3, 17")
        e("s_or_b32 s42, s42, s85")

    def params(self):
        e = self.e
        for i in range(4):
            e(f"ds_read_u16_d16_hi v{24 + i}, v10 offset:{128 * i}")
        rnd = ["v_cvt_pk_bf16_f32 v25, v25, v25", "v_lshlrev_b32 v25, 16, v25"]
        L = ["s_waitcnt lgkmcnt(0)", "v_add_f32 v25, 0x3727c5ac, v25"] + rnd + ["v_sqrt_f32 v25, v25", "s_nop 0"] + rnd
        L += ["v_rcp_f32 v25, v25", "s_nop 0"] + rnd + ["v_mul_f32 v25, v26, v25"] + rnd
        if self.o["off"]:
            L += ["v_rcp_f32 v26, v25", f"v_mul_f32 v{TMP}, s42, v25", "v_mul_f32 v26, v27, v26",
                  "v_max_f32_e64 v26, |v24|, |v26|"]
            for sh in (1, 2, 4):
                L += [f"v_mov_b32_dpp v{16 + q}, v{TMP} row_newbcast:{q} row_mask:0xf bank_mask:0xf" for q in {1: (0, 1), 2: (2, 3), 4: (4, 5)}[sh]]
                L += [f"v_min_u32_dpp v26, v26, v26 row_ror:{sh} row_mask:0xf bank_mask:0xf"]
            L += [f"v_mov_b32_dpp v{16 + q}, v{TMP} row_newbcast:{q} row_mask:0xf bank_mask:0xf" for q in (6, 7)]
            L += [f"v_readlane_b32 s{24 + q}, v26, {16 * q}" for q in range(4)]
            L += ["s_min_u32 s24, s24, s25", "s_min_u32 s26, s26, s27", "s_min_u32 s24, s24, s26",
                  "s_min_u32 s24, s24, 0x70000000", "s_and_b32 s24, s24, 0x7f800000",
                  f"s_cselect_b32 s25, {(self.o['off'] << 23) + 0x400000:#x}, 0", "s_add_u32 s24, s24, s25"]
            L += ["v_fma_f32 v27, -v24, v25, v27", "v_fma_f32 v27, -s24, v25, v27", f"v_mul_f32 v{TMP + 1}, s42, v27"]
            L += [f"v_mov_b32 v{r}, s24" for r in range(40, 44)]
        else:
            L += ["v_fma_f32 v27, -v24, v25, v27", f"v_mul_f32 v{TMP}, s42, v25", f"v_mul_f32 v{TMP + 1}, s42, v27", "s_nop 0"]
            L += [f"v_mov_b32_dpp v{16 + q}, v{TMP} row_newbcast:{q} row_mask:0xf bank_mask:0xf" for q in range(8)]
        L += [f"v_mov_b32_dpp v{24 + q}, v{TMP + 1} row_newbcast:{q} row_mask:0xf bank_mask:0xf" for q in range(8)]
        for x in L:
            e(x)

    def pi(self, dst, j, t0, t1):
        e = self.e
        e(f"v_lshlrev_b32 v{dst}, 1, v{j}")
        e(f"v_cmp_lt_u32 vcc, 3, v{j}")
        e(f"v_subrev_u32 v{t0}, 7, v{dst}")
        e(f"v_subrev_u32 v{t1}, 16, v{dst}")
        e(f"v_cndmask_b32 v{dst}, v{dst}, v{t0}, vcc")
        e(f"v_cmp_lt_u32 vcc, 11, v{j}")
        e("s_nop 1")
        e(f"v_cndmask_b32 v{dst}, v{dst}, v{t1}, vcc")

    def loader(self):
        e = self.e
        o = self.o
        self.lab("L_loader")
        if o["prio_l"]:
            e(f"s_setprio {o['prio_l']}")
        base = [int(ch, 16) for ch in o["base"].lstrip("_")]
        mask = [int(ch, 16) for ch in o["mask"].lstrip("_")]
        maskb = [int(ch, 16) for ch in o["maskb"].lstrip("_")]
        for c in range(4):
            for cb in range(4):
                assert sorted(b ^ (c & m) ^ (cb & mb) for b, m, mb in zip(base, mask, maskb)) == list(range(16))
        assert not maskb[0] and o["rotk"] and o["rotx"] == 1 and o["lfirst"]
        pack = lambda v: sum(x << (4 * k) for k, x in enumerate(v))
        e("s_lshl3_add_u32 s3, s18, 16")
        e("s_load_dwordx2 s[12:13], s[0:1], s3")
        e("v_lshrrev_b32 v5, 3, v0")
        e("s_lshl_b32 s47, s18, 2")
        e("v_xor_b32 v6, s47, v0")
        e("s_xor_b32 s84, s22, s20")
        e("v_and_b32 v7, 2, v5")
        e("v_and_b32 v6, 7, v6")
        if mask[0] == 3:
            e(f"s_xor_b32 s3, s84, {base[0]}")
        else:
            e(f"s_and_b32 s3, s84, {mask[0]}")
            e(f"s_xor_b32 s3, s3, {base[0]}")
        e("s_lshl_b32 s85, s2, 13")
        e("v_xor_b32 v7, v7, v6")
        e("s_and_b32 s85, s85, 0x10000")
        e("s_lshl_b32 s42, s3, 17")
        e("v_lshlrev_b32 v7, 4, v7")
        e("s_or_b32 s42, s42, s85")
        e("s_lshl_b32 s50, s18, 10")
        e("v_lshl_add_u32 v4, v5, 11, v7")
        e("s_lshl3_add_u32 s45, s50, s17")
        e(f"s_add_u32 s51, s50, {WBASE}")
        e("v_lshl_add_u32 v4, s45, 1, v4")
        e("s_mov_b32 s10, 0x600000")
        e("s_mov_b32 s11, 0x20000")
        e("s_mov_b32 s43, s51")
        e("s_mov_b32 s38, 0x200000")
        e("s_movk_i32 s39, 4096")
        e(f"s_add_u32 s49, s51, {NWB * WBUF}")
        e("s_lshl_b32 s40, s3, 7")
        e("v_lshl_add_u32 v8, v0, 1, s17")
        e("s_movk_i32 s14, 2048")
        e("s_mov_b32 s15, s11")
        e("v_lshlrev_b32 v8, 1, v8")
        e("s_lshl_b32 s3, s18, 7")
        e(f"s_add_u32 m0, s3, {PB}")
        e("s_mov_b32 exec_hi, 0")
        e("s_waitcnt lgkmcnt(0)")
        self.stamp(1)
        e("buffer_load_dword v8, s[12:15], 0 offen lds")
        e("s_mov_b32 exec_hi, -1")
        if ",g," in o["probe"]:
            e("s_load_dwordx2 s[92:93], s[0:1], 56")
            e("s_not_b32 s3, s62")
            e("v_mov_b32 v50, 0")
            e("v_mov_b32 v51, s3")
            e("s_waitcnt lgkmcnt(0)")
            e("s_mov_b64 exec, 1")
            e("global_atomic_umax v50, v51, s[92:93] sc1")
            e("s_mov_b64 exec, -1")

        def x_setup():
            e("v_lshrrev_b32 v7, 1, v5")
            e("s_mov_b32 s6, 0x800000")
            e("v_xor_b32 v7, v7, v6")
            e("s_mov_b32 s7, s11")
            e("v_lshlrev_b32 v7, 4, v7")
            e("s_lshl4_add_u32 s3, s47, s16")
            e("v_lshl_add_u32 v2, v5, 14, v7")
            e("s_bitcmp1_b32 s17, 6")
            e(f"s_cselect_b32 s86, {4 * PS}, 0")
            e("v_lshl_add_u32 v2, s3, 11, v2")
            e("s_cselect_b32 s88, 0x2000, 0")
            e(f"s_add_u32 s41, s50, {XBUF}")
            e("s_movk_i32 s53, 2048")
            e(f"s_movk_i32 s54, {PS}")

        def halo_setup():
            e(f"s_xor_b32 s87, s86, {4 * PS}")
            e("s_xor_b32 s89, s88, 0x2000")
            e(f"s_movk_i32 s44, {230 * 128}")
            e("s_cmp_lt_u32 s18, 2")
            e("s_cselect_b32 s3, 256, 0")
            e("s_cselect_b32 s23, 256, -1")
            e("s_cselect_b32 s24, 0, 7")
            e(f"s_cmovk_i32 s44, {32 * 128}")
            e("s_add_u32 s3, s3, s16")
            e("s_add_u32 s23, s23, s16")
            e("s_lshl_b32 s23, s23, 11")
            e("s_and_b32 s3, s3, 2047")
            e("s_cselect_b32 s23, s23, 0x80000000")
            e("v_xor_b32 v7, s24, v6")
            e("s_and_b32 s47, s47, 4")
            e("v_lshl_add_u32 v3, v7, 4, s23")
            e("s_lshl4_add_u32 s44, s47, s44")
            e("s_sub_u32 s44, s44, s50")

        def table_setup():
            e("s_mul_i32 s3, s84, 0x11111111")
            for h in range(2):
                m = pack(mask[8 * h:8 * h + 8])
                if m == 0x33333333:
                    e(f"s_xor_b32 s{82 + h}, s3, {pack(base[8 * h:8 * h + 8]):#x}")
                else:
                    e(f"s_and_b32 s{82 + h}, s3, {m:#x}")
                    e(f"s_xor_b32 s{82 + h}, s{82 + h}, {pack(base[8 * h:8 * h + 8]):#x}")
            if any(maskb):
                if o["modeb"] == 0:
                    e("s_and_b32 s84, s84, 1")
                    e("s_lshr_b32 s3, s2, 2")
                    e("s_xor_b32 s3, s3, s2")
                    e("s_bfe_u32 s3, s3, 0x10004")
                    e("s_lshl1_add_u32 s84, s84, s3")
                elif o["modeb"] == 1:
                    e("s_lshl_b32 s3, s20, 1")
                    e("s_xor_b32 s84, s22, s3")
                else:
                    e("s_lshr_b32 s3, s2, 5")
                    e("s_and_b32 s3, s3, 2")
                    e("s_xor_b32 s84, s84, s3")
                e("s_mul_i32 s84, s84, 0x11111111")
                for h in range(2):
                    m = pack(maskb[8 * h:8 * h + 8])
                    if m:
                        e(f"s_and_b32 s3, s84, {m:#x}")
                        e(f"s_xor_b32 s{82 + h}, s{82 + h}, s3")
        self.hooks = {"x": x_setup, "halo": halo_setup, "table": table_setup}
        if o["trace"]:
            e("s_mov_b32 s55, 0")
        st = {"issued": 0, "chunks": []}

        def upto(c):
            while st["issued"] < min(c, 240):
                if not st["chunks"]:
                    keep, self.l = self.l, []
                    pos = st["issued"] % 15
                    self.issue({0: 0, 3: 1, 8: 2, 12: 3}[pos])
                    lines, self.l = self.l, keep
                    n = {0: 3, 3: 5, 8: 4, 12: 3}[pos]
                    cuts = [k + 1 for k, x in enumerate(lines) if x.endswith(" lds")][:n - 1]
                    cuts = cuts + [len(lines)] * (n - len(cuts))
                    st["chunks"] = [lines[a:b] for a, b in zip([0] + cuts, cuts)]
                self.l += st["chunks"].pop(0)
                st["issued"] += 1

        needi = lambda u: 15 * (u // 2) + (15 if u & 1 else 12)
        legal = lambda u: needi(u + 4)

        def step(u):
            nd = needi(29) if u == 28 else needi(u)
            assert nd <= st["issued"]
            e(f"s_waitcnt vmcnt({st['issued'] - nd})")
            self.lbarrier()

        cum = [int(v) for v in str(o["cum"]).split(",")]
        for u, c in enumerate(cum):
            assert c <= legal(max(u - 1, 0))
            if u == 0:
                upto(o["pbar"])
                e(f"s_waitcnt vmcnt({o['pbar'] if not o['no_dma'] else 0})")
                e("s_barrier")
            upto(c)
            step(u)
            if u == 0:
                self.stamp(2)
        u0 = len(cum)
        pat = [int(v) for v in str(o["pat"]).split(",")]
        per = 2 if pat[2] == pat[0] + 15 and pat[3] == pat[1] + 15 else 4
        after = lambda u: 30 * (u // 4) + pat[u % 4]
        assert all(after(u) <= legal(u) for u in range(4))
        assert st["issued"] <= after(u0 - 1)
        upto(after(u0 - 1))
        endq = [int(v) for v in str(o["endq"]).split(",") if v]
        nit = (28 - len(endq) - u0) // per
        e(f"s_mov_b32 s52, {nit - 1}")
        self.lab("L_lloop")
        self.inloop = 1
        for k in range(per):
            step(u0 + k)
            if o["pstamp"] and (o["pstamp"] - u0) % per == k:
                e(f"s_cmp_lg_u32 s52, {nit - 1 - (o['pstamp'] - u0) // per}")
                e("s_cbranch_scc1 L_nops")
                self.stamp(1)
                self.lab("L_nops")
            upto(after(u0 + k))
        e("s_sub_u32 s52, s52, 1")
        e("s_cbranch_scc0 L_lloop")
        st["issued"] += 15 * per // 2 * (nit - 1)
        e("s_load_dwordx2 s[12:13], s[0:1], 48")
        for u in range(u0 + per * nit, 29):
            step(u)
            k = u - (28 - len(endq))
            c = endq[k] if 0 <= k < len(endq) else after(u)
            assert c <= legal(u)
            upto(c)
        assert st["issued"] == 240
        e("s_waitcnt vmcnt(0) lgkmcnt(0)")
        self.lbarrier()
        self.lab("L_store")
        self.stamp(3)
        self.store_setup()
        if o["diag"] & 32:
            e("s_movk_i32 s53, 2048")
        e("s_mov_b32 s46, 0")
        bars = [int(ch) for ch in str(o["bars"])]
        assert bars[-1] == (6 if o["direct"] else 7)
        tm = 0
        for b in bars:
            if not o["diag"] & 1:
                self.lbarrier()
            grp = list(range(tm, b + 1))
            for q, t2 in enumerate(grp):
                e(f"ds_read_b128 v[{28 + 4 * q}:{31 + 4 * q}], v17 offset:{t2 * 4096}")
            for q, t2 in enumerate(grp):
                e(f"s_waitcnt lgkmcnt({len(grp) - 1 - q})")
                if not o["no_store"]:
                    e(f"buffer_store_dwordx4 v[{28 + 4 * q}:{31 + 4 * q}], v16, s[12:15], s46 offen {o['saux'] if t2 < o['nsc'] else o['saux2']}")
                e("s_add_u32 s46, s46, s53")
            tm = b + 1
        if o["stamps"]:
            e("s_waitcnt vmcnt(0)")
        self.stamp(4)
        if o["stamps"]:
            e("s_branch L_ldump")

            def late():
                self.lab("L_ldump")
                self.dump_stamps(5, "l")
                e("s_endpgm")
            self.late.append(late)
        else:
            e("s_endpgm")

    def store_setup(self):
        e = self.e
        e("s_mov_b32 s14, 0x800000")
        e("s_mov_b32 s15, 0x20000")
        e("s_and_b32 s3, s18, 1")
        e("v_lshl_add_u32 v6, s3, 3, v5")
        self.pi(7, 6, 8, 9)
        e("s_lshr_b32 s3, s18, 1")
        e("s_lshl_b32 s3, s3, 7")
        e("s_add_u32 s3, s3, s16")
        e("s_lshl_b32 s3, s3, 10")
        e("s_add_u32 s3, s3, s17")
        e("s_lshl_b32 s3, s3, 1")
        e("v_and_b32 v8, 7, v0")
        e("v_lshl_add_u32 v9, v8, 4, s3")
        e("v_lshl_add_u32 v16, v7, 14, v9")
        e("v_xor_b32 v8, v8, v5")
        e("v_lshlrev_b32 v8, 4, v8")
        e("v_lshl_add_u32 v8, v5, 7, v8")
        e(f"s_add_u32 s3, s50, {STG}")
        e("v_add_u32 v17, s3, v8")

    def rd_f(self, r, kk, dl, off=0):
        a = 2 + 3 * kk
        if dl == 0:
            return [f"ds_read_b128 v[{r}:{r + 3}], v{a + 2} offset:{7 * PS - 128 + off}"]
        if dl == 9:
            return [f"ds_read_b128 v[{r}:{r + 3}], v{a + 1} offset:{off}"]
        return [f"ds_read_b128 v[{r}:{r + 3}], v{a} offset:{(dl - 1) * PS + off}"]

    def rd_g(self, r, k, t, off=0):
        return [f"ds_read_b64_tr_b16 v[{r + 2 * hh}:{r + 2 * hh + 1}], v{8 + t} offset:{k * 4096 + hh * 512 + off}"
                for hh in range(2)]

    def reads(self, st, kk):
        base = SET[st]
        if self.o["rord"] == 2:
            return [x for dl in range(10) for x in self.rd_f(base + 4 * dl, kk, dl)] + \
                   [x for t in range(2) for k in range(3) for x in self.rd_g(base + 40 + (k * 2 + t) * 4, k, t)]
        if self.o["lbar"] or self.o["rord"] == 1:
            out, seen = [], set()
            for k, t, tm in self.mfmas(st, raw=True):
                for nm in (("G", k, t), ("F", tm + k)):
                    if nm not in seen:
                        seen.add(nm)
                        out += self.rd_g(base + 40 + (k * 2 + t) * 4, k, t) if nm[0] == "G" else \
                            self.rd_f(base + 4 * nm[1], kk, nm[1])
            return out
        L = []
        for t in range(2):
            for k in range(3):
                L += self.rd_g(base + 40 + (k * 2 + t) * 4, k, t)
        X = []
        for dl in range(10):
            X += self.rd_f(base + 4 * dl, kk, dl)
        out = []
        while L or X:
            if X:
                out.append(X.pop(0))
            if L:
                out.append(L.pop(0))
        return out

    def mf(self, g, f, t, tm):
        acc = ACC + (tm * 2 + t) * 4
        return f"v_mfma_f32_16x16x32_bf16 v[{acc}:{acc + 3}], v[{g}:{g + 3}], v[{f}:{f + 3}], v[{acc}:{acc + 3}]"

    def mfmas(self, st, raw=False):
        od = self.o["order"] if not (raw and self.o["order"] != 17) else 17
        asc, desc = (0, 1, 2), (2, 1, 0)
        up, down = list(range(8)), list(range(7, -1, -1))
        if od == 0:
            seq = [(k, t, tm) for k in range(3) for t in range(2) for tm in range(8)]
        elif od == 4:
            seq = [(k, t, tm) for t in range(2) for tm in up for k in asc]
        elif od == 6:
            seq = [(k, t, tm) for t in range(2) for tm in up for k in (asc if tm % 2 == 0 else desc)]
        elif od == 7:
            seq = []
            for tm in up:
                ts = (0, 1) if tm % 2 == 0 else (1, 0)
                seq += [(k, ts[0], tm) for k in asc] + [(k, ts[1], tm) for k in desc]
        elif od == 9:
            seq = [(k, 0, tm) for tm in up for k in (asc if tm % 2 == 0 else desc)] + \
                  [(k, 1, tm) for tm in down for k in (asc if tm % 2 else desc)]
        elif od == 17:
            seq = [(k, st, tm) for tm in up for k in (asc if tm % 2 == 0 else desc)] + \
                  [(k, st ^ 1, tm) for tm in down for k in (asc if tm % 2 else desc)]
        elif od == 18:
            seq = [(k, 0, tm) for tm in up for k in (0, 1)] + [(k, 1, tm) for tm in down for k in (1, 0)] + \
                  [(2, t, tm) for tm in up for t in ((1, 0) if tm == 0 else (0, 1))]
        elif od == 19:
            seq = [(k, t, tm) for k in range(3) for tm in (up if k != 1 else down) for t in range(2)]
        elif od == 10:
            seq = [(k, t, tm) for t in range(2) for tm in up for k in desc]
        elif od == 11:
            seq = [(k, t, tm) for t in range(2) for tm in up for k in (0, 2, 1)]
        elif od == 12:
            seq = [(k, t, tm) for t in range(2) for tm in up for k in (1, 0, 2)]
        elif od == 13:
            rot = [(0, 1, 2), (2, 0, 1), (1, 2, 0)]
            seq = [(k, t, tm) for t in range(2) for tm in up for k in rot[tm % 3]]
        elif od == 14:
            rot = [(0, 2, 1), (1, 0, 2), (2, 1, 0)]
            seq = [(k, t, tm) for t in range(2) for tm in up for k in rot[tm % 3]]
        elif od == 15:
            seq = [(k, t, tm) for t in range(2) for tm in up for k in ((0, 2, 1) if tm % 2 == 0 else (1, 2, 0))]
        elif od == 16:
            seq = [(k, t, tm) for t in range(2) for tm in up for k in ((2, 0, 1) if tm % 2 == 0 else (1, 0, 2))]
        elif od >= 20:
            out = []
            for tm in up:
                ks = [(0, k) for k in asc] + [(1, k) for k in (asc if od == 20 else desc)]
                if od != 22 and tm % 2:
                    ks = ks[::-1]
                out += [self.mf(SET[s_] + 40 + (k * 2 + st) * 4, SET[s_] + 4 * (tm + k), st, tm) for s_, k in ks]
            return out
        if raw:
            return seq
        M = [(SET[st] + 40 + (k * 2 + t) * 4, SET[st] + 4 * (tm + k), t, tm) for k, t, tm in seq]
        if self.o["swap"]:
            M = [(f, g, t, tm) for g, f, t, tm in M]
        return [self.mf(*m) for m in M]

    def substage(self, st, pre):
        o = self.o
        M = self.mfmas(st)
        R = self.reads(st ^ 1, st ^ 1) if not o["no_reads"] else []
        if o["diag"] & 1024:
            R = [r for r in R if "tr" not in r]
        if o["diag"] & 2048:
            R = [r for r in R if "tr" in r]
        if o["diag"] & 4096:
            R = [r.replace("b64_tr_b16", "b64") for r in R]
        fill = {}
        lb = o["lbar"]
        sp = (o["lastrd"] - lb) / 22.0
        if lb:
            fill[lb - 1] = ["s_waitcnt lgkmcnt(0)", "s_barrier"]
        for i, r in enumerate(R):
            fill.setdefault(lb + int(i * sp), []).append(r)
        pos = 0 if lb else o["lastrd"]
        for i, p in enumerate(pre):
            fill.setdefault(min(pos + i, 47), []).extend(p)
        top = [f"s_waitcnt lgkmcnt({o['topw']})"] if lb else ["s_waitcnt lgkmcnt(0)", "s_barrier"] + ["s_nop 15"] * o["idle"]
        if lb and o["topw"] > 6:
            fill.setdefault({7: 20, 8: 19, 9: 14, 10: 13, 11: 8, 12: 7}[o["topw"]] - 1, []).append("s_waitcnt lgkmcnt(6)")
        out = []
        for i, m in enumerate(M):
            out.append((top if i == 0 else []) + ([m] if not o["no_mfma"] else []) + fill.get(i, []))
        return out

    def first(self, pre, nm_=48):
        e = self.e
        o = self.o
        seq = self.mfmas(0, raw=True)
        todo, queue, seen = [], [], set()
        for k, t, tm in seq:
            for nm in (("G", k, t), ("F", tm + k)):
                if nm not in todo:
                    todo.append(nm)

        def rd():
            nm = todo.pop(0)
            ops = self.rd_g(SET[0] + 40 + (nm[1] * 2 + nm[2]) * 4, nm[1], nm[2]) if nm[0] == "G" else \
                self.rd_f(SET[0] + 4 * nm[1], 0, nm[1])
            for op in ops:
                e(op)
                queue.append(nm)
        for _ in range(o["fpre"]):
            rd()
        R = self.reads(1, 1)
        bar = o["fbar"]
        sp = (o["flast"] - bar) / 22.0
        fill = {bar - 1: ["v_add_u32 v8, s53, v8", "v_add_u32 v9, s53, v9"], bar: ["s_waitcnt lgkmcnt(0)", "s_barrier"]}
        for i, r in enumerate(R):
            fill.setdefault(bar + int(i * sp), []).append(r)
        for i, p in enumerate(pre):
            fill.setdefault(min(o["flast"] + i * 2 // 3, nm_ - 1), []).extend(p)
        for i, (k, t, tm) in enumerate(seq[:nm_]):
            idx = max((q for q, tg in enumerate(queue) if tg in (("G", k, t), ("F", tm + k))), default=-1)
            if idx >= 0:
                n = min(len(queue) - 1 - idx, 14)
                e(f"s_waitcnt lgkmcnt({n})")
                del queue[:len(queue) - n]
            m = self.mf(SET[0] + 40 + (k * 2 + t) * 4, SET[0] + 4 * (tm + k), t, tm)
            if (t, tm) not in seen:
                seen.add((t, tm))
                m = m[:m.rindex(",")] + (", v[40:43]" if o["off"] else ", 0")
            e(m)
            if todo:
                assert i < bar - 1
                rd()
            if i == bar:
                del queue[:]
            for x in fill.get(i, []):
                e(x)

    def epi_ops(self, un):
        tm, t = un >> 1, un & 1
        a = ACC + un * 4
        tb = TMP + 4 * t
        L = []
        if not self.o["no_epi"] and not (self.o["pk"] == 1 or (self.o["pk"] == 2 and un == 15)):
            for r in range(4):
                L.append(f"v_fma_f32 v{a + r}, v{a + r}, v{16 + 4 * t + r}, v{24 + 4 * t + r}")
            for r in range(4):
                L.append(f"v_exp_f32 v{tb + r}, v{a + r}")
            for r in range(4):
                L.append(f"v_fma_f32 v{tb + r}, v{tb + r}, s42, s42")
            for r in range(4):
                L.append(f"v_rcp_f32 v{tb + r}, v{tb + r}")
            for r in range(4):
                L.append(f"v_mul_f32 v{tb + r}, v{tb + r}, v{a + r}")
            for p in range(2):
                L.append(f"v_cvt_pk_bf16_f32 v{a + p}, v{tb + 2 * p}, v{tb + 2 * p + 1}")
        elif not self.o["no_epi"]:
            for p in range(2):
                q = 4 * t + 2 * p
                L.append(f"v_pk_fma_f32 v[{a + 2 * p}:{a + 2 * p + 1}], v[{a + 2 * p}:{a + 2 * p + 1}], v[{16 + q}:{17 + q}], v[{24 + q}:{25 + q}]")
            for r in range(4):
                L.append(f"v_exp_f32 v{tb + r}, v{a + r}")
            for p in range(2):
                L.append(f"v_pk_fma_f32 v[{tb + 2 * p}:{tb + 2 * p + 1}], v[{tb + 2 * p}:{tb + 2 * p + 1}], s[42:43], s[42:43]")
            for r in range(4):
                L.append(f"v_rcp_f32 v{tb + r}, v{tb + r}")
            for p in range(2):
                L.append(f"v_pk_mul_f32 v[{tb + 2 * p}:{tb + 2 * p + 1}], v[{tb + 2 * p}:{tb + 2 * p + 1}], v[{a + 2 * p}:{a + 2 * p + 1}]")
            for p in range(2):
                L.append(f"v_cvt_pk_bf16_f32 v{a + p}, v{tb + 2 * p}, v{tb + 2 * p + 1}")
        if self.o["direct"] and tm == 7:
            if t:
                L = [x.replace(f"v_cvt_pk_bf16_f32 v{a},", f"v_cvt_pk_bf16_f32 v{a - 2},")
                      .replace(f"v_cvt_pk_bf16_f32 v{a + 1},", f"v_cvt_pk_bf16_f32 v{a - 1},") for x in L]
                L += ["s_nop 0", f"v_permlane16_swap_b32 v{a - 4}, v{a - 2}", f"v_permlane16_swap_b32 v{a - 3}, v{a - 1}"]
                if not self.o["no_store"]:
                    L.append(f"buffer_store_dwordx4 v[{a - 4}:{a - 1}], v0, s[12:15], 0 offen {self.o['saux']}")
        elif self.o["diag"] & 2:
            L.append("ds_read_b32 v12, v1")
        elif self.o["wpair"]:
            if t:
                L.insert(len(L) - 2, f"DS ds_write_b64 v1, v[{a - 4}:{a - 3}] offset:{tm * 4096}")
                L.append(f"ds_write_b64 v11, v[{a}:{a + 1}] offset:{tm * 4096}")
        else:
            L.append(f"ds_write_b64 v{11 if t else 1}, v[{a}:{a + 1}] offset:{tm * 4096}")
        return L

    def tail(self):
        e = self.e
        o = self.o
        nt = o["nt"]
        seq = []
        for u in range(27, 32 - nt):
            for tm in range(8):
                ts = (0, 1) if tm % 2 else (1, 0)
                seq += [(u, k, ts[0], tm) for k in (0, 1, 2)] + [(u, k, ts[1], tm) for k in (2, 1, 0)]
        done_at = {}
        for tm in range(8):
            if o["alt"]:
                for u in range(32 - nt, 32):
                    seq += [(u, k, t, tm) for k in range(3) for t in range(2)]
                done_at[2 * tm] = len(seq) - 2
                done_at[2 * tm + 1] = len(seq) - 1
                continue
            lo = 32 - nt
            if tm == 0 and nt == 4 and o["split0"]:
                seq += [(u, k, t, tm) for t in range(2) for u in (28, 29) for k in range(3)]
                lo = 30
            for t in range(2):
                for u in range(lo, 32):
                    seq += [(u, k, t, tm) for k in range(3)]
                done_at[2 * tm + t] = len(seq) - 1
        first, last = {}, {}
        for i, (u, k, t, tm) in enumerate(seq):
            for nm in (("G", u, k, t), ("F", u, tm + k)):
                first.setdefault(nm, i)
                last[nm] = i
        reg = {}
        for dl in range(10):
            reg[("F", 27, dl)] = SET[1] + 4 * dl
        for k in range(3):
            for t in range(2):
                reg[("G", 27, k, t)] = SET[1] + 40 + (k * 2 + t) * 4
        free = list(range(SET[0], SET[0] + 64, 4)) + list(range(TMP + 8, 64, 4)) + [12]
        todo = sorted((nm for nm in first if nm not in reg), key=lambda nm: first[nm])
        queue = []

        def lds(op, tag=None):
            e(op)
            queue.append(tag)

        def wait_for(tags):
            idx = max((i for i, tg in enumerate(queue) if tg in tags), default=-1)
            if idx >= 0:
                n = min(len(queue) - 1 - idx, 14)
                e(f"s_waitcnt lgkmcnt({n})")
                del queue[:len(queue) - n]

        half = []

        def issue_read(nm):
            if nm[0] == "P":
                i = nm[1]
                lds(f"ds_read_b128 v[{16 + 4 * i}:{19 + 4 * i}], v10 offset:{(i >> 1) * 256 + (i & 1) * 64}", nm)
                return
            r = free.pop(0)
            reg[nm] = r
            u = nm[1]
            if nm[0] == "F":
                ops = self.rd_f(r, u & 1, nm[2], XBUF * ((u >> 1) - 14))
            else:
                ops = self.rd_g(r, nm[2], nm[3], WBUF * (u % NWB))
            if not o["no_reads"]:
                lds(ops[0], nm)
                half.extend((op, nm) for op in ops[1:])

        e("s_waitcnt lgkmcnt(0)")
        self.stamp(3)
        if not o["lbar"]:
            e("s_barrier")
        chk, pchk = o["tchk"], o["pchk"]
        head = {0: [f"v_subrev_u32 v8, {3 * WBUF}, v8", "s_mov_b32 s43, s42"], 1: [f"v_subrev_u32 v9, {3 * WBUF}, v9"],
                2: ["v_add_u32 v5, s55, v5"], 3: ["v_add_u32 v6, s55, v6"], 4: ["v_add_u32 v7, s55, v7"],
                chk: ["s_barrier"]}
        avail = {28: 1, 29: 5, 30: chk, 31: chk}
        if o["lbar"]:
            tb = o["tbar"]
            head = {0: [f"v_subrev_u32 v8, {2 * WBUF}, v8", f"v_subrev_u32 v9, {2 * WBUF}, v9", "s_mov_b32 s43, s42"],
                    1: ["v_add_u32 v2, s47, v2", "v_add_u32 v3, s47, v3"], 2: ["v_add_u32 v4, s47, v4", "v_add_u32 v5, s47, v5"],
                    3: ["v_add_u32 v6, s47, v6", "v_add_u32 v7, s47, v7"],
                    tb: ["s_barrier"], chk: ["s_barrier"]}
            avail = {28: tb + 1, 29: tb + 1, 30: chk, 31: chk}
        bar_at = {}
        quiet = -1
        bars = [int(ch) for ch in str(o["bars"])]
        cost = lambda x: 8 if ("v_exp" in x or "v_rcp" in x) else 12 if "ds_write" in x else 4
        cur, pend, nxt = [], [], 0
        mark = {}
        credit = 0.0
        per_gap = sum(cost(x) for x in self.epi_ops(0) + self.epi_ops(1)) / (6.0 * nt) * o['pace'] + 0.5
        stalls = []
        for i, (u, k, t, tm) in enumerate(seq):
            g, f = ("G", u, k, t), ("F", u, tm + k)
            while g in todo or f in todo or any(nm == g for _, nm in half):
                stalls.append(i)
                if half:
                    lds(*half.pop(0))
                else:
                    issue_read(todo.pop(0))
            wait_for({g, f})
            if not o["no_mfma"]:
                e(self.mf(reg[g], reg[f], t, tm))
            if nxt < 16 and done_at[nxt] == i:
                mark[nxt] = len(self.l)
                pend.append(nxt)
                nxt += 1
            for nm in (g, f):
                if last[nm] == i:
                    free.append(reg[nm])
            for x in head.get(i, []):
                e(x)
            if i in bar_at and not o["latebar"]:
                wait_for({bar_at.pop(i)})
                e("s_barrier")
            wnext = cur and any(x[:2].lower() == "ds" for x in cur[:3])
            if i >= 1 and i != chk and not (wnext and not half) and i > quiet:
                if half:
                    lds(*half.pop(0))
                    credit -= 4 * bool(cur or pend)
                else:
                    hold = min([first[nm] for nm in todo if nm[0] != "P" and i < avail[nm[1]]], default=999)
                    cand = [nm for nm in todo if (i >= pchk if nm[0] == "P" else
                                                  i >= avail[nm[1]] and first[nm] <= hold + o["hold"])]
                    if cand and (cand[0][0] == "P" or free):
                        todo.remove(cand[0])
                        issue_read(cand[0])
                        credit -= 4 * bool(cur or pend)
            if cur or pend:
                credit += per_gap
            while credit > 0:
                if not cur:
                    if not pend or len(self.l) - mark[pend[0]] < 8:
                        credit = 0
                        break
                    curun = pend.pop(0)
                    cur = self.epi_ops(curun)
                x = cur.pop(0)
                if x.startswith("DS "):
                    lds(x[3:])
                elif x.startswith("ds_"):
                    lds(x, ("W", curun))
                    if curun & 1:
                        free.extend([ACC + 4 * curun - 4, ACC + 4 * curun])
                    quiet = i + o["wq"]
                    if curun & 1 and curun >> 1 in bars and not o["diag"] & 1:
                        bar_at[i + o["blag"]] = ("W", curun)
                else:
                    e(x)
                credit -= cost(x)
        assert not todo
        if stalls:
            print("tail: late reads at", stalls, file=sys.stderr)
        rest = [(curun, cur)] if cur else []
        rest += [(un, None) for un in pend]
        for un, ops in rest:
            if ops is None:
                gap = len(self.l) - mark[un]
                if gap < 8:
                    e(f"s_nop {7 - gap}")
                ops = self.epi_ops(un)
            for x in ops:
                if x.startswith("DS "):
                    lds(x[3:])
                elif x.startswith("ds_"):
                    for key in sorted(bar_at):
                        wait_for({bar_at.pop(key)})
                        e("s_barrier")
                    lds(x, ("W", un))
                    if un & 1 and un >> 1 in bars and not o["diag"] & 1:
                        bar_at[un] = ("W", un)
                else:
                    e(x)
        for key in sorted(bar_at):
            wait_for({bar_at.pop(key)})
            e("s_barrier")

    def compute(self):
        e = self.e
        o = self.o
        if o["pages"]:
            e(".p2align 12")
            self.lab("L_page1")
        self.lab("L_compute")
        e("s_and_b32 s38, s18, 1")
        e("s_bfe_u32 s39, s18, 0x10001")
        e("v_and_b32 v10, 15, v0")
        e("v_lshrrev_b32 v16, 4, v0")
        if o["cpf"]:
            e("s_getpc_b64 s[20:21]")
            e("v_lshlrev_b32 v12, 7, v0")
            e("v_mov_b32 v13, s21")
            e("v_add_co_u32 v12, vcc, s20, v12")
            e("s_cmp_lt_u32 s36, %d" % o["cpf"])
            e("s_cselect_b32 s3, s18, 1")
            e("v_addc_co_u32 v13, vcc, 0, v13, vcc")
            e("s_and_b32 s3, s3, 3")
            e("s_cbranch_scc1 L_nocpf")
            e("s_mov_b32 exec_hi, (1 << (((L_end - L_compute) >> 7) - 32)) - 1")
            e("global_load_dword v14, v[12:13], off")
            e("s_mov_b32 exec_hi, -1")
            self.lab("L_nocpf")
        self.pi(17, 10, 18, 19)
        e("v_lshrrev_b32 v18, 2, v10")
        e("v_lshl_add_u32 v19, v16, 3, v18")
        e("v_lshlrev_b32 v19, 7, v19")
        e("v_and_b32 v20, 3, v10")
        e("v_lshl_add_u32 v19, v20, 3, v19")
        e("v_lshrrev_b32 v18, 1, v18")
        e("v_and_b32 v20, 1, v16")
        e("v_lshl_or_b32 v18, v20, 1, v18")
        e("s_lshl_b32 s45, s39, 1")
        e("v_xor_b32 v18, s45, v18")
        e("v_lshl_add_u32 v19, v18, 5, v19")
        e(f"v_add_u32 v8, {WBASE}, v19")
        e("v_xor_b32 v9, 32, v8")
        e("s_lshl_b32 s3, s38, 11")
        e(f"s_add_u32 s46, s3, {XBUF}")
        if o["rotk"]:
            e("s_bfe_u32 s47, s16, 0x10008")
            e("v_lshl_or_b32 v21, s47, 2, v16")
        for idx, sh in ((0, 0), (1, 1), (2, -1)):
            e(f"v_add_u32 v18, {sh}, v17")
            e("v_bfe_u32 v19, v18, 1, 3")
            e(f"v_xor_b32 v19, v19, v{21 if o['rotk'] else 16}")
            e("v_lshlrev_b32 v19, 4, v19")
            e(f"v_lshl_add_u32 v19, v{17 if sh == -1 else 18}, 7, v19")
            e(f"v_add_u32 v{2 + idx}, s46, v19")
            e(f"v_xor_b32 v{5 + idx}, 64, v{2 + idx}")
        e("v_lshrrev_b32 v18, 1, v16")
        e("v_lshl_add_u32 v18, s39, 2, v18")
        e("v_and_b32 v19, 7, v10")
        e("v_xor_b32 v18, v18, v19")
        e("v_lshlrev_b32 v18, 4, v18")
        e("v_lshl_add_u32 v18, v20, 3, v18")
        e("v_lshl_add_u32 v18, v10, 7, v18")
        e(f"s_add_u32 s3, s3, {STG}")
        e("v_add_u32 v1, s3, v18")
        e("v_xor_b32 v11, 32, v1")
        if o["direct"]:
            e("s_lshl_b32 s3, s38, 7")
            e("s_add_u32 s3, s3, s16")
            e("s_add_u32 s3, s3, 7")
            e("s_lshl_b32 s3, s3, 10")
            e("s_lshl_b32 s45, s39, 5")
            e("s_add_u32 s3, s3, s45")
            e("s_add_u32 s3, s3, s17")
            e("s_lshl_b32 s3, s3, 1")
            e("v_lshl_add_u32 v18, v20, 5, s3")
            e("v_lshrrev_b32 v19, 1, v16")
            e("v_lshl_add_u32 v18, v19, 4, v18")
            e("v_lshl_add_u32 v0, v17, 14, v18")
            e("s_waitcnt lgkmcnt(0)")
        e("s_lshl_b32 s3, s39, 6")
        e(f"s_add_u32 s3, s3, {PB}")
        e("v_and_b32 v18, 4, v10")
        e("v_add_lshl_u32 v18, v18, v16, 2")
        e("v_and_or_b32 v18, v10, 3, v18")
        e("v_lshl_add_u32 v10, v18, 1, s3")
        e("v_mov_b64 v[24:25], 0")
        e("v_mov_b64 v[26:27], 0")
        if o["fall"]:
            seq = self.mfmas(0, raw=True)
            for t, tm in sorted({(t, tm) for k, t, tm in seq[o["brpos"]:]} - {(t, tm) for k, t, tm in seq[:o["brpos"]]}):
                for h in range(2):
                    r = ACC + (tm * 2 + t) * 4 + 2 * h
                    e(f"v_mov_b64 v[{r}:{r + 1}], 0")
            for _ in range(o["lpad"]):
                e("s_nop 0")
        e("s_mov_b32 s40, 1")
        e("s_mov_b32 s41, 1")
        e("s_mov_b32 s42, 0xbfb8aa3b")
        e(f"s_movk_i32 s53, {WBUF}")
        e(f"s_mov_b32 s54, {XBUF}")
        e(f"s_mov_b32 s46, {-(NWB - 1) * WBUF & 0xffffffff:#x}")
        e(f"s_mov_b32 s47, {-(NXB - 1) * XBUF & 0xffffffff:#x}")
        e("s_mov_b32 s52, 12")
        if o["prio_c"]:
            e(f"s_setprio {o['prio_c']}")
        e("s_barrier")
        self.params()
        self.stamp(1)
        e("s_barrier")
        self.stamp(2)

        def wadv():
            return [["s_add_u32 s41, s41, 1", f"s_cmp_eq_u32 s41, {NWB}"],
                    ["s_cselect_b32 s43, s46, s53", "s_cselect_b32 s41, 0, s41"],
                    ["v_add_u32 v8, s43, v8"], ["v_add_u32 v9, s43, v9"]]

        pre0 = wadv() + [["s_add_u32 s40, s40, 1", f"s_cmp_eq_u32 s40, {NXB}"],
                         ["s_cselect_b32 s55, s47, s54", "s_cselect_b32 s40, 0, s40"]] + \
            [[f"v_add_u32 v{2 + i}, s55, v{2 + i}"] for i in range(3)]
        pre1 = wadv() + [[f"v_add_u32 v{5 + i}, s55, v{5 + i}"] for i in range(3)]
        if o["lbar"]:
            assert o["topw"] <= 6 or o["lbar"] > {7: 20, 8: 19, 9: 14, 10: 13, 11: 8, 12: 7}[o["topw"]]
            self.first([], 48)
            body = self.substage(1, pre0) + self.substage(0, pre1 + [["s_sub_u32 s52, s52, 1"]])
        else:
            self.first(pre0, o["brpos"] if o["fall"] else 48)
            body = self.substage(1, pre1) + self.substage(0, pre0 + [["s_sub_u32 s52, s52, 1"]])
        cut = 48 + o["brpos"]
        if not o["fall"]:
            e("s_branch L_centry")
        if o["pages"]:
            self.lab("L_touch0")
        if not o["fall"]:
            e(".p2align 6")
            for _ in range(o["lpad"]):
                e("s_nop 0")
        self.lab("L_cloop")
        for gap in body[cut:]:
            for x in gap:
                e(x)
        self.lab("L_centry")
        for gap in body[:cut]:
            for x in gap:
                e(x)
        e("s_cbranch_scc0 L_cloop")
        for gap in body[cut:]:
            for x in gap:
                e(x)
        self.lab("L_tail")
        self.tail()
        self.lab("L_tail_end")
        if o["stamps"] and o["direct"]:
            e("s_waitcnt vmcnt(0)")
            e("v_mbcnt_lo_u32_b32 v0, -1, 0")
            e("v_mbcnt_hi_u32_b32 v0, -1, v0")
        self.stamp(4)
        self.dump_stamps(5, "c")
        e("s_endpgm")

    def gen(self):
        e = self.e
        o = self.o
        self.l.append(HEADER.rstrip())
        self.l.append(f"; @launch grid=(256,1,1) block=(512,1,1) lds={LDS}")
        self.l.append(DOC)
        self.l.append('.amdgcn_target "amdgcn-amd-amdhsa--gfx950"')
        self.l.append(".text")
        self.l.append(f".globl {KN}")
        if o["pages"]:
            self.l.append(".p2align 12")
        self.l.append(".p2align 8")
        self.l.append(f".type {KN},@function")
        self.lab(KN)
        e("s_cmp_ge_u32 s2, 256")
        e("s_cbranch_scc1 L_end")
        if o["stamps"]:
            e("s_memtime s[60:61]")
            e("s_memrealtime s[62:63]")
        e("s_load_dwordx2 s[8:9], s[0:1], 8")
        e("s_load_dwordx2 s[4:5], s[0:1], 0")
        e("v_readfirstlane_b32 s18, v0")
        e("v_and_b32 v0, 63, v0")
        e("s_lshr_b32 s17, s2, 5")
        e("s_and_b32 s20, s2, 1")
        e("s_lshl3_add_u32 s17, s20, s17")
        e("s_bfe_u32 s22, s2, 0x20001")
        e("s_bfe_u32 s16, s2, 0x20003")
        e("s_lshl2_add_u32 s16, s22, s16")
        e("s_lshr_b32 s18, s18, 6")
        e("s_lshl_b32 s17, s17, 6")
        e("s_lshl_b32 s16, s16, 8")
        e("s_cmp_ge_u32 s18, 4")
        if o["pages"] >= 2:
            e("s_cbranch_scc0 L_loader")
            self.l.append("@DISPATCH")
            e("s_branch L_compute")
        else:
            e(("s_cbranch_scc1" if o["lfirst"] else "s_cbranch_scc0") + " L_compute")
        self.loader()
        self.compute()
        for f in self.late:
            f()
        self.lab("L_end")
        e("s_endpgm")
        self.l.append(f""".section .rodata,"a"
.p2align 6
.amdhsa_kernel {KN}
  .amdhsa_next_free_vgpr 256
  .amdhsa_next_free_sgpr 96
  .amdhsa_accum_offset 256
  .amdhsa_group_segment_fixed_size 0
  .amdhsa_kernarg_size 72
  .amdhsa_user_sgpr_count 2
  .amdhsa_user_sgpr_kernarg_segment_ptr 1
  .amdhsa_system_sgpr_workgroup_id_x 1
.end_amdhsa_kernel""")
        return self.finish()

    def finish(self):
        L = "\n".join(self.l).split("\n")
        if self.o["pages"] < 2:
            return "\n".join(L) + "\n"
        import re
        import subprocess
        i0 = L.index("L_touch0:")
        it, ie = L.index("L_tail:"), L.index("L_tail_end:")
        probe = []
        for i, x in enumerate(L):
            if it < i <= ie:
                probe.append(f"L_pos{i}:")
            if x != "@DISPATCH":
                probe.append(x)
        open("probe.s", "w").write("\n".join(probe) + "\n")
        subprocess.run(["clang", "-x", "assembler", "-target", "amdgcn-amd-amdhsa", "-mcpu=gfx950",
                        "-c", "probe.s", "-o", "probe.o"], check=True)
        sym = subprocess.run(["llvm-readelf", "-s", "probe.o"], capture_output=True, text=True).stdout
        addr = {m.group(2): int(m.group(1), 16) for m in re.finditer(r"^\s*\d+: ([0-9a-f]+)\s.*\s(\S+)$", sym, re.M)}
        base = addr["L_page1"]
        win = self.o["win"]
        out, n, covered = [], 1, (addr["L_touch0"] - base) // 64 * 64 + win
        if not self.o["touch1"]:
            covered = 4096
        for i, x in enumerate(L):
            if it < i < ie:
                pos = addr[f"L_pos{i}"] - base + 4 * (n - 1)
                if pos >= covered and n < 4:
                    out += [f"L_touch{n}:", "    s_cbranch_scc0 L_compute"]
                    n += 1
                    covered = min(pos // 64 * 64 + win, (pos // 4096 + 1) * 4096)
            out.append(x)
        disp = []
        for k, t in enumerate([f"L_touch{k}" for k in range(0 if self.o["touch1"] else 1, n)]):
            assert k < 3
            disp += [f"    s_cmp_lg_u32 s18, {4 + k}", f"    s_cbranch_scc0 {t}"]
        j = out.index("@DISPATCH")
        out[j:j + 1] = disp
        return "\n".join(out) + "\n"


if __name__ == "__main__":
    out = sys.argv[1]
    opts = {}
    for a in sys.argv[2:]:
        k, v = a.split("=")
        if k == "bars":
            opts[k] = v
            continue
        try:
            v = int(v)
        except ValueError:
            try:
                v = float(v)
            except ValueError:
                v = v.replace("+", " ")
        opts[k] = v
    open(out, "w").write(G(**opts).gen())
```

```python
import sys

HEADER = open("standalone__batchnorm__prompt.s.ref").read().split("; Override launch")[0]
KN = "standalone__batchnorm__prompt_kernel"

PS = 33 * 128
XBUF = 263 * 128
NXB = 3
WBUF = 3 * 32 * 128
NWB = 5
WBASE = NXB * XBUF
PB = WBASE + NWB * WBUF
LDS = PB + 512
STG = 2 * XBUF

ACC = 64
SET = (128, 192)
TMP = 32


def cnt(i):
    return (3, 5, 4, 3)[i % 4]


def need(u):
    return 2 * u + 3 if u % 2 == 0 else 2 * u + 2


DOC = """;
; One workgroup owns a 256 x 64 output tile. Waves 0-3 stream x and w into LDS rings with LDS-DMA loads, waves 4-7
; each compute 128 x 32 with v_mfma_f32_16x16x32_bf16 (A = w^T through transposed LDS reads, B = x).
; One barrier per 32 channels. The 64-channel stages are visited in an order that differs between workgroup groups, so
; in LDS and written as whole 128-byte lines by waves 0-3."""

NOTES = {
    "L_loader": "DMA waves: addresses, first loads",
    "L_lloop": "DMA waves: steady state, two 64-channel stages per trip",
    "L_store": "DMA waves: store the staged output rows",
    "L_compute": "MFMA waves: addresses, first 32-channel step",
    "L_cloop": "MFMA waves: steady state, two 32-channel steps per trip",
    "L_tail": "MFMA waves: last five steps and the epilogue; the scc0 branches are only taken by the entry-time jumps that pull this code into the instruction cache",
}


class G:
    def __init__(self, **o):
        self.o = dict(stamps=0, trace=0, no_dma=0, no_reads=0, no_mfma=0, no_epi=0, no_store=0,
                      lastrd=33, prio_c=1, prio_l=0, lfirst=1, order=17, xaux="", waux="", saux="sc1", xmap=0,
                      probe="", xor=1, nt=4, fpre=7, fbar=20, flast=40, hold=12, split0=1, touch1=0, direct=0, bars='01234567', wq=1, modeb=0, fall=0, off=5, pbar=14, rord=0, lbar=0, topw=6, tbar=4, idle=0, nsc=8, saux2='', pat='32,39,43,53', pwg=-1, rrate=0.8, x0=4, pace=1.04, pk=2, alt=0, lead=6, cum="21,27,35",
                      rotx=1, rotk=1, tchk=34, endq="229,240", pchk=50, blag=7, cpf=0, pstamp=0, brpos=45, pages=2, lpad=0, win=1280, latebar=0, diag=0, wpair=1, cmode=0, swap=0, base="_456789AB0123CDEF", mask="_1111333333333333", maskb="_0000000000000000")
        self.o.update(o)
        self.l = []
        self.nlab = 0
        self.late = []
        self.late_table = None
        self.inloop = 0
        self.flow = 0

    def e(self, s):
        self.l.append("    " + s)

    def lab(self, s):
        if s in NOTES:
            self.l.append("; " + NOTES[s])
        self.l.append(s + ":")

    def stamp(self, i):
        if self.o["stamps"]:
            self.e(f"s_memtime s[{60 + 4 * i}:{61 + 4 * i}]")
            self.e(f"s_memrealtime s[{62 + 4 * i}:{63 + 4 * i}]")
            self.e("s_waitcnt lgkmcnt(0)")

    def lbarrier(self):
        e = self.e
        e("s_barrier")
        if self.o["trace"]:
            e("s_memtime s[56:57]")
            e("s_memrealtime s[80:81]")
            e("s_mov_b32 s90, m0")
            e("s_mov_b32 m0, s55")
            e("s_waitcnt lgkmcnt(0)")
            e("v_writelane_b32 v62, s56, m0")
            e("v_writelane_b32 v63, s80, m0")
            e("s_add_u32 s55, s55, 1")
            e("s_mov_b32 m0, s90")

    def dump_stamps(self, n, role):
        if not self.o["stamps"]:
            return
        e = self.e
        if self.o["probe"]:
            prole, a, z, kind, mult = self.o["probe"].split(",")
            if prole == role:
                off = 60 if kind == "c" else 62
                e(f"s_sub_u32 s3, s{off + 4 * int(z)}, s{off + 4 * int(a)}")
                if kind == "g":
                    e("v_mov_b32 v50, 0")
                    e("global_load_dword v51, v50, s[92:93] sc1")
                    e("s_waitcnt vmcnt(0)")
                    e("v_readfirstlane_b32 s3, v51")
                    e("s_not_b32 s3, s3")
                    e(f"s_sub_u32 s3, s{62 + 4 * int(z)}, s3")
                if kind != "c":
                    e(f"s_mul_i32 s3, s3, {mult}")
                else:
                    e(f"s_lshr_b32 s3, s3, {mult}")
                e("s_min_u32 s3, s3, 50000")
                if self.o["pwg"] >= 0:
                    e("s_and_b32 s56, s2, 7")
                    e(f"s_cmp_eq_u32 s56, {self.o['pwg']}")
                    e("s_cselect_b32 s3, s3, 0")
                self.lab(f"L_spin_{role}")
                e("s_memrealtime s[56:57]")
                e("s_waitcnt lgkmcnt(0)")
                e(f"s_sub_u32 s56, s56, s{62 + 4 * (n - 1)}")
                e("s_cmp_lt_u32 s56, s3")
                e(f"s_cbranch_scc1 L_spin_{role}")
            return
        e("s_load_dwordx2 s[34:35], s[0:1], 64")
        e("s_waitcnt lgkmcnt(0)")
        e("v_mov_b32 v40, 0")
        for i in range(n):
            e(f"v_writelane_b32 v40, s{60 + 4 * i}, {2 * i}")
            e(f"v_writelane_b32 v40, s{62 + 4 * i}, {2 * i + 1}")
        for i in range(4):
            e(f"v_writelane_b32 v40, s{86 + i}, {12 + i}")
        e("s_lshl_b32 s3, s2, 3")
        e("s_and_b32 s18, s18, 3")
        if role == "l":
            e("s_add_u32 s18, s18, 4")
        e("s_add_u32 s3, s3, s18")
        e("s_lshl_b32 s3, s3, 6")
        e("v_lshl_add_u32 v41, v0, 2, s3")
        if self.o["trace"] and role == "l":
            e("s_lshl_b32 s3, s3, 2")
            e("s_add_u32 s3, s3, 0x100000")
            e("v_lshl_add_u32 v42, v0, 2, s3")
            e("v_subrev_u32 v62, s60, v62")
            e("v_subrev_u32 v63, s62, v63")
            e("v_lshl_or_b32 v63, v63, 18, v62")
            e("global_store_dword v42, v63, s[34:35]")
        e("s_mov_b64 exec, 0xffff")
        e("global_store_dword v41, v40, s[34:35]")

    def issue_x(self, half):
        e = self.e
        aux = self.o["xaux"]
        self.hooks.pop("x", lambda: None)()
        if self.o["no_dma"]:
            self.hooks.pop("halo", lambda: None)()
        if not self.o["no_dma"] and not (self.o["diag"] & 8 and self.inloop):
            e(f"s_add_u32 m0, s41, s{86 + half}")
            e(f"s_add_u32 s45, s40, s{88 + half}")
            e(f"buffer_load_dwordx4 v2, s[4:7], s45 offen {aux} lds")
            for p in range(1, 4):
                a, b = (45, 46) if p & 1 else (46, 45)
                e("s_add_u32 m0, m0, s54")
                e(f"s_add_u32 s{b}, s{a}, s53")
                e(f"buffer_load_dwordx4 v2, s[4:7], s{b} offen {aux} lds")
            self.hooks.pop("halo", lambda: None)()
            if half == 0 and not self.o["diag"] & 64:
                e("s_add_u32 m0, s41, s44")
                e("s_mov_b64 exec, 15")
                e(f"buffer_load_dwordx4 v3, s[4:7], s40 offen {aux} lds")
                e("s_mov_b64 exec, -1")
        if half == 0:
            return
        e(f"s_add_u32 s41, s41, {XBUF}")
        e("s_cmp_ge_u32 s41, s51")
        e("s_cselect_b32 s41, s50, s41")

    def issue(self, i):
        if i % 4 in (0, 3):
            self.issue_w(i & 1)
        else:
            self.issue_x(i % 4 - 1)

    def issue_w(self, second):
        e = self.e
        if not self.o["no_dma"] and not (self.o["diag"] & 16 and self.inloop):
            aux = self.o["waux"]
            e("s_mov_b32 m0, s43")
            e("s_add_u32 s45, s42, s38")
            e(f"buffer_load_dwordx4 v4, s[8:11], s42 offen {aux} lds")
            e("s_add_u32 m0, m0, s39")
            e("s_add_u32 s46, s45, s38")
            e(f"buffer_load_dwordx4 v4, s[8:11], s45 offen {aux} lds")
            e("s_add_u32 m0, m0, s39")
            e(f"s_addk_i32 s43, {WBUF}")
            e(f"buffer_load_dwordx4 v4, s[8:11], s46 offen {aux} lds")
        else:
            e(f"s_addk_i32 s43, {WBUF}")
        e("s_cmp_ge_u32 s43, s49")
        e("s_cselect_b32 s43, s51, s43")
        if second:
            self.hooks.pop("table", lambda: None)()
            e("s_lshr_b64 s[82:83], s[82:83], 4")
            self.stage_offsets()
        else:
            e("s_xor_b32 s42, s42, 0x10000")

    def stage_offsets(self):
        e = self.e
        e("s_and_b32 s3, s82, 15")
        e("s_lshl_b32 s40, s3, 7")
        e("s_lshl_b32 s42, s3, 17")
        e("s_or_b32 s42, s42, s85")

    def params(self):
        e = self.e
        for i in range(4):
            e(f"ds_read_u16_d16_hi v{24 + i}, v10 offset:{128 * i}")
        rnd = ["v_cvt_pk_bf16_f32 v25, v25, v25", "v_lshlrev_b32 v25, 16, v25"]
        L = ["s_waitcnt lgkmcnt(0)", "v_add_f32 v25, 0x3727c5ac, v25"] + rnd + ["v_sqrt_f32 v25, v25", "s_nop 0"] + rnd
        L += ["v_rcp_f32 v25, v25", "s_nop 0"] + rnd + ["v_mul_f32 v25, v26, v25"] + rnd
        if self.o["off"]:
            L += ["v_rcp_f32 v26, v25", f"v_mul_f32 v{TMP}, s42, v25", "v_mul_f32 v26, v27, v26",
                  "v_max_f32_e64 v26, |v24|, |v26|"]
            for sh in (1, 2, 4):
                L += [f"v_mov_b32_dpp v{16 + q}, v{TMP} row_newbcast:{q} row_mask:0xf bank_mask:0xf" for q in {1: (0, 1), 2: (2, 3), 4: (4, 5)}[sh]]
                L += [f"v_min_u32_dpp v26, v26, v26 row_ror:{sh} row_mask:0xf bank_mask:0xf"]
            L += [f"v_mov_b32_dpp v{16 + q}, v{TMP} row_newbcast:{q} row_mask:0xf bank_mask:0xf" for q in (6, 7)]
            L += [f"v_readlane_b32 s{24 + q}, v26, {16 * q}" for q in range(4)]
            L += ["s_min_u32 s24, s24, s25", "s_min_u32 s26, s26, s27", "s_min_u32 s24, s24, s26",
                  "s_min_u32 s24, s24, 0x70000000", "s_and_b32 s24, s24, 0x7f800000",
                  f"s_cselect_b32 s25, {(self.o['off'] << 23) + 0x400000:#x}, 0", "s_add_u32 s24, s24, s25"]
            L += ["v_fma_f32 v27, -v24, v25, v27", "v_fma_f32 v27, -s24, v25, v27", f"v_mul_f32 v{TMP + 1}, s42, v27"]
            L += [f"v_mov_b32 v{r}, s24" for r in range(40, 44)]
        else:
            L += ["v_fma_f32 v27, -v24, v25, v27", f"v_mul_f32 v{TMP}, s42, v25", f"v_mul_f32 v{TMP + 1}, s42, v27", "s_nop 0"]
            L += [f"v_mov_b32_dpp v{16 + q}, v{TMP} row_newbcast:{q} row_mask:0xf bank_mask:0xf" for q in range(8)]
        L += [f"v_mov_b32_dpp v{24 + q}, v{TMP + 1} row_newbcast:{q} row_mask:0xf bank_mask:0xf" for q in range(8)]
        for x in L:
            e(x)

    def pi(self, dst, j, t0, t1):
        e = self.e
        e(f"v_lshlrev_b32 v{dst}, 1, v{j}")
        e(f"v_cmp_lt_u32 vcc, 3, v{j}")
        e(f"v_subrev_u32 v{t0}, 7, v{dst}")
        e(f"v_subrev_u32 v{t1}, 16, v{dst}")
        e(f"v_cndmask_b32 v{dst}, v{dst}, v{t0}, vcc")
        e(f"v_cmp_lt_u32 vcc, 11, v{j}")
        e("s_nop 1")
        e(f"v_cndmask_b32 v{dst}, v{dst}, v{t1}, vcc")

    def loader(self):
        e = self.e
        o = self.o
        self.lab("L_loader")
        if o["prio_l"]:
            e(f"s_setprio {o['prio_l']}")
        base = [int(ch, 16) for ch in o["base"].lstrip("_")]
        mask = [int(ch, 16) for ch in o["mask"].lstrip("_")]
        maskb = [int(ch, 16) for ch in o["maskb"].lstrip("_")]
        for c in range(4):
            for cb in range(4):
                assert sorted(b ^ (c & m) ^ (cb & mb) for b, m, mb in zip(base, mask, maskb)) == list(range(16))
        assert not maskb[0] and o["rotk"] and o["rotx"] == 1 and o["lfirst"]
        pack = lambda v: sum(x << (4 * k) for k, x in enumerate(v))
        e("s_lshl3_add_u32 s3, s18, 16")
        e("s_load_dwordx2 s[12:13], s[0:1], s3")
        e("v_lshrrev_b32 v5, 3, v0")
        e("s_lshl_b32 s47, s18, 2")
        e("v_xor_b32 v6, s47, v0")
        e("s_xor_b32 s84, s22, s20")
        e("v_and_b32 v7, 2, v5")
        e("v_and_b32 v6, 7, v6")
        if mask[0] == 3:
            e(f"s_xor_b32 s3, s84, {base[0]}")
        else:
            e(f"s_and_b32 s3, s84, {mask[0]}")
            e(f"s_xor_b32 s3, s3, {base[0]}")
        e("s_lshl_b32 s85, s2, 13")
        e("v_xor_b32 v7, v7, v6")
        e("s_and_b32 s85, s85, 0x10000")
        e("s_lshl_b32 s42, s3, 17")
        e("v_lshlrev_b32 v7, 4, v7")
        e("s_or_b32 s42, s42, s85")
        e("s_lshl_b32 s50, s18, 10")
        e("v_lshl_add_u32 v4, v5, 11, v7")
        e("s_lshl3_add_u32 s45, s50, s17")
        e(f"s_add_u32 s51, s50, {WBASE}")
        e("v_lshl_add_u32 v4, s45, 1, v4")
        e("s_mov_b32 s10, 0x600000")
        e("s_mov_b32 s11, 0x20000")
        e("s_mov_b32 s43, s51")
        e("s_mov_b32 s38, 0x200000")
        e("s_movk_i32 s39, 4096")
        e(f"s_add_u32 s49, s51, {NWB * WBUF}")
        e("s_lshl_b32 s40, s3, 7")
        e("v_lshl_add_u32 v8, v0, 1, s17")
        e("s_movk_i32 s14, 2048")
        e("s_mov_b32 s15, s11")
        e("v_lshlrev_b32 v8, 1, v8")
        e("s_lshl_b32 s3, s18, 7")
        e(f"s_add_u32 m0, s3, {PB}")
        e("s_mov_b32 exec_hi, 0")
        e("s_waitcnt lgkmcnt(0)")
        self.stamp(1)
        e("buffer_load_dword v8, s[12:15], 0 offen lds")
        e("s_mov_b32 exec_hi, -1")
        if ",g," in o["probe"]:
            e("s_load_dwordx2 s[92:93], s[0:1], 56")
            e("s_not_b32 s3, s62")
            e("v_mov_b32 v50, 0")
            e("v_mov_b32 v51, s3")
            e("s_waitcnt lgkmcnt(0)")
            e("s_mov_b64 exec, 1")
            e("global_atomic_umax v50, v51, s[92:93] sc1")
            e("s_mov_b64 exec, -1")

        def x_setup():
            e("v_lshrrev_b32 v7, 1, v5")
            e("s_mov_b32 s6, 0x800000")
            e("v_xor_b32 v7, v7, v6")
            e("s_mov_b32 s7, s11")
            e("v_lshlrev_b32 v7, 4, v7")
            e("s_lshl4_add_u32 s3, s47, s16")
            e("v_lshl_add_u32 v2, v5, 14, v7")
            e("s_bitcmp1_b32 s17, 6")
            e(f"s_cselect_b32 s86, {4 * PS}, 0")
            e("v_lshl_add_u32 v2, s3, 11, v2")
            e("s_cselect_b32 s88, 0x2000, 0")
            e(f"s_add_u32 s41, s50, {XBUF}")
            e("s_movk_i32 s53, 2048")
            e(f"s_movk_i32 s54, {PS}")

        def halo_setup():
            e(f"s_xor_b32 s87, s86, {4 * PS}")
            e("s_xor_b32 s89, s88, 0x2000")
            e(f"s_movk_i32 s44, {230 * 128}")
            e("s_cmp_lt_u32 s18, 2")
            e("s_cselect_b32 s3, 256, 0")
            e("s_cselect_b32 s23, 256, -1")
            e("s_cselect_b32 s24, 0, 7")
            e(f"s_cmovk_i32 s44, {32 * 128}")
            e("s_add_u32 s3, s3, s16")
            e("s_add_u32 s23, s23, s16")
            e("s_lshl_b32 s23, s23, 11")
            e("s_and_b32 s3, s3, 2047")
            e("s_cselect_b32 s23, s23, 0x80000000")
            e("v_xor_b32 v7, s24, v6")
            e("s_and_b32 s47, s47, 4")
            e("v_lshl_add_u32 v3, v7, 4, s23")
            e("s_lshl4_add_u32 s44, s47, s44")
            e("s_sub_u32 s44, s44, s50")

        def table_setup():
            e("s_mul_i32 s3, s84, 0x11111111")
            for h in range(2):
                m = pack(mask[8 * h:8 * h + 8])
                if m == 0x33333333:
                    e(f"s_xor_b32 s{82 + h}, s3, {pack(base[8 * h:8 * h + 8]):#x}")
                else:
                    e(f"s_and_b32 s{82 + h}, s3, {m:#x}")
                    e(f"s_xor_b32 s{82 + h}, s{82 + h}, {pack(base[8 * h:8 * h + 8]):#x}")
            if any(maskb):
                if o["modeb"] == 0:
                    e("s_and_b32 s84, s84, 1")
                    e("s_lshr_b32 s3, s2, 2")
                    e("s_xor_b32 s3, s3, s2")
                    e("s_bfe_u32 s3, s3, 0x10004")
                    e("s_lshl1_add_u32 s84, s84, s3")
                elif o["modeb"] == 1:
                    e("s_lshl_b32 s3, s20, 1")
                    e("s_xor_b32 s84, s22, s3")
                else:
                    e("s_lshr_b32 s3, s2, 5")
                    e("s_and_b32 s3, s3, 2")
                    e("s_xor_b32 s84, s84, s3")
                e("s_mul_i32 s84, s84, 0x11111111")
                for h in range(2):
                    m = pack(maskb[8 * h:8 * h + 8])
                    if m:
                        e(f"s_and_b32 s3, s84, {m:#x}")
                        e(f"s_xor_b32 s{82 + h}, s{82 + h}, s3")
        self.hooks = {"x": x_setup, "halo": halo_setup, "table": table_setup}
        if o["trace"]:
            e("s_mov_b32 s55, 0")
        st = {"issued": 0, "chunks": []}

        def upto(c):
            while st["issued"] < min(c, 240):
                if not st["chunks"]:
                    keep, self.l = self.l, []
                    pos = st["issued"] % 15
                    self.issue({0: 0, 3: 1, 8: 2, 12: 3}[pos])
                    lines, self.l = self.l, keep
                    n = {0: 3, 3: 5, 8: 4, 12: 3}[pos]
                    cuts = [k + 1 for k, x in enumerate(lines) if x.endswith(" lds")][:n - 1]
                    cuts = cuts + [len(lines)] * (n - len(cuts))
                    st["chunks"] = [lines[a:b] for a, b in zip([0] + cuts, cuts)]
                self.l += st["chunks"].pop(0)
                st["issued"] += 1

        needi = lambda u: 15 * (u // 2) + (15 if u & 1 else 12)
        legal = lambda u: needi(u + 4)

        def step(u):
            nd = needi(29) if u == 28 else needi(u)
            assert nd <= st["issued"]
            e(f"s_waitcnt vmcnt({st['issued'] - nd})")
            self.lbarrier()

        cum = [int(v) for v in str(o["cum"]).split(",")]
        for u, c in enumerate(cum):
            assert c <= legal(max(u - 1, 0))
            if u == 0:
                upto(o["pbar"])
                e(f"s_waitcnt vmcnt({o['pbar'] if not o['no_dma'] else 0})")
                e("s_barrier")
            upto(c)
            step(u)
            if u == 0:
                self.stamp(2)
        u0 = len(cum)
        pat = [int(v) for v in str(o["pat"]).split(",")]
        per = 2 if pat[2] == pat[0] + 15 and pat[3] == pat[1] + 15 else 4
        after = lambda u: 30 * (u // 4) + pat[u % 4]
        assert all(after(u) <= legal(u) for u in range(4))
        assert st["issued"] <= after(u0 - 1)
        upto(after(u0 - 1))
        endq = [int(v) for v in str(o["endq"]).split(",") if v]
        nit = (28 - len(endq) - u0) // per
        e(f"s_mov_b32 s52, {nit - 1}")
        self.lab("L_lloop")
        self.inloop = 1
        for k in range(per):
            step(u0 + k)
            if o["pstamp"] and (o["pstamp"] - u0) % per == k:
                e(f"s_cmp_lg_u32 s52, {nit - 1 - (o['pstamp'] - u0) // per}")
                e("s_cbranch_scc1 L_nops")
                self.stamp(1)
                self.lab("L_nops")
            upto(after(u0 + k))
        e("s_sub_u32 s52, s52, 1")
        e("s_cbranch_scc0 L_lloop")
        st["issued"] += 15 * per // 2 * (nit - 1)
        e("s_load_dwordx2 s[12:13], s[0:1], 48")
        for u in range(u0 + per * nit, 29):
            step(u)
            k = u - (28 - len(endq))
            c = endq[k] if 0 <= k < len(endq) else after(u)
            assert c <= legal(u)
            upto(c)
        assert st["issued"] == 240
        e("s_waitcnt vmcnt(0) lgkmcnt(0)")
        self.lbarrier()
        self.lab("L_store")
        self.stamp(3)
        self.store_setup()
        if o["diag"] & 32:
            e("s_movk_i32 s53, 2048")
        e("s_mov_b32 s46, 0")
        bars = [int(ch) for ch in str(o["bars"])]
        assert bars[-1] == (6 if o["direct"] else 7)
        tm = 0
        if bars == list(range(8)) and o["nsc"] == 8 and not o["diag"] & 1:
            bars = []
            self.lab("L_sloop")
            self.lbarrier()
            e("ds_read_b128 v[28:31], v17")
            e("v_add_u32 v17, s39, v17")
            e("s_waitcnt lgkmcnt(0)")
            if not o["no_store"]:
                e(f"buffer_store_dwordx4 v[28:31], v16, s[12:15], s46 offen {o['saux']}")
            e("s_add_u32 s46, s46, s53")
            e("s_bitcmp0_b32 s46, 14")
            e("s_cbranch_scc1 L_sloop")
        for b in bars:
            if not o["diag"] & 1:
                self.lbarrier()
            grp = list(range(tm, b + 1))
            for q, t2 in enumerate(grp):
                e(f"ds_read_b128 v[{28 + 4 * q}:{31 + 4 * q}], v17 offset:{t2 * 4096}")
            for q, t2 in enumerate(grp):
                e(f"s_waitcnt lgkmcnt({len(grp) - 1 - q})")
                if not o["no_store"]:
                    e(f"buffer_store_dwordx4 v[{28 + 4 * q}:{31 + 4 * q}], v16, s[12:15], s46 offen {o['saux'] if t2 < o['nsc'] else o['saux2']}")
                e("s_add_u32 s46, s46, s53")
            tm = b + 1
        if o["stamps"]:
            e("s_waitcnt vmcnt(0)")
        self.stamp(4)
        if o["stamps"]:
            e("s_branch L_ldump")

            def late():
                self.lab("L_ldump")
                self.dump_stamps(5, "l")
                e("s_endpgm")
            self.late.append(late)
        else:
            e("s_endpgm")

    def store_setup(self):
        e = self.e
        e("s_mov_b32 s14, 0x800000")
        e("s_mov_b32 s15, 0x20000")
        e("s_and_b32 s3, s18, 1")
        e("v_lshl_add_u32 v6, s3, 3, v5")
        self.pi(7, 6, 8, 9)
        e("s_lshr_b32 s3, s18, 1")
        e("s_lshl_b32 s3, s3, 7")
        e("s_add_u32 s3, s3, s16")
        e("s_lshl_b32 s3, s3, 10")
        e("s_add_u32 s3, s3, s17")
        e("s_lshl_b32 s3, s3, 1")
        e("v_and_b32 v8, 7, v0")
        e("v_lshl_add_u32 v9, v8, 4, s3")
        e("v_lshl_add_u32 v16, v7, 14, v9")
        e("v_xor_b32 v8, v8, v5")
        e("v_lshlrev_b32 v8, 4, v8")
        e("v_lshl_add_u32 v8, v5, 7, v8")
        e(f"s_add_u32 s3, s50, {STG}")
        e("v_add_u32 v17, s3, v8")

    def rd_f(self, r, kk, dl, off=0):
        a = 2 + 3 * kk
        if dl == 0:
            return [f"ds_read_b128 v[{r}:{r + 3}], v{a + 2} offset:{7 * PS - 128 + off}"]
        if dl == 9:
            return [f"ds_read_b128 v[{r}:{r + 3}], v{a + 1} offset:{off}"]
        return [f"ds_read_b128 v[{r}:{r + 3}], v{a} offset:{(dl - 1) * PS + off}"]

    def rd_g(self, r, k, t, off=0):
        return [f"ds_read_b64_tr_b16 v[{r + 2 * hh}:{r + 2 * hh + 1}], v{8 + t} offset:{k * 4096 + hh * 512 + off}"
                for hh in range(2)]

    def reads(self, st, kk):
        base = SET[st]
        if self.o["rord"] == 2:
            return [x for dl in range(10) for x in self.rd_f(base + 4 * dl, kk, dl)] + \
                   [x for t in range(2) for k in range(3) for x in self.rd_g(base + 40 + (k * 2 + t) * 4, k, t)]
        if self.o["lbar"] or self.o["rord"] == 1:
            out, seen = [], set()
            for k, t, tm in self.mfmas(st, raw=True):
                for nm in (("G", k, t), ("F", tm + k)):
                    if nm not in seen:
                        seen.add(nm)
                        out += self.rd_g(base + 40 + (k * 2 + t) * 4, k, t) if nm[0] == "G" else \
                            self.rd_f(base + 4 * nm[1], kk, nm[1])
            return out
        L = []
        for t in range(2):
            for k in range(3):
                L += self.rd_g(base + 40 + (k * 2 + t) * 4, k, t)
        X = []
        for dl in range(10):
            X += self.rd_f(base + 4 * dl, kk, dl)
        out = []
        while L or X:
            if X:
                out.append(X.pop(0))
            if L:
                out.append(L.pop(0))
        return out

    def mf(self, g, f, t, tm):
        acc = ACC + (tm * 2 + t) * 4
        return f"v_mfma_f32_16x16x32_bf16 v[{acc}:{acc + 3}], v[{g}:{g + 3}], v[{f}:{f + 3}], v[{acc}:{acc + 3}]"

    def mfmas(self, st, raw=False):
        od = self.o["order"] if not (raw and self.o["order"] != 17) else 17
        asc, desc = (0, 1, 2), (2, 1, 0)
        up, down = list(range(8)), list(range(7, -1, -1))
        if od == 0:
            seq = [(k, t, tm) for k in range(3) for t in range(2) for tm in range(8)]
        elif od == 4:
            seq = [(k, t, tm) for t in range(2) for tm in up for k in asc]
        elif od == 6:
            seq = [(k, t, tm) for t in range(2) for tm in up for k in (asc if tm % 2 == 0 else desc)]
        elif od == 7:
            seq = []
            for tm in up:
                ts = (0, 1) if tm % 2 == 0 else (1, 0)
                seq += [(k, ts[0], tm) for k in asc] + [(k, ts[1], tm) for k in desc]
        elif od == 9:
            seq = [(k, 0, tm) for tm in up for k in (asc if tm % 2 == 0 else desc)] + \
                  [(k, 1, tm) for tm in down for k in (asc if tm % 2 else desc)]
        elif od == 17:
            seq = [(k, st, tm) for tm in up for k in (asc if tm % 2 == 0 else desc)] + \
                  [(k, st ^ 1, tm) for tm in down for k in (asc if tm % 2 else desc)]
        elif od == 18:
            seq = [(k, 0, tm) for tm in up for k in (0, 1)] + [(k, 1, tm) for tm in down for k in (1, 0)] + \
                  [(2, t, tm) for tm in up for t in ((1, 0) if tm == 0 else (0, 1))]
        elif od == 19:
            seq = [(k, t, tm) for k in range(3) for tm in (up if k != 1 else down) for t in range(2)]
        elif od == 10:
            seq = [(k, t, tm) for t in range(2) for tm in up for k in desc]
        elif od == 11:
            seq = [(k, t, tm) for t in range(2) for tm in up for k in (0, 2, 1)]
        elif od == 12:
            seq = [(k, t, tm) for t in range(2) for tm in up for k in (1, 0, 2)]
        elif od == 13:
            rot = [(0, 1, 2), (2, 0, 1), (1, 2, 0)]
            seq = [(k, t, tm) for t in range(2) for tm in up for k in rot[tm % 3]]
        elif od == 14:
            rot = [(0, 2, 1), (1, 0, 2), (2, 1, 0)]
            seq = [(k, t, tm) for t in range(2) for tm in up for k in rot[tm % 3]]
        elif od == 15:
            seq = [(k, t, tm) for t in range(2) for tm in up for k in ((0, 2, 1) if tm % 2 == 0 else (1, 2, 0))]
        elif od == 16:
            seq = [(k, t, tm) for t in range(2) for tm in up for k in ((2, 0, 1) if tm % 2 == 0 else (1, 0, 2))]
        elif od >= 20:
            out = []
            for tm in up:
                ks = [(0, k) for k in asc] + [(1, k) for k in (asc if od == 20 else desc)]
                if od != 22 and tm % 2:
                    ks = ks[::-1]
                out += [self.mf(SET[s_] + 40 + (k * 2 + st) * 4, SET[s_] + 4 * (tm + k), st, tm) for s_, k in ks]
            return out
        if raw:
            return seq
        M = [(SET[st] + 40 + (k * 2 + t) * 4, SET[st] + 4 * (tm + k), t, tm) for k, t, tm in seq]
        if self.o["swap"]:
            M = [(f, g, t, tm) for g, f, t, tm in M]
        return [self.mf(*m) for m in M]

    def substage(self, st, pre):
        o = self.o
        M = self.mfmas(st)
        R = self.reads(st ^ 1, st ^ 1) if not o["no_reads"] else []
        if o["diag"] & 1024:
            R = [r for r in R if "tr" not in r]
        if o["diag"] & 2048:
            R = [r for r in R if "tr" in r]
        if o["diag"] & 4096:
            R = [r.replace("b64_tr_b16", "b64") for r in R]
        fill = {}
        lb = o["lbar"]
        sp = (o["lastrd"] - lb) / 22.0
        if lb:
            fill[lb - 1] = ["s_waitcnt lgkmcnt(0)", "s_barrier"]
        for i, r in enumerate(R):
            fill.setdefault(lb + int(i * sp), []).append(r)
        pos = 0 if lb else o["lastrd"]
        for i, p in enumerate(pre):
            fill.setdefault(min(pos + i, 47), []).extend(p)
        top = [f"s_waitcnt lgkmcnt({o['topw']})"] if lb else ["s_waitcnt lgkmcnt(0)", "s_barrier"] + ["s_nop 15"] * o["idle"]
        if lb and o["topw"] > 6:
            fill.setdefault({7: 20, 8: 19, 9: 14, 10: 13, 11: 8, 12: 7}[o["topw"]] - 1, []).append("s_waitcnt lgkmcnt(6)")
        out = []
        for i, m in enumerate(M):
            out.append((top if i == 0 else []) + ([m] if not o["no_mfma"] else []) + fill.get(i, []))
        return out

    def first(self, pre, nm_=48):
        e = self.e
        o = self.o
        seq = self.mfmas(0, raw=True)
        todo, queue, seen = [], [], set()
        for k, t, tm in seq:
            for nm in (("G", k, t), ("F", tm + k)):
                if nm not in todo:
                    todo.append(nm)

        def rd():
            nm = todo.pop(0)
            ops = self.rd_g(SET[0] + 40 + (nm[1] * 2 + nm[2]) * 4, nm[1], nm[2]) if nm[0] == "G" else \
                self.rd_f(SET[0] + 4 * nm[1], 0, nm[1])
            for op in ops:
                e(op)
                queue.append(nm)
        for _ in range(o["fpre"]):
            rd()
        R = self.reads(1, 1)
        bar = o["fbar"]
        sp = (o["flast"] - bar) / 22.0
        fill = {bar - 1: ["v_add_u32 v8, s53, v8", "v_add_u32 v9, s53, v9"], bar: ["s_waitcnt lgkmcnt(0)", "s_barrier"]}
        for i, r in enumerate(R):
            fill.setdefault(bar + int(i * sp), []).append(r)
        for i, p in enumerate(pre):
            fill.setdefault(min(o["flast"] + i * 2 // 3, nm_ - 1), []).extend(p)
        for i, (k, t, tm) in enumerate(seq[:nm_]):
            idx = max((q for q, tg in enumerate(queue) if tg in (("G", k, t), ("F", tm + k))), default=-1)
            if idx >= 0:
                n = min(len(queue) - 1 - idx, 14)
                e(f"s_waitcnt lgkmcnt({n})")
                del queue[:len(queue) - n]
            m = self.mf(SET[0] + 40 + (k * 2 + t) * 4, SET[0] + 4 * (tm + k), t, tm)
            if (t, tm) not in seen:
                seen.add((t, tm))
                m = m[:m.rindex(",")] + (", v[40:43]" if o["off"] else ", 0")
            e(m)
            if todo:
                assert i < bar - 1
                rd()
            if i == bar:
                del queue[:]
            for x in fill.get(i, []):
                e(x)

    def epi_ops(self, un):
        tm, t = un >> 1, un & 1
        a = ACC + un * 4
        tb = TMP + 4 * t
        L = []
        if not self.o["no_epi"] and not (self.o["pk"] == 1 or (self.o["pk"] == 2 and un == 15)):
            for r in range(4):
                L.append(f"v_fma_f32 v{a + r}, v{a + r}, v{16 + 4 * t + r}, v{24 + 4 * t + r}")
            for r in range(4):
                L.append(f"v_exp_f32 v{tb + r}, v{a + r}")
            for r in range(4):
                L.append(f"v_fma_f32 v{tb + r}, v{tb + r}, s42, s42")
            for r in range(4):
                L.append(f"v_rcp_f32 v{tb + r}, v{tb + r}")
            for r in range(4):
                L.append(f"v_mul_f32 v{tb + r}, v{tb + r}, v{a + r}")
            for p in range(2):
                L.append(f"v_cvt_pk_bf16_f32 v{a + p}, v{tb + 2 * p}, v{tb + 2 * p + 1}")
        elif not self.o["no_epi"]:
            for p in range(2):
                q = 4 * t + 2 * p
                L.append(f"v_pk_fma_f32 v[{a + 2 * p}:{a + 2 * p + 1}], v[{a + 2 * p}:{a + 2 * p + 1}], v[{16 + q}:{17 + q}], v[{24 + q}:{25 + q}]")
            for r in range(4):
                L.append(f"v_exp_f32 v{tb + r}, v{a + r}")
            for p in range(2):
                L.append(f"v_pk_fma_f32 v[{tb + 2 * p}:{tb + 2 * p + 1}], v[{tb + 2 * p}:{tb + 2 * p + 1}], s[42:43], s[42:43]")
            for r in range(4):
                L.append(f"v_rcp_f32 v{tb + r}, v{tb + r}")
            for p in range(2):
                L.append(f"v_pk_mul_f32 v[{tb + 2 * p}:{tb + 2 * p + 1}], v[{tb + 2 * p}:{tb + 2 * p + 1}], v[{a + 2 * p}:{a + 2 * p + 1}]")
            for p in range(2):
                L.append(f"v_cvt_pk_bf16_f32 v{a + p}, v{tb + 2 * p}, v{tb + 2 * p + 1}")
        if self.o["direct"] and tm == 7:
            if t:
                L = [x.replace(f"v_cvt_pk_bf16_f32 v{a},", f"v_cvt_pk_bf16_f32 v{a - 2},")
                      .replace(f"v_cvt_pk_bf16_f32 v{a + 1},", f"v_cvt_pk_bf16_f32 v{a - 1},") for x in L]
                L += ["s_nop 0", f"v_permlane16_swap_b32 v{a - 4}, v{a - 2}", f"v_permlane16_swap_b32 v{a - 3}, v{a - 1}"]
                if not self.o["no_store"]:
                    L.append(f"buffer_store_dwordx4 v[{a - 4}:{a - 1}], v0, s[12:15], 0 offen {self.o['saux']}")
        elif self.o["diag"] & 2:
            L.append("ds_read_b32 v12, v1")
        elif self.o["wpair"]:
            if t:
                L.insert(len(L) - 2, f"DS ds_write_b64 v1, v[{a - 4}:{a - 3}] offset:{tm * 4096}")
                L.append(f"ds_write_b64 v11, v[{a}:{a + 1}] offset:{tm * 4096}")
        else:
            L.append(f"ds_write_b64 v{11 if t else 1}, v[{a}:{a + 1}] offset:{tm * 4096}")
        return L

    def tail(self):
        e = self.e
        o = self.o
        nt = o["nt"]
        seq = []
        for u in range(27, 32 - nt):
            for tm in range(8):
                ts = (0, 1) if tm % 2 else (1, 0)
                seq += [(u, k, ts[0], tm) for k in (0, 1, 2)] + [(u, k, ts[1], tm) for k in (2, 1, 0)]
        done_at = {}
        for tm in range(8):
            if o["alt"]:
                for u in range(32 - nt, 32):
                    seq += [(u, k, t, tm) for k in range(3) for t in range(2)]
                done_at[2 * tm] = len(seq) - 2
                done_at[2 * tm + 1] = len(seq) - 1
                continue
            lo = 32 - nt
            if tm == 0 and nt == 4 and o["split0"]:
                seq += [(u, k, t, tm) for t in range(2) for u in (28, 29) for k in range(3)]
                lo = 30
            for t in range(2):
                for u in range(lo, 32):
                    seq += [(u, k, t, tm) for k in range(3)]
                done_at[2 * tm + t] = len(seq) - 1
        first, last = {}, {}
        for i, (u, k, t, tm) in enumerate(seq):
            for nm in (("G", u, k, t), ("F", u, tm + k)):
                first.setdefault(nm, i)
                last[nm] = i
        reg = {}
        for dl in range(10):
            reg[("F", 27, dl)] = SET[1] + 4 * dl
        for k in range(3):
            for t in range(2):
                reg[("G", 27, k, t)] = SET[1] + 40 + (k * 2 + t) * 4
        free = list(range(SET[0], SET[0] + 64, 4)) + list(range(TMP + 8, 64, 4)) + [12]
        todo = sorted((nm for nm in first if nm not in reg), key=lambda nm: first[nm])
        queue = []

        def lds(op, tag=None):
            e(op)
            queue.append(tag)

        def wait_for(tags):
            idx = max((i for i, tg in enumerate(queue) if tg in tags), default=-1)
            if idx >= 0:
                n = min(len(queue) - 1 - idx, 14)
                e(f"s_waitcnt lgkmcnt({n})")
                del queue[:len(queue) - n]

        half = []

        def issue_read(nm):
            if nm[0] == "P":
                i = nm[1]
                lds(f"ds_read_b128 v[{16 + 4 * i}:{19 + 4 * i}], v10 offset:{(i >> 1) * 256 + (i & 1) * 64}", nm)
                return
            r = free.pop(0)
            reg[nm] = r
            u = nm[1]
            if nm[0] == "F":
                ops = self.rd_f(r, u & 1, nm[2], XBUF * ((u >> 1) - 14))
            else:
                ops = self.rd_g(r, nm[2], nm[3], WBUF * (u % NWB))
            if not o["no_reads"]:
                lds(ops[0], nm)
                half.extend((op, nm) for op in ops[1:])

        e("s_waitcnt lgkmcnt(0)")
        self.stamp(3)
        if not o["lbar"]:
            e("s_barrier")
        chk, pchk = o["tchk"], o["pchk"]
        head = {0: [f"v_subrev_u32 v8, {3 * WBUF}, v8", "s_mov_b32 s43, s42"], 1: [f"v_subrev_u32 v9, {3 * WBUF}, v9"],
                2: ["v_add_u32 v5, s55, v5"], 3: ["v_add_u32 v6, s55, v6"], 4: ["v_add_u32 v7, s55, v7"],
                chk: ["s_barrier"]}
        avail = {28: 1, 29: 5, 30: chk, 31: chk}
        if o["lbar"]:
            tb = o["tbar"]
            head = {0: [f"v_subrev_u32 v8, {2 * WBUF}, v8", f"v_subrev_u32 v9, {2 * WBUF}, v9", "s_mov_b32 s43, s42"],
                    1: ["v_add_u32 v2, s47, v2", "v_add_u32 v3, s47, v3"], 2: ["v_add_u32 v4, s47, v4", "v_add_u32 v5, s47, v5"],
                    3: ["v_add_u32 v6, s47, v6", "v_add_u32 v7, s47, v7"],
                    tb: ["s_barrier"], chk: ["s_barrier"]}
            avail = {28: tb + 1, 29: tb + 1, 30: chk, 31: chk}
        bar_at = {}
        quiet = -1
        bars = [int(ch) for ch in str(o["bars"])]
        cost = lambda x: 8 if ("v_exp" in x or "v_rcp" in x) else 12 if "ds_write" in x else 4
        cur, pend, nxt = [], [], 0
        mark = {}
        credit = 0.0
        per_gap = sum(cost(x) for x in self.epi_ops(0) + self.epi_ops(1)) / (6.0 * nt) * o['pace'] + 0.5
        stalls = []
        for i, (u, k, t, tm) in enumerate(seq):
            g, f = ("G", u, k, t), ("F", u, tm + k)
            while g in todo or f in todo or any(nm == g for _, nm in half):
                stalls.append(i)
                if half:
                    lds(*half.pop(0))
                else:
                    issue_read(todo.pop(0))
            wait_for({g, f})
            if not o["no_mfma"]:
                e(self.mf(reg[g], reg[f], t, tm))
            if nxt < 16 and done_at[nxt] == i:
                mark[nxt] = len(self.l)
                pend.append(nxt)
                nxt += 1
            for nm in (g, f):
                if last[nm] == i:
                    free.append(reg[nm])
            for x in head.get(i, []):
                e(x)
            if i in bar_at and not o["latebar"]:
                wait_for({bar_at.pop(i)})
                e("s_barrier")
            wnext = cur and any(x[:2].lower() == "ds" for x in cur[:3])
            if i >= 1 and i != chk and not (wnext and not half) and i > quiet:
                if half:
                    lds(*half.pop(0))
                    credit -= 4 * bool(cur or pend)
                else:
                    hold = min([first[nm] for nm in todo if nm[0] != "P" and i < avail[nm[1]]], default=999)
                    cand = [nm for nm in todo if (i >= pchk if nm[0] == "P" else
                                                  i >= avail[nm[1]] and first[nm] <= hold + o["hold"])]
                    if cand and (cand[0][0] == "P" or free):
                        todo.remove(cand[0])
                        issue_read(cand[0])
                        credit -= 4 * bool(cur or pend)
            if cur or pend:
                credit += per_gap
            while credit > 0:
                if not cur:
                    if not pend or len(self.l) - mark[pend[0]] < 8:
                        credit = 0
                        break
                    curun = pend.pop(0)
                    cur = self.epi_ops(curun)
                x = cur.pop(0)
                if x.startswith("DS "):
                    lds(x[3:])
                elif x.startswith("ds_"):
                    lds(x, ("W", curun))
                    if curun & 1:
                        free.extend([ACC + 4 * curun - 4, ACC + 4 * curun])
                    quiet = i + o["wq"]
                    if curun & 1 and curun >> 1 in bars and not o["diag"] & 1:
                        bar_at[i + o["blag"]] = ("W", curun)
                else:
                    e(x)
                credit -= cost(x)
        assert not todo
        if stalls:
            print("tail: late reads at", stalls, file=sys.stderr)
        rest = [(curun, cur)] if cur else []
        rest += [(un, None) for un in pend]
        for un, ops in rest:
            if ops is None:
                gap = len(self.l) - mark[un]
                if gap < 8:
                    e(f"s_nop {7 - gap}")
                ops = self.epi_ops(un)
            for x in ops:
                if x.startswith("DS "):
                    lds(x[3:])
                elif x.startswith("ds_"):
                    for key in sorted(bar_at):
                        wait_for({bar_at.pop(key)})
                        e("s_barrier")
                    lds(x, ("W", un))
                    if un & 1 and un >> 1 in bars and not o["diag"] & 1:
                        bar_at[un] = ("W", un)
                else:
                    e(x)
        for key in sorted(bar_at):
            wait_for({bar_at.pop(key)})
            e("s_barrier")

    def compute(self):
        e = self.e
        o = self.o
        if o["pages"]:
            e(".p2align 12")
            self.lab("L_page1")
        self.lab("L_compute")
        e("s_and_b32 s38, s18, 1")
        e("s_bfe_u32 s39, s18, 0x10001")
        e("v_and_b32 v10, 15, v0")
        e("v_lshrrev_b32 v16, 4, v0")
        if o["cpf"]:
            e("s_getpc_b64 s[20:21]")
            e("v_lshlrev_b32 v12, 7, v0")
            e("v_mov_b32 v13, s21")
            e("v_add_co_u32 v12, vcc, s20, v12")
            e("s_cmp_lt_u32 s36, %d" % o["cpf"])
            e("s_cselect_b32 s3, s18, 1")
            e("v_addc_co_u32 v13, vcc, 0, v13, vcc")
            e("s_and_b32 s3, s3, 3")
            e("s_cbranch_scc1 L_nocpf")
            e("s_mov_b32 exec_hi, (1 << (((L_end - L_compute) >> 7) - 32)) - 1")
            e("global_load_dword v14, v[12:13], off")
            e("s_mov_b32 exec_hi, -1")
            self.lab("L_nocpf")
        self.pi(17, 10, 18, 19)
        e("v_lshrrev_b32 v18, 2, v10")
        e("v_lshl_add_u32 v19, v16, 3, v18")
        e("v_lshlrev_b32 v19, 7, v19")
        e("v_and_b32 v20, 3, v10")
        e("v_lshl_add_u32 v19, v20, 3, v19")
        e("v_lshrrev_b32 v18, 1, v18")
        e("v_and_b32 v20, 1, v16")
        e("v_lshl_or_b32 v18, v20, 1, v18")
        e("s_lshl_b32 s45, s39, 1")
        e("v_xor_b32 v18, s45, v18")
        e("v_lshl_add_u32 v19, v18, 5, v19")
        e(f"v_add_u32 v8, {WBASE}, v19")
        e("v_xor_b32 v9, 32, v8")
        e("s_lshl_b32 s3, s38, 11")
        e(f"s_add_u32 s46, s3, {XBUF}")
        if o["rotk"]:
            e("s_bfe_u32 s47, s16, 0x10008")
            e("v_lshl_or_b32 v21, s47, 2, v16")
        for idx, sh in ((0, 0), (1, 1), (2, -1)):
            e(f"v_add_u32 v18, {sh}, v17")
            e("v_bfe_u32 v19, v18, 1, 3")
            e(f"v_xor_b32 v19, v19, v{21 if o['rotk'] else 16}")
            e("v_lshlrev_b32 v19, 4, v19")
            e(f"v_lshl_add_u32 v19, v{17 if sh == -1 else 18}, 7, v19")
            e(f"v_add_u32 v{2 + idx}, s46, v19")
            e(f"v_xor_b32 v{5 + idx}, 64, v{2 + idx}")
        e("v_lshrrev_b32 v18, 1, v16")
        e("v_lshl_add_u32 v18, s39, 2, v18")
        e("v_and_b32 v19, 7, v10")
        e("v_xor_b32 v18, v18, v19")
        e("v_lshlrev_b32 v18, 4, v18")
        e("v_lshl_add_u32 v18, v20, 3, v18")
        e("v_lshl_add_u32 v18, v10, 7, v18")
        e(f"s_add_u32 s3, s3, {STG}")
        e("v_add_u32 v1, s3, v18")
        e("v_xor_b32 v11, 32, v1")
        if o["direct"]:
            e("s_lshl_b32 s3, s38, 7")
            e("s_add_u32 s3, s3, s16")
            e("s_add_u32 s3, s3, 7")
            e("s_lshl_b32 s3, s3, 10")
            e("s_lshl_b32 s45, s39, 5")
            e("s_add_u32 s3, s3, s45")
            e("s_add_u32 s3, s3, s17")
            e("s_lshl_b32 s3, s3, 1")
            e("v_lshl_add_u32 v18, v20, 5, s3")
            e("v_lshrrev_b32 v19, 1, v16")
            e("v_lshl_add_u32 v18, v19, 4, v18")
            e("v_lshl_add_u32 v0, v17, 14, v18")
            e("s_waitcnt lgkmcnt(0)")
        e("s_lshl_b32 s3, s39, 6")
        e(f"s_add_u32 s3, s3, {PB}")
        e("v_and_b32 v18, 4, v10")
        e("v_add_lshl_u32 v18, v18, v16, 2")
        e("v_and_or_b32 v18, v10, 3, v18")
        e("v_lshl_add_u32 v10, v18, 1, s3")
        e("v_mov_b64 v[24:25], 0")
        e("v_mov_b64 v[26:27], 0")
        if o["fall"]:
            seq = self.mfmas(0, raw=True)
            for t, tm in sorted({(t, tm) for k, t, tm in seq[o["brpos"]:]} - {(t, tm) for k, t, tm in seq[:o["brpos"]]}):
                for h in range(2):
                    r = ACC + (tm * 2 + t) * 4 + 2 * h
                    e(f"v_mov_b64 v[{r}:{r + 1}], 0")
            for _ in range(o["lpad"]):
                e("s_nop 0")
        e("s_mov_b32 s40, 1")
        e("s_mov_b32 s41, 1")
        e("s_mov_b32 s42, 0xbfb8aa3b")
        e(f"s_movk_i32 s53, {WBUF}")
        e(f"s_mov_b32 s54, {XBUF}")
        e(f"s_mov_b32 s46, {-(NWB - 1) * WBUF & 0xffffffff:#x}")
        e(f"s_mov_b32 s47, {-(NXB - 1) * XBUF & 0xffffffff:#x}")
        e("s_mov_b32 s52, 12")
        if o["prio_c"]:
            e(f"s_setprio {o['prio_c']}")
        e("s_barrier")
        self.params()
        self.stamp(1)
        e("s_barrier")
        self.stamp(2)

        def wadv():
            return [["s_add_u32 s41, s41, 1", f"s_cmp_eq_u32 s41, {NWB}"],
                    ["s_cselect_b32 s43, s46, s53", "s_cselect_b32 s41, 0, s41"],
                    ["v_add_u32 v8, s43, v8"], ["v_add_u32 v9, s43, v9"]]

        pre0 = wadv() + [["s_add_u32 s40, s40, 1", f"s_cmp_eq_u32 s40, {NXB}"],
                         ["s_cselect_b32 s55, s47, s54", "s_cselect_b32 s40, 0, s40"]] + \
            [[f"v_add_u32 v{2 + i}, s55, v{2 + i}"] for i in range(3)]
        pre1 = wadv() + [[f"v_add_u32 v{5 + i}, s55, v{5 + i}"] for i in range(3)]
        if o["lbar"]:
            assert o["topw"] <= 6 or o["lbar"] > {7: 20, 8: 19, 9: 14, 10: 13, 11: 8, 12: 7}[o["topw"]]
            self.first([], 48)
            body = self.substage(1, pre0) + self.substage(0, pre1 + [["s_sub_u32 s52, s52, 1"]])
        else:
            self.first(pre0, o["brpos"] if o["fall"] else 48)
            body = self.substage(1, pre1) + self.substage(0, pre0 + [["s_sub_u32 s52, s52, 1"]])
        cut = 48 + o["brpos"]
        if not o["fall"]:
            e("s_branch L_centry")
        if o["pages"]:
            self.lab("L_touch0")
        if not o["fall"]:
            e(".p2align 6")
            for _ in range(o["lpad"]):
                e("s_nop 0")
        self.lab("L_cloop")
        for gap in body[cut:]:
            for x in gap:
                e(x)
        self.lab("L_centry")
        for gap in body[:cut]:
            for x in gap:
                e(x)
        e("s_cbranch_scc0 L_cloop")
        for gap in body[cut:]:
            for x in gap:
                e(x)
        self.lab("L_tail")
        self.tail()
        self.lab("L_tail_end")
        if o["stamps"] and o["direct"]:
            e("s_waitcnt vmcnt(0)")
            e("v_mbcnt_lo_u32_b32 v0, -1, 0")
            e("v_mbcnt_hi_u32_b32 v0, -1, v0")
        self.stamp(4)
        self.dump_stamps(5, "c")
        e("s_endpgm")

    def gen(self):
        e = self.e
        o = self.o
        self.l.append(HEADER.rstrip())
        self.l.append(f"; @launch grid=(256,1,1) block=(512,1,1) lds={LDS}")
        self.l.append(DOC)
        self.l.append('.amdgcn_target "amdgcn-amd-amdhsa--gfx950"')
        self.l.append(".text")
        self.l.append(f".globl {KN}")
        if o["pages"]:
            self.l.append(".p2align 12")
        self.l.append(".p2align 8")
        self.l.append(f".type {KN},@function")
        self.lab(KN)
        e("s_cmp_ge_u32 s2, 256")
        e("s_cbranch_scc1 L_end")
        if o["stamps"]:
            e("s_memtime s[60:61]")
            e("s_memrealtime s[62:63]")
        e("s_load_dwordx2 s[8:9], s[0:1], 8")
        e("s_load_dwordx2 s[4:5], s[0:1], 0")
        e("v_readfirstlane_b32 s18, v0")
        e("v_and_b32 v0, 63, v0")
        e("s_lshr_b32 s17, s2, 5")
        e("s_and_b32 s20, s2, 1")
        e("s_lshl3_add_u32 s17, s20, s17")
        e("s_bfe_u32 s22, s2, 0x20001")
        e("s_bfe_u32 s16, s2, 0x20003")
        e("s_lshl2_add_u32 s16, s22, s16")
        e("s_lshr_b32 s18, s18, 6")
        e("s_lshl_b32 s17, s17, 6")
        e("s_lshl_b32 s16, s16, 8")
        e("s_cmp_ge_u32 s18, 4")
        if o["pages"] >= 2:
            e("s_cbranch_scc0 L_loader")
            self.l.append("@DISPATCH")
            e("s_branch L_compute")
        else:
            e(("s_cbranch_scc1" if o["lfirst"] else "s_cbranch_scc0") + " L_compute")
        self.loader()
        self.compute()
        for f in self.late:
            f()
        self.lab("L_end")
        e("s_endpgm")
        self.l.append(f""".section .rodata,"a"
.p2align 6
.amdhsa_kernel {KN}
  .amdhsa_next_free_vgpr 256
  .amdhsa_next_free_sgpr 96
  .amdhsa_accum_offset 256
  .amdhsa_group_segment_fixed_size 0
  .amdhsa_kernarg_size 72
  .amdhsa_user_sgpr_count 2
  .amdhsa_user_sgpr_kernarg_segment_ptr 1
  .amdhsa_system_sgpr_workgroup_id_x 1
.end_amdhsa_kernel""")
        return self.finish()

    def finish(self):
        L = "\n".join(self.l).split("\n")
        if self.o["pages"] < 2:
            return "\n".join(L) + "\n"
        import re
        import subprocess
        i0 = L.index("L_touch0:")
        it, ie = L.index("L_tail:"), L.index("L_tail_end:")
        probe = []
        for i, x in enumerate(L):
            if it < i <= ie:
                probe.append(f"L_pos{i}:")
            if x != "@DISPATCH":
                probe.append(x)
        open("probe.s", "w").write("\n".join(probe) + "\n")
        subprocess.run(["clang", "-x", "assembler", "-target", "amdgcn-amd-amdhsa", "-mcpu=gfx950",
                        "-c", "probe.s", "-o", "probe.o"], check=True)
        sym = subprocess.run(["llvm-readelf", "-s", "probe.o"], capture_output=True, text=True).stdout
        addr = {m.group(2): int(m.group(1), 16) for m in re.finditer(r"^\s*\d+: ([0-9a-f]+)\s.*\s(\S+)$", sym, re.M)}
        base = addr["L_page1"]
        win = self.o["win"]
        out, n, covered = [], 1, (addr["L_touch0"] - base) // 64 * 64 + win
        if not self.o["touch1"]:
            covered = 4096
        for i, x in enumerate(L):
            if it < i < ie:
                pos = addr[f"L_pos{i}"] - base + 4 * (n - 1)
                if pos >= covered and n < 4:
                    out += [f"L_touch{n}:", "    s_cbranch_scc0 L_compute"]
                    n += 1
                    covered = min(pos // 64 * 64 + win, (pos // 4096 + 1) * 4096)
            out.append(x)
        disp = []
        for k, t in enumerate([f"L_touch{k}" for k in range(0 if self.o["touch1"] else 1, n)]):
            assert k < 3
            disp += [f"    s_cmp_lg_u32 s18, {4 + k}", f"    s_cbranch_scc0 {t}"]
        j = out.index("@DISPATCH")
        out[j:j + 1] = disp
        return "\n".join(out) + "\n"


if __name__ == "__main__":
    out = sys.argv[1]
    opts = {}
    for a in sys.argv[2:]:
        k, v = a.split("=")
        if k == "bars":
            opts[k] = v
            continue
        try:
            v = int(v)
        except ValueError:
            try:
                v = float(v)
            except ValueError:
                v = v.replace("+", " ")
        opts[k] = v
    open(out, "w").write(G(**opts).gen())
```

```python
import sys

HEADER = open("standalone__batchnorm__prompt.s.ref").read().split("; Override launch")[0]
KN = "standalone__batchnorm__prompt_kernel"

PS = 33 * 128
XBUF = 263 * 128
NXB = 3
WBUF = 3 * 32 * 128
NWB = 5
WBASE = NXB * XBUF
PB = WBASE + NWB * WBUF
LDS = PB + 512
STG = 2 * XBUF

ACC = 64
SET = (128, 192)
TMP = 32


def cnt(i):
    return (3, 5, 4, 3)[i % 4]


def need(u):
    return 2 * u + 3 if u % 2 == 0 else 2 * u + 2


DOC = """;
; One workgroup owns a 256 x 64 output tile. Waves 0-3 stream x and w into LDS rings with LDS-DMA loads, waves 4-7
; each compute 128 x 32 with v_mfma_f32_16x16x32_bf16 (A = w^T through transposed LDS reads, B = x).
; One barrier per 32 channels. The 64-channel stages are visited in an order that differs between workgroup groups, so
; in LDS and written as whole 128-byte lines by waves 0-3."""

NOTES = {
    "L_loader": "DMA waves: addresses, first loads",
    "L_lloop": "DMA waves: steady state, two 64-channel stages per trip",
    "L_store": "DMA waves: store the staged output rows",
    "L_compute": "MFMA waves: addresses, first 32-channel step",
    "L_cloop": "MFMA waves: steady state, two 32-channel steps per trip",
    "L_tail": "MFMA waves: last five steps and the epilogue; the scc0 branches are only taken by the entry-time jumps that pull this code into the instruction cache",
}


class G:
    def __init__(self, **o):
        self.o = dict(stamps=0, trace=0, no_dma=0, no_reads=0, no_mfma=0, no_epi=0, no_store=0,
                      lastrd=33, prio_c=1, prio_l=0, lfirst=1, order=17, xaux="", waux="", saux="sc1", xmap=0,
                      probe="", xor=1, nt=4, fpre=7, fbar=20, flast=40, hold=12, split0=1, touch1=0, direct=0, bars='01234567', wq=1, modeb=0, fall=0, off=5, pbar=14, rord=0, lbar=0, topw=6, tbar=4, idle=0, nsc=8, saux2='', pat='32,39,43,53', pwg=-1, rrate=0.8, x0=4, pace=1.04, pk=2, alt=0, lead=6, cum="21,27,35",
                      rotx=1, rotk=1, tchk=34, endq="213,222,231,240", pchk=50, blag=7, cpf=0, pstamp=0, brpos=45, pages=2, lpad=0, win=1280, latebar=0, diag=0, wpair=1, cmode=0, swap=0, base="_456789AB0123CDEF", mask="_1111333333333333", maskb="_0000000000000000")
        self.o.update(o)
        self.l = []
        self.nlab = 0
        self.late = []
        self.late_table = None
        self.inloop = 0
        self.flow = 0

    def e(self, s):
        self.l.append("    " + s)

    def lab(self, s):
        if s in NOTES:
            self.l.append("; " + NOTES[s])
        self.l.append(s + ":")

    def stamp(self, i):
        pr = self.o["probe"].split(",")
        if len(pr) == 5 and i not in (int(pr[1]), int(pr[2]), 4):
            return
        if self.o["stamps"]:
            self.e(f"s_memtime s[{60 + 4 * i}:{61 + 4 * i}]")
            self.e(f"s_memrealtime s[{62 + 4 * i}:{63 + 4 * i}]")
            self.e("s_waitcnt lgkmcnt(0)")

    def lbarrier(self):
        e = self.e
        e("s_barrier")
        if self.o["trace"]:
            e("s_memtime s[56:57]")
            e("s_memrealtime s[80:81]")
            e("s_mov_b32 s90, m0")
            e("s_mov_b32 m0, s55")
            e("s_waitcnt lgkmcnt(0)")
            e("v_writelane_b32 v62, s56, m0")
            e("v_writelane_b32 v63, s80, m0")
            e("s_add_u32 s55, s55, 1")
            e("s_mov_b32 m0, s90")

    def dump_stamps(self, n, role):
        if not self.o["stamps"]:
            return
        e = self.e
        if self.o["probe"]:
            prole, a, z, kind, mult = self.o["probe"].split(",")
            if prole == role:
                off = 60 if kind == "c" else 62
                e(f"s_sub_u32 s3, s{off + 4 * int(z)}, s{off + 4 * int(a)}")
                if kind == "g":
                    e("v_mov_b32 v50, 0")
                    e("global_load_dword v51, v50, s[92:93] sc1")
                    e("s_waitcnt vmcnt(0)")
                    e("v_readfirstlane_b32 s3, v51")
                    e("s_not_b32 s3, s3")
                    e(f"s_sub_u32 s3, s{62 + 4 * int(z)}, s3")
                if kind != "c":
                    e(f"s_mul_i32 s3, s3, {mult}")
                elif int(mult) < 0:
                    e(f"s_lshl_b32 s3, s3, {-int(mult)}")
                else:
                    e(f"s_lshr_b32 s3, s3, {mult}")
                e("s_min_u32 s3, s3, 50000")
                if self.o["pwg"] >= 0:
                    e("s_and_b32 s56, s2, 7")
                    e(f"s_cmp_eq_u32 s56, {self.o['pwg']}")
                    e("s_cselect_b32 s3, s3, 0")
                self.lab(f"L_spin_{role}")
                e("s_memrealtime s[56:57]")
                e("s_waitcnt lgkmcnt(0)")
                e(f"s_sub_u32 s56, s56, s{62 + 4 * (n - 1)}")
                e("s_cmp_lt_u32 s56, s3")
                e(f"s_cbranch_scc1 L_spin_{role}")
            return
        e("s_load_dwordx2 s[34:35], s[0:1], 64")
        e("s_waitcnt lgkmcnt(0)")
        e("v_mov_b32 v40, 0")
        for i in range(n):
            e(f"v_writelane_b32 v40, s{60 + 4 * i}, {2 * i}")
            e(f"v_writelane_b32 v40, s{62 + 4 * i}, {2 * i + 1}")
        for i in range(4):
            e(f"v_writelane_b32 v40, s{86 + i}, {12 + i}")
        e("s_lshl_b32 s3, s2, 3")
        e("s_and_b32 s18, s18, 3")
        if role == "l":
            e("s_add_u32 s18, s18, 4")
        e("s_add_u32 s3, s3, s18")
        e("s_lshl_b32 s3, s3, 6")
        e("v_lshl_add_u32 v41, v0, 2, s3")
        if self.o["trace"] and role == "l":
            e("s_lshl_b32 s3, s3, 2")
            e("s_add_u32 s3, s3, 0x100000")
            e("v_lshl_add_u32 v42, v0, 2, s3")
            e("v_subrev_u32 v62, s60, v62")
            e("v_subrev_u32 v63, s62, v63")
            e("v_lshl_or_b32 v63, v63, 18, v62")
            e("global_store_dword v42, v63, s[34:35]")
        e("s_mov_b64 exec, 0xffff")
        e("global_store_dword v41, v40, s[34:35]")

    def issue_x(self, half):
        e = self.e
        aux = self.o["xaux"]
        self.hooks.pop("x", lambda: None)()
        if self.o["no_dma"]:
            self.hooks.pop("halo", lambda: None)()
        if not self.o["no_dma"] and not (self.o["diag"] & 8 and self.inloop):
            e(f"s_add_u32 m0, s41, s{86 + half}")
            e(f"s_add_u32 s45, s40, s{88 + half}")
            e(f"buffer_load_dwordx4 v2, s[4:7], s45 offen {aux} lds")
            for p in range(1, 4):
                a, b = (45, 46) if p & 1 else (46, 45)
                e("s_add_u32 m0, m0, s54")
                e(f"s_add_u32 s{b}, s{a}, s53")
                e(f"buffer_load_dwordx4 v2, s[4:7], s{b} offen {aux} lds")
            self.hooks.pop("halo", lambda: None)()
            if half == 0 and not self.o["diag"] & 64:
                e("s_add_u32 m0, s41, s44")
                e("s_mov_b64 exec, 15")
                e(f"buffer_load_dwordx4 v3, s[4:7], s40 offen {aux} lds")
                e("s_mov_b64 exec, -1")
        if half == 0:
            return
        e(f"s_add_u32 s41, s41, {XBUF}")
        e("s_cmp_ge_u32 s41, s51")
        e("s_cselect_b32 s41, s50, s41")

    def issue(self, i):
        if i % 4 in (0, 3):
            self.issue_w(i & 1)
        else:
            self.issue_x(i % 4 - 1)

    def issue_w(self, second):
        e = self.e
        if not self.o["no_dma"] and not (self.o["diag"] & 16 and self.inloop):
            aux = self.o["waux"]
            e("s_mov_b32 m0, s43")
            e("s_add_u32 s45, s42, s38")
            e(f"buffer_load_dwordx4 v4, s[8:11], s42 offen {aux} lds")
            e("s_add_u32 m0, m0, s39")
            e("s_add_u32 s46, s45, s38")
            e(f"buffer_load_dwordx4 v4, s[8:11], s45 offen {aux} lds")
            e("s_add_u32 m0, m0, s39")
            e(f"s_addk_i32 s43, {WBUF}")
            e(f"buffer_load_dwordx4 v4, s[8:11], s46 offen {aux} lds")
        else:
            e(f"s_addk_i32 s43, {WBUF}")
        e("s_cmp_ge_u32 s43, s49")
        e("s_cselect_b32 s43, s51, s43")
        if second:
            self.hooks.pop("table", lambda: None)()
            e("s_lshr_b64 s[82:83], s[82:83], 4")
            self.stage_offsets()
        else:
            e("s_xor_b32 s42, s42, 0x10000")

    def stage_offsets(self):
        e = self.e
        e("s_and_b32 s3, s82, 15")
        e("s_lshl_b32 s40, s3, 7")
        e("s_lshl_b32 s42, s3, 17")
        e("s_or_b32 s42, s42, s85")

    def params(self):
        e = self.e
        for i in range(4):
            e(f"ds_read_u16_d16_hi v{24 + i}, v10 offset:{128 * i}")
        rnd = ["v_cvt_pk_bf16_f32 v25, v25, v25", "v_lshlrev_b32 v25, 16, v25"]
        L = ["s_waitcnt lgkmcnt(0)", "v_add_f32 v25, 0x3727c5ac, v25"] + rnd + ["v_sqrt_f32 v25, v25", "s_nop 0"] + rnd
        L += ["v_rcp_f32 v25, v25", "s_nop 0"] + rnd + ["v_mul_f32 v25, v26, v25"] + rnd
        if self.o["off"]:
            L += ["v_rcp_f32 v26, v25", f"v_mul_f32 v{TMP}, s42, v25", "v_mul_f32 v26, v27, v26",
                  "v_max_f32_e64 v26, |v24|, |v26|"]
            for sh in (1, 2, 4):
                L += [f"v_mov_b32_dpp v{16 + q}, v{TMP} row_newbcast:{q} row_mask:0xf bank_mask:0xf" for q in {1: (0, 1), 2: (2, 3), 4: (4, 5)}[sh]]
                L += [f"v_min_u32_dpp v26, v26, v26 row_ror:{sh} row_mask:0xf bank_mask:0xf"]
            L += [f"v_mov_b32_dpp v{16 + q}, v{TMP} row_newbcast:{q} row_mask:0xf bank_mask:0xf" for q in (6, 7)]
            L += [f"v_readlane_b32 s{24 + q}, v26, {16 * q}" for q in range(4)]
            L += ["s_min_u32 s24, s24, s25", "s_min_u32 s26, s26, s27", "s_min_u32 s24, s24, s26",
                  "s_min_u32 s24, s24, 0x70000000", "s_and_b32 s24, s24, 0x7f800000",
                  f"s_cselect_b32 s25, {(self.o['off'] << 23) + 0x400000:#x}, 0", "s_add_u32 s24, s24, s25"]
            L += ["v_fma_f32 v27, -v24, v25, v27", "v_fma_f32 v27, -s24, v25, v27", f"v_mul_f32 v{TMP + 1}, s42, v27"]
            L += [f"v_mov_b32 v{r}, s24" for r in range(40, 44)]
        else:
            L += ["v_fma_f32 v27, -v24, v25, v27", f"v_mul_f32 v{TMP}, s42, v25", f"v_mul_f32 v{TMP + 1}, s42, v27", "s_nop 0"]
            L += [f"v_mov_b32_dpp v{16 + q}, v{TMP} row_newbcast:{q} row_mask:0xf bank_mask:0xf" for q in range(8)]
        L += [f"v_mov_b32_dpp v{24 + q}, v{TMP + 1} row_newbcast:{q} row_mask:0xf bank_mask:0xf" for q in range(8)]
        for x in L:
            e(x)

    def pi(self, dst, j, t0, t1):
        e = self.e
        e(f"v_lshlrev_b32 v{dst}, 1, v{j}")
        e(f"v_cmp_lt_u32 vcc, 3, v{j}")
        e(f"v_subrev_u32 v{t0}, 7, v{dst}")
        e(f"v_subrev_u32 v{t1}, 16, v{dst}")
        e(f"v_cndmask_b32 v{dst}, v{dst}, v{t0}, vcc")
        e(f"v_cmp_lt_u32 vcc, 11, v{j}")
        e("s_nop 1")
        e(f"v_cndmask_b32 v{dst}, v{dst}, v{t1}, vcc")

    def loader(self):
        e = self.e
        o = self.o
        self.lab("L_loader")
        if o["prio_l"]:
            e(f"s_setprio {o['prio_l']}")
        base = [int(ch, 16) for ch in o["base"].lstrip("_")]
        mask = [int(ch, 16) for ch in o["mask"].lstrip("_")]
        maskb = [int(ch, 16) for ch in o["maskb"].lstrip("_")]
        for c in range(4):
            for cb in range(4):
                assert sorted(b ^ (c & m) ^ (cb & mb) for b, m, mb in zip(base, mask, maskb)) == list(range(16))
        assert not maskb[0] and o["rotk"] and o["rotx"] == 1 and o["lfirst"]
        pack = lambda v: sum(x << (4 * k) for k, x in enumerate(v))
        e("s_lshl3_add_u32 s3, s18, 16")
        e("s_load_dwordx2 s[12:13], s[0:1], s3")
        e("v_lshrrev_b32 v5, 3, v0")
        e("s_lshl_b32 s47, s18, 2")
        e("v_xor_b32 v6, s47, v0")
        e("s_xor_b32 s84, s22, s20")
        e("v_and_b32 v7, 2, v5")
        e("v_and_b32 v6, 7, v6")
        if mask[0] == 3:
            e(f"s_xor_b32 s3, s84, {base[0]}")
        else:
            e(f"s_and_b32 s3, s84, {mask[0]}")
            e(f"s_xor_b32 s3, s3, {base[0]}")
        e("s_lshl_b32 s85, s2, 13")
        e("v_xor_b32 v7, v7, v6")
        e("s_and_b32 s85, s85, 0x10000")
        e("s_lshl_b32 s42, s3, 17")
        e("v_lshlrev_b32 v7, 4, v7")
        e("s_or_b32 s42, s42, s85")
        e("s_lshl_b32 s50, s18, 10")
        e("v_lshl_add_u32 v4, v5, 11, v7")
        e("s_lshl3_add_u32 s45, s50, s17")
        e(f"s_add_u32 s51, s50, {WBASE}")
        e("v_lshl_add_u32 v4, s45, 1, v4")
        e("s_mov_b32 s10, 0x600000")
        e("s_mov_b32 s11, 0x20000")
        e("s_mov_b32 s43, s51")
        e("s_mov_b32 s38, 0x200000")
        e("s_movk_i32 s39, 4096")
        e(f"s_add_u32 s49, s51, {NWB * WBUF}")
        e("s_lshl_b32 s40, s3, 7")
        e("v_lshl_add_u32 v8, v0, 1, s17")
        e("s_movk_i32 s14, 2048")
        e("s_mov_b32 s15, s11")
        e("v_lshlrev_b32 v8, 1, v8")
        e("s_lshl_b32 s3, s18, 7")
        e(f"s_add_u32 m0, s3, {PB}")
        e("s_mov_b32 exec_hi, 0")
        e("s_waitcnt lgkmcnt(0)")
        self.stamp(1)
        e("buffer_load_dword v8, s[12:15], 0 offen lds")
        e("s_mov_b32 exec_hi, -1")
        if ",g," in o["probe"]:
            e("s_load_dwordx2 s[92:93], s[0:1], 56")
            e("s_not_b32 s3, s62")
            e("v_mov_b32 v50, 0")
            e("v_mov_b32 v51, s3")
            e("s_waitcnt lgkmcnt(0)")
            e("s_mov_b64 exec, 1")
            e("global_atomic_umax v50, v51, s[92:93] sc1")
            e("s_mov_b64 exec, -1")

        def x_setup():
            e("v_lshrrev_b32 v7, 1, v5")
            e("s_mov_b32 s6, 0x800000")
            e("v_xor_b32 v7, v7, v6")
            e("s_mov_b32 s7, s11")
            e("v_lshlrev_b32 v7, 4, v7")
            e("s_lshl4_add_u32 s3, s47, s16")
            e("v_lshl_add_u32 v2, v5, 14, v7")
            e("s_bitcmp1_b32 s17, 6")
            e(f"s_cselect_b32 s86, {4 * PS}, 0")
            e("v_lshl_add_u32 v2, s3, 11, v2")
            e("s_cselect_b32 s88, 0x2000, 0")
            e(f"s_add_u32 s41, s50, {XBUF}")
            e("s_movk_i32 s53, 2048")
            e(f"s_movk_i32 s54, {PS}")

        def halo_setup():
            e(f"s_xor_b32 s87, s86, {4 * PS}")
            e("s_xor_b32 s89, s88, 0x2000")
            e(f"s_movk_i32 s44, {230 * 128}")
            e("s_cmp_lt_u32 s18, 2")
            e("s_cselect_b32 s3, 256, 0")
            e("s_cselect_b32 s23, 256, -1")
            e("s_cselect_b32 s24, 0, 7")
            e(f"s_cmovk_i32 s44, {32 * 128}")
            e("s_add_u32 s3, s3, s16")
            e("s_add_u32 s23, s23, s16")
            e("s_lshl_b32 s23, s23, 11")
            e("s_and_b32 s3, s3, 2047")
            e("s_cselect_b32 s23, s23, 0x80000000")
            e("v_xor_b32 v7, s24, v6")
            e("s_and_b32 s47, s47, 4")
            e("v_lshl_add_u32 v3, v7, 4, s23")
            e("s_lshl4_add_u32 s44, s47, s44")
            e("s_sub_u32 s44, s44, s50")

        def table_setup():
            e("s_mul_i32 s3, s84, 0x11111111")
            for h in range(2):
                m = pack(mask[8 * h:8 * h + 8])
                if m == 0x33333333:
                    e(f"s_xor_b32 s{82 + h}, s3, {pack(base[8 * h:8 * h + 8]):#x}")
                else:
                    e(f"s_and_b32 s{82 + h}, s3, {m:#x}")
                    e(f"s_xor_b32 s{82 + h}, s{82 + h}, {pack(base[8 * h:8 * h + 8]):#x}")
            if any(maskb):
                if o["modeb"] == 0:
                    e("s_and_b32 s84, s84, 1")
                    e("s_lshr_b32 s3, s2, 2")
                    e("s_xor_b32 s3, s3, s2")
                    e("s_bfe_u32 s3, s3, 0x10004")
                    e("s_lshl1_add_u32 s84, s84, s3")
                elif o["modeb"] == 1:
                    e("s_lshl_b32 s3, s20, 1")
                    e("s_xor_b32 s84, s22, s3")
                else:
                    e("s_lshr_b32 s3, s2, 5")
                    e("s_and_b32 s3, s3, 2")
                    e("s_xor_b32 s84, s84, s3")
                e("s_mul_i32 s84, s84, 0x11111111")
                for h in range(2):
                    m = pack(maskb[8 * h:8 * h + 8])
                    if m:
                        e(f"s_and_b32 s3, s84, {m:#x}")
                        e(f"s_xor_b32 s{82 + h}, s{82 + h}, s3")
        self.hooks = {"x": x_setup, "halo": halo_setup, "table": table_setup}
        if o["trace"]:
            e("s_mov_b32 s55, 0")
        st = {"issued": 0, "chunks": []}

        def upto(c):
            while st["issued"] < min(c, 240):
                if not st["chunks"]:
                    keep, self.l = self.l, []
                    pos = st["issued"] % 15
                    self.issue({0: 0, 3: 1, 8: 2, 12: 3}[pos])
                    lines, self.l = self.l, keep
                    n = {0: 3, 3: 5, 8: 4, 12: 3}[pos]
                    cuts = [k + 1 for k, x in enumerate(lines) if x.endswith(" lds")][:n - 1]
                    cuts = cuts + [len(lines)] * (n - len(cuts))
                    st["chunks"] = [lines[a:b] for a, b in zip([0] + cuts, cuts)]
                self.l += st["chunks"].pop(0)
                st["issued"] += 1

        needi = lambda u: 15 * (u // 2) + (15 if u & 1 else 12)
        legal = lambda u: needi(u + 4)

        def step(u):
            nd = needi(29) if u == 28 else needi(u)
            assert nd <= st["issued"]
            e(f"s_waitcnt vmcnt({st['issued'] - nd})")
            self.lbarrier()

        cum = [int(v) for v in str(o["cum"]).split(",")]
        for u, c in enumerate(cum):
            assert c <= legal(max(u - 1, 0))
            if u == 0:
                upto(o["pbar"])
                e(f"s_waitcnt vmcnt({o['pbar'] if not o['no_dma'] else 0})")
                e("s_barrier")
            upto(c)
            step(u)
            if u == 0:
                self.stamp(2)
        u0 = len(cum)
        pat = [int(v) for v in str(o["pat"]).split(",")]
        per = 2 if pat[2] == pat[0] + 15 and pat[3] == pat[1] + 15 else 4
        after = lambda u: 30 * (u // 4) + pat[u % 4]
        assert all(after(u) <= legal(u) for u in range(4))
        assert st["issued"] <= after(u0 - 1)
        upto(after(u0 - 1))
        endq = [int(v) for v in str(o["endq"]).split(",") if v]
        nit = (28 - len(endq) - u0) // per
        e(f"s_mov_b32 s52, {nit - 1}")
        self.lab("L_lloop")
        self.inloop = 1
        for k in range(per):
            step(u0 + k)
            if o["pstamp"] and (o["pstamp"] - u0) % per == k:
                e(f"s_cmp_lg_u32 s52, {nit - 1 - (o['pstamp'] - u0) // per}")
                e("s_cbranch_scc1 L_nops")
                self.stamp(1)
                self.lab("L_nops")
            upto(after(u0 + k))
        e("s_sub_u32 s52, s52, 1")
        e("s_cbranch_scc0 L_lloop")
        st["issued"] += 15 * per // 2 * (nit - 1)
        e("s_load_dwordx2 s[12:13], s[0:1], 48")
        for u in range(u0 + per * nit, 29):
            step(u)
            k = u - (28 - len(endq))
            c = endq[k] if 0 <= k < len(endq) else after(u)
            assert c <= legal(u)
            upto(c)
        assert st["issued"] == 240
        e("s_waitcnt vmcnt(0) lgkmcnt(0)")
        self.lbarrier()
        self.lab("L_store")
        self.stamp(3)
        self.store_setup()
        if o["diag"] & 32:
            e("s_movk_i32 s53, 2048")
        e("s_mov_b32 s46, 0")
        bars = [int(ch) for ch in str(o["bars"])]
        assert bars[-1] == (6 if o["direct"] else 7)
        tm = 0
        if bars == list(range(8)) and o["nsc"] == 8 and not o["diag"] & 1:
            bars = []
            self.lab("L_sloop")
            self.lbarrier()
            e("ds_read_b128 v[28:31], v17")
            e("v_add_u32 v17, s39, v17")
            e("s_waitcnt lgkmcnt(0)")
            if not o["no_store"]:
                e(f"buffer_store_dwordx4 v[28:31], v16, s[12:15], s46 offen {o['saux']}")
            e("s_add_u32 s46, s46, s53")
            e("s_bitcmp0_b32 s46, 14")
            e("s_cbranch_scc1 L_sloop")
        for b in bars:
            if not o["diag"] & 1:
                self.lbarrier()
            grp = list(range(tm, b + 1))
            for q, t2 in enumerate(grp):
                e(f"ds_read_b128 v[{28 + 4 * q}:{31 + 4 * q}], v17 offset:{t2 * 4096}")
            for q, t2 in enumerate(grp):
                e(f"s_waitcnt lgkmcnt({len(grp) - 1 - q})")
                if not o["no_store"]:
                    e(f"buffer_store_dwordx4 v[{28 + 4 * q}:{31 + 4 * q}], v16, s[12:15], s46 offen {o['saux'] if t2 < o['nsc'] else o['saux2']}")
                e("s_add_u32 s46, s46, s53")
            tm = b + 1
        if o["stamps"]:
            e("s_waitcnt vmcnt(0)")
        self.stamp(4)
        if o["stamps"]:
            e("s_branch L_ldump")

            def late():
                self.lab("L_ldump")
                self.dump_stamps(5, "l")
                e("s_endpgm")
            self.late.append(late)
        else:
            e("s_endpgm")

    def store_setup(self):
        e = self.e
        e("s_mov_b32 s14, 0x800000")
        e("s_mov_b32 s15, 0x20000")
        e("s_and_b32 s3, s18, 1")
        e("v_lshl_add_u32 v6, s3, 3, v5")
        self.pi(7, 6, 8, 9)
        e("s_lshr_b32 s3, s18, 1")
        e("s_lshl_b32 s3, s3, 7")
        e("s_add_u32 s3, s3, s16")
        e("s_lshl_b32 s3, s3, 10")
        e("s_add_u32 s3, s3, s17")
        e("s_lshl_b32 s3, s3, 1")
        e("v_and_b32 v8, 7, v0")
        e("v_lshl_add_u32 v9, v8, 4, s3")
        e("v_lshl_add_u32 v16, v7, 14, v9")
        e("v_xor_b32 v8, v8, v5")
        e("v_lshlrev_b32 v8, 4, v8")
        e("v_lshl_add_u32 v8, v5, 7, v8")
        e(f"s_add_u32 s3, s50, {STG}")
        e("v_add_u32 v17, s3, v8")

    def rd_f(self, r, kk, dl, off=0):
        a = 2 + 3 * kk
        if dl == 0:
            return [f"ds_read_b128 v[{r}:{r + 3}], v{a + 2} offset:{7 * PS - 128 + off}"]
        if dl == 9:
            return [f"ds_read_b128 v[{r}:{r + 3}], v{a + 1} offset:{off}"]
        return [f"ds_read_b128 v[{r}:{r + 3}], v{a} offset:{(dl - 1) * PS + off}"]

    def rd_g(self, r, k, t, off=0):
        return [f"ds_read_b64_tr_b16 v[{r + 2 * hh}:{r + 2 * hh + 1}], v{8 + t} offset:{k * 4096 + hh * 512 + off}"
                for hh in range(2)]

    def reads(self, st, kk):
        base = SET[st]
        if self.o["rord"] == 2:
            return [x for dl in range(10) for x in self.rd_f(base + 4 * dl, kk, dl)] + \
                   [x for t in range(2) for k in range(3) for x in self.rd_g(base + 40 + (k * 2 + t) * 4, k, t)]
        if self.o["lbar"] or self.o["rord"] == 1:
            out, seen = [], set()
            for k, t, tm in self.mfmas(st, raw=True):
                for nm in (("G", k, t), ("F", tm + k)):
                    if nm not in seen:
                        seen.add(nm)
                        out += self.rd_g(base + 40 + (k * 2 + t) * 4, k, t) if nm[0] == "G" else \
                            self.rd_f(base + 4 * nm[1], kk, nm[1])
            return out
        L = []
        for t in range(2):
            for k in range(3):
                L += self.rd_g(base + 40 + (k * 2 + t) * 4, k, t)
        X = []
        for dl in range(10):
            X += self.rd_f(base + 4 * dl, kk, dl)
        out = []
        while L or X:
            if X:
                out.append(X.pop(0))
            if L:
                out.append(L.pop(0))
        return out

    def mf(self, g, f, t, tm):
        acc = ACC + (tm * 2 + t) * 4
        return f"v_mfma_f32_16x16x32_bf16 v[{acc}:{acc + 3}], v[{g}:{g + 3}], v[{f}:{f + 3}], v[{acc}:{acc + 3}]"

    def mfmas(self, st, raw=False):
        od = self.o["order"] if not (raw and self.o["order"] != 17) else 17
        asc, desc = (0, 1, 2), (2, 1, 0)
        up, down = list(range(8)), list(range(7, -1, -1))
        if od == 0:
            seq = [(k, t, tm) for k in range(3) for t in range(2) for tm in range(8)]
        elif od == 4:
            seq = [(k, t, tm) for t in range(2) for tm in up for k in asc]
        elif od == 6:
            seq = [(k, t, tm) for t in range(2) for tm in up for k in (asc if tm % 2 == 0 else desc)]
        elif od == 7:
            seq = []
            for tm in up:
                ts = (0, 1) if tm % 2 == 0 else (1, 0)
                seq += [(k, ts[0], tm) for k in asc] + [(k, ts[1], tm) for k in desc]
        elif od == 9:
            seq = [(k, 0, tm) for tm in up for k in (asc if tm % 2 == 0 else desc)] + \
                  [(k, 1, tm) for tm in down for k in (asc if tm % 2 else desc)]
        elif od == 17:
            seq = [(k, st, tm) for tm in up for k in (asc if tm % 2 == 0 else desc)] + \
                  [(k, st ^ 1, tm) for tm in down for k in (asc if tm % 2 else desc)]
        elif od == 18:
            seq = [(k, 0, tm) for tm in up for k in (0, 1)] + [(k, 1, tm) for tm in down for k in (1, 0)] + \
                  [(2, t, tm) for tm in up for t in ((1, 0) if tm == 0 else (0, 1))]
        elif od == 19:
            seq = [(k, t, tm) for k in range(3) for tm in (up if k != 1 else down) for t in range(2)]
        elif od == 10:
            seq = [(k, t, tm) for t in range(2) for tm in up for k in desc]
        elif od == 11:
            seq = [(k, t, tm) for t in range(2) for tm in up for k in (0, 2, 1)]
        elif od == 12:
            seq = [(k, t, tm) for t in range(2) for tm in up for k in (1, 0, 2)]
        elif od == 13:
            rot = [(0, 1, 2), (2, 0, 1), (1, 2, 0)]
            seq = [(k, t, tm) for t in range(2) for tm in up for k in rot[tm % 3]]
        elif od == 14:
            rot = [(0, 2, 1), (1, 0, 2), (2, 1, 0)]
            seq = [(k, t, tm) for t in range(2) for tm in up for k in rot[tm % 3]]
        elif od == 15:
            seq = [(k, t, tm) for t in range(2) for tm in up for k in ((0, 2, 1) if tm % 2 == 0 else (1, 2, 0))]
        elif od == 16:
            seq = [(k, t, tm) for t in range(2) for tm in up for k in ((2, 0, 1) if tm % 2 == 0 else (1, 0, 2))]
        elif od >= 20:
            out = []
            for tm in up:
                ks = [(0, k) for k in asc] + [(1, k) for k in (asc if od == 20 else desc)]
                if od != 22 and tm % 2:
                    ks = ks[::-1]
                out += [self.mf(SET[s_] + 40 + (k * 2 + st) * 4, SET[s_] + 4 * (tm + k), st, tm) for s_, k in ks]
            return out
        if raw:
            return seq
        M = [(SET[st] + 40 + (k * 2 + t) * 4, SET[st] + 4 * (tm + k), t, tm) for k, t, tm in seq]
        if self.o["swap"]:
            M = [(f, g, t, tm) for g, f, t, tm in M]
        return [self.mf(*m) for m in M]

    def substage(self, st, pre):
        o = self.o
        M = self.mfmas(st)
        R = self.reads(st ^ 1, st ^ 1) if not o["no_reads"] else []
        if o["diag"] & 1024:
            R = [r for r in R if "tr" not in r]
        if o["diag"] & 2048:
            R = [r for r in R if "tr" in r]
        if o["diag"] & 4096:
            R = [r.replace("b64_tr_b16", "b64") for r in R]
        fill = {}
        lb = o["lbar"]
        sp = (o["lastrd"] - lb) / 22.0
        if lb:
            fill[lb - 1] = ["s_waitcnt lgkmcnt(0)", "s_barrier"]
        for i, r in enumerate(R):
            fill.setdefault(lb + int(i * sp), []).append(r)
        pos = 0 if lb else o["lastrd"]
        for i, p in enumerate(pre):
            fill.setdefault(min(pos + i, 47), []).extend(p)
        top = [f"s_waitcnt lgkmcnt({o['topw']})"] if lb else ["s_waitcnt lgkmcnt(0)", "s_barrier"] + ["s_nop 15"] * o["idle"]
        if lb and o["topw"] > 6:
            fill.setdefault({7: 20, 8: 19, 9: 14, 10: 13, 11: 8, 12: 7}[o["topw"]] - 1, []).append("s_waitcnt lgkmcnt(6)")
        out = []
        for i, m in enumerate(M):
            out.append((top if i == 0 else []) + ([m] if not o["no_mfma"] else []) + fill.get(i, []))
        return out

    def first(self, pre, nm_=48):
        e = self.e
        o = self.o
        seq = self.mfmas(0, raw=True)
        todo, queue, seen = [], [], set()
        for k, t, tm in seq:
            for nm in (("G", k, t), ("F", tm + k)):
                if nm not in todo:
                    todo.append(nm)

        def rd():
            nm = todo.pop(0)
            ops = self.rd_g(SET[0] + 40 + (nm[1] * 2 + nm[2]) * 4, nm[1], nm[2]) if nm[0] == "G" else \
                self.rd_f(SET[0] + 4 * nm[1], 0, nm[1])
            for op in ops:
                e(op)
                queue.append(nm)
        for _ in range(o["fpre"]):
            rd()
        R = self.reads(1, 1)
        bar = o["fbar"]
        sp = (o["flast"] - bar) / 22.0
        fill = {bar - 1: ["v_add_u32 v8, s53, v8", "v_add_u32 v9, s53, v9"], bar: ["s_waitcnt lgkmcnt(0)", "s_barrier"]}
        for i, r in enumerate(R):
            fill.setdefault(bar + int(i * sp), []).append(r)
        for i, p in enumerate(pre):
            fill.setdefault(min(o["flast"] + i * 2 // 3, nm_ - 1), []).extend(p)
        for i, (k, t, tm) in enumerate(seq[:nm_]):
            idx = max((q for q, tg in enumerate(queue) if tg in (("G", k, t), ("F", tm + k))), default=-1)
            if idx >= 0:
                n = min(len(queue) - 1 - idx, 14)
                e(f"s_waitcnt lgkmcnt({n})")
                del queue[:len(queue) - n]
            m = self.mf(SET[0] + 40 + (k * 2 + t) * 4, SET[0] + 4 * (tm + k), t, tm)
            if (t, tm) not in seen:
                seen.add((t, tm))
                m = m[:m.rindex(",")] + (", v[40:43]" if o["off"] else ", 0")
            e(m)
            if todo:
                assert i < bar - 1
                rd()
            if i == bar:
                del queue[:]
            for x in fill.get(i, []):
                e(x)

    def epi_ops(self, un):
        tm, t = un >> 1, un & 1
        a = ACC + un * 4
        tb = TMP + 4 * t
        L = []
        if not self.o["no_epi"] and not (self.o["pk"] == 1 or (self.o["pk"] == 2 and un == 15)):
            for r in range(4):
                L.append(f"v_fma_f32 v{a + r}, v{a + r}, v{16 + 4 * t + r}, v{24 + 4 * t + r}")
            for r in range(4):
                L.append(f"v_exp_f32 v{tb + r}, v{a + r}")
            for r in range(4):
                L.append(f"v_fma_f32 v{tb + r}, v{tb + r}, s42, s42")
            for r in range(4):
                L.append(f"v_rcp_f32 v{tb + r}, v{tb + r}")
            for r in range(4):
                L.append(f"v_mul_f32 v{tb + r}, v{tb + r}, v{a + r}")
            for p in range(2):
                L.append(f"v_cvt_pk_bf16_f32 v{a + p}, v{tb + 2 * p}, v{tb + 2 * p + 1}")
        elif not self.o["no_epi"]:
            for p in range(2):
                q = 4 * t + 2 * p
                L.append(f"v_pk_fma_f32 v[{a + 2 * p}:{a + 2 * p + 1}], v[{a + 2 * p}:{a + 2 * p + 1}], v[{16 + q}:{17 + q}], v[{24 + q}:{25 + q}]")
            for r in range(4):
                L.append(f"v_exp_f32 v{tb + r}, v{a + r}")
            for p in range(2):
                L.append(f"v_pk_fma_f32 v[{tb + 2 * p}:{tb + 2 * p + 1}], v[{tb + 2 * p}:{tb + 2 * p + 1}], s[42:43], s[42:43]")
            for r in range(4):
                L.append(f"v_rcp_f32 v{tb + r}, v{tb + r}")
            for p in range(2):
                L.append(f"v_pk_mul_f32 v[{tb + 2 * p}:{tb + 2 * p + 1}], v[{tb + 2 * p}:{tb + 2 * p + 1}], v[{a + 2 * p}:{a + 2 * p + 1}]")
            for p in range(2):
                L.append(f"v_cvt_pk_bf16_f32 v{a + p}, v{tb + 2 * p}, v{tb + 2 * p + 1}")
        if self.o["direct"] and tm == 7:
            if t:
                L = [x.replace(f"v_cvt_pk_bf16_f32 v{a},", f"v_cvt_pk_bf16_f32 v{a - 2},")
                      .replace(f"v_cvt_pk_bf16_f32 v{a + 1},", f"v_cvt_pk_bf16_f32 v{a - 1},") for x in L]
                L += ["s_nop 0", f"v_permlane16_swap_b32 v{a - 4}, v{a - 2}", f"v_permlane16_swap_b32 v{a - 3}, v{a - 1}"]
                if not self.o["no_store"]:
                    L.append(f"buffer_store_dwordx4 v[{a - 4}:{a - 1}], v0, s[12:15], 0 offen {self.o['saux']}")
        elif self.o["diag"] & 2:
            L.append("ds_read_b32 v12, v1")
        elif self.o["wpair"]:
            if t:
                L.insert(len(L) - 2, f"DS ds_write_b64 v1, v[{a - 4}:{a - 3}] offset:{tm * 4096}")
                L.append(f"ds_write_b64 v11, v[{a}:{a + 1}] offset:{tm * 4096}")
        else:
            L.append(f"ds_write_b64 v{11 if t else 1}, v[{a}:{a + 1}] offset:{tm * 4096}")
        return L

    def tail(self):
        e = self.e
        o = self.o
        nt = o["nt"]
        seq = []
        for u in range(27, 32 - nt):
            for tm in range(8):
                ts = (0, 1) if tm % 2 else (1, 0)
                seq += [(u, k, ts[0], tm) for k in (0, 1, 2)] + [(u, k, ts[1], tm) for k in (2, 1, 0)]
        done_at = {}
        for tm in range(8):
            if o["alt"]:
                for u in range(32 - nt, 32):
                    seq += [(u, k, t, tm) for k in range(3) for t in range(2)]
                done_at[2 * tm] = len(seq) - 2
                done_at[2 * tm + 1] = len(seq) - 1
                continue
            lo = 32 - nt
            if tm == 0 and nt == 4 and o["split0"]:
                seq += [(u, k, t, tm) for t in range(2) for u in (28, 29) for k in range(3)]
                lo = 30
            for t in range(2):
                for u in range(lo, 32):
                    seq += [(u, k, t, tm) for k in range(3)]
                done_at[2 * tm + t] = len(seq) - 1
        first, last = {}, {}
        for i, (u, k, t, tm) in enumerate(seq):
            for nm in (("G", u, k, t), ("F", u, tm + k)):
                first.setdefault(nm, i)
                last[nm] = i
        reg = {}
        for dl in range(10):
            reg[("F", 27, dl)] = SET[1] + 4 * dl
        for k in range(3):
            for t in range(2):
                reg[("G", 27, k, t)] = SET[1] + 40 + (k * 2 + t) * 4
        free = list(range(SET[0], SET[0] + 64, 4)) + list(range(TMP + 8, 64, 4)) + [12]
        todo = sorted((nm for nm in first if nm not in reg), key=lambda nm: first[nm])
        queue = []

        def lds(op, tag=None):
            e(op)
            queue.append(tag)

        def wait_for(tags):
            idx = max((i for i, tg in enumerate(queue) if tg in tags), default=-1)
            if idx >= 0:
                n = min(len(queue) - 1 - idx, 14)
                e(f"s_waitcnt lgkmcnt({n})")
                del queue[:len(queue) - n]

        half = []

        def issue_read(nm):
            if nm[0] == "P":
                i = nm[1]
                lds(f"ds_read_b128 v[{16 + 4 * i}:{19 + 4 * i}], v10 offset:{(i >> 1) * 256 + (i & 1) * 64}", nm)
                return
            r = free.pop(0)
            reg[nm] = r
            u = nm[1]
            if nm[0] == "F":
                ops = self.rd_f(r, u & 1, nm[2], XBUF * ((u >> 1) - 14))
            else:
                ops = self.rd_g(r, nm[2], nm[3], WBUF * (u % NWB))
            if not o["no_reads"]:
                lds(ops[0], nm)
                half.extend((op, nm) for op in ops[1:])

        e("s_waitcnt lgkmcnt(0)")
        self.stamp(3)
        if not o["lbar"]:
            e("s_barrier")
        chk, pchk = o["tchk"], o["pchk"]
        head = {0: [f"v_subrev_u32 v8, {3 * WBUF}, v8", "s_mov_b32 s43, s42"], 1: [f"v_subrev_u32 v9, {3 * WBUF}, v9"],
                2: ["v_add_u32 v5, s55, v5"], 3: ["v_add_u32 v6, s55, v6"], 4: ["v_add_u32 v7, s55, v7"],
                chk: ["s_barrier"]}
        avail = {28: 1, 29: 5, 30: chk, 31: chk}
        if o["lbar"]:
            tb = o["tbar"]
            head = {0: [f"v_subrev_u32 v8, {2 * WBUF}, v8", f"v_subrev_u32 v9, {2 * WBUF}, v9", "s_mov_b32 s43, s42"],
                    1: ["v_add_u32 v2, s47, v2", "v_add_u32 v3, s47, v3"], 2: ["v_add_u32 v4, s47, v4", "v_add_u32 v5, s47, v5"],
                    3: ["v_add_u32 v6, s47, v6", "v_add_u32 v7, s47, v7"],
                    tb: ["s_barrier"], chk: ["s_barrier"]}
            avail = {28: tb + 1, 29: tb + 1, 30: chk, 31: chk}
        bar_at = {}
        quiet = -1
        bars = [int(ch) for ch in str(o["bars"])]
        cost = lambda x: 8 if ("v_exp" in x or "v_rcp" in x) else 12 if "ds_write" in x else 4
        cur, pend, nxt = [], [], 0
        mark = {}
        credit = 0.0
        per_gap = sum(cost(x) for x in self.epi_ops(0) + self.epi_ops(1)) / (6.0 * nt) * o['pace'] + 0.5
        stalls = []
        for i, (u, k, t, tm) in enumerate(seq):
            g, f = ("G", u, k, t), ("F", u, tm + k)
            while g in todo or f in todo or any(nm == g for _, nm in half):
                stalls.append(i)
                if half:
                    lds(*half.pop(0))
                else:
                    issue_read(todo.pop(0))
            wait_for({g, f})
            if not o["no_mfma"]:
                e(self.mf(reg[g], reg[f], t, tm))
            if nxt < 16 and done_at[nxt] == i:
                mark[nxt] = len(self.l)
                pend.append(nxt)
                nxt += 1
            for nm in (g, f):
                if last[nm] == i:
                    free.append(reg[nm])
            for x in head.get(i, []):
                e(x)
            if i in bar_at and not o["latebar"]:
                wait_for({bar_at.pop(i)})
                e("s_barrier")
            wnext = cur and any(x[:2].lower() == "ds" for x in cur[:3])
            if i >= 1 and i != chk and not (wnext and not half) and i > quiet:
                if half:
                    lds(*half.pop(0))
                    credit -= 4 * bool(cur or pend)
                else:
                    hold = min([first[nm] for nm in todo if nm[0] != "P" and i < avail[nm[1]]], default=999)
                    cand = [nm for nm in todo if (i >= pchk if nm[0] == "P" else
                                                  i >= avail[nm[1]] and first[nm] <= hold + o["hold"])]
                    if cand and (cand[0][0] == "P" or free):
                        todo.remove(cand[0])
                        issue_read(cand[0])
                        credit -= 4 * bool(cur or pend)
            if cur or pend:
                credit += per_gap
            while credit > 0:
                if not cur:
                    if not pend or len(self.l) - mark[pend[0]] < 8:
                        credit = 0
                        break
                    curun = pend.pop(0)
                    cur = self.epi_ops(curun)
                x = cur.pop(0)
                if x.startswith("DS "):
                    lds(x[3:])
                elif x.startswith("ds_"):
                    lds(x, ("W", curun))
                    if curun & 1:
                        free.extend([ACC + 4 * curun - 4, ACC + 4 * curun])
                    quiet = i + o["wq"]
                    if curun & 1 and curun >> 1 in bars and not o["diag"] & 1:
                        bar_at[i + o["blag"]] = ("W", curun)
                else:
                    e(x)
                credit -= cost(x)
        assert not todo
        if stalls:
            print("tail: late reads at", stalls, file=sys.stderr)
        rest = [(curun, cur)] if cur else []
        rest += [(un, None) for un in pend]
        for un, ops in rest:
            if ops is None:
                gap = len(self.l) - mark[un]
                if gap < 8:
                    e(f"s_nop {7 - gap}")
                ops = self.epi_ops(un)
            for x in ops:
                if x.startswith("DS "):
                    lds(x[3:])
                elif x.startswith("ds_"):
                    for key in sorted(bar_at):
                        wait_for({bar_at.pop(key)})
                        e("s_barrier")
                    lds(x, ("W", un))
                    if un & 1 and un >> 1 in bars and not o["diag"] & 1:
                        bar_at[un] = ("W", un)
                else:
                    e(x)
        for key in sorted(bar_at):
            wait_for({bar_at.pop(key)})
            e("s_barrier")

    def compute(self):
        e = self.e
        o = self.o
        if o["pages"]:
            e(".p2align 12")
            self.lab("L_page1")
        self.lab("L_compute")
        e("s_and_b32 s38, s18, 1")
        e("s_bfe_u32 s39, s18, 0x10001")
        e("v_and_b32 v10, 15, v0")
        e("v_lshrrev_b32 v16, 4, v0")
        if o["cpf"]:
            e("s_getpc_b64 s[20:21]")
            e("v_lshlrev_b32 v12, 7, v0")
            e("v_mov_b32 v13, s21")
            e("v_add_co_u32 v12, vcc, s20, v12")
            e("s_cmp_lt_u32 s36, %d" % o["cpf"])
            e("s_cselect_b32 s3, s18, 1")
            e("v_addc_co_u32 v13, vcc, 0, v13, vcc")
            e("s_and_b32 s3, s3, 3")
            e("s_cbranch_scc1 L_nocpf")
            e("s_mov_b32 exec_hi, (1 << (((L_end - L_compute) >> 7) - 32)) - 1")
            e("global_load_dword v14, v[12:13], off")
            e("s_mov_b32 exec_hi, -1")
            self.lab("L_nocpf")
        self.pi(17, 10, 18, 19)
        e("v_lshrrev_b32 v18, 2, v10")
        e("v_lshl_add_u32 v19, v16, 3, v18")
        e("v_lshlrev_b32 v19, 7, v19")
        e("v_and_b32 v20, 3, v10")
        e("v_lshl_add_u32 v19, v20, 3, v19")
        e("v_lshrrev_b32 v18, 1, v18")
        e("v_and_b32 v20, 1, v16")
        e("v_lshl_or_b32 v18, v20, 1, v18")
        e("s_lshl_b32 s45, s39, 1")
        e("v_xor_b32 v18, s45, v18")
        e("v_lshl_add_u32 v19, v18, 5, v19")
        e(f"v_add_u32 v8, {WBASE}, v19")
        e("v_xor_b32 v9, 32, v8")
        e("s_lshl_b32 s3, s38, 11")
        e(f"s_add_u32 s46, s3, {XBUF}")
        if o["rotk"]:
            e("s_bfe_u32 s47, s16, 0x10008")
            e("v_lshl_or_b32 v21, s47, 2, v16")
        for idx, sh in ((0, 0), (1, 1), (2, -1)):
            e(f"v_add_u32 v18, {sh}, v17")
            e("v_bfe_u32 v19, v18, 1, 3")
            e(f"v_xor_b32 v19, v19, v{21 if o['rotk'] else 16}")
            e("v_lshlrev_b32 v19, 4, v19")
            e(f"v_lshl_add_u32 v19, v{17 if sh == -1 else 18}, 7, v19")
            e(f"v_add_u32 v{2 + idx}, s46, v19")
            e(f"v_xor_b32 v{5 + idx}, 64, v{2 + idx}")
        e("v_lshrrev_b32 v18, 1, v16")
        e("v_lshl_add_u32 v18, s39, 2, v18")
        e("v_and_b32 v19, 7, v10")
        e("v_xor_b32 v18, v18, v19")
        e("v_lshlrev_b32 v18, 4, v18")
        e("v_lshl_add_u32 v18, v20, 3, v18")
        e("v_lshl_add_u32 v18, v10, 7, v18")
        e(f"s_add_u32 s3, s3, {STG}")
        e("v_add_u32 v1, s3, v18")
        e("v_xor_b32 v11, 32, v1")
        if o["direct"]:
            e("s_lshl_b32 s3, s38, 7")
            e("s_add_u32 s3, s3, s16")
            e("s_add_u32 s3, s3, 7")
            e("s_lshl_b32 s3, s3, 10")
            e("s_lshl_b32 s45, s39, 5")
            e("s_add_u32 s3, s3, s45")
            e("s_add_u32 s3, s3, s17")
            e("s_lshl_b32 s3, s3, 1")
            e("v_lshl_add_u32 v18, v20, 5, s3")
            e("v_lshrrev_b32 v19, 1, v16")
            e("v_lshl_add_u32 v18, v19, 4, v18")
            e("v_lshl_add_u32 v0, v17, 14, v18")
            e("s_waitcnt lgkmcnt(0)")
        e("s_lshl_b32 s3, s39, 6")
        e(f"s_add_u32 s3, s3, {PB}")
        e("v_and_b32 v18, 4, v10")
        e("v_add_lshl_u32 v18, v18, v16, 2")
        e("v_and_or_b32 v18, v10, 3, v18")
        e("v_lshl_add_u32 v10, v18, 1, s3")
        e("v_mov_b64 v[24:25], 0")
        e("v_mov_b64 v[26:27], 0")
        if o["fall"]:
            seq = self.mfmas(0, raw=True)
            for t, tm in sorted({(t, tm) for k, t, tm in seq[o["brpos"]:]} - {(t, tm) for k, t, tm in seq[:o["brpos"]]}):
                for h in range(2):
                    r = ACC + (tm * 2 + t) * 4 + 2 * h
                    e(f"v_mov_b64 v[{r}:{r + 1}], 0")
            for _ in range(o["lpad"]):
                e("s_nop 0")
        e("s_mov_b32 s40, 1")
        e("s_mov_b32 s41, 1")
        e("s_mov_b32 s42, 0xbfb8aa3b")
        e(f"s_movk_i32 s53, {WBUF}")
        e(f"s_mov_b32 s54, {XBUF}")
        e(f"s_mov_b32 s46, {-(NWB - 1) * WBUF & 0xffffffff:#x}")
        e(f"s_mov_b32 s47, {-(NXB - 1) * XBUF & 0xffffffff:#x}")
        e("s_mov_b32 s52, 12")
        if o["prio_c"]:
            e(f"s_setprio {o['prio_c']}")
        e("s_barrier")
        self.params()
        self.stamp(1)
        e("s_barrier")
        self.stamp(2)

        def wadv():
            return [["s_add_u32 s41, s41, 1", f"s_cmp_eq_u32 s41, {NWB}"],
                    ["s_cselect_b32 s43, s46, s53", "s_cselect_b32 s41, 0, s41"],
                    ["v_add_u32 v8, s43, v8"], ["v_add_u32 v9, s43, v9"]]

        pre0 = wadv() + [["s_add_u32 s40, s40, 1", f"s_cmp_eq_u32 s40, {NXB}"],
                         ["s_cselect_b32 s55, s47, s54", "s_cselect_b32 s40, 0, s40"]] + \
            [[f"v_add_u32 v{2 + i}, s55, v{2 + i}"] for i in range(3)]
        pre1 = wadv() + [[f"v_add_u32 v{5 + i}, s55, v{5 + i}"] for i in range(3)]
        if o["lbar"]:
            assert o["topw"] <= 6 or o["lbar"] > {7: 20, 8: 19, 9: 14, 10: 13, 11: 8, 12: 7}[o["topw"]]
            self.first([], 48)
            body = self.substage(1, pre0) + self.substage(0, pre1 + [["s_sub_u32 s52, s52, 1"]])
        else:
            self.first(pre0, o["brpos"] if o["fall"] else 48)
            body = self.substage(1, pre1) + self.substage(0, pre0 + [["s_sub_u32 s52, s52, 1"]])
        cut = 48 + o["brpos"]
        if not o["fall"]:
            e("s_branch L_centry")
        if o["pages"]:
            self.lab("L_touch0")
        if not o["fall"]:
            e(".p2align 6")
            for _ in range(o["lpad"]):
                e("s_nop 0")
        self.lab("L_cloop")
        for gap in body[cut:]:
            for x in gap:
                e(x)
        self.lab("L_centry")
        for gap in body[:cut]:
            for x in gap:
                e(x)
        e("s_cbranch_scc0 L_cloop")
        for gap in body[cut:]:
            for x in gap:
                e(x)
        self.lab("L_tail")
        self.tail()
        self.lab("L_tail_end")
        if o["stamps"] and o["direct"]:
            e("s_waitcnt vmcnt(0)")
            e("v_mbcnt_lo_u32_b32 v0, -1, 0")
            e("v_mbcnt_hi_u32_b32 v0, -1, v0")
        self.stamp(4)
        self.dump_stamps(5, "c")
        e("s_endpgm")

    def gen(self):
        e = self.e
        o = self.o
        self.l.append(HEADER.rstrip())
        self.l.append(f"; @launch grid=(256,1,1) block=(512,1,1) lds={LDS}")
        self.l.append(DOC)
        self.l.append('.amdgcn_target "amdgcn-amd-amdhsa--gfx950"')
        self.l.append(".text")
        self.l.append(f".globl {KN}")
        if o["pages"]:
            self.l.append(".p2align 12")
        self.l.append(".p2align 8")
        self.l.append(f".type {KN},@function")
        self.lab(KN)
        e("s_cmp_ge_u32 s2, 256")
        e("s_cbranch_scc1 L_end")
        if o["stamps"]:
            e("s_memtime s[60:61]")
            e("s_memrealtime s[62:63]")
        e("s_load_dwordx2 s[8:9], s[0:1], 8")
        e("s_load_dwordx2 s[4:5], s[0:1], 0")
        e("v_readfirstlane_b32 s18, v0")
        e("v_and_b32 v0, 63, v0")
        e("s_lshr_b32 s17, s2, 5")
        e("s_and_b32 s20, s2, 1")
        e("s_lshl3_add_u32 s17, s20, s17")
        e("s_bfe_u32 s22, s2, 0x20001")
        e("s_bfe_u32 s16, s2, 0x20003")
        e("s_lshl2_add_u32 s16, s22, s16")
        e("s_lshr_b32 s18, s18, 6")
        e("s_lshl_b32 s17, s17, 6")
        e("s_lshl_b32 s16, s16, 8")
        e("s_cmp_ge_u32 s18, 4")
        if o["pages"] >= 2:
            e("s_cbranch_scc0 L_loader")
            self.l.append("@DISPATCH")
            e("s_branch L_compute")
        else:
            e(("s_cbranch_scc1" if o["lfirst"] else "s_cbranch_scc0") + " L_compute")
        self.loader()
        self.compute()
        for f in self.late:
            f()
        self.lab("L_end")
        e("s_endpgm")
        self.l.append(f""".section .rodata,"a"
.p2align 6
.amdhsa_kernel {KN}
  .amdhsa_next_free_vgpr 256
  .amdhsa_next_free_sgpr 96
  .amdhsa_accum_offset 256
  .amdhsa_group_segment_fixed_size 0
  .amdhsa_kernarg_size 72
  .amdhsa_user_sgpr_count 2
  .amdhsa_user_sgpr_kernarg_segment_ptr 1
  .amdhsa_system_sgpr_workgroup_id_x 1
.end_amdhsa_kernel""")
        return self.finish()

    def finish(self):
        L = "\n".join(self.l).split("\n")
        if self.o["pages"] < 2:
            return "\n".join(L) + "\n"
        import re
        import subprocess
        i0 = L.index("L_touch0:")
        it, ie = L.index("L_tail:"), L.index("L_tail_end:")
        probe = []
        for i, x in enumerate(L):
            if it < i <= ie:
                probe.append(f"L_pos{i}:")
            if x != "@DISPATCH":
                probe.append(x)
        open("probe.s", "w").write("\n".join(probe) + "\n")
        subprocess.run(["clang", "-x", "assembler", "-target", "amdgcn-amd-amdhsa", "-mcpu=gfx950",
                        "-c", "probe.s", "-o", "probe.o"], check=True)
        sym = subprocess.run(["llvm-readelf", "-s", "probe.o"], capture_output=True, text=True).stdout
        addr = {m.group(2): int(m.group(1), 16) for m in re.finditer(r"^\s*\d+: ([0-9a-f]+)\s.*\s(\S+)$", sym, re.M)}
        base = addr["L_page1"]
        win = self.o["win"]
        out, n, covered = [], 1, (addr["L_touch0"] - base) // 64 * 64 + win
        if not self.o["touch1"]:
            covered = 4096
        for i, x in enumerate(L):
            if it < i < ie:
                pos = addr[f"L_pos{i}"] - base + 4 * (n - 1)
                if pos >= covered and n < 4:
                    out += [f"L_touch{n}:", "    s_cbranch_scc0 L_compute"]
                    n += 1
                    covered = min(pos // 64 * 64 + win, (pos // 4096 + 1) * 4096)
            out.append(x)
        disp = []
        for k, t in enumerate([f"L_touch{k}" for k in range(0 if self.o["touch1"] else 1, n)]):
            assert k < 3
            disp += [f"    s_cmp_lg_u32 s18, {4 + k}", f"    s_cbranch_scc0 {t}"]
        j = out.index("@DISPATCH")
        out[j:j + 1] = disp
        return "\n".join(out) + "\n"


if __name__ == "__main__":
    out = sys.argv[1]
    opts = {}
    for a in sys.argv[2:]:
        k, v = a.split("=")
        if k == "bars":
            opts[k] = v
            continue
        try:
            v = int(v)
        except ValueError:
            try:
                v = float(v)
            except ValueError:
                v = v.replace("+", " ")
        opts[k] = v
    open(out, "w").write(G(**opts).gen())
```

```python
import sys

HEADER = open("standalone__batchnorm__prompt.s.ref").read().split("; Override launch")[0]
KN = "standalone__batchnorm__prompt_kernel"

PS = 33 * 128
XBUF = 263 * 128
NXB = 3
WBUF = 3 * 32 * 128
NWB = 5
WBASE = NXB * XBUF
PB = WBASE + NWB * WBUF
LDS = PB + 512
STG = 2 * XBUF

ACC = 64
SET = (128, 192)
TMP = 32


def cnt(i):
    return (3, 5, 4, 3)[i % 4]


def need(u):
    return 2 * u + 3 if u % 2 == 0 else 2 * u + 2


DOC = """;
; One workgroup owns a 256 x 64 output tile. Waves 0-3 stream x and w into LDS rings with LDS-DMA loads, waves 4-7
; each compute 128 x 32 with v_mfma_f32_16x16x32_bf16 (A = w^T through transposed LDS reads, B = x).
; One barrier per 32 channels. The 64-channel stages are visited in an order that differs between workgroup groups, so
; in LDS and written as whole 128-byte lines by waves 0-3."""

NOTES = {
    "L_loader": "DMA waves: addresses, first loads",
    "L_lloop": "DMA waves: steady state, two 64-channel stages per trip",
    "L_store": "DMA waves: store the staged output rows",
    "L_compute": "MFMA waves: addresses, first 32-channel step",
    "L_cloop": "MFMA waves: steady state, two 32-channel steps per trip",
    "L_tail": "MFMA waves: last five steps and the epilogue; the scc0 branches are only taken by the entry-time jumps that pull this code into the instruction cache",
}


class G:
    def __init__(self, **o):
        self.o = dict(stamps=0, trace=0, no_dma=0, no_reads=0, no_mfma=0, no_epi=0, no_store=0,
                      lastrd=33, prio_c=1, prio_l=0, lfirst=1, order=17, xaux="", waux="", saux="sc1", xmap=0,
                      probe="", xor=1, nt=4, fpre=7, fbar=20, flast=40, hold=12, split0=1, touch1=0, direct=0, bars='01234567', wq=1, modeb=0, fall=0, off=5, tchain='c11', tord='032w1', tst='', pbar=14, rord=0, lbar=0, topw=6, tbar=4, idle=0, nsc=8, saux2='', pat='32,39,43,53', pwg=-1, rrate=0.8, x0=4, pace=1.04, pk=2, alt=0, lead=6, cum="21,27,35",
                      rotx=1, rotk=1, tchk=34, endq="213,222,231,240", pchk=50, blag=7, cpf=0, pstamp=0, brpos=45, pages=2, lpad=0, win=1280, latebar=0, diag=0, wpair=1, cmode=0, swap=0, base="_456789AB0123CDEF", mask="_1111333333333333", maskb="_0000000000000000")
        self.o.update(o)
        self.l = []
        self.nlab = 0
        self.late = []
        self.late_table = None
        self.inloop = 0
        self.flow = 0

    def e(self, s):
        self.l.append("    " + s)

    def lab(self, s):
        if s in NOTES:
            self.l.append("; " + NOTES[s])
        self.l.append(s + ":")

    def stamp(self, i):
        pr = self.o["probe"].split(",")
        if len(pr) == 5 and i not in (int(pr[1]), int(pr[2]), 4) or self.o["tst"] and i in (1, 2, 3):
            return
        if self.o["stamps"]:
            self.e(f"s_memtime s[{60 + 4 * i}:{61 + 4 * i}]")
            self.e(f"s_memrealtime s[{62 + 4 * i}:{63 + 4 * i}]")
            self.e("s_waitcnt lgkmcnt(0)")

    def lbarrier(self):
        e = self.e
        e("s_barrier")
        if self.o["trace"]:
            e("s_memtime s[56:57]")
            e("s_memrealtime s[80:81]")
            e("s_mov_b32 s90, m0")
            e("s_mov_b32 m0, s55")
            e("s_waitcnt lgkmcnt(0)")
            e("v_writelane_b32 v62, s56, m0")
            e("v_writelane_b32 v63, s80, m0")
            e("s_add_u32 s55, s55, 1")
            e("s_mov_b32 m0, s90")

    def dump_stamps(self, n, role):
        if not self.o["stamps"]:
            return
        e = self.e
        if self.o["probe"]:
            prole, a, z, kind, mult = self.o["probe"].split(",")
            if prole == role:
                off = 60 if kind == "c" else 62
                e(f"s_sub_u32 s3, s{off + 4 * int(z)}, s{off + 4 * int(a)}")
                if kind == "g":
                    e("v_mov_b32 v50, 0")
                    e("global_load_dword v51, v50, s[92:93] sc1")
                    e("s_waitcnt vmcnt(0)")
                    e("v_readfirstlane_b32 s3, v51")
                    e("s_not_b32 s3, s3")
                    e(f"s_sub_u32 s3, s{62 + 4 * int(z)}, s3")
                if kind != "c":
                    e(f"s_mul_i32 s3, s3, {mult}")
                elif int(mult) < 0:
                    e(f"s_lshl_b32 s3, s3, {-int(mult)}")
                else:
                    e(f"s_lshr_b32 s3, s3, {mult}")
                e("s_min_u32 s3, s3, 50000")
                if self.o["pwg"] >= 0:
                    e("s_and_b32 s56, s2, 7")
                    e(f"s_cmp_eq_u32 s56, {self.o['pwg']}")
                    e("s_cselect_b32 s3, s3, 0")
                self.lab(f"L_spin_{role}")
                e("s_memrealtime s[56:57]")
                e("s_waitcnt lgkmcnt(0)")
                e(f"s_sub_u32 s56, s56, s{62 + 4 * (n - 1)}")
                e("s_cmp_lt_u32 s56, s3")
                e(f"s_cbranch_scc1 L_spin_{role}")
            return
        e("s_load_dwordx2 s[34:35], s[0:1], 64")
        e("s_waitcnt lgkmcnt(0)")
        e("v_mov_b32 v40, 0")
        for i in range(n):
            e(f"v_writelane_b32 v40, s{60 + 4 * i}, {2 * i}")
            e(f"v_writelane_b32 v40, s{62 + 4 * i}, {2 * i + 1}")
        for i in range(4):
            e(f"v_writelane_b32 v40, s{86 + i}, {12 + i}")
        e("s_lshl_b32 s3, s2, 3")
        e("s_and_b32 s18, s18, 3")
        if role == "l":
            e("s_add_u32 s18, s18, 4")
        e("s_add_u32 s3, s3, s18")
        e("s_lshl_b32 s3, s3, 6")
        e("v_lshl_add_u32 v41, v0, 2, s3")
        if self.o["trace"] and role == "l":
            e("s_lshl_b32 s3, s3, 2")
            e("s_add_u32 s3, s3, 0x100000")
            e("v_lshl_add_u32 v42, v0, 2, s3")
            e("v_subrev_u32 v62, s60, v62")
            e("v_subrev_u32 v63, s62, v63")
            e("v_lshl_or_b32 v63, v63, 18, v62")
            e("global_store_dword v42, v63, s[34:35]")
        e("s_mov_b64 exec, 0xffff")
        e("global_store_dword v41, v40, s[34:35]")

    def issue_x(self, half):
        e = self.e
        aux = self.o["xaux"]
        self.hooks.pop("x", lambda: None)()
        if self.o["no_dma"]:
            self.hooks.pop("halo", lambda: None)()
        if not self.o["no_dma"] and not (self.o["diag"] & 8 and self.inloop):
            e(f"s_add_u32 m0, s41, s{86 + half}")
            e(f"s_add_u32 s45, s40, s{88 + half}")
            e(f"buffer_load_dwordx4 v2, s[4:7], s45 offen {aux} lds")
            for p in range(1, 4):
                a, b = (45, 46) if p & 1 else (46, 45)
                e("s_add_u32 m0, m0, s54")
                e(f"s_add_u32 s{b}, s{a}, s53")
                e(f"buffer_load_dwordx4 v2, s[4:7], s{b} offen {aux} lds")
            self.hooks.pop("halo", lambda: None)()
            if half == 0 and not self.o["diag"] & 64:
                e("s_add_u32 m0, s41, s44")
                e("s_mov_b64 exec, 15")
                e(f"buffer_load_dwordx4 v3, s[4:7], s40 offen {aux} lds")
                e("s_mov_b64 exec, -1")
        if half == 0:
            return
        e(f"s_add_u32 s41, s41, {XBUF}")
        e("s_cmp_ge_u32 s41, s51")
        e("s_cselect_b32 s41, s50, s41")

    def issue(self, i):
        if i % 4 in (0, 3):
            self.issue_w(i & 1)
        else:
            self.issue_x(i % 4 - 1)

    def issue_w(self, second):
        e = self.e
        if not self.o["no_dma"] and not (self.o["diag"] & 16 and self.inloop):
            aux = self.o["waux"]
            e("s_mov_b32 m0, s43")
            e("s_add_u32 s45, s42, s38")
            e(f"buffer_load_dwordx4 v4, s[8:11], s42 offen {aux} lds")
            e("s_add_u32 m0, m0, s39")
            e("s_add_u32 s46, s45, s38")
            e(f"buffer_load_dwordx4 v4, s[8:11], s45 offen {aux} lds")
            e("s_add_u32 m0, m0, s39")
            e(f"s_addk_i32 s43, {WBUF}")
            e(f"buffer_load_dwordx4 v4, s[8:11], s46 offen {aux} lds")
        else:
            e(f"s_addk_i32 s43, {WBUF}")
        e("s_cmp_ge_u32 s43, s49")
        e("s_cselect_b32 s43, s51, s43")
        if second:
            self.hooks.pop("table", lambda: None)()
            e("s_lshr_b64 s[82:83], s[82:83], 4")
            self.stage_offsets()
        else:
            e("s_xor_b32 s42, s42, 0x10000")

    def stage_offsets(self):
        e = self.e
        e("s_and_b32 s3, s82, 15")
        e("s_lshl_b32 s40, s3, 7")
        e("s_lshl_b32 s42, s3, 17")
        e("s_or_b32 s42, s42, s85")

    def params(self):
        e = self.e
        for i in range(4):
            e(f"ds_read_u16_d16_hi v{24 + i}, v10 offset:{128 * i}")
        rnd = ["v_cvt_pk_bf16_f32 v25, v25, v25", "v_lshlrev_b32 v25, 16, v25"]
        L = ["s_waitcnt lgkmcnt(0)", "v_add_f32 v25, 0x3727c5ac, v25"] + rnd + ["v_sqrt_f32 v25, v25", "s_nop 0"] + rnd
        L += ["v_rcp_f32 v25, v25", "s_nop 0"] + rnd + ["v_mul_f32 v25, v26, v25"] + rnd
        if self.o["off"]:
            L += ["v_rcp_f32 v26, v25", f"v_mul_f32 v{TMP}, s42, v25", "v_mul_f32 v26, v27, v26",
                  "v_max_f32_e64 v26, |v24|, |v26|"]
            for sh in (1, 2, 4):
                L += [f"v_mov_b32_dpp v{16 + q}, v{TMP} row_newbcast:{q} row_mask:0xf bank_mask:0xf" for q in {1: (0, 1), 2: (2, 3), 4: (4, 5)}[sh]]
                L += [f"v_min_u32_dpp v26, v26, v26 row_ror:{sh} row_mask:0xf bank_mask:0xf"]
            L += [f"v_mov_b32_dpp v{16 + q}, v{TMP} row_newbcast:{q} row_mask:0xf bank_mask:0xf" for q in (6, 7)]
            L += [f"v_readlane_b32 s{24 + q}, v26, {16 * q}" for q in range(4)]
            L += ["s_min_u32 s24, s24, s25", "s_min_u32 s26, s26, s27", "s_min_u32 s24, s24, s26",
                  "s_min_u32 s24, s24, 0x70000000", "s_and_b32 s24, s24, 0x7f800000",
                  f"s_cselect_b32 s25, {(self.o['off'] << 23) + 0x400000:#x}, 0", "s_add_u32 s24, s24, s25"]
            L += ["v_fma_f32 v27, -v24, v25, v27", "v_fma_f32 v27, -s24, v25, v27", f"v_mul_f32 v{TMP + 1}, s42, v27"]
            L += [f"v_mov_b32 v{r}, s24" for r in range(40, 44)]
        else:
            L += ["v_fma_f32 v27, -v24, v25, v27", f"v_mul_f32 v{TMP}, s42, v25", f"v_mul_f32 v{TMP + 1}, s42, v27", "s_nop 0"]
            L += [f"v_mov_b32_dpp v{16 + q}, v{TMP} row_newbcast:{q} row_mask:0xf bank_mask:0xf" for q in range(8)]
        L += [f"v_mov_b32_dpp v{24 + q}, v{TMP + 1} row_newbcast:{q} row_mask:0xf bank_mask:0xf" for q in range(8)]
        for x in L:
            e(x)

    def pi(self, dst, j, t0, t1):
        e = self.e
        e(f"v_lshlrev_b32 v{dst}, 1, v{j}")
        e(f"v_cmp_lt_u32 vcc, 3, v{j}")
        e(f"v_subrev_u32 v{t0}, 7, v{dst}")
        e(f"v_subrev_u32 v{t1}, 16, v{dst}")
        e(f"v_cndmask_b32 v{dst}, v{dst}, v{t0}, vcc")
        e(f"v_cmp_lt_u32 vcc, 11, v{j}")
        e("s_nop 1")
        e(f"v_cndmask_b32 v{dst}, v{dst}, v{t1}, vcc")

    def loader(self):
        e = self.e
        o = self.o
        self.lab("L_loader")
        if o["prio_l"]:
            e(f"s_setprio {o['prio_l']}")
        base = [int(ch, 16) for ch in o["base"].lstrip("_")]
        mask = [int(ch, 16) for ch in o["mask"].lstrip("_")]
        maskb = [int(ch, 16) for ch in o["maskb"].lstrip("_")]
        for c in range(4):
            for cb in range(4):
                assert sorted(b ^ (c & m) ^ (cb & mb) for b, m, mb in zip(base, mask, maskb)) == list(range(16))
        assert not maskb[0] and o["rotk"] and o["rotx"] == 1 and o["lfirst"]
        pack = lambda v: sum(x << (4 * k) for k, x in enumerate(v))
        e("s_lshl3_add_u32 s3, s18, 16")
        e("s_load_dwordx2 s[12:13], s[0:1], s3")
        e("v_lshrrev_b32 v5, 3, v0")
        e("s_lshl_b32 s47, s18, 2")
        e("v_xor_b32 v6, s47, v0")
        e("s_xor_b32 s84, s22, s20")
        e("v_and_b32 v7, 2, v5")
        e("v_and_b32 v6, 7, v6")
        if mask[0] == 3:
            e(f"s_xor_b32 s3, s84, {base[0]}")
        else:
            e(f"s_and_b32 s3, s84, {mask[0]}")
            e(f"s_xor_b32 s3, s3, {base[0]}")
        e("s_lshl_b32 s85, s2, 13")
        e("v_xor_b32 v7, v7, v6")
        e("s_and_b32 s85, s85, 0x10000")
        e("s_lshl_b32 s42, s3, 17")
        e("v_lshlrev_b32 v7, 4, v7")
        e("s_or_b32 s42, s42, s85")
        e("s_lshl_b32 s50, s18, 10")
        e("v_lshl_add_u32 v4, v5, 11, v7")
        e("s_lshl3_add_u32 s45, s50, s17")
        e(f"s_add_u32 s51, s50, {WBASE}")
        e("v_lshl_add_u32 v4, s45, 1, v4")
        e("s_mov_b32 s10, 0x600000")
        e("s_mov_b32 s11, 0x20000")
        e("s_mov_b32 s43, s51")
        e("s_mov_b32 s38, 0x200000")
        e("s_movk_i32 s39, 4096")
        e(f"s_add_u32 s49, s51, {NWB * WBUF}")
        e("s_lshl_b32 s40, s3, 7")
        e("v_lshl_add_u32 v8, v0, 1, s17")
        e("s_movk_i32 s14, 2048")
        e("s_mov_b32 s15, s11")
        e("v_lshlrev_b32 v8, 1, v8")
        e("s_lshl_b32 s3, s18, 7")
        e(f"s_add_u32 m0, s3, {PB}")
        e("s_mov_b32 exec_hi, 0")
        e("s_waitcnt lgkmcnt(0)")
        self.stamp(1)
        e("buffer_load_dword v8, s[12:15], 0 offen lds")
        e("s_mov_b32 exec_hi, -1")
        if ",g," in o["probe"]:
            e("s_load_dwordx2 s[92:93], s[0:1], 56")
            e("s_not_b32 s3, s62")
            e("v_mov_b32 v50, 0")
            e("v_mov_b32 v51, s3")
            e("s_waitcnt lgkmcnt(0)")
            e("s_mov_b64 exec, 1")
            e("global_atomic_umax v50, v51, s[92:93] sc1")
            e("s_mov_b64 exec, -1")

        def x_setup():
            e("v_lshrrev_b32 v7, 1, v5")
            e("s_mov_b32 s6, 0x800000")
            e("v_xor_b32 v7, v7, v6")
            e("s_mov_b32 s7, s11")
            e("v_lshlrev_b32 v7, 4, v7")
            e("s_lshl4_add_u32 s3, s47, s16")
            e("v_lshl_add_u32 v2, v5, 14, v7")
            e("s_bitcmp1_b32 s17, 6")
            e(f"s_cselect_b32 s86, {4 * PS}, 0")
            e("v_lshl_add_u32 v2, s3, 11, v2")
            e("s_cselect_b32 s88, 0x2000, 0")
            e(f"s_add_u32 s41, s50, {XBUF}")
            e("s_movk_i32 s53, 2048")
            e(f"s_movk_i32 s54, {PS}")

        def halo_setup():
            e(f"s_xor_b32 s87, s86, {4 * PS}")
            e("s_xor_b32 s89, s88, 0x2000")
            e(f"s_movk_i32 s44, {230 * 128}")
            e("s_cmp_lt_u32 s18, 2")
            e("s_cselect_b32 s3, 256, 0")
            e("s_cselect_b32 s23, 256, -1")
            e("s_cselect_b32 s24, 0, 7")
            e(f"s_cmovk_i32 s44, {32 * 128}")
            e("s_add_u32 s3, s3, s16")
            e("s_add_u32 s23, s23, s16")
            e("s_lshl_b32 s23, s23, 11")
            e("s_and_b32 s3, s3, 2047")
            e("s_cselect_b32 s23, s23, 0x80000000")
            e("v_xor_b32 v7, s24, v6")
            e("s_and_b32 s47, s47, 4")
            e("v_lshl_add_u32 v3, v7, 4, s23")
            e("s_lshl4_add_u32 s44, s47, s44")
            e("s_sub_u32 s44, s44, s50")

        def table_setup():
            e("s_mul_i32 s3, s84, 0x11111111")
            for h in range(2):
                m = pack(mask[8 * h:8 * h + 8])
                if m == 0x33333333:
                    e(f"s_xor_b32 s{82 + h}, s3, {pack(base[8 * h:8 * h + 8]):#x}")
                else:
                    e(f"s_and_b32 s{82 + h}, s3, {m:#x}")
                    e(f"s_xor_b32 s{82 + h}, s{82 + h}, {pack(base[8 * h:8 * h + 8]):#x}")
            if any(maskb):
                if o["modeb"] == 0:
                    e("s_and_b32 s84, s84, 1")
                    e("s_lshr_b32 s3, s2, 2")
                    e("s_xor_b32 s3, s3, s2")
                    e("s_bfe_u32 s3, s3, 0x10004")
                    e("s_lshl1_add_u32 s84, s84, s3")
                elif o["modeb"] == 1:
                    e("s_lshl_b32 s3, s20, 1")
                    e("s_xor_b32 s84, s22, s3")
                else:
                    e("s_lshr_b32 s3, s2, 5")
                    e("s_and_b32 s3, s3, 2")
                    e("s_xor_b32 s84, s84, s3")
                e("s_mul_i32 s84, s84, 0x11111111")
                for h in range(2):
                    m = pack(maskb[8 * h:8 * h + 8])
                    if m:
                        e(f"s_and_b32 s3, s84, {m:#x}")
                        e(f"s_xor_b32 s{82 + h}, s{82 + h}, s3")
        self.hooks = {"x": x_setup, "halo": halo_setup, "table": table_setup}
        if o["trace"]:
            e("s_mov_b32 s55, 0")
        st = {"issued": 0, "chunks": []}

        def upto(c):
            while st["issued"] < min(c, 240):
                if not st["chunks"]:
                    keep, self.l = self.l, []
                    pos = st["issued"] % 15
                    self.issue({0: 0, 3: 1, 8: 2, 12: 3}[pos])
                    lines, self.l = self.l, keep
                    n = {0: 3, 3: 5, 8: 4, 12: 3}[pos]
                    cuts = [k + 1 for k, x in enumerate(lines) if x.endswith(" lds")][:n - 1]
                    cuts = cuts + [len(lines)] * (n - len(cuts))
                    st["chunks"] = [lines[a:b] for a, b in zip([0] + cuts, cuts)]
                self.l += st["chunks"].pop(0)
                st["issued"] += 1

        needi = lambda u: 15 * (u // 2) + (15 if u & 1 else 12)
        legal = lambda u: needi(u + 4)

        def step(u):
            nd = needi(29) if u == 28 else needi(u)
            assert nd <= st["issued"]
            e(f"s_waitcnt vmcnt({st['issued'] - nd})")
            self.lbarrier()

        cum = [int(v) for v in str(o["cum"]).split(",")]
        for u, c in enumerate(cum):
            assert c <= legal(max(u - 1, 0))
            if u == 0:
                upto(o["pbar"])
                e(f"s_waitcnt vmcnt({o['pbar'] if not o['no_dma'] else 0})")
                e("s_barrier")
            upto(c)
            step(u)
            if u == 0:
                self.stamp(2)
        u0 = len(cum)
        pat = [int(v) for v in str(o["pat"]).split(",")]
        per = 2 if pat[2] == pat[0] + 15 and pat[3] == pat[1] + 15 else 4
        after = lambda u: 30 * (u // 4) + pat[u % 4]
        assert all(after(u) <= legal(u) for u in range(4))
        assert st["issued"] <= after(u0 - 1)
        upto(after(u0 - 1))
        endq = [int(v) for v in str(o["endq"]).split(",") if v]
        nit = (28 - len(endq) - u0) // per
        e(f"s_mov_b32 s52, {nit - 1}")
        self.lab("L_lloop")
        self.inloop = 1
        for k in range(per):
            step(u0 + k)
            if o["pstamp"] and (o["pstamp"] - u0) % per == k:
                e(f"s_cmp_lg_u32 s52, {nit - 1 - (o['pstamp'] - u0) // per}")
                e("s_cbranch_scc1 L_nops")
                self.stamp(1)
                self.lab("L_nops")
            upto(after(u0 + k))
        e("s_sub_u32 s52, s52, 1")
        e("s_cbranch_scc0 L_lloop")
        st["issued"] += 15 * per // 2 * (nit - 1)
        e("s_load_dwordx2 s[12:13], s[0:1], 48")
        for u in range(u0 + per * nit, 29):
            step(u)
            k = u - (28 - len(endq))
            c = endq[k] if 0 <= k < len(endq) else after(u)
            assert c <= legal(u)
            upto(c)
        assert st["issued"] == 240
        e("s_waitcnt vmcnt(0) lgkmcnt(0)")
        self.lbarrier()
        self.lab("L_store")
        self.stamp(3)
        self.store_setup()
        if o["diag"] & 32:
            e("s_movk_i32 s53, 2048")
        e("s_mov_b32 s46, 0")
        bars = [int(ch) for ch in str(o["bars"])]
        assert bars[-1] == (6 if o["direct"] else 7)
        tm = 0
        if bars == list(range(8)) and o["nsc"] == 8 and not o["diag"] & 1:
            bars = []
            self.lab("L_sloop")
            self.lbarrier()
            e("ds_read_b128 v[28:31], v17")
            e("v_add_u32 v17, s39, v17")
            e("s_waitcnt lgkmcnt(0)")
            if not o["no_store"]:
                e(f"buffer_store_dwordx4 v[28:31], v16, s[12:15], s46 offen {o['saux']}")
            e("s_add_u32 s46, s46, s53")
            e("s_bitcmp0_b32 s46, 14")
            e("s_cbranch_scc1 L_sloop")
        for b in bars:
            if not o["diag"] & 1:
                self.lbarrier()
            grp = list(range(tm, b + 1))
            for q, t2 in enumerate(grp):
                e(f"ds_read_b128 v[{28 + 4 * q}:{31 + 4 * q}], v17 offset:{t2 * 4096}")
            for q, t2 in enumerate(grp):
                e(f"s_waitcnt lgkmcnt({len(grp) - 1 - q})")
                if not o["no_store"]:
                    e(f"buffer_store_dwordx4 v[{28 + 4 * q}:{31 + 4 * q}], v16, s[12:15], s46 offen {o['saux'] if t2 < o['nsc'] else o['saux2']}")
                e("s_add_u32 s46, s46, s53")
            tm = b + 1
        if o["stamps"]:
            e("s_waitcnt vmcnt(0)")
        self.stamp(4)
        if o["stamps"]:
            e("s_branch L_ldump")

            def late():
                self.lab("L_ldump")
                self.dump_stamps(5, "l")
                e("s_endpgm")
            self.late.append(late)
        else:
            e("s_endpgm")

    def store_setup(self):
        e = self.e
        e("s_mov_b32 s14, 0x800000")
        e("s_mov_b32 s15, 0x20000")
        e("s_and_b32 s3, s18, 1")
        e("v_lshl_add_u32 v6, s3, 3, v5")
        self.pi(7, 6, 8, 9)
        e("s_lshr_b32 s3, s18, 1")
        e("s_lshl_b32 s3, s3, 7")
        e("s_add_u32 s3, s3, s16")
        e("s_lshl_b32 s3, s3, 10")
        e("s_add_u32 s3, s3, s17")
        e("s_lshl_b32 s3, s3, 1")
        e("v_and_b32 v8, 7, v0")
        e("v_lshl_add_u32 v9, v8, 4, s3")
        e("v_lshl_add_u32 v16, v7, 14, v9")
        e("v_xor_b32 v8, v8, v5")
        e("v_lshlrev_b32 v8, 4, v8")
        e("v_lshl_add_u32 v8, v5, 7, v8")
        e(f"s_add_u32 s3, s50, {STG}")
        e("v_add_u32 v17, s3, v8")

    def rd_f(self, r, kk, dl, off=0):
        a = 2 + 3 * kk
        if dl == 0:
            return [f"ds_read_b128 v[{r}:{r + 3}], v{a + 2} offset:{7 * PS - 128 + off}"]
        if dl == 9:
            return [f"ds_read_b128 v[{r}:{r + 3}], v{a + 1} offset:{off}"]
        return [f"ds_read_b128 v[{r}:{r + 3}], v{a} offset:{(dl - 1) * PS + off}"]

    def rd_g(self, r, k, t, off=0):
        return [f"ds_read_b64_tr_b16 v[{r + 2 * hh}:{r + 2 * hh + 1}], v{8 + t} offset:{k * 4096 + hh * 512 + off}"
                for hh in range(2)]

    def reads(self, st, kk):
        base = SET[st]
        if self.o["rord"] == 2:
            return [x for dl in range(10) for x in self.rd_f(base + 4 * dl, kk, dl)] + \
                   [x for t in range(2) for k in range(3) for x in self.rd_g(base + 40 + (k * 2 + t) * 4, k, t)]
        if self.o["lbar"] or self.o["rord"] == 1:
            out, seen = [], set()
            for k, t, tm in self.mfmas(st, raw=True):
                for nm in (("G", k, t), ("F", tm + k)):
                    if nm not in seen:
                        seen.add(nm)
                        out += self.rd_g(base + 40 + (k * 2 + t) * 4, k, t) if nm[0] == "G" else \
                            self.rd_f(base + 4 * nm[1], kk, nm[1])
            return out
        L = []
        for t in range(2):
            for k in range(3):
                L += self.rd_g(base + 40 + (k * 2 + t) * 4, k, t)
        X = []
        for dl in range(10):
            X += self.rd_f(base + 4 * dl, kk, dl)
        out = []
        while L or X:
            if X:
                out.append(X.pop(0))
            if L:
                out.append(L.pop(0))
        return out

    def mf(self, g, f, t, tm):
        acc = ACC + (tm * 2 + t) * 4
        return f"v_mfma_f32_16x16x32_bf16 v[{acc}:{acc + 3}], v[{g}:{g + 3}], v[{f}:{f + 3}], v[{acc}:{acc + 3}]"

    def mfmas(self, st, raw=False):
        od = self.o["order"] if not (raw and self.o["order"] != 17) else 17
        asc, desc = (0, 1, 2), (2, 1, 0)
        up, down = list(range(8)), list(range(7, -1, -1))
        if od == 0:
            seq = [(k, t, tm) for k in range(3) for t in range(2) for tm in range(8)]
        elif od == 4:
            seq = [(k, t, tm) for t in range(2) for tm in up for k in asc]
        elif od == 6:
            seq = [(k, t, tm) for t in range(2) for tm in up for k in (asc if tm % 2 == 0 else desc)]
        elif od == 7:
            seq = []
            for tm in up:
                ts = (0, 1) if tm % 2 == 0 else (1, 0)
                seq += [(k, ts[0], tm) for k in asc] + [(k, ts[1], tm) for k in desc]
        elif od == 9:
            seq = [(k, 0, tm) for tm in up for k in (asc if tm % 2 == 0 else desc)] + \
                  [(k, 1, tm) for tm in down for k in (asc if tm % 2 else desc)]
        elif od == 17:
            seq = [(k, st, tm) for tm in up for k in (asc if tm % 2 == 0 else desc)] + \
                  [(k, st ^ 1, tm) for tm in down for k in (asc if tm % 2 else desc)]
        elif od == 18:
            seq = [(k, 0, tm) for tm in up for k in (0, 1)] + [(k, 1, tm) for tm in down for k in (1, 0)] + \
                  [(2, t, tm) for tm in up for t in ((1, 0) if tm == 0 else (0, 1))]
        elif od == 19:
            seq = [(k, t, tm) for k in range(3) for tm in (up if k != 1 else down) for t in range(2)]
        elif od == 10:
            seq = [(k, t, tm) for t in range(2) for tm in up for k in desc]
        elif od == 11:
            seq = [(k, t, tm) for t in range(2) for tm in up for k in (0, 2, 1)]
        elif od == 12:
            seq = [(k, t, tm) for t in range(2) for tm in up for k in (1, 0, 2)]
        elif od == 13:
            rot = [(0, 1, 2), (2, 0, 1), (1, 2, 0)]
            seq = [(k, t, tm) for t in range(2) for tm in up for k in rot[tm % 3]]
        elif od == 14:
            rot = [(0, 2, 1), (1, 0, 2), (2, 1, 0)]
            seq = [(k, t, tm) for t in range(2) for tm in up for k in rot[tm % 3]]
        elif od == 15:
            seq = [(k, t, tm) for t in range(2) for tm in up for k in ((0, 2, 1) if tm % 2 == 0 else (1, 2, 0))]
        elif od == 16:
            seq = [(k, t, tm) for t in range(2) for tm in up for k in ((2, 0, 1) if tm % 2 == 0 else (1, 0, 2))]
        elif od >= 20:
            out = []
            for tm in up:
                ks = [(0, k) for k in asc] + [(1, k) for k in (asc if od == 20 else desc)]
                if od != 22 and tm % 2:
                    ks = ks[::-1]
                out += [self.mf(SET[s_] + 40 + (k * 2 + st) * 4, SET[s_] + 4 * (tm + k), st, tm) for s_, k in ks]
            return out
        if raw:
            return seq
        M = [(SET[st] + 40 + (k * 2 + t) * 4, SET[st] + 4 * (tm + k), t, tm) for k, t, tm in seq]
        if self.o["swap"]:
            M = [(f, g, t, tm) for g, f, t, tm in M]
        return [self.mf(*m) for m in M]

    def substage(self, st, pre):
        o = self.o
        M = self.mfmas(st)
        R = self.reads(st ^ 1, st ^ 1) if not o["no_reads"] else []
        if o["diag"] & 1024:
            R = [r for r in R if "tr" not in r]
        if o["diag"] & 2048:
            R = [r for r in R if "tr" in r]
        if o["diag"] & 4096:
            R = [r.replace("b64_tr_b16", "b64") for r in R]
        fill = {}
        lb = o["lbar"]
        sp = (o["lastrd"] - lb) / 22.0
        if lb:
            fill[lb - 1] = ["s_waitcnt lgkmcnt(0)", "s_barrier"]
        for i, r in enumerate(R):
            fill.setdefault(lb + int(i * sp), []).append(r)
        pos = 0 if lb else o["lastrd"]
        for i, p in enumerate(pre):
            fill.setdefault(min(pos + i, 47), []).extend(p)
        top = [f"s_waitcnt lgkmcnt({o['topw']})"] if lb else ["s_waitcnt lgkmcnt(0)", "s_barrier"] + ["s_nop 15"] * o["idle"]
        if lb and o["topw"] > 6:
            fill.setdefault({7: 20, 8: 19, 9: 14, 10: 13, 11: 8, 12: 7}[o["topw"]] - 1, []).append("s_waitcnt lgkmcnt(6)")
        out = []
        for i, m in enumerate(M):
            out.append((top if i == 0 else []) + ([m] if not o["no_mfma"] else []) + fill.get(i, []))
        return out

    def first(self, pre, nm_=48):
        e = self.e
        o = self.o
        seq = self.mfmas(0, raw=True)
        todo, queue, seen = [], [], set()
        for k, t, tm in seq:
            for nm in (("G", k, t), ("F", tm + k)):
                if nm not in todo:
                    todo.append(nm)

        def rd():
            nm = todo.pop(0)
            ops = self.rd_g(SET[0] + 40 + (nm[1] * 2 + nm[2]) * 4, nm[1], nm[2]) if nm[0] == "G" else \
                self.rd_f(SET[0] + 4 * nm[1], 0, nm[1])
            for op in ops:
                e(op)
                queue.append(nm)
        for _ in range(o["fpre"]):
            rd()
        R = self.reads(1, 1)
        bar = o["fbar"]
        sp = (o["flast"] - bar) / 22.0
        fill = {bar - 1: ["v_add_u32 v8, s53, v8", "v_add_u32 v9, s53, v9"], bar: ["s_waitcnt lgkmcnt(0)", "s_barrier"]}
        for i, r in enumerate(R):
            fill.setdefault(bar + int(i * sp), []).append(r)
        for i, p in enumerate(pre):
            fill.setdefault(min(o["flast"] + i * 2 // 3, nm_ - 1), []).extend(p)
        for i, (k, t, tm) in enumerate(seq[:nm_]):
            idx = max((q for q, tg in enumerate(queue) if tg in (("G", k, t), ("F", tm + k))), default=-1)
            if idx >= 0:
                n = min(len(queue) - 1 - idx, 14)
                e(f"s_waitcnt lgkmcnt({n})")
                del queue[:len(queue) - n]
            m = self.mf(SET[0] + 40 + (k * 2 + t) * 4, SET[0] + 4 * (tm + k), t, tm)
            if (t, tm) not in seen:
                seen.add((t, tm))
                m = m[:m.rindex(",")] + (", v[40:43]" if o["off"] else ", 0")
            e(m)
            if todo:
                assert i < bar - 1
                rd()
            if i == bar:
                del queue[:]
            for x in fill.get(i, []):
                e(x)

    def epi_ops(self, un):
        tm, t = un >> 1, un & 1
        a = ACC + un * 4
        tb = TMP + 4 * t
        L = []
        if not self.o["no_epi"] and not (self.o["pk"] == 1 or (self.o["pk"] == 2 and un == 15)):
            for r in range(4):
                L.append(f"v_fma_f32 v{a + r}, v{a + r}, v{16 + 4 * t + r}, v{24 + 4 * t + r}")
            for r in range(4):
                L.append(f"v_exp_f32 v{tb + r}, v{a + r}")
            for r in range(4):
                L.append(f"v_fma_f32 v{tb + r}, v{tb + r}, s42, s42")
            for r in range(4):
                L.append(f"v_rcp_f32 v{tb + r}, v{tb + r}")
            for r in range(4):
                L.append(f"v_mul_f32 v{tb + r}, v{tb + r}, v{a + r}")
            for p in range(2):
                L.append(f"v_cvt_pk_bf16_f32 v{a + p}, v{tb + 2 * p}, v{tb + 2 * p + 1}")
        elif not self.o["no_epi"]:
            for p in range(2):
                q = 4 * t + 2 * p
                L.append(f"v_pk_fma_f32 v[{a + 2 * p}:{a + 2 * p + 1}], v[{a + 2 * p}:{a + 2 * p + 1}], v[{16 + q}:{17 + q}], v[{24 + q}:{25 + q}]")
            for r in range(4):
                L.append(f"v_exp_f32 v{tb + r}, v{a + r}")
            for p in range(2):
                L.append(f"v_pk_fma_f32 v[{tb + 2 * p}:{tb + 2 * p + 1}], v[{tb + 2 * p}:{tb + 2 * p + 1}], s[42:43], s[42:43]")
            for r in range(4):
                L.append(f"v_rcp_f32 v{tb + r}, v{tb + r}")
            for p in range(2):
                L.append(f"v_pk_mul_f32 v[{tb + 2 * p}:{tb + 2 * p + 1}], v[{tb + 2 * p}:{tb + 2 * p + 1}], v[{a + 2 * p}:{a + 2 * p + 1}]")
            for p in range(2):
                L.append(f"v_cvt_pk_bf16_f32 v{a + p}, v{tb + 2 * p}, v{tb + 2 * p + 1}")
        if self.o["direct"] and tm == 7:
            if t:
                L = [x.replace(f"v_cvt_pk_bf16_f32 v{a},", f"v_cvt_pk_bf16_f32 v{a - 2},")
                      .replace(f"v_cvt_pk_bf16_f32 v{a + 1},", f"v_cvt_pk_bf16_f32 v{a - 1},") for x in L]
                L += ["s_nop 0", f"v_permlane16_swap_b32 v{a - 4}, v{a - 2}", f"v_permlane16_swap_b32 v{a - 3}, v{a - 1}"]
                if not self.o["no_store"]:
                    L.append(f"buffer_store_dwordx4 v[{a - 4}:{a - 1}], v0, s[12:15], 0 offen {self.o['saux']}")
        elif self.o["diag"] & 2:
            L.append("ds_read_b32 v12, v1")
        elif self.o["wpair"]:
            if t:
                L.insert(len(L) - 2, f"DS ds_write_b64 v1, v[{a - 4}:{a - 3}] offset:{tm * 4096}")
                L.append(f"ds_write_b64 v11, v[{a}:{a + 1}] offset:{tm * 4096}")
        else:
            L.append(f"ds_write_b64 v{11 if t else 1}, v[{a}:{a + 1}] offset:{tm * 4096}")
        return L

    def tail(self):
        e = self.e
        o = self.o
        nt = o["nt"]
        seq = []
        for u in range(27, 32 - nt):
            for tm in range(8):
                ts = (0, 1) if tm % 2 else (1, 0)
                seq += [(u, k, ts[0], tm) for k in (0, 1, 2)] + [(u, k, ts[1], tm) for k in (2, 1, 0)]
        done_at = {}
        for tm in range(8):
            if o["alt"]:
                for u in range(32 - nt, 32):
                    seq += [(u, k, t, tm) for k in range(3) for t in range(2)]
                done_at[2 * tm] = len(seq) - 2
                done_at[2 * tm + 1] = len(seq) - 1
                continue
            lo = 32 - nt
            if tm == 0 and nt == 4 and o["split0"]:
                seq += [(u, k, t, tm) for t in range(2) for u in (28, 29) for k in range(3)]
                lo = 30
            for t in range(2):
                for u in range(lo, 32):
                    seq += [(u, k, t, tm) for k in range(3)]
                done_at[2 * tm + t] = len(seq) - 1
        first, last = {}, {}
        for i, (u, k, t, tm) in enumerate(seq):
            for nm in (("G", u, k, t), ("F", u, tm + k)):
                first.setdefault(nm, i)
                last[nm] = i
        reg = {}
        for dl in range(10):
            reg[("F", 27, dl)] = SET[1] + 4 * dl
        for k in range(3):
            for t in range(2):
                reg[("G", 27, k, t)] = SET[1] + 40 + (k * 2 + t) * 4
        free = list(range(SET[0], SET[0] + 64, 4)) + list(range(TMP + 8, 64, 4)) + [12]
        todo = sorted((nm for nm in first if nm not in reg), key=lambda nm: first[nm])
        queue = []

        def lds(op, tag=None):
            e(op)
            queue.append(tag)

        def wait_for(tags):
            idx = max((i for i, tg in enumerate(queue) if tg in tags), default=-1)
            if idx >= 0:
                n = min(len(queue) - 1 - idx, 14)
                e(f"s_waitcnt lgkmcnt({n})")
                del queue[:len(queue) - n]

        half = []

        def issue_read(nm):
            if nm[0] == "P":
                i = nm[1]
                lds(f"ds_read_b128 v[{16 + 4 * i}:{19 + 4 * i}], v10 offset:{(i >> 1) * 256 + (i & 1) * 64}", nm)
                return
            r = free.pop(0)
            reg[nm] = r
            u = nm[1]
            if nm[0] == "F":
                ops = self.rd_f(r, u & 1, nm[2], XBUF * ((u >> 1) - 14))
            else:
                ops = self.rd_g(r, nm[2], nm[3], WBUF * (u % NWB))
            if not o["no_reads"]:
                lds(ops[0], nm)
                half.extend((op, nm) for op in ops[1:])

        e("s_waitcnt lgkmcnt(0)")
        self.stamp(3)
        if not o["lbar"]:
            e("s_barrier")
        chk, pchk = o["tchk"], o["pchk"]
        head = {0: [f"v_subrev_u32 v8, {3 * WBUF}, v8", "s_mov_b32 s43, s42"], 1: [f"v_subrev_u32 v9, {3 * WBUF}, v9"],
                2: ["v_add_u32 v5, s55, v5"], 3: ["v_add_u32 v6, s55, v6"], 4: ["v_add_u32 v7, s55, v7"],
                chk: ["s_barrier"]}
        avail = {28: 1, 29: 5, 30: chk, 31: chk}
        if o["lbar"]:
            tb = o["tbar"]
            head = {0: [f"v_subrev_u32 v8, {2 * WBUF}, v8", f"v_subrev_u32 v9, {2 * WBUF}, v9", "s_mov_b32 s43, s42"],
                    1: ["v_add_u32 v2, s47, v2", "v_add_u32 v3, s47, v3"], 2: ["v_add_u32 v4, s47, v4", "v_add_u32 v5, s47, v5"],
                    3: ["v_add_u32 v6, s47, v6", "v_add_u32 v7, s47, v7"],
                    tb: ["s_barrier"], chk: ["s_barrier"]}
            avail = {28: tb + 1, 29: tb + 1, 30: chk, 31: chk}
        bar_at = {}
        quiet = -1
        bars = [int(ch) for ch in str(o["bars"])]
        cost = lambda x: 8 if ("v_exp" in x or "v_rcp" in x) else 12 if "ds_write" in x else 4
        cur, pend, nxt = [], [], 0
        mark = {}
        credit = 0.0
        per_gap = sum(cost(x) for x in self.epi_ops(0) + self.epi_ops(1)) / (6.0 * nt) * o['pace'] + 0.5
        stalls = []
        for i, (u, k, t, tm) in enumerate(seq):
            g, f = ("G", u, k, t), ("F", u, tm + k)
            while g in todo or f in todo or any(nm == g for _, nm in half):
                stalls.append(i)
                if half:
                    lds(*half.pop(0))
                else:
                    issue_read(todo.pop(0))
            wait_for({g, f})
            if not o["no_mfma"]:
                e(self.mf(reg[g], reg[f], t, tm))
            if nxt < 16 and done_at[nxt] == i:
                mark[nxt] = len(self.l)
                pend.append(nxt)
                nxt += 1
            for nm in (g, f):
                if last[nm] == i:
                    free.append(reg[nm])
            for x in head.get(i, []):
                e(x)
            if o["tst"] and i in [int(v) for v in o["tst"].split(",")]:
                q = 1 + [int(v) for v in o["tst"].split(",")].index(i)
                e(f"s_memtime s[{60 + 4 * q}:{61 + 4 * q}]")
            if i in bar_at and not o["latebar"]:
                wait_for({bar_at.pop(i)})
                e("s_barrier")
            wnext = cur and any(x[:2].lower() == "ds" for x in cur[:3])
            if i >= 1 and i != chk and not (wnext and not half) and i > quiet:
                if half:
                    lds(*half.pop(0))
                    credit -= 4 * bool(cur or pend)
                else:
                    hold = min([first[nm] for nm in todo if nm[0] != "P" and i < avail[nm[1]]], default=999)
                    cand = [nm for nm in todo if (i >= pchk if nm[0] == "P" else
                                                  i >= avail[nm[1]] and first[nm] <= hold + o["hold"])]
                    if cand and (cand[0][0] == "P" or free):
                        todo.remove(cand[0])
                        issue_read(cand[0])
                        credit -= 4 * bool(cur or pend)
            if cur or pend:
                credit += per_gap
            while credit > 0:
                if not cur:
                    if not pend or len(self.l) - mark[pend[0]] < 8:
                        credit = 0
                        break
                    curun = pend.pop(0)
                    cur = self.epi_ops(curun)
                x = cur.pop(0)
                if x.startswith("DS "):
                    lds(x[3:])
                elif x.startswith("ds_"):
                    lds(x, ("W", curun))
                    if curun & 1:
                        free.extend([ACC + 4 * curun - 4, ACC + 4 * curun])
                    quiet = i + o["wq"]
                    if curun & 1 and curun >> 1 in bars and not o["diag"] & 1:
                        bar_at[i + o["blag"]] = ("W", curun)
                else:
                    e(x)
                credit -= cost(x)
        assert not todo
        if stalls:
            print("tail: late reads at", stalls, file=sys.stderr)
        rest = [(curun, cur)] if cur else []
        rest += [(un, None) for un in pend]
        for un, ops in rest:
            if ops is None:
                gap = len(self.l) - mark[un]
                if gap < 8:
                    e(f"s_nop {7 - gap}")
                ops = self.epi_ops(un)
            for x in ops:
                if x.startswith("DS "):
                    lds(x[3:])
                elif x.startswith("ds_"):
                    for key in sorted(bar_at):
                        wait_for({bar_at.pop(key)})
                        e("s_barrier")
                    lds(x, ("W", un))
                    if un & 1 and un >> 1 in bars and not o["diag"] & 1:
                        bar_at[un] = ("W", un)
                else:
                    e(x)
        for key in sorted(bar_at):
            wait_for({bar_at.pop(key)})
            e("s_barrier")

    def compute(self):
        e = self.e
        o = self.o
        if o["pages"]:
            e(".p2align 12")
            self.lab("L_page1")
        self.lab("L_compute")
        e("s_and_b32 s38, s18, 1")
        e("s_bfe_u32 s39, s18, 0x10001")
        e("v_and_b32 v10, 15, v0")
        e("v_lshrrev_b32 v16, 4, v0")
        if o["cpf"]:
            e("s_getpc_b64 s[20:21]")
            e("v_lshlrev_b32 v12, 7, v0")
            e("v_mov_b32 v13, s21")
            e("v_add_co_u32 v12, vcc, s20, v12")
            e("s_cmp_lt_u32 s36, %d" % o["cpf"])
            e("s_cselect_b32 s3, s18, 1")
            e("v_addc_co_u32 v13, vcc, 0, v13, vcc")
            e("s_and_b32 s3, s3, 3")
            e("s_cbranch_scc1 L_nocpf")
            e("s_mov_b32 exec_hi, (1 << (((L_end - L_compute) >> 7) - 32)) - 1")
            e("global_load_dword v14, v[12:13], off")
            e("s_mov_b32 exec_hi, -1")
            self.lab("L_nocpf")
        self.pi(17, 10, 18, 19)
        e("v_lshrrev_b32 v18, 2, v10")
        e("v_lshl_add_u32 v19, v16, 3, v18")
        e("v_lshlrev_b32 v19, 7, v19")
        e("v_and_b32 v20, 3, v10")
        e("v_lshl_add_u32 v19, v20, 3, v19")
        e("v_lshrrev_b32 v18, 1, v18")
        e("v_and_b32 v20, 1, v16")
        e("v_lshl_or_b32 v18, v20, 1, v18")
        e("s_lshl_b32 s45, s39, 1")
        e("v_xor_b32 v18, s45, v18")
        e("v_lshl_add_u32 v19, v18, 5, v19")
        e(f"v_add_u32 v8, {WBASE}, v19")
        e("v_xor_b32 v9, 32, v8")
        e("s_lshl_b32 s3, s38, 11")
        e(f"s_add_u32 s46, s3, {XBUF}")
        if o["rotk"]:
            e("s_bfe_u32 s47, s16, 0x10008")
            e("v_lshl_or_b32 v21, s47, 2, v16")
        for idx, sh in ((0, 0), (1, 1), (2, -1)):
            e(f"v_add_u32 v18, {sh}, v17")
            e("v_bfe_u32 v19, v18, 1, 3")
            e(f"v_xor_b32 v19, v19, v{21 if o['rotk'] else 16}")
            e("v_lshlrev_b32 v19, 4, v19")
            e(f"v_lshl_add_u32 v19, v{17 if sh == -1 else 18}, 7, v19")
            e(f"v_add_u32 v{2 + idx}, s46, v19")
            e(f"v_xor_b32 v{5 + idx}, 64, v{2 + idx}")
        e("v_lshrrev_b32 v18, 1, v16")
        e("v_lshl_add_u32 v18, s39, 2, v18")
        e("v_and_b32 v19, 7, v10")
        e("v_xor_b32 v18, v18, v19")
        e("v_lshlrev_b32 v18, 4, v18")
        e("v_lshl_add_u32 v18, v20, 3, v18")
        e("v_lshl_add_u32 v18, v10, 7, v18")
        e(f"s_add_u32 s3, s3, {STG}")
        e("v_add_u32 v1, s3, v18")
        e("v_xor_b32 v11, 32, v1")
        if o["direct"]:
            e("s_lshl_b32 s3, s38, 7")
            e("s_add_u32 s3, s3, s16")
            e("s_add_u32 s3, s3, 7")
            e("s_lshl_b32 s3, s3, 10")
            e("s_lshl_b32 s45, s39, 5")
            e("s_add_u32 s3, s3, s45")
            e("s_add_u32 s3, s3, s17")
            e("s_lshl_b32 s3, s3, 1")
            e("v_lshl_add_u32 v18, v20, 5, s3")
            e("v_lshrrev_b32 v19, 1, v16")
            e("v_lshl_add_u32 v18, v19, 4, v18")
            e("v_lshl_add_u32 v0, v17, 14, v18")
            e("s_waitcnt lgkmcnt(0)")
        e("s_lshl_b32 s3, s39, 6")
        e(f"s_add_u32 s3, s3, {PB}")
        e("v_and_b32 v18, 4, v10")
        e("v_add_lshl_u32 v18, v18, v16, 2")
        e("v_and_or_b32 v18, v10, 3, v18")
        e("v_lshl_add_u32 v10, v18, 1, s3")
        e("v_mov_b64 v[24:25], 0")
        e("v_mov_b64 v[26:27], 0")
        if o["fall"]:
            seq = self.mfmas(0, raw=True)
            for t, tm in sorted({(t, tm) for k, t, tm in seq[o["brpos"]:]} - {(t, tm) for k, t, tm in seq[:o["brpos"]]}):
                for h in range(2):
                    r = ACC + (tm * 2 + t) * 4 + 2 * h
                    e(f"v_mov_b64 v[{r}:{r + 1}], 0")
            for _ in range(o["lpad"]):
                e("s_nop 0")
        e("s_mov_b32 s40, 1")
        e("s_mov_b32 s41, 1")
        e("s_mov_b32 s42, 0xbfb8aa3b")
        e(f"s_movk_i32 s53, {WBUF}")
        e(f"s_mov_b32 s54, {XBUF}")
        e(f"s_mov_b32 s46, {-(NWB - 1) * WBUF & 0xffffffff:#x}")
        e(f"s_mov_b32 s47, {-(NXB - 1) * XBUF & 0xffffffff:#x}")
        e("s_mov_b32 s52, 12")
        if o["prio_c"]:
            e(f"s_setprio {o['prio_c']}")
        e("s_barrier")
        self.params()
        self.stamp(1)
        e("s_barrier")
        self.stamp(2)

        def wadv():
            return [["s_add_u32 s41, s41, 1", f"s_cmp_eq_u32 s41, {NWB}"],
                    ["s_cselect_b32 s43, s46, s53", "s_cselect_b32 s41, 0, s41"],
                    ["v_add_u32 v8, s43, v8"], ["v_add_u32 v9, s43, v9"]]

        pre0 = wadv() + [["s_add_u32 s40, s40, 1", f"s_cmp_eq_u32 s40, {NXB}"],
                         ["s_cselect_b32 s55, s47, s54", "s_cselect_b32 s40, 0, s40"]] + \
            [[f"v_add_u32 v{2 + i}, s55, v{2 + i}"] for i in range(3)]
        pre1 = wadv() + [[f"v_add_u32 v{5 + i}, s55, v{5 + i}"] for i in range(3)]
        if o["lbar"]:
            assert o["topw"] <= 6 or o["lbar"] > {7: 20, 8: 19, 9: 14, 10: 13, 11: 8, 12: 7}[o["topw"]]
            self.first([], 48)
            body = self.substage(1, pre0) + self.substage(0, pre1 + [["s_sub_u32 s52, s52, 1"]])
        else:
            self.first(pre0, o["brpos"] if o["fall"] else 48)
            body = self.substage(1, pre1) + self.substage(0, pre0 + [["s_sub_u32 s52, s52, 1"]])
        cut = 48 + o["brpos"]
        if not o["fall"]:
            e("s_branch L_centry")
        if o["pages"]:
            self.lab("L_touch0")
        if not o["fall"]:
            e(".p2align 6")
            for _ in range(o["lpad"]):
                e("s_nop 0")
        self.lab("L_cloop")
        for gap in body[cut:]:
            for x in gap:
                e(x)
        self.lab("L_centry")
        for gap in body[:cut]:
            for x in gap:
                e(x)
        e("s_cbranch_scc0 L_cloop")
        for gap in body[cut:]:
            for x in gap:
                e(x)
        self.lab("L_tail")
        self.tail()
        self.lab("L_tail_end")
        if o["stamps"] and o["direct"]:
            e("s_waitcnt vmcnt(0)")
            e("v_mbcnt_lo_u32_b32 v0, -1, 0")
            e("v_mbcnt_hi_u32_b32 v0, -1, v0")
        self.stamp(4)
        self.dump_stamps(5, "c")
        e("s_endpgm")

    def gen(self):
        e = self.e
        o = self.o
        self.l.append(HEADER.rstrip())
        self.l.append(f"; @launch grid=(256,1,1) block=(512,1,1) lds={LDS}")
        self.l.append(DOC)
        self.l.append('.amdgcn_target "amdgcn-amd-amdhsa--gfx950"')
        self.l.append(".text")
        self.l.append(f".globl {KN}")
        if o["pages"]:
            self.l.append(".p2align 12")
        self.l.append(".p2align 8")
        self.l.append(f".type {KN},@function")
        self.lab(KN)
        e("s_cmp_ge_u32 s2, 256")
        e("s_cbranch_scc1 L_end")
        if o["stamps"]:
            e("s_memtime s[60:61]")
            e("s_memrealtime s[62:63]")
        e("s_load_dwordx2 s[8:9], s[0:1], 8")
        e("s_load_dwordx2 s[4:5], s[0:1], 0")
        e("v_readfirstlane_b32 s18, v0")
        e("v_and_b32 v0, 63, v0")
        e("s_lshr_b32 s17, s2, 5")
        e("s_and_b32 s20, s2, 1")
        e("s_lshl3_add_u32 s17, s20, s17")
        e("s_bfe_u32 s22, s2, 0x20001")
        e("s_bfe_u32 s16, s2, 0x20003")
        e("s_lshl2_add_u32 s16, s22, s16")
        e("s_lshr_b32 s18, s18, 6")
        e("s_lshl_b32 s17, s17, 6")
        e("s_lshl_b32 s16, s16, 8")
        e("s_cmp_ge_u32 s18, 4")
        if o["pages"] >= 2:
            e("s_cbranch_scc0 L_loader")
            self.l.append("@DISPATCH")
            e("s_branch L_compute")
        else:
            e(("s_cbranch_scc1" if o["lfirst"] else "s_cbranch_scc0") + " L_compute")
        self.loader()
        self.compute()
        for f in self.late:
            f()
        self.lab("L_end")
        e("s_endpgm")
        self.l.append(f""".section .rodata,"a"
.p2align 6
.amdhsa_kernel {KN}
  .amdhsa_next_free_vgpr 256
  .amdhsa_next_free_sgpr 96
  .amdhsa_accum_offset 256
  .amdhsa_group_segment_fixed_size 0
  .amdhsa_kernarg_size 72
  .amdhsa_user_sgpr_count 2
  .amdhsa_user_sgpr_kernarg_segment_ptr 1
  .amdhsa_system_sgpr_workgroup_id_x 1
.end_amdhsa_kernel""")
        return self.finish()

    def finish(self):
        L = "\n".join(self.l).split("\n")
        if self.o["pages"] < 2:
            return "\n".join(L) + "\n"
        import re
        import subprocess
        i0 = L.index("L_touch0:")
        it, ie = L.index("L_tail:"), L.index("L_tail_end:")
        probe = []
        for i, x in enumerate(L):
            if it < i <= ie:
                probe.append(f"L_pos{i}:")
            if x != "@DISPATCH":
                probe.append(x)
        open("probe.s", "w").write("\n".join(probe) + "\n")
        subprocess.run(["clang", "-x", "assembler", "-target", "amdgcn-amd-amdhsa", "-mcpu=gfx950",
                        "-c", "probe.s", "-o", "probe.o"], check=True)
        sym = subprocess.run(["llvm-readelf", "-s", "probe.o"], capture_output=True, text=True).stdout
        addr = {m.group(2): int(m.group(1), 16) for m in re.finditer(r"^\s*\d+: ([0-9a-f]+)\s.*\s(\S+)$", sym, re.M)}
        base = addr["L_page1"]
        win = self.o["win"]
        out, n, covered = [], 1, (addr["L_touch0"] - base) // 64 * 64 + win
        if not self.o["touch1"]:
            covered = 4096
        for i, x in enumerate(L):
            if it < i < ie:
                pos = addr[f"L_pos{i}"] - base + 4 * (n - 1)
                if pos >= covered and n < 4:
                    out += [f"L_touch{n}:", "    s_cbranch_scc0 " + {"c": "L_compute"}.get(self.o["tchain"][n - 1], "L_touch" + self.o["tchain"][n - 1])]
                    n += 1
                    covered = min(pos // 64 * 64 + win, (pos // 4096 + 1) * 4096)
            out.append(x)
        disp, wave = [], 7
        for ch in str(self.o["tord"]):
            if ch == "w":
                disp.append("    s_waitcnt lgkmcnt(0)")
                continue
            if int(ch) < n:
                disp += [f"    s_cmp_lg_u32 s18, {wave}", "    s_cbranch_scc0 " + (f"L_touch{ch}" if ch != "0" else "L_compute")]
            wave -= 1
        j = out.index("@DISPATCH")
        out[j:j + 1] = disp
        return "\n".join(out) + "\n"


if __name__ == "__main__":
    out = sys.argv[1]
    opts = {}
    for a in sys.argv[2:]:
        k, v = a.split("=")
        if k in ("bars", "tord", "tchain"):
            opts[k] = v
            continue
        try:
            v = int(v)
        except ValueError:
            try:
                v = float(v)
            except ValueError:
                v = v.replace("+", " ")
        opts[k] = v
    open(out, "w").write(G(**opts).gen())
```

```python
import sys

HEADER = open("standalone__batchnorm__prompt.s.ref").read().split("; Override launch")[0]
KN = "standalone__batchnorm__prompt_kernel"

PS = 33 * 128
XBUF = 263 * 128
NXB = 3
WBUF = 3 * 32 * 128
NWB = 5
WBASE = NXB * XBUF
PB = WBASE + NWB * WBUF
LDS = PB + 512
STG = 2 * XBUF

ACC = 64
SET = (128, 192)
TMP = 32


def cnt(i):
    return (3, 5, 4, 3)[i % 4]


def need(u):
    return 2 * u + 3 if u % 2 == 0 else 2 * u + 2


DOC = """;
; One workgroup owns a 256 x 64 output tile. Waves 0-3 stream x and w into LDS rings with LDS-DMA loads, waves 4-7
; each compute 128 x 32 with v_mfma_f32_16x16x32_bf16 (A = w^T through transposed LDS reads, B = x).
; One barrier per 32 channels. The 64-channel stages are visited in an order that differs between workgroup groups, so
; in LDS and written as whole 128-byte lines by waves 0-3."""

NOTES = {
    "L_loader": "DMA waves: addresses, first loads",
    "L_lloop": "DMA waves: steady state, two 64-channel stages per trip",
    "L_store": "DMA waves: store the staged output rows",
    "L_compute": "MFMA waves: addresses, first 32-channel step",
    "L_cloop": "MFMA waves: steady state, two 32-channel steps per trip",
    "L_tail": "MFMA waves: last five steps and the epilogue; the scc0 / vccnz branches are only taken by the earlier jumps that pull this code into the instruction cache",
}


class G:
    def __init__(self, **o):
        self.o = dict(stamps=0, trace=0, no_dma=0, no_reads=0, no_mfma=0, no_epi=0, no_store=0,
                      lastrd=33, prio_c=1, prio_l=0, lfirst=1, order=17, xaux="", waux="", saux="sc1", xmap=0,
                      probe="", xor=1, nt=4, fpre=7, fbar=20, flast=40, hold=12, split0=1, touch1=0, direct=0, bars='01234567', wq=1, modeb=0, fall=0, off=5, ltouch=1, tchain='ccc', tord='0321', tst='', pbar=14, rord=0, lbar=0, topw=6, tbar=4, idle=0, nsc=8, saux2='', pat='32,39,43,53', pwg=-1, rrate=0.8, x0=4, pace=1.04, pk=2, alt=0, lead=6, cum="21,27,35",
                      rotx=1, rotk=1, tchk=34, endq="204,215,222,232,240", pchk=50, blag=7, cpf=0, pstamp=0, brpos=45, pages=2, lpad=0, win=1280, latebar=0, diag=0, wpair=1, cmode=0, swap=0, base="_456789AB0123CDEF", mask="_1111333333333333", maskb="_0000000000000000")
        self.o.update(o)
        self.l = []
        self.nlab = 0
        self.late = []
        self.late_table = None
        self.inloop = 0
        self.flow = 0

    def e(self, s):
        self.l.append("    " + s)

    def lab(self, s):
        if s in NOTES:
            self.l.append("; " + NOTES[s])
        self.l.append(s + ":")

    def stamp(self, i):
        pr = self.o["probe"].split(",")
        if len(pr) == 5 and i not in (int(pr[1]), int(pr[2]), 4) or self.o["tst"] and i in (1, 2, 3):
            return
        if self.o["stamps"]:
            self.e(f"s_memtime s[{60 + 4 * i}:{61 + 4 * i}]")
            self.e(f"s_memrealtime s[{62 + 4 * i}:{63 + 4 * i}]")
            self.e("s_waitcnt lgkmcnt(0)")

    def lbarrier(self):
        e = self.e
        e("s_barrier")
        if self.o["trace"]:
            e("s_memtime s[56:57]")
            e("s_memrealtime s[80:81]")
            e("s_mov_b32 s90, m0")
            e("s_mov_b32 m0, s55")
            e("s_waitcnt lgkmcnt(0)")
            e("v_writelane_b32 v62, s56, m0")
            e("v_writelane_b32 v63, s80, m0")
            e("s_add_u32 s55, s55, 1")
            e("s_mov_b32 m0, s90")

    def dump_stamps(self, n, role):
        if not self.o["stamps"]:
            return
        e = self.e
        if self.o["probe"]:
            prole, a, z, kind, mult = self.o["probe"].split(",")
            if prole == role:
                off = 60 if kind == "c" else 62
                e(f"s_sub_u32 s3, s{off + 4 * int(z)}, s{off + 4 * int(a)}")
                if kind == "g":
                    e("v_mov_b32 v50, 0")
                    e("global_load_dword v51, v50, s[92:93] sc1")
                    e("s_waitcnt vmcnt(0)")
                    e("v_readfirstlane_b32 s3, v51")
                    e("s_not_b32 s3, s3")
                    e(f"s_sub_u32 s3, s{62 + 4 * int(z)}, s3")
                if kind != "c":
                    e(f"s_mul_i32 s3, s3, {mult}")
                elif int(mult) < 0:
                    e(f"s_lshl_b32 s3, s3, {-int(mult)}")
                else:
                    e(f"s_lshr_b32 s3, s3, {mult}")
                e("s_min_u32 s3, s3, 50000")
                if self.o["pwg"] >= 0:
                    e("s_and_b32 s56, s2, 7")
                    e(f"s_cmp_eq_u32 s56, {self.o['pwg']}")
                    e("s_cselect_b32 s3, s3, 0")
                self.lab(f"L_spin_{role}")
                e("s_memrealtime s[56:57]")
                e("s_waitcnt lgkmcnt(0)")
                e(f"s_sub_u32 s56, s56, s{62 + 4 * (n - 1)}")
                e("s_cmp_lt_u32 s56, s3")
                e(f"s_cbranch_scc1 L_spin_{role}")
            return
        e("s_load_dwordx2 s[34:35], s[0:1], 64")
        e("s_waitcnt lgkmcnt(0)")
        e("v_mov_b32 v40, 0")
        for i in range(n):
            e(f"v_writelane_b32 v40, s{60 + 4 * i}, {2 * i}")
            e(f"v_writelane_b32 v40, s{62 + 4 * i}, {2 * i + 1}")
        for i in range(4):
            e(f"v_writelane_b32 v40, s{86 + i}, {12 + i}")
        e("s_lshl_b32 s3, s2, 3")
        e("s_and_b32 s18, s18, 3")
        if role == "l":
            e("s_add_u32 s18, s18, 4")
        e("s_add_u32 s3, s3, s18")
        e("s_lshl_b32 s3, s3, 6")
        e("v_lshl_add_u32 v41, v0, 2, s3")
        if self.o["trace"] and role == "l":
            e("s_lshl_b32 s3, s3, 2")
            e("s_add_u32 s3, s3, 0x100000")
            e("v_lshl_add_u32 v42, v0, 2, s3")
            e("v_subrev_u32 v62, s60, v62")
            e("v_subrev_u32 v63, s62, v63")
            e("v_lshl_or_b32 v63, v63, 18, v62")
            e("global_store_dword v42, v63, s[34:35]")
        e("s_mov_b64 exec, 0xffff")
        e("global_store_dword v41, v40, s[34:35]")

    def issue_x(self, half):
        e = self.e
        aux = self.o["xaux"]
        self.hooks.pop("x", lambda: None)()
        if self.o["no_dma"]:
            self.hooks.pop("halo", lambda: None)()
        if not self.o["no_dma"] and not (self.o["diag"] & 8 and self.inloop):
            e(f"s_add_u32 m0, s41, s{86 + half}")
            e(f"s_add_u32 s45, s40, s{88 + half}")
            e(f"buffer_load_dwordx4 v2, s[4:7], s45 offen {aux} lds")
            for p in range(1, 4):
                a, b = (45, 46) if p & 1 else (46, 45)
                e("s_add_u32 m0, m0, s54")
                e(f"s_add_u32 s{b}, s{a}, s53")
                e(f"buffer_load_dwordx4 v2, s[4:7], s{b} offen {aux} lds")
            self.hooks.pop("halo", lambda: None)()
            if half == 0 and not self.o["diag"] & 64:
                e("s_add_u32 m0, s41, s44")
                e("s_mov_b64 exec, 15")
                e(f"buffer_load_dwordx4 v3, s[4:7], s40 offen {aux} lds")
                e("s_mov_b64 exec, -1")
        if half == 0:
            return
        e(f"s_add_u32 s41, s41, {XBUF}")
        e("s_cmp_ge_u32 s41, s51")
        e("s_cselect_b32 s41, s50, s41")

    def issue(self, i):
        if i % 4 in (0, 3):
            self.issue_w(i & 1)
        else:
            self.issue_x(i % 4 - 1)

    def issue_w(self, second):
        e = self.e
        if not self.o["no_dma"] and not (self.o["diag"] & 16 and self.inloop):
            aux = self.o["waux"]
            e("s_mov_b32 m0, s43")
            e("s_add_u32 s45, s42, s38")
            e(f"buffer_load_dwordx4 v4, s[8:11], s42 offen {aux} lds")
            e("s_add_u32 m0, m0, s39")
            e("s_add_u32 s46, s45, s38")
            e(f"buffer_load_dwordx4 v4, s[8:11], s45 offen {aux} lds")
            e("s_add_u32 m0, m0, s39")
            e(f"s_addk_i32 s43, {WBUF}")
            e(f"buffer_load_dwordx4 v4, s[8:11], s46 offen {aux} lds")
        else:
            e(f"s_addk_i32 s43, {WBUF}")
        e("s_cmp_ge_u32 s43, s49")
        e("s_cselect_b32 s43, s51, s43")
        if second:
            self.hooks.pop("table", lambda: None)()
            e("s_lshr_b64 s[82:83], s[82:83], 4")
            self.stage_offsets()
        else:
            e("s_xor_b32 s42, s42, 0x10000")

    def stage_offsets(self):
        e = self.e
        e("s_and_b32 s3, s82, 15")
        e("s_lshl_b32 s40, s3, 7")
        e("s_lshl_b32 s42, s3, 17")
        e("s_or_b32 s42, s42, s85")

    def params(self):
        e = self.e
        for i in range(4):
            e(f"ds_read_u16_d16_hi v{24 + i}, v10 offset:{128 * i}")
        rnd = ["v_cvt_pk_bf16_f32 v25, v25, v25", "v_lshlrev_b32 v25, 16, v25"]
        L = ["s_waitcnt lgkmcnt(0)", "v_add_f32 v25, 0x3727c5ac, v25"] + rnd + ["v_sqrt_f32 v25, v25", "s_nop 0"] + rnd
        L += ["v_rcp_f32 v25, v25", "s_nop 0"] + rnd + ["v_mul_f32 v25, v26, v25"] + rnd
        if self.o["off"]:
            L += ["v_rcp_f32 v26, v25", f"v_mul_f32 v{TMP}, s42, v25", "v_mul_f32 v26, v27, v26",
                  "v_max_f32_e64 v26, |v24|, |v26|"]
            for sh in (1, 2, 4):
                L += [f"v_mov_b32_dpp v{16 + q}, v{TMP} row_newbcast:{q} row_mask:0xf bank_mask:0xf" for q in {1: (0, 1), 2: (2, 3), 4: (4, 5)}[sh]]
                L += [f"v_min_u32_dpp v26, v26, v26 row_ror:{sh} row_mask:0xf bank_mask:0xf"]
            L += [f"v_mov_b32_dpp v{16 + q}, v{TMP} row_newbcast:{q} row_mask:0xf bank_mask:0xf" for q in (6, 7)]
            L += [f"v_readlane_b32 s{24 + q}, v26, {16 * q}" for q in range(4)]
            L += ["s_min_u32 s24, s24, s25", "s_min_u32 s26, s26, s27", "s_min_u32 s24, s24, s26",
                  "s_min_u32 s24, s24, 0x70000000", "s_and_b32 s24, s24, 0x7f800000",
                  f"s_cselect_b32 s25, {(self.o['off'] << 23) + 0x400000:#x}, 0", "s_add_u32 s24, s24, s25"]
            L += ["v_fma_f32 v27, -v24, v25, v27", "v_fma_f32 v27, -s24, v25, v27", f"v_mul_f32 v{TMP + 1}, s42, v27"]
            L += [f"v_mov_b32 v{r}, s24" for r in range(40, 44)]
        else:
            L += ["v_fma_f32 v27, -v24, v25, v27", f"v_mul_f32 v{TMP}, s42, v25", f"v_mul_f32 v{TMP + 1}, s42, v27", "s_nop 0"]
            L += [f"v_mov_b32_dpp v{16 + q}, v{TMP} row_newbcast:{q} row_mask:0xf bank_mask:0xf" for q in range(8)]
        L += [f"v_mov_b32_dpp v{24 + q}, v{TMP + 1} row_newbcast:{q} row_mask:0xf bank_mask:0xf" for q in range(8)]
        for x in L:
            e(x)

    def pi(self, dst, j, t0, t1):
        e = self.e
        e(f"v_lshlrev_b32 v{dst}, 1, v{j}")
        e(f"v_cmp_lt_u32 vcc, 3, v{j}")
        e(f"v_subrev_u32 v{t0}, 7, v{dst}")
        e(f"v_subrev_u32 v{t1}, 16, v{dst}")
        e(f"v_cndmask_b32 v{dst}, v{dst}, v{t0}, vcc")
        e(f"v_cmp_lt_u32 vcc, 11, v{j}")
        e("s_nop 1")
        e(f"v_cndmask_b32 v{dst}, v{dst}, v{t1}, vcc")

    def loader(self):
        e = self.e
        o = self.o
        self.lab("L_loader")
        if o["prio_l"]:
            e(f"s_setprio {o['prio_l']}")
        base = [int(ch, 16) for ch in o["base"].lstrip("_")]
        mask = [int(ch, 16) for ch in o["mask"].lstrip("_")]
        maskb = [int(ch, 16) for ch in o["maskb"].lstrip("_")]
        for c in range(4):
            for cb in range(4):
                assert sorted(b ^ (c & m) ^ (cb & mb) for b, m, mb in zip(base, mask, maskb)) == list(range(16))
        assert not maskb[0] and o["rotk"] and o["rotx"] == 1 and o["lfirst"]
        pack = lambda v: sum(x << (4 * k) for k, x in enumerate(v))
        e("s_lshl3_add_u32 s3, s18, 16")
        e("s_load_dwordx2 s[12:13], s[0:1], s3")
        e("v_lshrrev_b32 v5, 3, v0")
        e("s_lshl_b32 s47, s18, 2")
        e("v_xor_b32 v6, s47, v0")
        e("s_xor_b32 s84, s22, s20")
        e("v_and_b32 v7, 2, v5")
        e("v_and_b32 v6, 7, v6")
        if mask[0] == 3:
            e(f"s_xor_b32 s3, s84, {base[0]}")
        else:
            e(f"s_and_b32 s3, s84, {mask[0]}")
            e(f"s_xor_b32 s3, s3, {base[0]}")
        e("s_lshl_b32 s85, s2, 13")
        e("v_xor_b32 v7, v7, v6")
        e("s_and_b32 s85, s85, 0x10000")
        e("s_lshl_b32 s42, s3, 17")
        e("v_lshlrev_b32 v7, 4, v7")
        e("s_or_b32 s42, s42, s85")
        e("s_lshl_b32 s50, s18, 10")
        e("v_lshl_add_u32 v4, v5, 11, v7")
        e("s_lshl3_add_u32 s45, s50, s17")
        e(f"s_add_u32 s51, s50, {WBASE}")
        e("v_lshl_add_u32 v4, s45, 1, v4")
        e("s_mov_b32 s10, 0x600000")
        e("s_mov_b32 s11, 0x20000")
        e("s_mov_b32 s43, s51")
        e("s_mov_b32 s38, 0x200000")
        e("s_movk_i32 s39, 4096")
        e(f"s_add_u32 s49, s51, {NWB * WBUF}")
        e("s_lshl_b32 s40, s3, 7")
        e("v_lshl_add_u32 v8, v0, 1, s17")
        e("s_movk_i32 s14, 2048")
        e("s_mov_b32 s15, s11")
        e("v_lshlrev_b32 v8, 1, v8")
        e("s_lshl_b32 s3, s18, 7")
        e(f"s_add_u32 m0, s3, {PB}")
        e("s_mov_b32 exec_hi, 0")
        e("s_waitcnt lgkmcnt(0)")
        self.stamp(1)
        e("buffer_load_dword v8, s[12:15], 0 offen lds")
        e("s_mov_b32 exec_hi, -1")
        if ",g," in o["probe"]:
            e("s_load_dwordx2 s[92:93], s[0:1], 56")
            e("s_not_b32 s3, s62")
            e("v_mov_b32 v50, 0")
            e("v_mov_b32 v51, s3")
            e("s_waitcnt lgkmcnt(0)")
            e("s_mov_b64 exec, 1")
            e("global_atomic_umax v50, v51, s[92:93] sc1")
            e("s_mov_b64 exec, -1")

        def x_setup():
            e("v_lshrrev_b32 v7, 1, v5")
            e("s_mov_b32 s6, 0x800000")
            e("v_xor_b32 v7, v7, v6")
            e("s_mov_b32 s7, s11")
            e("v_lshlrev_b32 v7, 4, v7")
            e("s_lshl4_add_u32 s3, s47, s16")
            e("v_lshl_add_u32 v2, v5, 14, v7")
            e("s_bitcmp1_b32 s17, 6")
            e(f"s_cselect_b32 s86, {4 * PS}, 0")
            e("v_lshl_add_u32 v2, s3, 11, v2")
            e("s_cselect_b32 s88, 0x2000, 0")
            e(f"s_add_u32 s41, s50, {XBUF}")
            e("s_movk_i32 s53, 2048")
            e(f"s_movk_i32 s54, {PS}")

        def halo_setup():
            e(f"s_xor_b32 s87, s86, {4 * PS}")
            e("s_xor_b32 s89, s88, 0x2000")
            e(f"s_movk_i32 s44, {230 * 128}")
            e("s_cmp_lt_u32 s18, 2")
            e("s_cselect_b32 s3, 256, 0")
            e("s_cselect_b32 s23, 256, -1")
            e("s_cselect_b32 s24, 0, 7")
            e(f"s_cmovk_i32 s44, {32 * 128}")
            e("s_add_u32 s3, s3, s16")
            e("s_add_u32 s23, s23, s16")
            e("s_lshl_b32 s23, s23, 11")
            e("s_and_b32 s3, s3, 2047")
            e("s_cselect_b32 s23, s23, 0x80000000")
            e("v_xor_b32 v7, s24, v6")
            e("s_and_b32 s47, s47, 4")
            e("v_lshl_add_u32 v3, v7, 4, s23")
            e("s_lshl4_add_u32 s44, s47, s44")
            e("s_sub_u32 s44, s44, s50")

        def table_setup():
            e("s_mul_i32 s3, s84, 0x11111111")
            for h in range(2):
                m = pack(mask[8 * h:8 * h + 8])
                if m == 0x33333333:
                    e(f"s_xor_b32 s{82 + h}, s3, {pack(base[8 * h:8 * h + 8]):#x}")
                else:
                    e(f"s_and_b32 s{82 + h}, s3, {m:#x}")
                    e(f"s_xor_b32 s{82 + h}, s{82 + h}, {pack(base[8 * h:8 * h + 8]):#x}")
            if any(maskb):
                if o["modeb"] == 0:
                    e("s_and_b32 s84, s84, 1")
                    e("s_lshr_b32 s3, s2, 2")
                    e("s_xor_b32 s3, s3, s2")
                    e("s_bfe_u32 s3, s3, 0x10004")
                    e("s_lshl1_add_u32 s84, s84, s3")
                elif o["modeb"] == 1:
                    e("s_lshl_b32 s3, s20, 1")
                    e("s_xor_b32 s84, s22, s3")
                else:
                    e("s_lshr_b32 s3, s2, 5")
                    e("s_and_b32 s3, s3, 2")
                    e("s_xor_b32 s84, s84, s3")
                e("s_mul_i32 s84, s84, 0x11111111")
                for h in range(2):
                    m = pack(maskb[8 * h:8 * h + 8])
                    if m:
                        e(f"s_and_b32 s3, s84, {m:#x}")
                        e(f"s_xor_b32 s{82 + h}, s{82 + h}, s3")
        self.hooks = {"x": x_setup, "halo": halo_setup, "table": table_setup}
        if o["trace"]:
            e("s_mov_b32 s55, 0")
        st = {"issued": 0, "chunks": []}

        def upto(c):
            while st["issued"] < min(c, 240):
                if not st["chunks"]:
                    keep, self.l = self.l, []
                    pos = st["issued"] % 15
                    self.issue({0: 0, 3: 1, 8: 2, 12: 3}[pos])
                    lines, self.l = self.l, keep
                    n = {0: 3, 3: 5, 8: 4, 12: 3}[pos]
                    cuts = [k + 1 for k, x in enumerate(lines) if x.endswith(" lds")][:n - 1]
                    cuts = cuts + [len(lines)] * (n - len(cuts))
                    st["chunks"] = [lines[a:b] for a, b in zip([0] + cuts, cuts)]
                self.l += st["chunks"].pop(0)
                st["issued"] += 1

        needi = lambda u: 15 * (u // 2) + (15 if u & 1 else 12)
        legal = lambda u: needi(u + 4)

        def step(u):
            nd = needi(29) if u == 28 else needi(u)
            assert nd <= st["issued"]
            e(f"s_waitcnt vmcnt({st['issued'] - nd})")
            self.lbarrier()

        cum = [int(v) for v in str(o["cum"]).split(",")]
        for u, c in enumerate(cum):
            assert c <= legal(max(u - 1, 0))
            if u == 0:
                upto(o["pbar"])
                e(f"s_waitcnt vmcnt({o['pbar'] if not o['no_dma'] else 0})")
                e("s_barrier")
            upto(c)
            step(u)
            if u == 0:
                self.stamp(2)
        u0 = len(cum)
        pat = [int(v) for v in str(o["pat"]).split(",")]
        per = 2 if pat[2] == pat[0] + 15 and pat[3] == pat[1] + 15 else 4
        after = lambda u: 30 * (u // 4) + pat[u % 4]
        assert all(after(u) <= legal(u) for u in range(4))
        assert st["issued"] <= after(u0 - 1)
        upto(after(u0 - 1))
        endq = [int(v) for v in str(o["endq"]).split(",") if v]
        nit = (28 - len(endq) - u0) // per
        e(f"s_mov_b32 s52, {nit - 1}")
        if o["ltouch"]:
            e("s_mov_b64 vcc, -1")
        self.lab("L_lloop")
        self.inloop = 1
        for k in range(per):
            step(u0 + k)
            if o["pstamp"] and (o["pstamp"] - u0) % per == k:
                e(f"s_cmp_lg_u32 s52, {nit - 1 - (o['pstamp'] - u0) // per}")
                e("s_cbranch_scc1 L_nops")
                self.stamp(1)
                self.lab("L_nops")
            upto(after(u0 + k))
            if o["ltouch"] and (u0 + k) % 4 == 2:
                e("s_branch L_ltouch")
                self.lab("L_lret")
        e("s_sub_u32 s52, s52, 1")
        e("s_cbranch_scc0 L_lloop")
        st["issued"] += 15 * per // 2 * (nit - 1)
        e("s_load_dwordx2 s[12:13], s[0:1], 48")
        for u in range(u0 + per * nit, 29):
            step(u)
            k = u - (28 - len(endq))
            c = endq[k] if 0 <= k < len(endq) else after(u)
            assert c <= legal(u)
            upto(c)
        assert st["issued"] == 240
        e("s_waitcnt vmcnt(0) lgkmcnt(0)")
        self.lbarrier()
        self.lab("L_store")
        self.stamp(3)
        self.store_setup()
        if o["diag"] & 32:
            e("s_movk_i32 s53, 2048")
        e("s_mov_b32 s46, 0")
        bars = [int(ch) for ch in str(o["bars"])]
        assert bars[-1] == (6 if o["direct"] else 7)
        tm = 0
        if bars == list(range(8)) and o["nsc"] == 8 and not o["diag"] & 1:
            bars = []
            self.lab("L_sloop")
            self.lbarrier()
            e("ds_read_b128 v[28:31], v17")
            e("v_add_u32 v17, s39, v17")
            e("s_waitcnt lgkmcnt(0)")
            if not o["no_store"]:
                e(f"buffer_store_dwordx4 v[28:31], v16, s[12:15], s46 offen {o['saux']}")
            e("s_add_u32 s46, s46, s53")
            e("s_bitcmp0_b32 s46, 14")
            e("s_cbranch_scc1 L_sloop")
        for b in bars:
            if not o["diag"] & 1:
                self.lbarrier()
            grp = list(range(tm, b + 1))
            for q, t2 in enumerate(grp):
                e(f"ds_read_b128 v[{28 + 4 * q}:{31 + 4 * q}], v17 offset:{t2 * 4096}")
            for q, t2 in enumerate(grp):
                e(f"s_waitcnt lgkmcnt({len(grp) - 1 - q})")
                if not o["no_store"]:
                    e(f"buffer_store_dwordx4 v[{28 + 4 * q}:{31 + 4 * q}], v16, s[12:15], s46 offen {o['saux'] if t2 < o['nsc'] else o['saux2']}")
                e("s_add_u32 s46, s46, s53")
            tm = b + 1
        if o["stamps"]:
            e("s_waitcnt vmcnt(0)")
        self.stamp(4)
        if o["stamps"]:
            e("s_branch L_ldump")

            def late():
                self.lab("L_ldump")
                self.dump_stamps(5, "l")
                e("s_endpgm")
            self.late.append(late)
        else:
            e("s_endpgm")

    def store_setup(self):
        e = self.e
        e("s_mov_b32 s14, 0x800000")
        e("s_mov_b32 s15, 0x20000")
        e("s_and_b32 s3, s18, 1")
        e("v_lshl_add_u32 v6, s3, 3, v5")
        self.pi(7, 6, 8, 9)
        e("s_lshr_b32 s3, s18, 1")
        e("s_lshl_b32 s3, s3, 7")
        e("s_add_u32 s3, s3, s16")
        e("s_lshl_b32 s3, s3, 10")
        e("s_add_u32 s3, s3, s17")
        e("s_lshl_b32 s3, s3, 1")
        e("v_and_b32 v8, 7, v0")
        e("v_lshl_add_u32 v9, v8, 4, s3")
        e("v_lshl_add_u32 v16, v7, 14, v9")
        e("v_xor_b32 v8, v8, v5")
        e("v_lshlrev_b32 v8, 4, v8")
        e("v_lshl_add_u32 v8, v5, 7, v8")
        e(f"s_add_u32 s3, s50, {STG}")
        e("v_add_u32 v17, s3, v8")

    def rd_f(self, r, kk, dl, off=0):
        a = 2 + 3 * kk
        if dl == 0:
            return [f"ds_read_b128 v[{r}:{r + 3}], v{a + 2} offset:{7 * PS - 128 + off}"]
        if dl == 9:
            return [f"ds_read_b128 v[{r}:{r + 3}], v{a + 1} offset:{off}"]
        return [f"ds_read_b128 v[{r}:{r + 3}], v{a} offset:{(dl - 1) * PS + off}"]

    def rd_g(self, r, k, t, off=0):
        return [f"ds_read_b64_tr_b16 v[{r + 2 * hh}:{r + 2 * hh + 1}], v{8 + t} offset:{k * 4096 + hh * 512 + off}"
                for hh in range(2)]

    def reads(self, st, kk):
        base = SET[st]
        if self.o["rord"] == 2:
            return [x for dl in range(10) for x in self.rd_f(base + 4 * dl, kk, dl)] + \
                   [x for t in range(2) for k in range(3) for x in self.rd_g(base + 40 + (k * 2 + t) * 4, k, t)]
        if self.o["lbar"] or self.o["rord"] == 1:
            out, seen = [], set()
            for k, t, tm in self.mfmas(st, raw=True):
                for nm in (("G", k, t), ("F", tm + k)):
                    if nm not in seen:
                        seen.add(nm)
                        out += self.rd_g(base + 40 + (k * 2 + t) * 4, k, t) if nm[0] == "G" else \
                            self.rd_f(base + 4 * nm[1], kk, nm[1])
            return out
        L = []
        for t in range(2):
            for k in range(3):
                L += self.rd_g(base + 40 + (k * 2 + t) * 4, k, t)
        X = []
        for dl in range(10):
            X += self.rd_f(base + 4 * dl, kk, dl)
        out = []
        while L or X:
            if X:
                out.append(X.pop(0))
            if L:
                out.append(L.pop(0))
        return out

    def mf(self, g, f, t, tm):
        acc = ACC + (tm * 2 + t) * 4
        return f"v_mfma_f32_16x16x32_bf16 v[{acc}:{acc + 3}], v[{g}:{g + 3}], v[{f}:{f + 3}], v[{acc}:{acc + 3}]"

    def mfmas(self, st, raw=False):
        od = self.o["order"] if not (raw and self.o["order"] != 17) else 17
        asc, desc = (0, 1, 2), (2, 1, 0)
        up, down = list(range(8)), list(range(7, -1, -1))
        if od == 0:
            seq = [(k, t, tm) for k in range(3) for t in range(2) for tm in range(8)]
        elif od == 4:
            seq = [(k, t, tm) for t in range(2) for tm in up for k in asc]
        elif od == 6:
            seq = [(k, t, tm) for t in range(2) for tm in up for k in (asc if tm % 2 == 0 else desc)]
        elif od == 7:
            seq = []
            for tm in up:
                ts = (0, 1) if tm % 2 == 0 else (1, 0)
                seq += [(k, ts[0], tm) for k in asc] + [(k, ts[1], tm) for k in desc]
        elif od == 9:
            seq = [(k, 0, tm) for tm in up for k in (asc if tm % 2 == 0 else desc)] + \
                  [(k, 1, tm) for tm in down for k in (asc if tm % 2 else desc)]
        elif od == 17:
            seq = [(k, st, tm) for tm in up for k in (asc if tm % 2 == 0 else desc)] + \
                  [(k, st ^ 1, tm) for tm in down for k in (asc if tm % 2 else desc)]
        elif od == 18:
            seq = [(k, 0, tm) for tm in up for k in (0, 1)] + [(k, 1, tm) for tm in down for k in (1, 0)] + \
                  [(2, t, tm) for tm in up for t in ((1, 0) if tm == 0 else (0, 1))]
        elif od == 19:
            seq = [(k, t, tm) for k in range(3) for tm in (up if k != 1 else down) for t in range(2)]
        elif od == 10:
            seq = [(k, t, tm) for t in range(2) for tm in up for k in desc]
        elif od == 11:
            seq = [(k, t, tm) for t in range(2) for tm in up for k in (0, 2, 1)]
        elif od == 12:
            seq = [(k, t, tm) for t in range(2) for tm in up for k in (1, 0, 2)]
        elif od == 13:
            rot = [(0, 1, 2), (2, 0, 1), (1, 2, 0)]
            seq = [(k, t, tm) for t in range(2) for tm in up for k in rot[tm % 3]]
        elif od == 14:
            rot = [(0, 2, 1), (1, 0, 2), (2, 1, 0)]
            seq = [(k, t, tm) for t in range(2) for tm in up for k in rot[tm % 3]]
        elif od == 15:
            seq = [(k, t, tm) for t in range(2) for tm in up for k in ((0, 2, 1) if tm % 2 == 0 else (1, 2, 0))]
        elif od == 16:
            seq = [(k, t, tm) for t in range(2) for tm in up for k in ((2, 0, 1) if tm % 2 == 0 else (1, 0, 2))]
        elif od >= 20:
            out = []
            for tm in up:
                ks = [(0, k) for k in asc] + [(1, k) for k in (asc if od == 20 else desc)]
                if od != 22 and tm % 2:
                    ks = ks[::-1]
                out += [self.mf(SET[s_] + 40 + (k * 2 + st) * 4, SET[s_] + 4 * (tm + k), st, tm) for s_, k in ks]
            return out
        if raw:
            return seq
        M = [(SET[st] + 40 + (k * 2 + t) * 4, SET[st] + 4 * (tm + k), t, tm) for k, t, tm in seq]
        if self.o["swap"]:
            M = [(f, g, t, tm) for g, f, t, tm in M]
        return [self.mf(*m) for m in M]

    def substage(self, st, pre):
        o = self.o
        M = self.mfmas(st)
        R = self.reads(st ^ 1, st ^ 1) if not o["no_reads"] else []
        if o["diag"] & 1024:
            R = [r for r in R if "tr" not in r]
        if o["diag"] & 2048:
            R = [r for r in R if "tr" in r]
        if o["diag"] & 4096:
            R = [r.replace("b64_tr_b16", "b64") for r in R]
        fill = {}
        lb = o["lbar"]
        sp = (o["lastrd"] - lb) / 22.0
        if lb:
            fill[lb - 1] = ["s_waitcnt lgkmcnt(0)", "s_barrier"]
        for i, r in enumerate(R):
            fill.setdefault(lb + int(i * sp), []).append(r)
        pos = 0 if lb else o["lastrd"]
        for i, p in enumerate(pre):
            fill.setdefault(min(pos + i, 47), []).extend(p)
        top = [f"s_waitcnt lgkmcnt({o['topw']})"] if lb else ["s_waitcnt lgkmcnt(0)", "s_barrier"] + ["s_nop 15"] * o["idle"]
        if lb and o["topw"] > 6:
            fill.setdefault({7: 20, 8: 19, 9: 14, 10: 13, 11: 8, 12: 7}[o["topw"]] - 1, []).append("s_waitcnt lgkmcnt(6)")
        out = []
        for i, m in enumerate(M):
            out.append((top if i == 0 else []) + ([m] if not o["no_mfma"] else []) + fill.get(i, []))
        return out

    def first(self, pre, nm_=48):
        e = self.e
        o = self.o
        seq = self.mfmas(0, raw=True)
        todo, queue, seen = [], [], set()
        for k, t, tm in seq:
            for nm in (("G", k, t), ("F", tm + k)):
                if nm not in todo:
                    todo.append(nm)

        def rd():
            nm = todo.pop(0)
            ops = self.rd_g(SET[0] + 40 + (nm[1] * 2 + nm[2]) * 4, nm[1], nm[2]) if nm[0] == "G" else \
                self.rd_f(SET[0] + 4 * nm[1], 0, nm[1])
            for op in ops:
                e(op)
                queue.append(nm)
        for _ in range(o["fpre"]):
            rd()
        R = self.reads(1, 1)
        bar = o["fbar"]
        sp = (o["flast"] - bar) / 22.0
        fill = {bar - 1: ["v_add_u32 v8, s53, v8", "v_add_u32 v9, s53, v9"], bar: ["s_waitcnt lgkmcnt(0)", "s_barrier"]}
        for i, r in enumerate(R):
            fill.setdefault(bar + int(i * sp), []).append(r)
        for i, p in enumerate(pre):
            fill.setdefault(min(o["flast"] + i * 2 // 3, nm_ - 1), []).extend(p)
        for i, (k, t, tm) in enumerate(seq[:nm_]):
            idx = max((q for q, tg in enumerate(queue) if tg in (("G", k, t), ("F", tm + k))), default=-1)
            if idx >= 0:
                n = min(len(queue) - 1 - idx, 14)
                e(f"s_waitcnt lgkmcnt({n})")
                del queue[:len(queue) - n]
            m = self.mf(SET[0] + 40 + (k * 2 + t) * 4, SET[0] + 4 * (tm + k), t, tm)
            if (t, tm) not in seen:
                seen.add((t, tm))
                m = m[:m.rindex(",")] + (", v[40:43]" if o["off"] else ", 0")
            e(m)
            if todo:
                assert i < bar - 1
                rd()
            if i == bar:
                del queue[:]
            for x in fill.get(i, []):
                e(x)

    def epi_ops(self, un):
        tm, t = un >> 1, un & 1
        a = ACC + un * 4
        tb = TMP + 4 * t
        L = []
        if not self.o["no_epi"] and not (self.o["pk"] == 1 or (self.o["pk"] == 2 and un == 15)):
            for r in range(4):
                L.append(f"v_fma_f32 v{a + r}, v{a + r}, v{16 + 4 * t + r}, v{24 + 4 * t + r}")
            for r in range(4):
                L.append(f"v_exp_f32 v{tb + r}, v{a + r}")
            for r in range(4):
                L.append(f"v_fma_f32 v{tb + r}, v{tb + r}, s42, s42")
            for r in range(4):
                L.append(f"v_rcp_f32 v{tb + r}, v{tb + r}")
            for r in range(4):
                L.append(f"v_mul_f32 v{tb + r}, v{tb + r}, v{a + r}")
            for p in range(2):
                L.append(f"v_cvt_pk_bf16_f32 v{a + p}, v{tb + 2 * p}, v{tb + 2 * p + 1}")
        elif not self.o["no_epi"]:
            for p in range(2):
                q = 4 * t + 2 * p
                L.append(f"v_pk_fma_f32 v[{a + 2 * p}:{a + 2 * p + 1}], v[{a + 2 * p}:{a + 2 * p + 1}], v[{16 + q}:{17 + q}], v[{24 + q}:{25 + q}]")
            for r in range(4):
                L.append(f"v_exp_f32 v{tb + r}, v{a + r}")
            for p in range(2):
                L.append(f"v_pk_fma_f32 v[{tb + 2 * p}:{tb + 2 * p + 1}], v[{tb + 2 * p}:{tb + 2 * p + 1}], s[42:43], s[42:43]")
            for r in range(4):
                L.append(f"v_rcp_f32 v{tb + r}, v{tb + r}")
            for p in range(2):
                L.append(f"v_pk_mul_f32 v[{tb + 2 * p}:{tb + 2 * p + 1}], v[{tb + 2 * p}:{tb + 2 * p + 1}], v[{a + 2 * p}:{a + 2 * p + 1}]")
            for p in range(2):
                L.append(f"v_cvt_pk_bf16_f32 v{a + p}, v{tb + 2 * p}, v{tb + 2 * p + 1}")
        if self.o["direct"] and tm == 7:
            if t:
                L = [x.replace(f"v_cvt_pk_bf16_f32 v{a},", f"v_cvt_pk_bf16_f32 v{a - 2},")
                      .replace(f"v_cvt_pk_bf16_f32 v{a + 1},", f"v_cvt_pk_bf16_f32 v{a - 1},") for x in L]
                L += ["s_nop 0", f"v_permlane16_swap_b32 v{a - 4}, v{a - 2}", f"v_permlane16_swap_b32 v{a - 3}, v{a - 1}"]
                if not self.o["no_store"]:
                    L.append(f"buffer_store_dwordx4 v[{a - 4}:{a - 1}], v0, s[12:15], 0 offen {self.o['saux']}")
        elif self.o["diag"] & 2:
            L.append("ds_read_b32 v12, v1")
        elif self.o["wpair"]:
            if t:
                L.insert(len(L) - 2, f"DS ds_write_b64 v1, v[{a - 4}:{a - 3}] offset:{tm * 4096}")
                L.append(f"ds_write_b64 v11, v[{a}:{a + 1}] offset:{tm * 4096}")
        else:
            L.append(f"ds_write_b64 v{11 if t else 1}, v[{a}:{a + 1}] offset:{tm * 4096}")
        return L

    def tail(self):
        e = self.e
        o = self.o
        nt = o["nt"]
        seq = []
        for u in range(27, 32 - nt):
            for tm in range(8):
                ts = (0, 1) if tm % 2 else (1, 0)
                seq += [(u, k, ts[0], tm) for k in (0, 1, 2)] + [(u, k, ts[1], tm) for k in (2, 1, 0)]
        done_at = {}
        for tm in range(8):
            if o["alt"]:
                for u in range(32 - nt, 32):
                    seq += [(u, k, t, tm) for k in range(3) for t in range(2)]
                done_at[2 * tm] = len(seq) - 2
                done_at[2 * tm + 1] = len(seq) - 1
                continue
            lo = 32 - nt
            if tm == 0 and nt == 4 and o["split0"]:
                seq += [(u, k, t, tm) for t in range(2) for u in (28, 29) for k in range(3)]
                lo = 30
            for t in range(2):
                for u in range(lo, 32):
                    seq += [(u, k, t, tm) for k in range(3)]
                done_at[2 * tm + t] = len(seq) - 1
        first, last = {}, {}
        for i, (u, k, t, tm) in enumerate(seq):
            for nm in (("G", u, k, t), ("F", u, tm + k)):
                first.setdefault(nm, i)
                last[nm] = i
        reg = {}
        for dl in range(10):
            reg[("F", 27, dl)] = SET[1] + 4 * dl
        for k in range(3):
            for t in range(2):
                reg[("G", 27, k, t)] = SET[1] + 40 + (k * 2 + t) * 4
        free = list(range(SET[0], SET[0] + 64, 4)) + list(range(TMP + 8, 64, 4)) + [12]
        todo = sorted((nm for nm in first if nm not in reg), key=lambda nm: first[nm])
        queue = []

        def lds(op, tag=None):
            e(op)
            queue.append(tag)

        def wait_for(tags):
            idx = max((i for i, tg in enumerate(queue) if tg in tags), default=-1)
            if idx >= 0:
                n = min(len(queue) - 1 - idx, 14)
                e(f"s_waitcnt lgkmcnt({n})")
                del queue[:len(queue) - n]

        half = []

        def issue_read(nm):
            if nm[0] == "P":
                i = nm[1]
                lds(f"ds_read_b128 v[{16 + 4 * i}:{19 + 4 * i}], v10 offset:{(i >> 1) * 256 + (i & 1) * 64}", nm)
                return
            r = free.pop(0)
            reg[nm] = r
            u = nm[1]
            if nm[0] == "F":
                ops = self.rd_f(r, u & 1, nm[2], XBUF * ((u >> 1) - 14))
            else:
                ops = self.rd_g(r, nm[2], nm[3], WBUF * (u % NWB))
            if not o["no_reads"]:
                lds(ops[0], nm)
                half.extend((op, nm) for op in ops[1:])

        e("s_waitcnt lgkmcnt(0)")
        self.stamp(3)
        if not o["lbar"]:
            e("s_barrier")
        chk, pchk = o["tchk"], o["pchk"]
        head = {0: [f"v_subrev_u32 v8, {3 * WBUF}, v8", "s_mov_b32 s43, s42"], 1: [f"v_subrev_u32 v9, {3 * WBUF}, v9"],
                2: ["v_add_u32 v5, s55, v5"], 3: ["v_add_u32 v6, s55, v6"], 4: ["v_add_u32 v7, s55, v7"],
                chk: ["s_barrier"]}
        avail = {28: 1, 29: 5, 30: chk, 31: chk}
        if o["lbar"]:
            tb = o["tbar"]
            head = {0: [f"v_subrev_u32 v8, {2 * WBUF}, v8", f"v_subrev_u32 v9, {2 * WBUF}, v9", "s_mov_b32 s43, s42"],
                    1: ["v_add_u32 v2, s47, v2", "v_add_u32 v3, s47, v3"], 2: ["v_add_u32 v4, s47, v4", "v_add_u32 v5, s47, v5"],
                    3: ["v_add_u32 v6, s47, v6", "v_add_u32 v7, s47, v7"],
                    tb: ["s_barrier"], chk: ["s_barrier"]}
            avail = {28: tb + 1, 29: tb + 1, 30: chk, 31: chk}
        bar_at = {}
        quiet = -1
        bars = [int(ch) for ch in str(o["bars"])]
        cost = lambda x: 8 if ("v_exp" in x or "v_rcp" in x) else 12 if "ds_write" in x else 4
        cur, pend, nxt = [], [], 0
        mark = {}
        credit = 0.0
        per_gap = sum(cost(x) for x in self.epi_ops(0) + self.epi_ops(1)) / (6.0 * nt) * o['pace'] + 0.5
        stalls = []
        for i, (u, k, t, tm) in enumerate(seq):
            g, f = ("G", u, k, t), ("F", u, tm + k)
            while g in todo or f in todo or any(nm == g for _, nm in half):
                stalls.append(i)
                if half:
                    lds(*half.pop(0))
                else:
                    issue_read(todo.pop(0))
            wait_for({g, f})
            if not o["no_mfma"]:
                e(self.mf(reg[g], reg[f], t, tm))
            if nxt < 16 and done_at[nxt] == i:
                mark[nxt] = len(self.l)
                pend.append(nxt)
                nxt += 1
            for nm in (g, f):
                if last[nm] == i:
                    free.append(reg[nm])
            for x in head.get(i, []):
                e(x)
            if o["tst"] and i in [int(v) for v in o["tst"].split(",")]:
                q = 1 + [int(v) for v in o["tst"].split(",")].index(i)
                e(f"s_memtime s[{60 + 4 * q}:{61 + 4 * q}]")
            if i in bar_at and not o["latebar"]:
                wait_for({bar_at.pop(i)})
                e("s_barrier")
            wnext = cur and any(x[:2].lower() == "ds" for x in cur[:3])
            if i >= 1 and i != chk and not (wnext and not half) and i > quiet:
                if half:
                    lds(*half.pop(0))
                    credit -= 4 * bool(cur or pend)
                else:
                    hold = min([first[nm] for nm in todo if nm[0] != "P" and i < avail[nm[1]]], default=999)
                    cand = [nm for nm in todo if (i >= pchk if nm[0] == "P" else
                                                  i >= avail[nm[1]] and first[nm] <= hold + o["hold"])]
                    if cand and (cand[0][0] == "P" or free):
                        todo.remove(cand[0])
                        issue_read(cand[0])
                        credit -= 4 * bool(cur or pend)
            if cur or pend:
                credit += per_gap
            while credit > 0:
                if not cur:
                    if not pend or len(self.l) - mark[pend[0]] < 8:
                        credit = 0
                        break
                    curun = pend.pop(0)
                    cur = self.epi_ops(curun)
                x = cur.pop(0)
                if x.startswith("DS "):
                    lds(x[3:])
                elif x.startswith("ds_"):
                    lds(x, ("W", curun))
                    if curun & 1:
                        free.extend([ACC + 4 * curun - 4, ACC + 4 * curun])
                    quiet = i + o["wq"]
                    if curun & 1 and curun >> 1 in bars and not o["diag"] & 1:
                        bar_at[i + o["blag"]] = ("W", curun)
                else:
                    e(x)
                credit -= cost(x)
        assert not todo
        if stalls:
            print("tail: late reads at", stalls, file=sys.stderr)
        rest = [(curun, cur)] if cur else []
        rest += [(un, None) for un in pend]
        for un, ops in rest:
            if ops is None:
                gap = len(self.l) - mark[un]
                if gap < 8:
                    e(f"s_nop {7 - gap}")
                ops = self.epi_ops(un)
            for x in ops:
                if x.startswith("DS "):
                    lds(x[3:])
                elif x.startswith("ds_"):
                    for key in sorted(bar_at):
                        wait_for({bar_at.pop(key)})
                        e("s_barrier")
                    lds(x, ("W", un))
                    if un & 1 and un >> 1 in bars and not o["diag"] & 1:
                        bar_at[un] = ("W", un)
                else:
                    e(x)
        for key in sorted(bar_at):
            wait_for({bar_at.pop(key)})
            e("s_barrier")

    def compute(self):
        e = self.e
        o = self.o
        if o["pages"]:
            e(".p2align 12")
            self.lab("L_page1")
        self.lab("L_compute")
        e("s_and_b32 s38, s18, 1")
        e("s_bfe_u32 s39, s18, 0x10001")
        e("v_and_b32 v10, 15, v0")
        e("v_lshrrev_b32 v16, 4, v0")
        if o["cpf"]:
            e("s_getpc_b64 s[20:21]")
            e("v_lshlrev_b32 v12, 7, v0")
            e("v_mov_b32 v13, s21")
            e("v_add_co_u32 v12, vcc, s20, v12")
            e("s_cmp_lt_u32 s36, %d" % o["cpf"])
            e("s_cselect_b32 s3, s18, 1")
            e("v_addc_co_u32 v13, vcc, 0, v13, vcc")
            e("s_and_b32 s3, s3, 3")
            e("s_cbranch_scc1 L_nocpf")
            e("s_mov_b32 exec_hi, (1 << (((L_end - L_compute) >> 7) - 32)) - 1")
            e("global_load_dword v14, v[12:13], off")
            e("s_mov_b32 exec_hi, -1")
            self.lab("L_nocpf")
        self.pi(17, 10, 18, 19)
        e("v_lshrrev_b32 v18, 2, v10")
        e("v_lshl_add_u32 v19, v16, 3, v18")
        e("v_lshlrev_b32 v19, 7, v19")
        e("v_and_b32 v20, 3, v10")
        e("v_lshl_add_u32 v19, v20, 3, v19")
        e("v_lshrrev_b32 v18, 1, v18")
        e("v_and_b32 v20, 1, v16")
        e("v_lshl_or_b32 v18, v20, 1, v18")
        e("s_lshl_b32 s45, s39, 1")
        e("v_xor_b32 v18, s45, v18")
        e("v_lshl_add_u32 v19, v18, 5, v19")
        e(f"v_add_u32 v8, {WBASE}, v19")
        e("v_xor_b32 v9, 32, v8")
        e("s_lshl_b32 s3, s38, 11")
        e(f"s_add_u32 s46, s3, {XBUF}")
        if o["rotk"]:
            e("s_bfe_u32 s47, s16, 0x10008")
            e("v_lshl_or_b32 v21, s47, 2, v16")
        for idx, sh in ((0, 0), (1, 1), (2, -1)):
            e(f"v_add_u32 v18, {sh}, v17")
            e("v_bfe_u32 v19, v18, 1, 3")
            e(f"v_xor_b32 v19, v19, v{21 if o['rotk'] else 16}")
            e("v_lshlrev_b32 v19, 4, v19")
            e(f"v_lshl_add_u32 v19, v{17 if sh == -1 else 18}, 7, v19")
            e(f"v_add_u32 v{2 + idx}, s46, v19")
            e(f"v_xor_b32 v{5 + idx}, 64, v{2 + idx}")
        e("v_lshrrev_b32 v18, 1, v16")
        e("v_lshl_add_u32 v18, s39, 2, v18")
        e("v_and_b32 v19, 7, v10")
        e("v_xor_b32 v18, v18, v19")
        e("v_lshlrev_b32 v18, 4, v18")
        e("v_lshl_add_u32 v18, v20, 3, v18")
        e("v_lshl_add_u32 v18, v10, 7, v18")
        e(f"s_add_u32 s3, s3, {STG}")
        e("v_add_u32 v1, s3, v18")
        e("v_xor_b32 v11, 32, v1")
        if o["direct"]:
            e("s_lshl_b32 s3, s38, 7")
            e("s_add_u32 s3, s3, s16")
            e("s_add_u32 s3, s3, 7")
            e("s_lshl_b32 s3, s3, 10")
            e("s_lshl_b32 s45, s39, 5")
            e("s_add_u32 s3, s3, s45")
            e("s_add_u32 s3, s3, s17")
            e("s_lshl_b32 s3, s3, 1")
            e("v_lshl_add_u32 v18, v20, 5, s3")
            e("v_lshrrev_b32 v19, 1, v16")
            e("v_lshl_add_u32 v18, v19, 4, v18")
            e("v_lshl_add_u32 v0, v17, 14, v18")
            e("s_waitcnt lgkmcnt(0)")
        e("s_lshl_b32 s3, s39, 6")
        e(f"s_add_u32 s3, s3, {PB}")
        e("v_and_b32 v18, 4, v10")
        e("v_add_lshl_u32 v18, v18, v16, 2")
        e("v_and_or_b32 v18, v10, 3, v18")
        e("v_lshl_add_u32 v10, v18, 1, s3")
        e("v_mov_b64 v[24:25], 0")
        e("v_mov_b64 v[26:27], 0")
        if o["fall"]:
            seq = self.mfmas(0, raw=True)
            for t, tm in sorted({(t, tm) for k, t, tm in seq[o["brpos"]:]} - {(t, tm) for k, t, tm in seq[:o["brpos"]]}):
                for h in range(2):
                    r = ACC + (tm * 2 + t) * 4 + 2 * h
                    e(f"v_mov_b64 v[{r}:{r + 1}], 0")
            for _ in range(o["lpad"]):
                e("s_nop 0")
        if o["ltouch"]:
            e("s_mov_b64 vcc, 0")
        e("s_mov_b32 s40, 1")
        e("s_mov_b32 s41, 1")
        e("s_mov_b32 s42, 0xbfb8aa3b")
        e(f"s_movk_i32 s53, {WBUF}")
        e(f"s_mov_b32 s54, {XBUF}")
        e(f"s_mov_b32 s46, {-(NWB - 1) * WBUF & 0xffffffff:#x}")
        e(f"s_mov_b32 s47, {-(NXB - 1) * XBUF & 0xffffffff:#x}")
        e("s_mov_b32 s52, 12")
        if o["prio_c"]:
            e(f"s_setprio {o['prio_c']}")
        e("s_barrier")
        self.params()
        self.stamp(1)
        e("s_barrier")
        self.stamp(2)

        def wadv():
            return [["s_add_u32 s41, s41, 1", f"s_cmp_eq_u32 s41, {NWB}"],
                    ["s_cselect_b32 s43, s46, s53", "s_cselect_b32 s41, 0, s41"],
                    ["v_add_u32 v8, s43, v8"], ["v_add_u32 v9, s43, v9"]]

        pre0 = wadv() + [["s_add_u32 s40, s40, 1", f"s_cmp_eq_u32 s40, {NXB}"],
                         ["s_cselect_b32 s55, s47, s54", "s_cselect_b32 s40, 0, s40"]] + \
            [[f"v_add_u32 v{2 + i}, s55, v{2 + i}"] for i in range(3)]
        pre1 = wadv() + [[f"v_add_u32 v{5 + i}, s55, v{5 + i}"] for i in range(3)]
        if o["lbar"]:
            assert o["topw"] <= 6 or o["lbar"] > {7: 20, 8: 19, 9: 14, 10: 13, 11: 8, 12: 7}[o["topw"]]
            self.first([], 48)
            body = self.substage(1, pre0) + self.substage(0, pre1 + [["s_sub_u32 s52, s52, 1"]])
        else:
            self.first(pre0, o["brpos"] if o["fall"] else 48)
            body = self.substage(1, pre1) + self.substage(0, pre0 + [["s_sub_u32 s52, s52, 1"]])
        cut = 48 + o["brpos"]
        if not o["fall"]:
            e("s_branch L_centry")
        if o["pages"]:
            self.lab("L_touch0")
        if not o["fall"]:
            e(".p2align 6")
            for _ in range(o["lpad"]):
                e("s_nop 0")
        self.lab("L_cloop")
        for gap in body[cut:]:
            for x in gap:
                e(x)
        self.lab("L_centry")
        for gap in body[:cut]:
            for x in gap:
                e(x)
        e("s_cbranch_scc0 L_cloop")
        for gap in body[cut:]:
            for x in gap:
                e(x)
        self.lab("L_tail")
        self.tail()
        self.lab("L_tail_end")
        if o["stamps"] and o["direct"]:
            e("s_waitcnt vmcnt(0)")
            e("v_mbcnt_lo_u32_b32 v0, -1, 0")
            e("v_mbcnt_hi_u32_b32 v0, -1, v0")
        self.stamp(4)
        self.dump_stamps(5, "c")
        e("s_endpgm")

    def gen(self):
        e = self.e
        o = self.o
        self.l.append(HEADER.rstrip())
        self.l.append(f"; @launch grid=(256,1,1) block=(512,1,1) lds={LDS}")
        self.l.append(DOC)
        self.l.append('.amdgcn_target "amdgcn-amd-amdhsa--gfx950"')
        self.l.append(".text")
        self.l.append(f".globl {KN}")
        if o["pages"]:
            self.l.append(".p2align 12")
        self.l.append(".p2align 8")
        self.l.append(f".type {KN},@function")
        self.lab(KN)
        e("s_cmp_ge_u32 s2, 256")
        e("s_cbranch_scc1 L_end")
        if o["stamps"]:
            e("s_memtime s[60:61]")
            e("s_memrealtime s[62:63]")
        e("s_load_dwordx2 s[8:9], s[0:1], 8")
        e("s_load_dwordx2 s[4:5], s[0:1], 0")
        e("v_readfirstlane_b32 s18, v0")
        e("v_and_b32 v0, 63, v0")
        e("s_lshr_b32 s17, s2, 5")
        e("s_and_b32 s20, s2, 1")
        e("s_lshl3_add_u32 s17, s20, s17")
        e("s_bfe_u32 s22, s2, 0x20001")
        e("s_bfe_u32 s16, s2, 0x20003")
        e("s_lshl2_add_u32 s16, s22, s16")
        e("s_lshr_b32 s18, s18, 6")
        e("s_lshl_b32 s17, s17, 6")
        e("s_lshl_b32 s16, s16, 8")
        e("s_cmp_ge_u32 s18, 4")
        if o["pages"] >= 2:
            e("s_cbranch_scc0 L_loader")
            self.l.append("@DISPATCH")
            e("s_branch L_compute")
        else:
            e(("s_cbranch_scc1" if o["lfirst"] else "s_cbranch_scc0") + " L_compute")
        self.loader()
        self.compute()
        for f in self.late:
            f()
        self.lab("L_end")
        e("s_endpgm")
        self.l.append(f""".section .rodata,"a"
.p2align 6
.amdhsa_kernel {KN}
  .amdhsa_next_free_vgpr 256
  .amdhsa_next_free_sgpr 96
  .amdhsa_accum_offset 256
  .amdhsa_group_segment_fixed_size 0
  .amdhsa_kernarg_size 72
  .amdhsa_user_sgpr_count 2
  .amdhsa_user_sgpr_kernarg_segment_ptr 1
  .amdhsa_system_sgpr_workgroup_id_x 1
.end_amdhsa_kernel""")
        return self.finish()

    def finish(self):
        L = "\n".join(self.l).split("\n")
        if self.o["pages"] < 2:
            return "\n".join(L) + "\n"
        import re
        import subprocess
        i0 = L.index("L_touch0:")
        it, ie = L.index("L_tail:"), L.index("L_tail_end:")
        probe = []
        for i, x in enumerate(L):
            if it < i <= ie:
                probe.append(f"L_pos{i}:")
            if x != "@DISPATCH":
                probe.append(x.replace("L_ltouch", "L_end"))
        open("probe.s", "w").write("\n".join(probe) + "\n")
        subprocess.run(["clang", "-x", "assembler", "-target", "amdgcn-amd-amdhsa", "-mcpu=gfx950",
                        "-c", "probe.s", "-o", "probe.o"], check=True)
        sym = subprocess.run(["llvm-readelf", "-s", "probe.o"], capture_output=True, text=True).stdout
        addr = {m.group(2): int(m.group(1), 16) for m in re.finditer(r"^\s*\d+: ([0-9a-f]+)\s.*\s(\S+)$", sym, re.M)}
        base = addr["L_page1"]
        win = self.o["win"]
        out, n, covered = [], 1, (addr["L_touch0"] - base) // 64 * 64 + win
        if not self.o["touch1"]:
            covered = 4096
        for i, x in enumerate(L):
            if it < i < ie:
                pos = addr[f"L_pos{i}"] - base + 4 * (n - 1) + 4 * (n > 1 and self.o["ltouch"])
                if pos >= covered and n < 4:
                    if n == 1 and self.o["ltouch"]:
                        out += ["L_ltouch:", "    s_cbranch_vccnz L_lret"]
                    out += [f"L_touch{n}:", "    s_cbranch_scc0 " + {"c": "L_compute"}.get(self.o["tchain"][n - 1], "L_touch" + self.o["tchain"][n - 1])]
                    n += 1
                    covered = min(pos // 64 * 64 + win, (pos // 4096 + 1) * 4096)
            out.append(x)
        disp, wave = [], 7
        for ch in str(self.o["tord"]):
            if ch == "w":
                disp.append("    s_waitcnt lgkmcnt(0)")
                continue
            if int(ch) < n:
                disp += [f"    s_cmp_lg_u32 s18, {wave}", "    s_cbranch_scc0 " + (f"L_touch{ch}" if ch != "0" else "L_compute")]
            wave -= 1
        j = out.index("@DISPATCH")
        out[j:j + 1] = disp
        return "\n".join(out) + "\n"


if __name__ == "__main__":
    out = sys.argv[1]
    opts = {}
    for a in sys.argv[2:]:
        k, v = a.split("=")
        if k in ("bars", "tord", "tchain"):
            opts[k] = v
            continue
        try:
            v = int(v)
        except ValueError:
            try:
                v = float(v)
            except ValueError:
                v = v.replace("+", " ")
        opts[k] = v
    open(out, "w").write(G(**opts).gen())
```

```python
import sys

HEADER = open("standalone__batchnorm__prompt.s.ref").read().split("; Override launch")[0]
KN = "standalone__batchnorm__prompt_kernel"

PS = 33 * 128
XBUF = 263 * 128
NXB = 3
WBUF = 3 * 32 * 128
NWB = 5
WBASE = NXB * XBUF
PB = WBASE + NWB * WBUF
LDS = PB + 512
STG = 2 * XBUF

ACC = 64
SET = (128, 192)
TMP = 32


def cnt(i):
    return (3, 5, 4, 3)[i % 4]


def need(u):
    return 2 * u + 3 if u % 2 == 0 else 2 * u + 2


DOC = """;
; One workgroup owns a 256 x 64 output tile. Waves 0-3 stream x and w into LDS rings with LDS-DMA loads, waves 4-7
; each compute 128 x 32 with v_mfma_f32_16x16x32_bf16 (A = w^T through transposed LDS reads, B = x).
; One barrier per 32 channels. The 64-channel stages are visited in an order that differs between workgroup groups, so
; in LDS and written as whole 128-byte lines by waves 0-3."""

NOTES = {
    "L_loader": "DMA waves: addresses, first loads",
    "L_lloop": "DMA waves: steady state, two 64-channel stages per trip",
    "L_store": "DMA waves: store the staged output rows",
    "L_compute": "MFMA waves: addresses, first 32-channel step",
    "L_cloop": "MFMA waves: steady state, two 32-channel steps per trip",
    "L_tail": "MFMA waves: last five steps and the epilogue; the scc0 / vccnz branches are only taken by the earlier jumps that pull this code into the instruction cache",
}


class G:
    def __init__(self, **o):
        self.o = dict(stamps=0, trace=0, no_dma=0, no_reads=0, no_mfma=0, no_epi=0, no_store=0,
                      lastrd=33, prio_c=1, prio_l=0, lfirst=1, order=17, xaux="", waux="", saux="sc1", xmap=0,
                      probe="", xor=1, nt=4, fpre=7, fbar=20, flast=40, hold=12, split0=1, touch1=0, direct=0, bars='01234567', wq=1, modeb=0, fall=0, off=5, xidle=0, early=1, ltouch=1, tchain='ccc', tord='0321', tst='', pbar=14, rord=0, lbar=0, topw=6, tbar=4, idle=0, nsc=8, saux2='', pat='32,39,43,53', pwg=-1, rrate=0.8, x0=4, pace=1.04, pk=2, alt=0, lead=6, cum="21,27,35",
                      rotx=1, rotk=1, tchk=34, endq="204,215,222,232,240", pchk=50, blag=7, cpf=0, pstamp=0, brpos=45, pages=2, lpad=0, win=1280, latebar=0, diag=0, wpair=1, cmode=0, swap=0, base="_456789AB0123CDEF", mask="_1111333333333333", maskb="_0000000000000000")
        self.o.update(o)
        self.l = []
        self.nlab = 0
        self.late = []
        self.late_table = None
        self.inloop = 0
        self.flow = 0

    def e(self, s):
        self.l.append("    " + s)

    def lab(self, s):
        if s in NOTES:
            self.l.append("; " + NOTES[s])
        self.l.append(s + ":")

    def stamp(self, i):
        pr = self.o["probe"].split(",")
        if len(pr) == 5 and i not in (int(pr[1]), int(pr[2]), 4) or self.o["tst"] and i in (1, 2, 3):
            return
        if self.o["stamps"]:
            self.e(f"s_memtime s[{60 + 4 * i}:{61 + 4 * i}]")
            self.e(f"s_memrealtime s[{62 + 4 * i}:{63 + 4 * i}]")
            self.e("s_waitcnt lgkmcnt(0)")

    def lbarrier(self):
        e = self.e
        e("s_barrier")
        if self.o["trace"]:
            e("s_memtime s[56:57]")
            e("s_memrealtime s[80:81]")
            e("s_mov_b32 s90, m0")
            e("s_mov_b32 m0, s55")
            e("s_waitcnt lgkmcnt(0)")
            e("v_writelane_b32 v62, s56, m0")
            e("v_writelane_b32 v63, s80, m0")
            e("s_add_u32 s55, s55, 1")
            e("s_mov_b32 m0, s90")

    def dump_stamps(self, n, role):
        if not self.o["stamps"]:
            return
        e = self.e
        if self.o["probe"]:
            prole, a, z, kind, mult = self.o["probe"].split(",")
            if prole == role:
                off = 60 if kind == "c" else 62
                e(f"s_sub_u32 s3, s{off + 4 * int(z)}, s{off + 4 * int(a)}")
                if kind == "g":
                    e("v_mov_b32 v50, 0")
                    e("global_load_dword v51, v50, s[92:93] sc1")
                    e("s_waitcnt vmcnt(0)")
                    e("v_readfirstlane_b32 s3, v51")
                    e("s_not_b32 s3, s3")
                    e(f"s_sub_u32 s3, s{62 + 4 * int(z)}, s3")
                if kind != "c":
                    e(f"s_mul_i32 s3, s3, {mult}")
                elif int(mult) < 0:
                    e(f"s_lshl_b32 s3, s3, {-int(mult)}")
                else:
                    e(f"s_lshr_b32 s3, s3, {mult}")
                e("s_min_u32 s3, s3, 50000")
                if self.o["pwg"] >= 0:
                    e("s_and_b32 s56, s2, 7")
                    e(f"s_cmp_eq_u32 s56, {self.o['pwg']}")
                    e("s_cselect_b32 s3, s3, 0")
                self.lab(f"L_spin_{role}")
                e("s_memrealtime s[56:57]")
                e("s_waitcnt lgkmcnt(0)")
                e(f"s_sub_u32 s56, s56, s{62 + 4 * (n - 1)}")
                e("s_cmp_lt_u32 s56, s3")
                e(f"s_cbranch_scc1 L_spin_{role}")
            return
        e("s_load_dwordx2 s[34:35], s[0:1], 64")
        e("s_waitcnt lgkmcnt(0)")
        e("v_mov_b32 v40, 0")
        for i in range(n):
            e(f"v_writelane_b32 v40, s{60 + 4 * i}, {2 * i}")
            e(f"v_writelane_b32 v40, s{62 + 4 * i}, {2 * i + 1}")
        for i in range(4):
            e(f"v_writelane_b32 v40, s{86 + i}, {12 + i}")
        e("s_lshl_b32 s3, s2, 3")
        e("s_and_b32 s18, s18, 3")
        if role == "l":
            e("s_add_u32 s18, s18, 4")
        e("s_add_u32 s3, s3, s18")
        e("s_lshl_b32 s3, s3, 6")
        e("v_lshl_add_u32 v41, v0, 2, s3")
        if self.o["trace"] and role == "l":
            e("s_lshl_b32 s3, s3, 2")
            e("s_add_u32 s3, s3, 0x100000")
            e("v_lshl_add_u32 v42, v0, 2, s3")
            e("v_subrev_u32 v62, s60, v62")
            e("v_subrev_u32 v63, s62, v63")
            e("v_lshl_or_b32 v63, v63, 18, v62")
            e("global_store_dword v42, v63, s[34:35]")
        e("s_mov_b64 exec, 0xffff")
        e("global_store_dword v41, v40, s[34:35]")

    def issue_x(self, half):
        e = self.e
        aux = self.o["xaux"]
        self.hooks.pop("x", lambda: None)()
        if self.o["no_dma"]:
            self.hooks.pop("halo", lambda: None)()
        if not self.o["no_dma"] and not (self.o["diag"] & 8 and self.inloop):
            e(f"s_add_u32 m0, s41, s{86 + half}")
            e(f"s_add_u32 s45, s40, s{88 + half}")
            e(f"buffer_load_dwordx4 v2, s[4:7], s45 offen {aux} lds")
            for p in range(1, 4):
                a, b = (45, 46) if p & 1 else (46, 45)
                e("s_add_u32 m0, m0, s54")
                e(f"s_add_u32 s{b}, s{a}, s53")
                e(f"buffer_load_dwordx4 v2, s[4:7], s{b} offen {aux} lds")
            self.hooks.pop("halo", lambda: None)()
            if half == 0 and not self.o["diag"] & 64:
                e("s_add_u32 m0, s41, s44")
                e("s_mov_b64 exec, 15")
                e(f"buffer_load_dwordx4 v3, s[4:7], s40 offen {aux} lds")
                e("s_mov_b64 exec, -1")
        if half == 0:
            return
        e(f"s_add_u32 s41, s41, {XBUF}")
        e("s_cmp_ge_u32 s41, s51")
        e("s_cselect_b32 s41, s50, s41")

    def issue(self, i):
        if i % 4 in (0, 3):
            self.issue_w(i & 1)
        else:
            self.issue_x(i % 4 - 1)

    def issue_w(self, second):
        e = self.e
        if not self.o["no_dma"] and not (self.o["diag"] & 16 and self.inloop):
            aux = self.o["waux"]
            e("s_mov_b32 m0, s43")
            e("s_add_u32 s45, s42, s38")
            e(f"buffer_load_dwordx4 v4, s[8:11], s42 offen {aux} lds")
            e("s_add_u32 m0, m0, s39")
            e("s_add_u32 s46, s45, s38")
            e(f"buffer_load_dwordx4 v4, s[8:11], s45 offen {aux} lds")
            e("s_add_u32 m0, m0, s39")
            e(f"s_addk_i32 s43, {WBUF}")
            e(f"buffer_load_dwordx4 v4, s[8:11], s46 offen {aux} lds")
        else:
            e(f"s_addk_i32 s43, {WBUF}")
        e("s_cmp_ge_u32 s43, s49")
        e("s_cselect_b32 s43, s51, s43")
        if second:
            self.hooks.pop("table", lambda: None)()
            e("s_lshr_b64 s[82:83], s[82:83], 4")
            self.stage_offsets()
        else:
            e("s_xor_b32 s42, s42, 0x10000")

    def stage_offsets(self):
        e = self.e
        e("s_and_b32 s3, s82, 15")
        e("s_lshl_b32 s40, s3, 7")
        e("s_lshl_b32 s42, s3, 17")
        e("s_or_b32 s42, s42, s85")

    def params(self):
        e = self.e
        for i in range(4):
            e(f"ds_read_u16_d16_hi v{24 + i}, v10 offset:{128 * i}")
        rnd = ["v_cvt_pk_bf16_f32 v25, v25, v25", "v_lshlrev_b32 v25, 16, v25"]
        L = ["s_waitcnt lgkmcnt(0)", "v_add_f32 v25, 0x3727c5ac, v25"] + rnd + ["v_sqrt_f32 v25, v25", "s_nop 0"] + rnd
        L += ["v_rcp_f32 v25, v25", "s_nop 0"] + rnd + ["v_mul_f32 v25, v26, v25"] + rnd
        if self.o["off"]:
            L += ["v_rcp_f32 v26, v25", f"v_mul_f32 v{TMP}, s42, v25", "v_mul_f32 v26, v27, v26",
                  "v_max_f32_e64 v26, |v24|, |v26|"]
            for sh in (1, 2, 4):
                L += [f"v_mov_b32_dpp v{16 + q}, v{TMP} row_newbcast:{q} row_mask:0xf bank_mask:0xf" for q in {1: (0, 1), 2: (2, 3), 4: (4, 5)}[sh]]
                L += [f"v_min_u32_dpp v26, v26, v26 row_ror:{sh} row_mask:0xf bank_mask:0xf"]
            L += [f"v_mov_b32_dpp v{16 + q}, v{TMP} row_newbcast:{q} row_mask:0xf bank_mask:0xf" for q in (6, 7)]
            L += [f"v_readlane_b32 s{24 + q}, v26, {16 * q}" for q in range(4)]
            L += ["s_min_u32 s24, s24, s25", "s_min_u32 s26, s26, s27", "s_min_u32 s24, s24, s26",
                  "s_min_u32 s24, s24, 0x70000000", "s_and_b32 s24, s24, 0x7f800000",
                  f"s_cselect_b32 s25, {(self.o['off'] << 23) + 0x400000:#x}, 0", "s_add_u32 s24, s24, s25"]
            L += ["v_fma_f32 v27, -v24, v25, v27", "v_fma_f32 v27, -s24, v25, v27", f"v_mul_f32 v{TMP + 1}, s42, v27"]
            L += [f"v_mov_b32 v{r}, s24" for r in range(40, 44)]
        else:
            L += ["v_fma_f32 v27, -v24, v25, v27", f"v_mul_f32 v{TMP}, s42, v25", f"v_mul_f32 v{TMP + 1}, s42, v27", "s_nop 0"]
            L += [f"v_mov_b32_dpp v{16 + q}, v{TMP} row_newbcast:{q} row_mask:0xf bank_mask:0xf" for q in range(8)]
        L += [f"v_mov_b32_dpp v{24 + q}, v{TMP + 1} row_newbcast:{q} row_mask:0xf bank_mask:0xf" for q in range(8)]
        for x in L:
            e(x)

    def pi(self, dst, j, t0, t1):
        e = self.e
        e(f"v_lshlrev_b32 v{dst}, 1, v{j}")
        e(f"v_cmp_lt_u32 vcc, 3, v{j}")
        e(f"v_subrev_u32 v{t0}, 7, v{dst}")
        e(f"v_subrev_u32 v{t1}, 16, v{dst}")
        e(f"v_cndmask_b32 v{dst}, v{dst}, v{t0}, vcc")
        e(f"v_cmp_lt_u32 vcc, 11, v{j}")
        e("s_nop 1")
        e(f"v_cndmask_b32 v{dst}, v{dst}, v{t1}, vcc")

    def loader(self):
        e = self.e
        o = self.o
        self.lab("L_loader")
        if o["prio_l"]:
            e(f"s_setprio {o['prio_l']}")
        base = [int(ch, 16) for ch in o["base"].lstrip("_")]
        mask = [int(ch, 16) for ch in o["mask"].lstrip("_")]
        maskb = [int(ch, 16) for ch in o["maskb"].lstrip("_")]
        for c in range(4):
            for cb in range(4):
                assert sorted(b ^ (c & m) ^ (cb & mb) for b, m, mb in zip(base, mask, maskb)) == list(range(16))
        assert not maskb[0] and o["rotk"] and o["rotx"] == 1 and o["lfirst"]
        pack = lambda v: sum(x << (4 * k) for k, x in enumerate(v))
        if not o["early"]:
            e("s_lshl3_add_u32 s3, s18, 16")
            e("s_load_dwordx2 s[12:13], s[0:1], s3")
        e("v_lshrrev_b32 v5, 3, v0")
        e("s_lshl_b32 s47, s18, 2")
        e("v_xor_b32 v6, s47, v0")
        e("s_xor_b32 s84, s22, s20")
        e("v_and_b32 v7, 2, v5")
        e("v_and_b32 v6, 7, v6")
        if mask[0] == 3:
            e(f"s_xor_b32 s3, s84, {base[0]}")
        else:
            e(f"s_and_b32 s3, s84, {mask[0]}")
            e(f"s_xor_b32 s3, s3, {base[0]}")
        e("s_lshl_b32 s85, s2, 13")
        e("v_xor_b32 v7, v7, v6")
        e("s_and_b32 s85, s85, 0x10000")
        e("s_lshl_b32 s42, s3, 17")
        e("v_lshlrev_b32 v7, 4, v7")
        e("s_or_b32 s42, s42, s85")
        e("s_lshl_b32 s50, s18, 10")
        e("v_lshl_add_u32 v4, v5, 11, v7")
        e("s_lshl3_add_u32 s45, s50, s17")
        e(f"s_add_u32 s51, s50, {WBASE}")
        e("v_lshl_add_u32 v4, s45, 1, v4")
        e("s_mov_b32 s10, 0x600000")
        e("s_mov_b32 s11, 0x20000")
        e("s_mov_b32 s43, s51")
        e("s_mov_b32 s38, 0x200000")
        e("s_movk_i32 s39, 4096")
        e(f"s_add_u32 s49, s51, {NWB * WBUF}")
        e("s_lshl_b32 s40, s3, 7")
        e("v_lshl_add_u32 v8, v0, 1, s17")
        e("s_movk_i32 s14, 2048")
        e("s_mov_b32 s15, s11")
        e("v_lshlrev_b32 v8, 1, v8")
        e("s_lshl_b32 s3, s18, 7")
        e(f"s_add_u32 m0, s3, {PB}")
        e("s_mov_b32 exec_hi, 0")
        e("s_waitcnt lgkmcnt(0)")
        self.stamp(1)
        e("buffer_load_dword v8, s[12:15], 0 offen lds")
        e("s_mov_b32 exec_hi, -1")
        if ",g," in o["probe"]:
            e("s_load_dwordx2 s[92:93], s[0:1], 56")
            e("s_not_b32 s3, s62")
            e("v_mov_b32 v50, 0")
            e("v_mov_b32 v51, s3")
            e("s_waitcnt lgkmcnt(0)")
            e("s_mov_b64 exec, 1")
            e("global_atomic_umax v50, v51, s[92:93] sc1")
            e("s_mov_b64 exec, -1")

        def x_setup():
            e("v_lshrrev_b32 v7, 1, v5")
            e("s_mov_b32 s6, 0x800000")
            e("v_xor_b32 v7, v7, v6")
            e("s_mov_b32 s7, s11")
            e("v_lshlrev_b32 v7, 4, v7")
            e("s_lshl4_add_u32 s3, s47, s16")
            e("v_lshl_add_u32 v2, v5, 14, v7")
            e("s_bitcmp1_b32 s17, 6")
            e(f"s_cselect_b32 s86, {4 * PS}, 0")
            e("v_lshl_add_u32 v2, s3, 11, v2")
            e("s_cselect_b32 s88, 0x2000, 0")
            e(f"s_add_u32 s41, s50, {XBUF}")
            e("s_movk_i32 s53, 2048")
            e(f"s_movk_i32 s54, {PS}")

        def halo_setup():
            e(f"s_xor_b32 s87, s86, {4 * PS}")
            e("s_xor_b32 s89, s88, 0x2000")
            e(f"s_movk_i32 s44, {230 * 128}")
            e("s_cmp_lt_u32 s18, 2")
            e("s_cselect_b32 s3, 256, 0")
            e("s_cselect_b32 s23, 256, -1")
            e("s_cselect_b32 s24, 0, 7")
            e(f"s_cmovk_i32 s44, {32 * 128}")
            e("s_add_u32 s3, s3, s16")
            e("s_add_u32 s23, s23, s16")
            e("s_lshl_b32 s23, s23, 11")
            e("s_and_b32 s3, s3, 2047")
            e("s_cselect_b32 s23, s23, 0x80000000")
            e("v_xor_b32 v7, s24, v6")
            e("s_and_b32 s47, s47, 4")
            e("v_lshl_add_u32 v3, v7, 4, s23")
            e("s_lshl4_add_u32 s44, s47, s44")
            e("s_sub_u32 s44, s44, s50")

        def table_setup():
            e("s_mul_i32 s3, s84, 0x11111111")
            for h in range(2):
                m = pack(mask[8 * h:8 * h + 8])
                if m == 0x33333333:
                    e(f"s_xor_b32 s{82 + h}, s3, {pack(base[8 * h:8 * h + 8]):#x}")
                else:
                    e(f"s_and_b32 s{82 + h}, s3, {m:#x}")
                    e(f"s_xor_b32 s{82 + h}, s{82 + h}, {pack(base[8 * h:8 * h + 8]):#x}")
            if any(maskb):
                if o["modeb"] == 0:
                    e("s_and_b32 s84, s84, 1")
                    e("s_lshr_b32 s3, s2, 2")
                    e("s_xor_b32 s3, s3, s2")
                    e("s_bfe_u32 s3, s3, 0x10004")
                    e("s_lshl1_add_u32 s84, s84, s3")
                elif o["modeb"] == 1:
                    e("s_lshl_b32 s3, s20, 1")
                    e("s_xor_b32 s84, s22, s3")
                else:
                    e("s_lshr_b32 s3, s2, 5")
                    e("s_and_b32 s3, s3, 2")
                    e("s_xor_b32 s84, s84, s3")
                e("s_mul_i32 s84, s84, 0x11111111")
                for h in range(2):
                    m = pack(maskb[8 * h:8 * h + 8])
                    if m:
                        e(f"s_and_b32 s3, s84, {m:#x}")
                        e(f"s_xor_b32 s{82 + h}, s{82 + h}, s3")
        self.hooks = {"x": x_setup, "halo": halo_setup, "table": table_setup}
        if o["trace"]:
            e("s_mov_b32 s55, 0")
        st = {"issued": 0, "chunks": []}

        def upto(c):
            while st["issued"] < min(c, 240):
                if not st["chunks"]:
                    keep, self.l = self.l, []
                    pos = st["issued"] % 15
                    self.issue({0: 0, 3: 1, 8: 2, 12: 3}[pos])
                    lines, self.l = self.l, keep
                    n = {0: 3, 3: 5, 8: 4, 12: 3}[pos]
                    cuts = [k + 1 for k, x in enumerate(lines) if x.endswith(" lds")][:n - 1]
                    cuts = cuts + [len(lines)] * (n - len(cuts))
                    st["chunks"] = [lines[a:b] for a, b in zip([0] + cuts, cuts)]
                self.l += st["chunks"].pop(0)
                st["issued"] += 1

        needi = lambda u: 15 * (u // 2) + (15 if u & 1 else 12)
        legal = lambda u: needi(u + 4)

        def step(u):
            nd = needi(29) if u == 28 else needi(u)
            assert nd <= st["issued"]
            e(f"s_waitcnt vmcnt({st['issued'] - nd})")
            self.lbarrier()

        cum = [int(v) for v in str(o["cum"]).split(",")]
        for u, c in enumerate(cum):
            assert c <= legal(max(u - 1, 0))
            if u == 0:
                upto(o["pbar"])
                e(f"s_waitcnt vmcnt({o['pbar'] if not o['no_dma'] else 0})")
                e("s_barrier")
            upto(c)
            step(u)
            if u == 0:
                self.stamp(2)
        u0 = len(cum)
        pat = [int(v) for v in str(o["pat"]).split(",")]
        per = 2 if pat[2] == pat[0] + 15 and pat[3] == pat[1] + 15 else 4
        after = lambda u: 30 * (u // 4) + pat[u % 4]
        assert all(after(u) <= legal(u) for u in range(4))
        assert st["issued"] <= after(u0 - 1)
        upto(after(u0 - 1))
        endq = [int(v) for v in str(o["endq"]).split(",") if v]
        nit = (28 - len(endq) - u0) // per
        e(f"s_mov_b32 s52, {nit - 1}")
        if o["ltouch"]:
            e("s_mov_b64 vcc, -1")
        self.lab("L_lloop")
        self.inloop = 1
        for k in range(per):
            step(u0 + k)
            if o["pstamp"] and (o["pstamp"] - u0) % per == k:
                e(f"s_cmp_lg_u32 s52, {nit - 1 - (o['pstamp'] - u0) // per}")
                e("s_cbranch_scc1 L_nops")
                self.stamp(1)
                self.lab("L_nops")
            upto(after(u0 + k))
            if o["ltouch"] and (u0 + k) % 4 == 2:
                e("s_branch L_ltouch")
                self.lab("L_lret")
        e("s_sub_u32 s52, s52, 1")
        e("s_cbranch_scc0 L_lloop")
        st["issued"] += 15 * per // 2 * (nit - 1)
        e("s_load_dwordx2 s[12:13], s[0:1], 48")
        for u in range(u0 + per * nit, 29):
            step(u)
            k = u - (28 - len(endq))
            c = endq[k] if 0 <= k < len(endq) else after(u)
            assert c <= legal(u)
            upto(c)
        assert st["issued"] == 240
        e("s_waitcnt vmcnt(0) lgkmcnt(0)")
        self.lbarrier()
        self.lab("L_store")
        self.stamp(3)
        self.store_setup()
        if o["diag"] & 32:
            e("s_movk_i32 s53, 2048")
        e("s_mov_b32 s46, 0")
        bars = [int(ch) for ch in str(o["bars"])]
        assert bars[-1] == (6 if o["direct"] else 7)
        tm = 0
        if bars == list(range(8)) and o["nsc"] == 8 and not o["diag"] & 1:
            bars = []
            self.lab("L_sloop")
            self.lbarrier()
            e("ds_read_b128 v[28:31], v17")
            e("v_add_u32 v17, s39, v17")
            e("s_waitcnt lgkmcnt(0)")
            if not o["no_store"]:
                e(f"buffer_store_dwordx4 v[28:31], v16, s[12:15], s46 offen {o['saux']}")
            e("s_add_u32 s46, s46, s53")
            e("s_bitcmp0_b32 s46, 14")
            e("s_cbranch_scc1 L_sloop")
        for b in bars:
            if not o["diag"] & 1:
                self.lbarrier()
            grp = list(range(tm, b + 1))
            for q, t2 in enumerate(grp):
                e(f"ds_read_b128 v[{28 + 4 * q}:{31 + 4 * q}], v17 offset:{t2 * 4096}")
            for q, t2 in enumerate(grp):
                e(f"s_waitcnt lgkmcnt({len(grp) - 1 - q})")
                if not o["no_store"]:
                    e(f"buffer_store_dwordx4 v[{28 + 4 * q}:{31 + 4 * q}], v16, s[12:15], s46 offen {o['saux'] if t2 < o['nsc'] else o['saux2']}")
                e("s_add_u32 s46, s46, s53")
            tm = b + 1
        if o["stamps"]:
            e("s_waitcnt vmcnt(0)")
        self.stamp(4)
        if o["stamps"]:
            e("s_branch L_ldump")

            def late():
                self.lab("L_ldump")
                self.dump_stamps(5, "l")
                e("s_endpgm")
            self.late.append(late)
        else:
            e("s_endpgm")

    def store_setup(self):
        e = self.e
        e("s_mov_b32 s14, 0x800000")
        e("s_mov_b32 s15, 0x20000")
        e("s_and_b32 s3, s18, 1")
        e("v_lshl_add_u32 v6, s3, 3, v5")
        self.pi(7, 6, 8, 9)
        e("s_lshr_b32 s3, s18, 1")
        e("s_lshl_b32 s3, s3, 7")
        e("s_add_u32 s3, s3, s16")
        e("s_lshl_b32 s3, s3, 10")
        e("s_add_u32 s3, s3, s17")
        e("s_lshl_b32 s3, s3, 1")
        e("v_and_b32 v8, 7, v0")
        e("v_lshl_add_u32 v9, v8, 4, s3")
        e("v_lshl_add_u32 v16, v7, 14, v9")
        e("v_xor_b32 v8, v8, v5")
        e("v_lshlrev_b32 v8, 4, v8")
        e("v_lshl_add_u32 v8, v5, 7, v8")
        e(f"s_add_u32 s3, s50, {STG}")
        e("v_add_u32 v17, s3, v8")

    def rd_f(self, r, kk, dl, off=0):
        a = 2 + 3 * kk
        if dl == 0:
            return [f"ds_read_b128 v[{r}:{r + 3}], v{a + 2} offset:{7 * PS - 128 + off}"]
        if dl == 9:
            return [f"ds_read_b128 v[{r}:{r + 3}], v{a + 1} offset:{off}"]
        return [f"ds_read_b128 v[{r}:{r + 3}], v{a} offset:{(dl - 1) * PS + off}"]

    def rd_g(self, r, k, t, off=0):
        return [f"ds_read_b64_tr_b16 v[{r + 2 * hh}:{r + 2 * hh + 1}], v{8 + t} offset:{k * 4096 + hh * 512 + off}"
                for hh in range(2)]

    def reads(self, st, kk):
        base = SET[st]
        if self.o["rord"] == 2:
            return [x for dl in range(10) for x in self.rd_f(base + 4 * dl, kk, dl)] + \
                   [x for t in range(2) for k in range(3) for x in self.rd_g(base + 40 + (k * 2 + t) * 4, k, t)]
        if self.o["lbar"] or self.o["rord"] == 1:
            out, seen = [], set()
            for k, t, tm in self.mfmas(st, raw=True):
                for nm in (("G", k, t), ("F", tm + k)):
                    if nm not in seen:
                        seen.add(nm)
                        out += self.rd_g(base + 40 + (k * 2 + t) * 4, k, t) if nm[0] == "G" else \
                            self.rd_f(base + 4 * nm[1], kk, nm[1])
            return out
        L = []
        for t in range(2):
            for k in range(3):
                L += self.rd_g(base + 40 + (k * 2 + t) * 4, k, t)
        X = []
        for dl in range(10):
            X += self.rd_f(base + 4 * dl, kk, dl)
        out = []
        while L or X:
            if X:
                out.append(X.pop(0))
            if L:
                out.append(L.pop(0))
        return out

    def mf(self, g, f, t, tm):
        acc = ACC + (tm * 2 + t) * 4
        return f"v_mfma_f32_16x16x32_bf16 v[{acc}:{acc + 3}], v[{g}:{g + 3}], v[{f}:{f + 3}], v[{acc}:{acc + 3}]"

    def mfmas(self, st, raw=False):
        od = self.o["order"] if not (raw and self.o["order"] != 17) else 17
        asc, desc = (0, 1, 2), (2, 1, 0)
        up, down = list(range(8)), list(range(7, -1, -1))
        if od == 0:
            seq = [(k, t, tm) for k in range(3) for t in range(2) for tm in range(8)]
        elif od == 4:
            seq = [(k, t, tm) for t in range(2) for tm in up for k in asc]
        elif od == 6:
            seq = [(k, t, tm) for t in range(2) for tm in up for k in (asc if tm % 2 == 0 else desc)]
        elif od == 7:
            seq = []
            for tm in up:
                ts = (0, 1) if tm % 2 == 0 else (1, 0)
                seq += [(k, ts[0], tm) for k in asc] + [(k, ts[1], tm) for k in desc]
        elif od == 9:
            seq = [(k, 0, tm) for tm in up for k in (asc if tm % 2 == 0 else desc)] + \
                  [(k, 1, tm) for tm in down for k in (asc if tm % 2 else desc)]
        elif od == 17:
            seq = [(k, st, tm) for tm in up for k in (asc if tm % 2 == 0 else desc)] + \
                  [(k, st ^ 1, tm) for tm in down for k in (asc if tm % 2 else desc)]
        elif od == 18:
            seq = [(k, 0, tm) for tm in up for k in (0, 1)] + [(k, 1, tm) for tm in down for k in (1, 0)] + \
                  [(2, t, tm) for tm in up for t in ((1, 0) if tm == 0 else (0, 1))]
        elif od == 19:
            seq = [(k, t, tm) for k in range(3) for tm in (up if k != 1 else down) for t in range(2)]
        elif od == 10:
            seq = [(k, t, tm) for t in range(2) for tm in up for k in desc]
        elif od == 11:
            seq = [(k, t, tm) for t in range(2) for tm in up for k in (0, 2, 1)]
        elif od == 12:
            seq = [(k, t, tm) for t in range(2) for tm in up for k in (1, 0, 2)]
        elif od == 13:
            rot = [(0, 1, 2), (2, 0, 1), (1, 2, 0)]
            seq = [(k, t, tm) for t in range(2) for tm in up for k in rot[tm % 3]]
        elif od == 14:
            rot = [(0, 2, 1), (1, 0, 2), (2, 1, 0)]
            seq = [(k, t, tm) for t in range(2) for tm in up for k in rot[tm % 3]]
        elif od == 15:
            seq = [(k, t, tm) for t in range(2) for tm in up for k in ((0, 2, 1) if tm % 2 == 0 else (1, 2, 0))]
        elif od == 16:
            seq = [(k, t, tm) for t in range(2) for tm in up for k in ((2, 0, 1) if tm % 2 == 0 else (1, 0, 2))]
        elif od >= 20:
            out = []
            for tm in up:
                ks = [(0, k) for k in asc] + [(1, k) for k in (asc if od == 20 else desc)]
                if od != 22 and tm % 2:
                    ks = ks[::-1]
                out += [self.mf(SET[s_] + 40 + (k * 2 + st) * 4, SET[s_] + 4 * (tm + k), st, tm) for s_, k in ks]
            return out
        if raw:
            return seq
        M = [(SET[st] + 40 + (k * 2 + t) * 4, SET[st] + 4 * (tm + k), t, tm) for k, t, tm in seq]
        if self.o["swap"]:
            M = [(f, g, t, tm) for g, f, t, tm in M]
        return [self.mf(*m) for m in M]

    def substage(self, st, pre):
        o = self.o
        M = self.mfmas(st)
        R = self.reads(st ^ 1, st ^ 1) if not o["no_reads"] else []
        if o["diag"] & 1024:
            R = [r for r in R if "tr" not in r]
        if o["diag"] & 2048:
            R = [r for r in R if "tr" in r]
        if o["diag"] & 4096:
            R = [r.replace("b64_tr_b16", "b64") for r in R]
        fill = {}
        lb = o["lbar"]
        sp = (o["lastrd"] - lb) / 22.0
        if lb:
            fill[lb - 1] = ["s_waitcnt lgkmcnt(0)", "s_barrier"]
        for i, r in enumerate(R):
            fill.setdefault(lb + int(i * sp), []).append(r)
        pos = 0 if lb else o["lastrd"]
        for i, p in enumerate(pre):
            fill.setdefault(min(pos + i, 47), []).extend(p)
        top = [f"s_waitcnt lgkmcnt({o['topw']})"] if lb else ["s_waitcnt lgkmcnt(0)", "s_barrier"] + ["s_nop 15"] * o["idle"] + \
            ([f"s_bitcmp{o['xidle'] & 1}_b32 s2, 0", "s_cbranch_scc1 2", "s_nop 15", "s_nop 15"] if o["xidle"] and st == 1 else [])
        if lb and o["topw"] > 6:
            fill.setdefault({7: 20, 8: 19, 9: 14, 10: 13, 11: 8, 12: 7}[o["topw"]] - 1, []).append("s_waitcnt lgkmcnt(6)")
        out = []
        for i, m in enumerate(M):
            out.append((top if i == 0 else []) + ([m] if not o["no_mfma"] else []) + fill.get(i, []))
        return out

    def first(self, pre, nm_=48):
        e = self.e
        o = self.o
        seq = self.mfmas(0, raw=True)
        todo, queue, seen = [], [], set()
        for k, t, tm in seq:
            for nm in (("G", k, t), ("F", tm + k)):
                if nm not in todo:
                    todo.append(nm)

        def rd():
            nm = todo.pop(0)
            ops = self.rd_g(SET[0] + 40 + (nm[1] * 2 + nm[2]) * 4, nm[1], nm[2]) if nm[0] == "G" else \
                self.rd_f(SET[0] + 4 * nm[1], 0, nm[1])
            for op in ops:
                e(op)
                queue.append(nm)
        for _ in range(o["fpre"]):
            rd()
        R = self.reads(1, 1)
        bar = o["fbar"]
        sp = (o["flast"] - bar) / 22.0
        fill = {bar - 1: ["v_add_u32 v8, s53, v8", "v_add_u32 v9, s53, v9"], bar: ["s_waitcnt lgkmcnt(0)", "s_barrier"]}
        for i, r in enumerate(R):
            fill.setdefault(bar + int(i * sp), []).append(r)
        for i, p in enumerate(pre):
            fill.setdefault(min(o["flast"] + i * 2 // 3, nm_ - 1), []).extend(p)
        for i, (k, t, tm) in enumerate(seq[:nm_]):
            idx = max((q for q, tg in enumerate(queue) if tg in (("G", k, t), ("F", tm + k))), default=-1)
            if idx >= 0:
                n = min(len(queue) - 1 - idx, 14)
                e(f"s_waitcnt lgkmcnt({n})")
                del queue[:len(queue) - n]
            m = self.mf(SET[0] + 40 + (k * 2 + t) * 4, SET[0] + 4 * (tm + k), t, tm)
            if (t, tm) not in seen:
                seen.add((t, tm))
                m = m[:m.rindex(",")] + (", v[40:43]" if o["off"] else ", 0")
            e(m)
            if todo:
                assert i < bar - 1
                rd()
            if i == bar:
                del queue[:]
            for x in fill.get(i, []):
                e(x)

    def epi_ops(self, un):
        tm, t = un >> 1, un & 1
        a = ACC + un * 4
        tb = TMP + 4 * t
        L = []
        if not self.o["no_epi"] and not (self.o["pk"] == 1 or (self.o["pk"] == 2 and un == 15)):
            for r in range(4):
                L.append(f"v_fma_f32 v{a + r}, v{a + r}, v{16 + 4 * t + r}, v{24 + 4 * t + r}")
            for r in range(4):
                L.append(f"v_exp_f32 v{tb + r}, v{a + r}")
            for r in range(4):
                L.append(f"v_fma_f32 v{tb + r}, v{tb + r}, s42, s42")
            for r in range(4):
                L.append(f"v_rcp_f32 v{tb + r}, v{tb + r}")
            for r in range(4):
                L.append(f"v_mul_f32 v{tb + r}, v{tb + r}, v{a + r}")
            for p in range(2):
                L.append(f"v_cvt_pk_bf16_f32 v{a + p}, v{tb + 2 * p}, v{tb + 2 * p + 1}")
        elif not self.o["no_epi"]:
            for p in range(2):
                q = 4 * t + 2 * p
                L.append(f"v_pk_fma_f32 v[{a + 2 * p}:{a + 2 * p + 1}], v[{a + 2 * p}:{a + 2 * p + 1}], v[{16 + q}:{17 + q}], v[{24 + q}:{25 + q}]")
            for r in range(4):
                L.append(f"v_exp_f32 v{tb + r}, v{a + r}")
            for p in range(2):
                L.append(f"v_pk_fma_f32 v[{tb + 2 * p}:{tb + 2 * p + 1}], v[{tb + 2 * p}:{tb + 2 * p + 1}], s[42:43], s[42:43]")
            for r in range(4):
                L.append(f"v_rcp_f32 v{tb + r}, v{tb + r}")
            for p in range(2):
                L.append(f"v_pk_mul_f32 v[{tb + 2 * p}:{tb + 2 * p + 1}], v[{tb + 2 * p}:{tb + 2 * p + 1}], v[{a + 2 * p}:{a + 2 * p + 1}]")
            for p in range(2):
                L.append(f"v_cvt_pk_bf16_f32 v{a + p}, v{tb + 2 * p}, v{tb + 2 * p + 1}")
        if self.o["direct"] and tm == 7:
            if t:
                L = [x.replace(f"v_cvt_pk_bf16_f32 v{a},", f"v_cvt_pk_bf16_f32 v{a - 2},")
                      .replace(f"v_cvt_pk_bf16_f32 v{a + 1},", f"v_cvt_pk_bf16_f32 v{a - 1},") for x in L]
                L += ["s_nop 0", f"v_permlane16_swap_b32 v{a - 4}, v{a - 2}", f"v_permlane16_swap_b32 v{a - 3}, v{a - 1}"]
                if not self.o["no_store"]:
                    L.append(f"buffer_store_dwordx4 v[{a - 4}:{a - 1}], v0, s[12:15], 0 offen {self.o['saux']}")
        elif self.o["diag"] & 2:
            L.append("ds_read_b32 v12, v1")
        elif self.o["wpair"]:
            if t:
                L.insert(len(L) - 2, f"DS ds_write_b64 v1, v[{a - 4}:{a - 3}] offset:{tm * 4096}")
                L.append(f"ds_write_b64 v11, v[{a}:{a + 1}] offset:{tm * 4096}")
        else:
            L.append(f"ds_write_b64 v{11 if t else 1}, v[{a}:{a + 1}] offset:{tm * 4096}")
        return L

    def tail(self):
        e = self.e
        o = self.o
        nt = o["nt"]
        seq = []
        for u in range(27, 32 - nt):
            for tm in range(8):
                ts = (0, 1) if tm % 2 else (1, 0)
                seq += [(u, k, ts[0], tm) for k in (0, 1, 2)] + [(u, k, ts[1], tm) for k in (2, 1, 0)]
        done_at = {}
        for tm in range(8):
            if o["alt"]:
                for u in range(32 - nt, 32):
                    seq += [(u, k, t, tm) for k in range(3) for t in range(2)]
                done_at[2 * tm] = len(seq) - 2
                done_at[2 * tm + 1] = len(seq) - 1
                continue
            lo = 32 - nt
            if tm == 0 and nt == 4 and o["split0"]:
                seq += [(u, k, t, tm) for t in range(2) for u in (28, 29) for k in range(3)]
                lo = 30
            for t in range(2):
                for u in range(lo, 32):
                    seq += [(u, k, t, tm) for k in range(3)]
                done_at[2 * tm + t] = len(seq) - 1
        first, last = {}, {}
        for i, (u, k, t, tm) in enumerate(seq):
            for nm in (("G", u, k, t), ("F", u, tm + k)):
                first.setdefault(nm, i)
                last[nm] = i
        reg = {}
        for dl in range(10):
            reg[("F", 27, dl)] = SET[1] + 4 * dl
        for k in range(3):
            for t in range(2):
                reg[("G", 27, k, t)] = SET[1] + 40 + (k * 2 + t) * 4
        free = list(range(SET[0], SET[0] + 64, 4)) + list(range(TMP + 8, 64, 4)) + [12]
        todo = sorted((nm for nm in first if nm not in reg), key=lambda nm: first[nm])
        queue = []

        def lds(op, tag=None):
            e(op)
            queue.append(tag)

        def wait_for(tags):
            idx = max((i for i, tg in enumerate(queue) if tg in tags), default=-1)
            if idx >= 0:
                n = min(len(queue) - 1 - idx, 14)
                e(f"s_waitcnt lgkmcnt({n})")
                del queue[:len(queue) - n]

        half = []

        def issue_read(nm):
            if nm[0] == "P":
                i = nm[1]
                lds(f"ds_read_b128 v[{16 + 4 * i}:{19 + 4 * i}], v10 offset:{(i >> 1) * 256 + (i & 1) * 64}", nm)
                return
            r = free.pop(0)
            reg[nm] = r
            u = nm[1]
            if nm[0] == "F":
                ops = self.rd_f(r, u & 1, nm[2], XBUF * ((u >> 1) - 14))
            else:
                ops = self.rd_g(r, nm[2], nm[3], WBUF * (u % NWB))
            if not o["no_reads"]:
                lds(ops[0], nm)
                half.extend((op, nm) for op in ops[1:])

        e("s_waitcnt lgkmcnt(0)")
        self.stamp(3)
        if not o["lbar"]:
            e("s_barrier")
        chk, pchk = o["tchk"], o["pchk"]
        head = {0: [f"v_subrev_u32 v8, {3 * WBUF}, v8", "s_mov_b32 s43, s42"], 1: [f"v_subrev_u32 v9, {3 * WBUF}, v9"],
                2: ["v_add_u32 v5, s55, v5"], 3: ["v_add_u32 v6, s55, v6"], 4: ["v_add_u32 v7, s55, v7"],
                chk: ["s_barrier"]}
        avail = {28: 1, 29: 5, 30: chk, 31: chk}
        if o["lbar"]:
            tb = o["tbar"]
            head = {0: [f"v_subrev_u32 v8, {2 * WBUF}, v8", f"v_subrev_u32 v9, {2 * WBUF}, v9", "s_mov_b32 s43, s42"],
                    1: ["v_add_u32 v2, s47, v2", "v_add_u32 v3, s47, v3"], 2: ["v_add_u32 v4, s47, v4", "v_add_u32 v5, s47, v5"],
                    3: ["v_add_u32 v6, s47, v6", "v_add_u32 v7, s47, v7"],
                    tb: ["s_barrier"], chk: ["s_barrier"]}
            avail = {28: tb + 1, 29: tb + 1, 30: chk, 31: chk}
        bar_at = {}
        quiet = -1
        bars = [int(ch) for ch in str(o["bars"])]
        cost = lambda x: 8 if ("v_exp" in x or "v_rcp" in x) else 12 if "ds_write" in x else 4
        cur, pend, nxt = [], [], 0
        mark = {}
        credit = 0.0
        per_gap = sum(cost(x) for x in self.epi_ops(0) + self.epi_ops(1)) / (6.0 * nt) * o['pace'] + 0.5
        stalls = []
        for i, (u, k, t, tm) in enumerate(seq):
            g, f = ("G", u, k, t), ("F", u, tm + k)
            while g in todo or f in todo or any(nm == g for _, nm in half):
                stalls.append(i)
                if half:
                    lds(*half.pop(0))
                else:
                    issue_read(todo.pop(0))
            wait_for({g, f})
            if not o["no_mfma"]:
                e(self.mf(reg[g], reg[f], t, tm))
            if nxt < 16 and done_at[nxt] == i:
                mark[nxt] = len(self.l)
                pend.append(nxt)
                nxt += 1
            for nm in (g, f):
                if last[nm] == i:
                    free.append(reg[nm])
            for x in head.get(i, []):
                e(x)
            if o["tst"] and i in [int(v) for v in o["tst"].split(",")]:
                q = 1 + [int(v) for v in o["tst"].split(",")].index(i)
                e(f"s_memtime s[{60 + 4 * q}:{61 + 4 * q}]")
            if i in bar_at and not o["latebar"]:
                wait_for({bar_at.pop(i)})
                e("s_barrier")
            wnext = cur and any(x[:2].lower() == "ds" for x in cur[:3])
            if i >= 1 and i != chk and not (wnext and not half) and i > quiet:
                if half:
                    lds(*half.pop(0))
                    credit -= 4 * bool(cur or pend)
                else:
                    hold = min([first[nm] for nm in todo if nm[0] != "P" and i < avail[nm[1]]], default=999)
                    cand = [nm for nm in todo if (i >= pchk if nm[0] == "P" else
                                                  i >= avail[nm[1]] and first[nm] <= hold + o["hold"])]
                    if cand and (cand[0][0] == "P" or free):
                        todo.remove(cand[0])
                        issue_read(cand[0])
                        credit -= 4 * bool(cur or pend)
            if cur or pend:
                credit += per_gap
            while credit > 0:
                if not cur:
                    if not pend or len(self.l) - mark[pend[0]] < 8:
                        credit = 0
                        break
                    curun = pend.pop(0)
                    cur = self.epi_ops(curun)
                x = cur.pop(0)
                if x.startswith("DS "):
                    lds(x[3:])
                elif x.startswith("ds_"):
                    lds(x, ("W", curun))
                    if curun & 1:
                        free.extend([ACC + 4 * curun - 4, ACC + 4 * curun])
                    quiet = i + o["wq"]
                    if curun & 1 and curun >> 1 in bars and not o["diag"] & 1:
                        bar_at[i + o["blag"]] = ("W", curun)
                else:
                    e(x)
                credit -= cost(x)
        assert not todo
        if stalls:
            print("tail: late reads at", stalls, file=sys.stderr)
        rest = [(curun, cur)] if cur else []
        rest += [(un, None) for un in pend]
        for un, ops in rest:
            if ops is None:
                gap = len(self.l) - mark[un]
                if gap < 8:
                    e(f"s_nop {7 - gap}")
                ops = self.epi_ops(un)
            for x in ops:
                if x.startswith("DS "):
                    lds(x[3:])
                elif x.startswith("ds_"):
                    for key in sorted(bar_at):
                        wait_for({bar_at.pop(key)})
                        e("s_barrier")
                    lds(x, ("W", un))
                    if un & 1 and un >> 1 in bars and not o["diag"] & 1:
                        bar_at[un] = ("W", un)
                else:
                    e(x)
        for key in sorted(bar_at):
            wait_for({bar_at.pop(key)})
            e("s_barrier")

    def compute(self):
        e = self.e
        o = self.o
        if o["pages"]:
            e(".p2align 12")
            self.lab("L_page1")
        self.lab("L_compute")
        e("s_and_b32 s38, s18, 1")
        e("s_bfe_u32 s39, s18, 0x10001")
        e("v_and_b32 v10, 15, v0")
        e("v_lshrrev_b32 v16, 4, v0")
        if o["cpf"]:
            e("s_getpc_b64 s[20:21]")
            e("v_lshlrev_b32 v12, 7, v0")
            e("v_mov_b32 v13, s21")
            e("v_add_co_u32 v12, vcc, s20, v12")
            e("s_cmp_lt_u32 s36, %d" % o["cpf"])
            e("s_cselect_b32 s3, s18, 1")
            e("v_addc_co_u32 v13, vcc, 0, v13, vcc")
            e("s_and_b32 s3, s3, 3")
            e("s_cbranch_scc1 L_nocpf")
            e("s_mov_b32 exec_hi, (1 << (((L_end - L_compute) >> 7) - 32)) - 1")
            e("global_load_dword v14, v[12:13], off")
            e("s_mov_b32 exec_hi, -1")
            self.lab("L_nocpf")
        self.pi(17, 10, 18, 19)
        e("v_lshrrev_b32 v18, 2, v10")
        e("v_lshl_add_u32 v19, v16, 3, v18")
        e("v_lshlrev_b32 v19, 7, v19")
        e("v_and_b32 v20, 3, v10")
        e("v_lshl_add_u32 v19, v20, 3, v19")
        e("v_lshrrev_b32 v18, 1, v18")
        e("v_and_b32 v20, 1, v16")
        e("v_lshl_or_b32 v18, v20, 1, v18")
        e("s_lshl_b32 s45, s39, 1")
        e("v_xor_b32 v18, s45, v18")
        e("v_lshl_add_u32 v19, v18, 5, v19")
        e(f"v_add_u32 v8, {WBASE}, v19")
        e("v_xor_b32 v9, 32, v8")
        e("s_lshl_b32 s3, s38, 11")
        e(f"s_add_u32 s46, s3, {XBUF}")
        if o["rotk"]:
            e("s_bfe_u32 s47, s16, 0x10008")
            e("v_lshl_or_b32 v21, s47, 2, v16")
        for idx, sh in ((0, 0), (1, 1), (2, -1)):
            e(f"v_add_u32 v18, {sh}, v17")
            e("v_bfe_u32 v19, v18, 1, 3")
            e(f"v_xor_b32 v19, v19, v{21 if o['rotk'] else 16}")
            e("v_lshlrev_b32 v19, 4, v19")
            e(f"v_lshl_add_u32 v19, v{17 if sh == -1 else 18}, 7, v19")
            e(f"v_add_u32 v{2 + idx}, s46, v19")
            e(f"v_xor_b32 v{5 + idx}, 64, v{2 + idx}")
        e("v_lshrrev_b32 v18, 1, v16")
        e("v_lshl_add_u32 v18, s39, 2, v18")
        e("v_and_b32 v19, 7, v10")
        e("v_xor_b32 v18, v18, v19")
        e("v_lshlrev_b32 v18, 4, v18")
        e("v_lshl_add_u32 v18, v20, 3, v18")
        e("v_lshl_add_u32 v18, v10, 7, v18")
        e(f"s_add_u32 s3, s3, {STG}")
        e("v_add_u32 v1, s3, v18")
        e("v_xor_b32 v11, 32, v1")
        if o["direct"]:
            e("s_lshl_b32 s3, s38, 7")
            e("s_add_u32 s3, s3, s16")
            e("s_add_u32 s3, s3, 7")
            e("s_lshl_b32 s3, s3, 10")
            e("s_lshl_b32 s45, s39, 5")
            e("s_add_u32 s3, s3, s45")
            e("s_add_u32 s3, s3, s17")
            e("s_lshl_b32 s3, s3, 1")
            e("v_lshl_add_u32 v18, v20, 5, s3")
            e("v_lshrrev_b32 v19, 1, v16")
            e("v_lshl_add_u32 v18, v19, 4, v18")
            e("v_lshl_add_u32 v0, v17, 14, v18")
            e("s_waitcnt lgkmcnt(0)")
        e("s_lshl_b32 s3, s39, 6")
        e(f"s_add_u32 s3, s3, {PB}")
        e("v_and_b32 v18, 4, v10")
        e("v_add_lshl_u32 v18, v18, v16, 2")
        e("v_and_or_b32 v18, v10, 3, v18")
        e("v_lshl_add_u32 v10, v18, 1, s3")
        e("v_mov_b64 v[24:25], 0")
        e("v_mov_b64 v[26:27], 0")
        if o["fall"]:
            seq = self.mfmas(0, raw=True)
            for t, tm in sorted({(t, tm) for k, t, tm in seq[o["brpos"]:]} - {(t, tm) for k, t, tm in seq[:o["brpos"]]}):
                for h in range(2):
                    r = ACC + (tm * 2 + t) * 4 + 2 * h
                    e(f"v_mov_b64 v[{r}:{r + 1}], 0")
            for _ in range(o["lpad"]):
                e("s_nop 0")
        if o["ltouch"]:
            e("s_mov_b64 vcc, 0")
        e("s_mov_b32 s40, 1")
        e("s_mov_b32 s41, 1")
        e("s_mov_b32 s42, 0xbfb8aa3b")
        e(f"s_movk_i32 s53, {WBUF}")
        e(f"s_mov_b32 s54, {XBUF}")
        e(f"s_mov_b32 s46, {-(NWB - 1) * WBUF & 0xffffffff:#x}")
        e(f"s_mov_b32 s47, {-(NXB - 1) * XBUF & 0xffffffff:#x}")
        e("s_mov_b32 s52, 12")
        if o["prio_c"]:
            e(f"s_setprio {o['prio_c']}")
        e("s_barrier")
        self.params()
        self.stamp(1)
        e("s_barrier")
        self.stamp(2)

        def wadv():
            return [["s_add_u32 s41, s41, 1", f"s_cmp_eq_u32 s41, {NWB}"],
                    ["s_cselect_b32 s43, s46, s53", "s_cselect_b32 s41, 0, s41"],
                    ["v_add_u32 v8, s43, v8"], ["v_add_u32 v9, s43, v9"]]

        pre0 = wadv() + [["s_add_u32 s40, s40, 1", f"s_cmp_eq_u32 s40, {NXB}"],
                         ["s_cselect_b32 s55, s47, s54", "s_cselect_b32 s40, 0, s40"]] + \
            [[f"v_add_u32 v{2 + i}, s55, v{2 + i}"] for i in range(3)]
        pre1 = wadv() + [[f"v_add_u32 v{5 + i}, s55, v{5 + i}"] for i in range(3)]
        if o["lbar"]:
            assert o["topw"] <= 6 or o["lbar"] > {7: 20, 8: 19, 9: 14, 10: 13, 11: 8, 12: 7}[o["topw"]]
            self.first([], 48)
            body = self.substage(1, pre0) + self.substage(0, pre1 + [["s_sub_u32 s52, s52, 1"]])
        else:
            self.first(pre0, o["brpos"] if o["fall"] else 48)
            body = self.substage(1, pre1) + self.substage(0, pre0 + [["s_sub_u32 s52, s52, 1"]])
        cut = 48 + o["brpos"]
        if not o["fall"]:
            e("s_branch L_centry")
        if o["pages"]:
            self.lab("L_touch0")
        if not o["fall"]:
            e(".p2align 6")
            for _ in range(o["lpad"]):
                e("s_nop 0")
        self.lab("L_cloop")
        for gap in body[cut:]:
            for x in gap:
                e(x)
        self.lab("L_centry")
        for gap in body[:cut]:
            for x in gap:
                e(x)
        e("s_cbranch_scc0 L_cloop")
        for gap in body[cut:]:
            for x in gap:
                e(x)
        self.lab("L_tail")
        self.tail()
        self.lab("L_tail_end")
        if o["stamps"] and o["direct"]:
            e("s_waitcnt vmcnt(0)")
            e("v_mbcnt_lo_u32_b32 v0, -1, 0")
            e("v_mbcnt_hi_u32_b32 v0, -1, v0")
        self.stamp(4)
        self.dump_stamps(5, "c")
        e("s_endpgm")

    def gen(self):
        e = self.e
        o = self.o
        self.l.append(HEADER.rstrip())
        self.l.append(f"; @launch grid=(256,1,1) block=(512,1,1) lds={LDS}")
        self.l.append(DOC)
        self.l.append('.amdgcn_target "amdgcn-amd-amdhsa--gfx950"')
        self.l.append(".text")
        self.l.append(f".globl {KN}")
        if o["pages"]:
            self.l.append(".p2align 12")
        self.l.append(".p2align 8")
        self.l.append(f".type {KN},@function")
        self.lab(KN)
        e("s_cmp_ge_u32 s2, 256")
        e("s_cbranch_scc1 L_end")
        if o["stamps"]:
            e("s_memtime s[60:61]")
            e("s_memrealtime s[62:63]")
        e("v_readfirstlane_b32 s18, v0")
        e("s_load_dwordx2 s[8:9], s[0:1], 8")
        e("s_load_dwordx2 s[4:5], s[0:1], 0")
        if o["early"]:
            e("s_bfe_u32 s3, s18, 0x50003")
            e("s_load_dwordx2 s[12:13], s[0:1], s3 offset:16")
        e("v_and_b32 v0, 63, v0")
        e("s_lshr_b32 s17, s2, 5")
        e("s_and_b32 s20, s2, 1")
        e("s_lshl3_add_u32 s17, s20, s17")
        e("s_bfe_u32 s22, s2, 0x20001")
        e("s_bfe_u32 s16, s2, 0x20003")
        e("s_lshl2_add_u32 s16, s22, s16")
        e("s_lshr_b32 s18, s18, 6")
        e("s_lshl_b32 s17, s17, 6")
        e("s_lshl_b32 s16, s16, 8")
        e("s_cmp_ge_u32 s18, 4")
        if o["pages"] >= 2:
            e("s_cbranch_scc0 L_loader")
            self.l.append("@DISPATCH")
            e("s_branch L_compute")
        else:
            e(("s_cbranch_scc1" if o["lfirst"] else "s_cbranch_scc0") + " L_compute")
        self.loader()
        self.compute()
        for f in self.late:
            f()
        self.lab("L_end")
        e("s_endpgm")
        self.l.append(f""".section .rodata,"a"
.p2align 6
.amdhsa_kernel {KN}
  .amdhsa_next_free_vgpr 256
  .amdhsa_next_free_sgpr 96
  .amdhsa_accum_offset 256
  .amdhsa_group_segment_fixed_size 0
  .amdhsa_kernarg_size 72
  .amdhsa_user_sgpr_count 2
  .amdhsa_user_sgpr_kernarg_segment_ptr 1
  .amdhsa_system_sgpr_workgroup_id_x 1
.end_amdhsa_kernel""")
        return self.finish()

    def finish(self):
        L = "\n".join(self.l).split("\n")
        if self.o["pages"] < 2:
            return "\n".join(L) + "\n"
        import re
        import subprocess
        i0 = L.index("L_touch0:")
        it, ie = L.index("L_tail:"), L.index("L_tail_end:")
        probe = []
        for i, x in enumerate(L):
            if it < i <= ie:
                probe.append(f"L_pos{i}:")
            if x != "@DISPATCH":
                probe.append(x.replace("L_ltouch", "L_end"))
        open("probe.s", "w").write("\n".join(probe) + "\n")
        subprocess.run(["clang", "-x", "assembler", "-target", "amdgcn-amd-amdhsa", "-mcpu=gfx950",
                        "-c", "probe.s", "-o", "probe.o"], check=True)
        sym = subprocess.run(["llvm-readelf", "-s", "probe.o"], capture_output=True, text=True).stdout
        addr = {m.group(2): int(m.group(1), 16) for m in re.finditer(r"^\s*\d+: ([0-9a-f]+)\s.*\s(\S+)$", sym, re.M)}
        base = addr["L_page1"]
        win = self.o["win"]
        out, n, covered = [], 1, (addr["L_touch0"] - base) // 64 * 64 + win
        if not self.o["touch1"]:
            covered = 4096
        for i, x in enumerate(L):
            if it < i < ie:
                pos = addr[f"L_pos{i}"] - base + 4 * (n - 1) + 4 * (n > 1 and self.o["ltouch"])
                if pos >= covered and n < 4:
                    if n == 1 and self.o["ltouch"]:
                        out += ["L_ltouch:", "    s_cbranch_vccnz L_lret"]
                    out += [f"L_touch{n}:", "    s_cbranch_scc0 " + {"c": "L_compute"}.get(self.o["tchain"][n - 1], "L_touch" + self.o["tchain"][n - 1])]
                    n += 1
                    covered = min(pos // 64 * 64 + win, (pos // 4096 + 1) * 4096)
            out.append(x)
        disp, wave = [], 7
        for ch in str(self.o["tord"]):
            if ch == "w":
                disp.append("    s_waitcnt lgkmcnt(0)")
                continue
            if int(ch) < n:
                disp += [f"    s_cmp_lg_u32 s18, {wave}", "    s_cbranch_scc0 " + (f"L_touch{ch}" if ch != "0" else "L_compute")]
            wave -= 1
        j = out.index("@DISPATCH")
        out[j:j + 1] = disp
        return "\n".join(out) + "\n"


if __name__ == "__main__":
    out = sys.argv[1]
    opts = {}
    for a in sys.argv[2:]:
        k, v = a.split("=")
        if k in ("bars", "tord", "tchain"):
            opts[k] = v
            continue
        try:
            v = int(v)
        except ValueError:
            try:
                v = float(v)
            except ValueError:
                v = v.replace("+", " ")
        opts[k] = v
    open(out, "w").write(G(**opts).gen())
```

```python
import sys

HEADER = open("standalone__batchnorm__prompt.s.ref").read().split("; Override launch")[0]
KN = "standalone__batchnorm__prompt_kernel"

PS = 33 * 128
XBUF = 263 * 128
NXB = 3
WBUF = 3 * 32 * 128
NWB = 5
WBASE = NXB * XBUF
PB = WBASE + NWB * WBUF
LDS = PB + 512
STG = 2 * XBUF

ACC = 64
SET = (128, 192)
TMP = 32


def cnt(i):
    return (3, 5, 4, 3)[i % 4]


def need(u):
    return 2 * u + 3 if u % 2 == 0 else 2 * u + 2


DOC = """;
; One workgroup owns a 256 x 64 output tile. Waves 0-3 stream x and w into LDS rings with LDS-DMA loads, waves 4-7
; each compute 128 x 32 with v_mfma_f32_16x16x32_bf16 (A = w^T through transposed LDS reads, B = x).
; One barrier per 32 channels. The 64-channel stages are visited in an order that differs between workgroup groups, so
; in LDS and written as whole 128-byte lines by waves 0-3."""

NOTES = {
    "L_loader": "DMA waves: addresses, first loads",
    "L_lloop": "DMA waves: steady state, two 64-channel stages per trip",
    "L_store": "DMA waves: store the staged output rows",
    "L_compute": "MFMA waves: addresses, first 32-channel step",
    "L_cloop": "MFMA waves: steady state, two 32-channel steps per trip",
    "L_tail": "MFMA waves: last five steps and the epilogue; the scc0 / vccnz branches are only taken by the earlier jumps that pull this code into the instruction cache",
}


class G:
    def __init__(self, **o):
        self.o = dict(stamps=0, trace=0, no_dma=0, no_reads=0, no_mfma=0, no_epi=0, no_store=0,
                      lastrd=33, prio_c=1, prio_l=0, lfirst=1, order=17, xaux="", waux="", saux="sc1", xmap=0,
                      probe="", xor=1, nt=4, fpre=7, fbar=20, flast=40, hold=12, split0=1, touch1=0, direct=0, bars='01234567', wq=1, modeb=0, fall=0, off=5, padkb=0, xidle=0, early=1, ltouch=1, tchain='ccc', tord='0321', tst='', pbar=14, rord=0, lbar=0, topw=6, tbar=4, idle=0, nsc=8, saux2='', pat='32,39,43,53', pwg=-1, rrate=0.8, x0=4, pace=1.04, pk=2, alt=0, lead=6, cum="21,27,35",
                      rotx=1, rotk=1, tchk=34, endq="204,215,222,232,240", pchk=50, blag=7, cpf=0, pstamp=0, brpos=45, pages=2, lpad=0, win=1280, latebar=0, diag=0, wpair=1, cmode=0, swap=0, base="_456789AB0123CDEF", mask="_1111333333333333", maskb="_0000000000000000")
        self.o.update(o)
        self.l = []
        self.nlab = 0
        self.late = []
        self.late_table = None
        self.inloop = 0
        self.flow = 0

    def e(self, s):
        self.l.append("    " + s)

    def lab(self, s):
        if s in NOTES:
            self.l.append("; " + NOTES[s])
        self.l.append(s + ":")

    def stamp(self, i):
        pr = self.o["probe"].split(",")
        if len(pr) == 5 and i not in (int(pr[1]), int(pr[2]), 4) or self.o["tst"] and i in (1, 2, 3):
            return
        if self.o["stamps"]:
            self.e(f"s_memtime s[{60 + 4 * i}:{61 + 4 * i}]")
            self.e(f"s_memrealtime s[{62 + 4 * i}:{63 + 4 * i}]")
            self.e("s_waitcnt lgkmcnt(0)")

    def lbarrier(self):
        e = self.e
        e("s_barrier")
        if self.o["trace"]:
            e("s_memtime s[56:57]")
            e("s_memrealtime s[80:81]")
            e("s_mov_b32 s90, m0")
            e("s_mov_b32 m0, s55")
            e("s_waitcnt lgkmcnt(0)")
            e("v_writelane_b32 v62, s56, m0")
            e("v_writelane_b32 v63, s80, m0")
            e("s_add_u32 s55, s55, 1")
            e("s_mov_b32 m0, s90")

    def dump_stamps(self, n, role):
        if not self.o["stamps"]:
            return
        e = self.e
        if self.o["probe"]:
            prole, a, z, kind, mult = self.o["probe"].split(",")
            if prole == role:
                off = 60 if kind == "c" else 62
                e(f"s_sub_u32 s3, s{off + 4 * int(z)}, s{off + 4 * int(a)}")
                if kind == "g":
                    e("v_mov_b32 v50, 0")
                    e("global_load_dword v51, v50, s[92:93] sc1")
                    e("s_waitcnt vmcnt(0)")
                    e("v_readfirstlane_b32 s3, v51")
                    e("s_not_b32 s3, s3")
                    e(f"s_sub_u32 s3, s{62 + 4 * int(z)}, s3")
                if kind == "f":
                    e(f"s_sub_u32 s3, {mult}, s3")
                elif kind != "c":
                    e(f"s_mul_i32 s3, s3, {mult}")
                elif int(mult) < 0:
                    e(f"s_lshl_b32 s3, s3, {-int(mult)}")
                else:
                    e(f"s_lshr_b32 s3, s3, {mult}")
                e("s_min_u32 s3, s3, 50000")
                if self.o["pwg"] >= 0:
                    e("s_and_b32 s56, s2, 7")
                    e(f"s_cmp_eq_u32 s56, {self.o['pwg']}")
                    e("s_cselect_b32 s3, s3, 0")
                self.lab(f"L_spin_{role}")
                e("s_memrealtime s[56:57]")
                e("s_waitcnt lgkmcnt(0)")
                e(f"s_sub_u32 s56, s56, s{62 + 4 * (n - 1)}")
                e("s_cmp_lt_u32 s56, s3")
                e(f"s_cbranch_scc1 L_spin_{role}")
            return
        e("s_load_dwordx2 s[34:35], s[0:1], 64")
        e("s_waitcnt lgkmcnt(0)")
        e("v_mov_b32 v40, 0")
        for i in range(n):
            e(f"v_writelane_b32 v40, s{60 + 4 * i}, {2 * i}")
            e(f"v_writelane_b32 v40, s{62 + 4 * i}, {2 * i + 1}")
        for i in range(4):
            e(f"v_writelane_b32 v40, s{86 + i}, {12 + i}")
        e("s_lshl_b32 s3, s2, 3")
        e("s_and_b32 s18, s18, 3")
        if role == "l":
            e("s_add_u32 s18, s18, 4")
        e("s_add_u32 s3, s3, s18")
        e("s_lshl_b32 s3, s3, 6")
        e("v_lshl_add_u32 v41, v0, 2, s3")
        if self.o["trace"] and role == "l":
            e("s_lshl_b32 s3, s3, 2")
            e("s_add_u32 s3, s3, 0x100000")
            e("v_lshl_add_u32 v42, v0, 2, s3")
            e("v_subrev_u32 v62, s60, v62")
            e("v_subrev_u32 v63, s62, v63")
            e("v_lshl_or_b32 v63, v63, 18, v62")
            e("global_store_dword v42, v63, s[34:35]")
        e("s_mov_b64 exec, 0xffff")
        e("global_store_dword v41, v40, s[34:35]")

    def issue_x(self, half):
        e = self.e
        aux = self.o["xaux"]
        self.hooks.pop("x", lambda: None)()
        if self.o["no_dma"]:
            self.hooks.pop("halo", lambda: None)()
        if not self.o["no_dma"] and not (self.o["diag"] & 8 and self.inloop):
            e(f"s_add_u32 m0, s41, s{86 + half}")
            e(f"s_add_u32 s45, s40, s{88 + half}")
            e(f"buffer_load_dwordx4 v2, s[4:7], s45 offen {aux} lds")
            for p in range(1, 4):
                a, b = (45, 46) if p & 1 else (46, 45)
                e("s_add_u32 m0, m0, s54")
                e(f"s_add_u32 s{b}, s{a}, s53")
                e(f"buffer_load_dwordx4 v2, s[4:7], s{b} offen {aux} lds")
            self.hooks.pop("halo", lambda: None)()
            if half == 0 and not self.o["diag"] & 64:
                e("s_add_u32 m0, s41, s44")
                e("s_mov_b64 exec, 15")
                e(f"buffer_load_dwordx4 v3, s[4:7], s40 offen {aux} lds")
                e("s_mov_b64 exec, -1")
        if half == 0:
            return
        e(f"s_add_u32 s41, s41, {XBUF}")
        e("s_cmp_ge_u32 s41, s51")
        e("s_cselect_b32 s41, s50, s41")

    def issue(self, i):
        if i % 4 in (0, 3):
            self.issue_w(i & 1)
        else:
            self.issue_x(i % 4 - 1)

    def issue_w(self, second):
        e = self.e
        if not self.o["no_dma"] and not (self.o["diag"] & 16 and self.inloop):
            aux = self.o["waux"]
            e("s_mov_b32 m0, s43")
            e("s_add_u32 s45, s42, s38")
            e(f"buffer_load_dwordx4 v4, s[8:11], s42 offen {aux} lds")
            e("s_add_u32 m0, m0, s39")
            e("s_add_u32 s46, s45, s38")
            e(f"buffer_load_dwordx4 v4, s[8:11], s45 offen {aux} lds")
            e("s_add_u32 m0, m0, s39")
            e(f"s_addk_i32 s43, {WBUF}")
            e(f"buffer_load_dwordx4 v4, s[8:11], s46 offen {aux} lds")
        else:
            e(f"s_addk_i32 s43, {WBUF}")
        e("s_cmp_ge_u32 s43, s49")
        e("s_cselect_b32 s43, s51, s43")
        if second:
            self.hooks.pop("table", lambda: None)()
            e("s_lshr_b64 s[82:83], s[82:83], 4")
            self.stage_offsets()
        else:
            e("s_xor_b32 s42, s42, 0x10000")

    def stage_offsets(self):
        e = self.e
        e("s_and_b32 s3, s82, 15")
        e("s_lshl_b32 s40, s3, 7")
        e("s_lshl_b32 s42, s3, 17")
        e("s_or_b32 s42, s42, s85")

    def params(self):
        e = self.e
        for i in range(4):
            e(f"ds_read_u16_d16_hi v{24 + i}, v10 offset:{128 * i}")
        rnd = ["v_cvt_pk_bf16_f32 v25, v25, v25", "v_lshlrev_b32 v25, 16, v25"]
        L = ["s_waitcnt lgkmcnt(0)", "v_add_f32 v25, 0x3727c5ac, v25"] + rnd + ["v_sqrt_f32 v25, v25", "s_nop 0"] + rnd
        L += ["v_rcp_f32 v25, v25", "s_nop 0"] + rnd + ["v_mul_f32 v25, v26, v25"] + rnd
        if self.o["off"]:
            L += ["v_rcp_f32 v26, v25", f"v_mul_f32 v{TMP}, s42, v25", "v_mul_f32 v26, v27, v26",
                  "v_max_f32_e64 v26, |v24|, |v26|"]
            for sh in (1, 2, 4):
                L += [f"v_mov_b32_dpp v{16 + q}, v{TMP} row_newbcast:{q} row_mask:0xf bank_mask:0xf" for q in {1: (0, 1), 2: (2, 3), 4: (4, 5)}[sh]]
                L += [f"v_min_u32_dpp v26, v26, v26 row_ror:{sh} row_mask:0xf bank_mask:0xf"]
            L += [f"v_mov_b32_dpp v{16 + q}, v{TMP} row_newbcast:{q} row_mask:0xf bank_mask:0xf" for q in (6, 7)]
            L += [f"v_readlane_b32 s{24 + q}, v26, {16 * q}" for q in range(4)]
            L += ["s_min_u32 s24, s24, s25", "s_min_u32 s26, s26, s27", "s_min_u32 s24, s24, s26",
                  "s_min_u32 s24, s24, 0x70000000", "s_and_b32 s24, s24, 0x7f800000",
                  f"s_cselect_b32 s25, {(self.o['off'] << 23) + 0x400000:#x}, 0", "s_add_u32 s24, s24, s25"]
            L += ["v_fma_f32 v27, -v24, v25, v27", "v_fma_f32 v27, -s24, v25, v27", f"v_mul_f32 v{TMP + 1}, s42, v27"]
            L += [f"v_mov_b32 v{r}, s24" for r in range(40, 44)]
        else:
            L += ["v_fma_f32 v27, -v24, v25, v27", f"v_mul_f32 v{TMP}, s42, v25", f"v_mul_f32 v{TMP + 1}, s42, v27", "s_nop 0"]
            L += [f"v_mov_b32_dpp v{16 + q}, v{TMP} row_newbcast:{q} row_mask:0xf bank_mask:0xf" for q in range(8)]
        L += [f"v_mov_b32_dpp v{24 + q}, v{TMP + 1} row_newbcast:{q} row_mask:0xf bank_mask:0xf" for q in range(8)]
        for x in L:
            e(x)

    def pi(self, dst, j, t0, t1):
        e = self.e
        e(f"v_lshlrev_b32 v{dst}, 1, v{j}")
        e(f"v_cmp_lt_u32 vcc, 3, v{j}")
        e(f"v_subrev_u32 v{t0}, 7, v{dst}")
        e(f"v_subrev_u32 v{t1}, 16, v{dst}")
        e(f"v_cndmask_b32 v{dst}, v{dst}, v{t0}, vcc")
        e(f"v_cmp_lt_u32 vcc, 11, v{j}")
        e("s_nop 1")
        e(f"v_cndmask_b32 v{dst}, v{dst}, v{t1}, vcc")

    def loader(self):
        e = self.e
        o = self.o
        self.lab("L_loader")
        if o["prio_l"]:
            e(f"s_setprio {o['prio_l']}")
        base = [int(ch, 16) for ch in o["base"].lstrip("_")]
        mask = [int(ch, 16) for ch in o["mask"].lstrip("_")]
        maskb = [int(ch, 16) for ch in o["maskb"].lstrip("_")]
        for c in range(4):
            for cb in range(4):
                assert sorted(b ^ (c & m) ^ (cb & mb) for b, m, mb in zip(base, mask, maskb)) == list(range(16))
        assert not maskb[0] and o["rotk"] and o["rotx"] == 1 and o["lfirst"]
        pack = lambda v: sum(x << (4 * k) for k, x in enumerate(v))
        if not o["early"]:
            e("s_lshl3_add_u32 s3, s18, 16")
            e("s_load_dwordx2 s[12:13], s[0:1], s3")
        e("v_lshrrev_b32 v5, 3, v0")
        e("s_lshl_b32 s47, s18, 2")
        e("v_xor_b32 v6, s47, v0")
        e("s_xor_b32 s84, s22, s20")
        e("v_and_b32 v7, 2, v5")
        e("v_and_b32 v6, 7, v6")
        if mask[0] == 3:
            e(f"s_xor_b32 s3, s84, {base[0]}")
        else:
            e(f"s_and_b32 s3, s84, {mask[0]}")
            e(f"s_xor_b32 s3, s3, {base[0]}")
        e("s_lshl_b32 s85, s2, 13")
        e("v_xor_b32 v7, v7, v6")
        e("s_and_b32 s85, s85, 0x10000")
        e("s_lshl_b32 s42, s3, 17")
        e("v_lshlrev_b32 v7, 4, v7")
        e("s_or_b32 s42, s42, s85")
        e("s_lshl_b32 s50, s18, 10")
        e("v_lshl_add_u32 v4, v5, 11, v7")
        e("s_lshl3_add_u32 s45, s50, s17")
        e(f"s_add_u32 s51, s50, {WBASE}")
        e("v_lshl_add_u32 v4, s45, 1, v4")
        e("s_mov_b32 s10, 0x600000")
        e("s_mov_b32 s11, 0x20000")
        e("s_mov_b32 s43, s51")
        e("s_mov_b32 s38, 0x200000")
        e("s_movk_i32 s39, 4096")
        e(f"s_add_u32 s49, s51, {NWB * WBUF}")
        e("s_lshl_b32 s40, s3, 7")
        e("v_lshl_add_u32 v8, v0, 1, s17")
        e("s_movk_i32 s14, 2048")
        e("s_mov_b32 s15, s11")
        e("v_lshlrev_b32 v8, 1, v8")
        e("s_lshl_b32 s3, s18, 7")
        e(f"s_add_u32 m0, s3, {PB}")
        e("s_mov_b32 exec_hi, 0")
        e("s_waitcnt lgkmcnt(0)")
        self.stamp(1)
        e("buffer_load_dword v8, s[12:15], 0 offen lds")
        e("s_mov_b32 exec_hi, -1")
        if ",g," in o["probe"]:
            e("s_load_dwordx2 s[92:93], s[0:1], 56")
            e("s_not_b32 s3, s62")
            e("v_mov_b32 v50, 0")
            e("v_mov_b32 v51, s3")
            e("s_waitcnt lgkmcnt(0)")
            e("s_mov_b64 exec, 1")
            e("global_atomic_umax v50, v51, s[92:93] sc1")
            e("s_mov_b64 exec, -1")

        def x_setup():
            e("v_lshrrev_b32 v7, 1, v5")
            e("s_mov_b32 s6, 0x800000")
            e("v_xor_b32 v7, v7, v6")
            e("s_mov_b32 s7, s11")
            e("v_lshlrev_b32 v7, 4, v7")
            e("s_lshl4_add_u32 s3, s47, s16")
            e("v_lshl_add_u32 v2, v5, 14, v7")
            e("s_bitcmp1_b32 s17, 6")
            e(f"s_cselect_b32 s86, {4 * PS}, 0")
            e("v_lshl_add_u32 v2, s3, 11, v2")
            e("s_cselect_b32 s88, 0x2000, 0")
            e(f"s_add_u32 s41, s50, {XBUF}")
            e("s_movk_i32 s53, 2048")
            e(f"s_movk_i32 s54, {PS}")

        def halo_setup():
            e(f"s_xor_b32 s87, s86, {4 * PS}")
            e("s_xor_b32 s89, s88, 0x2000")
            e(f"s_movk_i32 s44, {230 * 128}")
            e("s_cmp_lt_u32 s18, 2")
            e("s_cselect_b32 s3, 256, 0")
            e("s_cselect_b32 s23, 256, -1")
            e("s_cselect_b32 s24, 0, 7")
            e(f"s_cmovk_i32 s44, {32 * 128}")
            e("s_add_u32 s3, s3, s16")
            e("s_add_u32 s23, s23, s16")
            e("s_lshl_b32 s23, s23, 11")
            e("s_and_b32 s3, s3, 2047")
            e("s_cselect_b32 s23, s23, 0x80000000")
            e("v_xor_b32 v7, s24, v6")
            e("s_and_b32 s47, s47, 4")
            e("v_lshl_add_u32 v3, v7, 4, s23")
            e("s_lshl4_add_u32 s44, s47, s44")
            e("s_sub_u32 s44, s44, s50")

        def table_setup():
            e("s_mul_i32 s3, s84, 0x11111111")
            for h in range(2):
                m = pack(mask[8 * h:8 * h + 8])
                if m == 0x33333333:
                    e(f"s_xor_b32 s{82 + h}, s3, {pack(base[8 * h:8 * h + 8]):#x}")
                else:
                    e(f"s_and_b32 s{82 + h}, s3, {m:#x}")
                    e(f"s_xor_b32 s{82 + h}, s{82 + h}, {pack(base[8 * h:8 * h + 8]):#x}")
            if any(maskb):
                if o["modeb"] == 0:
                    e("s_and_b32 s84, s84, 1")
                    e("s_lshr_b32 s3, s2, 2")
                    e("s_xor_b32 s3, s3, s2")
                    e("s_bfe_u32 s3, s3, 0x10004")
                    e("s_lshl1_add_u32 s84, s84, s3")
                elif o["modeb"] == 1:
                    e("s_lshl_b32 s3, s20, 1")
                    e("s_xor_b32 s84, s22, s3")
                else:
                    e("s_lshr_b32 s3, s2, 5")
                    e("s_and_b32 s3, s3, 2")
                    e("s_xor_b32 s84, s84, s3")
                e("s_mul_i32 s84, s84, 0x11111111")
                for h in range(2):
                    m = pack(maskb[8 * h:8 * h + 8])
                    if m:
                        e(f"s_and_b32 s3, s84, {m:#x}")
                        e(f"s_xor_b32 s{82 + h}, s{82 + h}, s3")
        self.hooks = {"x": x_setup, "halo": halo_setup, "table": table_setup}
        if o["trace"]:
            e("s_mov_b32 s55, 0")
        st = {"issued": 0, "chunks": []}

        def upto(c):
            while st["issued"] < min(c, 240):
                if not st["chunks"]:
                    keep, self.l = self.l, []
                    pos = st["issued"] % 15
                    self.issue({0: 0, 3: 1, 8: 2, 12: 3}[pos])
                    lines, self.l = self.l, keep
                    n = {0: 3, 3: 5, 8: 4, 12: 3}[pos]
                    cuts = [k + 1 for k, x in enumerate(lines) if x.endswith(" lds")][:n - 1]
                    cuts = cuts + [len(lines)] * (n - len(cuts))
                    st["chunks"] = [lines[a:b] for a, b in zip([0] + cuts, cuts)]
                self.l += st["chunks"].pop(0)
                st["issued"] += 1

        needi = lambda u: 15 * (u // 2) + (15 if u & 1 else 12)
        legal = lambda u: needi(u + 4)

        def step(u):
            nd = needi(29) if u == 28 else needi(u)
            assert nd <= st["issued"]
            e(f"s_waitcnt vmcnt({st['issued'] - nd})")
            self.lbarrier()

        cum = [int(v) for v in str(o["cum"]).split(",")]
        for u, c in enumerate(cum):
            assert c <= legal(max(u - 1, 0))
            if u == 0:
                upto(o["pbar"])
                e(f"s_waitcnt vmcnt({o['pbar'] if not o['no_dma'] else 0})")
                e("s_barrier")
            upto(c)
            step(u)
            if u == 0:
                self.stamp(2)
        u0 = len(cum)
        pat = [int(v) for v in str(o["pat"]).split(",")]
        per = 2 if pat[2] == pat[0] + 15 and pat[3] == pat[1] + 15 else 4
        after = lambda u: 30 * (u // 4) + pat[u % 4]
        assert all(after(u) <= legal(u) for u in range(4))
        assert st["issued"] <= after(u0 - 1)
        upto(after(u0 - 1))
        endq = [int(v) for v in str(o["endq"]).split(",") if v]
        nit = (28 - len(endq) - u0) // per
        e(f"s_mov_b32 s52, {nit - 1}")
        if o["ltouch"]:
            e("s_mov_b64 vcc, -1")
        self.lab("L_lloop")
        self.inloop = 1
        for k in range(per):
            step(u0 + k)
            if o["pstamp"] and (o["pstamp"] - u0) % per == k:
                e(f"s_cmp_lg_u32 s52, {nit - 1 - (o['pstamp'] - u0) // per}")
                e("s_cbranch_scc1 L_nops")
                self.stamp(1)
                self.lab("L_nops")
            upto(after(u0 + k))
            if o["ltouch"] and (u0 + k) % 4 == 2:
                e("s_branch L_ltouch")
                self.lab("L_lret")
        e("s_sub_u32 s52, s52, 1")
        e("s_cbranch_scc0 L_lloop")
        st["issued"] += 15 * per // 2 * (nit - 1)
        e("s_load_dwordx2 s[12:13], s[0:1], 48")
        for u in range(u0 + per * nit, 29):
            step(u)
            k = u - (28 - len(endq))
            c = endq[k] if 0 <= k < len(endq) else after(u)
            assert c <= legal(u)
            upto(c)
        assert st["issued"] == 240
        e("s_waitcnt vmcnt(0) lgkmcnt(0)")
        self.lbarrier()
        self.lab("L_store")
        self.stamp(3)
        self.store_setup()
        if o["diag"] & 32:
            e("s_movk_i32 s53, 2048")
        e("s_mov_b32 s46, 0")
        bars = [int(ch) for ch in str(o["bars"])]
        assert bars[-1] == (6 if o["direct"] else 7)
        tm = 0
        if bars == list(range(8)) and o["nsc"] == 8 and not o["diag"] & 1:
            bars = []
            self.lab("L_sloop")
            self.lbarrier()
            e("ds_read_b128 v[28:31], v17")
            e("v_add_u32 v17, s39, v17")
            e("s_waitcnt lgkmcnt(0)")
            if not o["no_store"]:
                e(f"buffer_store_dwordx4 v[28:31], v16, s[12:15], s46 offen {o['saux']}")
            e("s_add_u32 s46, s46, s53")
            e("s_bitcmp0_b32 s46, 14")
            e("s_cbranch_scc1 L_sloop")
        for b in bars:
            if not o["diag"] & 1:
                self.lbarrier()
            grp = list(range(tm, b + 1))
            for q, t2 in enumerate(grp):
                e(f"ds_read_b128 v[{28 + 4 * q}:{31 + 4 * q}], v17 offset:{t2 * 4096}")
            for q, t2 in enumerate(grp):
                e(f"s_waitcnt lgkmcnt({len(grp) - 1 - q})")
                if not o["no_store"]:
                    e(f"buffer_store_dwordx4 v[{28 + 4 * q}:{31 + 4 * q}], v16, s[12:15], s46 offen {o['saux'] if t2 < o['nsc'] else o['saux2']}")
                e("s_add_u32 s46, s46, s53")
            tm = b + 1
        if o["stamps"]:
            e("s_waitcnt vmcnt(0)")
        self.stamp(4)
        if o["stamps"]:
            e("s_branch L_ldump")

            def late():
                self.lab("L_ldump")
                self.dump_stamps(5, "l")
                e("s_endpgm")
            self.late.append(late)
        else:
            e("s_endpgm")

    def store_setup(self):
        e = self.e
        e("s_mov_b32 s14, 0x800000")
        e("s_mov_b32 s15, 0x20000")
        e("s_and_b32 s3, s18, 1")
        e("v_lshl_add_u32 v6, s3, 3, v5")
        self.pi(7, 6, 8, 9)
        e("s_lshr_b32 s3, s18, 1")
        e("s_lshl_b32 s3, s3, 7")
        e("s_add_u32 s3, s3, s16")
        e("s_lshl_b32 s3, s3, 10")
        e("s_add_u32 s3, s3, s17")
        e("s_lshl_b32 s3, s3, 1")
        e("v_and_b32 v8, 7, v0")
        e("v_lshl_add_u32 v9, v8, 4, s3")
        e("v_lshl_add_u32 v16, v7, 14, v9")
        e("v_xor_b32 v8, v8, v5")
        e("v_lshlrev_b32 v8, 4, v8")
        e("v_lshl_add_u32 v8, v5, 7, v8")
        e(f"s_add_u32 s3, s50, {STG}")
        e("v_add_u32 v17, s3, v8")

    def rd_f(self, r, kk, dl, off=0):
        a = 2 + 3 * kk
        if dl == 0:
            return [f"ds_read_b128 v[{r}:{r + 3}], v{a + 2} offset:{7 * PS - 128 + off}"]
        if dl == 9:
            return [f"ds_read_b128 v[{r}:{r + 3}], v{a + 1} offset:{off}"]
        return [f"ds_read_b128 v[{r}:{r + 3}], v{a} offset:{(dl - 1) * PS + off}"]

    def rd_g(self, r, k, t, off=0):
        return [f"ds_read_b64_tr_b16 v[{r + 2 * hh}:{r + 2 * hh + 1}], v{8 + t} offset:{k * 4096 + hh * 512 + off}"
                for hh in range(2)]

    def reads(self, st, kk):
        base = SET[st]
        if self.o["rord"] == 2:
            return [x for dl in range(10) for x in self.rd_f(base + 4 * dl, kk, dl)] + \
                   [x for t in range(2) for k in range(3) for x in self.rd_g(base + 40 + (k * 2 + t) * 4, k, t)]
        if self.o["lbar"] or self.o["rord"] == 1:
            out, seen = [], set()
            for k, t, tm in self.mfmas(st, raw=True):
                for nm in (("G", k, t), ("F", tm + k)):
                    if nm not in seen:
                        seen.add(nm)
                        out += self.rd_g(base + 40 + (k * 2 + t) * 4, k, t) if nm[0] == "G" else \
                            self.rd_f(base + 4 * nm[1], kk, nm[1])
            return out
        L = []
        for t in range(2):
            for k in range(3):
                L += self.rd_g(base + 40 + (k * 2 + t) * 4, k, t)
        X = []
        for dl in range(10):
            X += self.rd_f(base + 4 * dl, kk, dl)
        out = []
        while L or X:
            if X:
                out.append(X.pop(0))
            if L:
                out.append(L.pop(0))
        return out

    def mf(self, g, f, t, tm):
        acc = ACC + (tm * 2 + t) * 4
        return f"v_mfma_f32_16x16x32_bf16 v[{acc}:{acc + 3}], v[{g}:{g + 3}], v[{f}:{f + 3}], v[{acc}:{acc + 3}]"

    def mfmas(self, st, raw=False):
        od = self.o["order"] if not (raw and self.o["order"] != 17) else 17
        asc, desc = (0, 1, 2), (2, 1, 0)
        up, down = list(range(8)), list(range(7, -1, -1))
        if od == 0:
            seq = [(k, t, tm) for k in range(3) for t in range(2) for tm in range(8)]
        elif od == 4:
            seq = [(k, t, tm) for t in range(2) for tm in up for k in asc]
        elif od == 6:
            seq = [(k, t, tm) for t in range(2) for tm in up for k in (asc if tm % 2 == 0 else desc)]
        elif od == 7:
            seq = []
            for tm in up:
                ts = (0, 1) if tm % 2 == 0 else (1, 0)
                seq += [(k, ts[0], tm) for k in asc] + [(k, ts[1], tm) for k in desc]
        elif od == 9:
            seq = [(k, 0, tm) for tm in up for k in (asc if tm % 2 == 0 else desc)] + \
                  [(k, 1, tm) for tm in down for k in (asc if tm % 2 else desc)]
        elif od == 17:
            seq = [(k, st, tm) for tm in up for k in (asc if tm % 2 == 0 else desc)] + \
                  [(k, st ^ 1, tm) for tm in down for k in (asc if tm % 2 else desc)]
        elif od == 18:
            seq = [(k, 0, tm) for tm in up for k in (0, 1)] + [(k, 1, tm) for tm in down for k in (1, 0)] + \
                  [(2, t, tm) for tm in up for t in ((1, 0) if tm == 0 else (0, 1))]
        elif od == 19:
            seq = [(k, t, tm) for k in range(3) for tm in (up if k != 1 else down) for t in range(2)]
        elif od == 10:
            seq = [(k, t, tm) for t in range(2) for tm in up for k in desc]
        elif od == 11:
            seq = [(k, t, tm) for t in range(2) for tm in up for k in (0, 2, 1)]
        elif od == 12:
            seq = [(k, t, tm) for t in range(2) for tm in up for k in (1, 0, 2)]
        elif od == 13:
            rot = [(0, 1, 2), (2, 0, 1), (1, 2, 0)]
            seq = [(k, t, tm) for t in range(2) for tm in up for k in rot[tm % 3]]
        elif od == 14:
            rot = [(0, 2, 1), (1, 0, 2), (2, 1, 0)]
            seq = [(k, t, tm) for t in range(2) for tm in up for k in rot[tm % 3]]
        elif od == 15:
            seq = [(k, t, tm) for t in range(2) for tm in up for k in ((0, 2, 1) if tm % 2 == 0 else (1, 2, 0))]
        elif od == 16:
            seq = [(k, t, tm) for t in range(2) for tm in up for k in ((2, 0, 1) if tm % 2 == 0 else (1, 0, 2))]
        elif od >= 20:
            out = []
            for tm in up:
                ks = [(0, k) for k in asc] + [(1, k) for k in (asc if od == 20 else desc)]
                if od != 22 and tm % 2:
                    ks = ks[::-1]
                out += [self.mf(SET[s_] + 40 + (k * 2 + st) * 4, SET[s_] + 4 * (tm + k), st, tm) for s_, k in ks]
            return out
        if raw:
            return seq
        M = [(SET[st] + 40 + (k * 2 + t) * 4, SET[st] + 4 * (tm + k), t, tm) for k, t, tm in seq]
        if self.o["swap"]:
            M = [(f, g, t, tm) for g, f, t, tm in M]
        return [self.mf(*m) for m in M]

    def substage(self, st, pre):
        o = self.o
        M = self.mfmas(st)
        R = self.reads(st ^ 1, st ^ 1) if not o["no_reads"] else []
        if o["diag"] & 1024:
            R = [r for r in R if "tr" not in r]
        if o["diag"] & 2048:
            R = [r for r in R if "tr" in r]
        if o["diag"] & 4096:
            R = [r.replace("b64_tr_b16", "b64") for r in R]
        fill = {}
        lb = o["lbar"]
        sp = (o["lastrd"] - lb) / 22.0
        if lb:
            fill[lb - 1] = ["s_waitcnt lgkmcnt(0)", "s_barrier"]
        for i, r in enumerate(R):
            fill.setdefault(lb + int(i * sp), []).append(r)
        pos = 0 if lb else o["lastrd"]
        for i, p in enumerate(pre):
            fill.setdefault(min(pos + i, 47), []).extend(p)
        top = [f"s_waitcnt lgkmcnt({o['topw']})"] if lb else ["s_waitcnt lgkmcnt(0)", "s_barrier"] + ["s_nop 15"] * o["idle"] + \
            ([f"s_bitcmp{o['xidle'] & 1}_b32 s2, 0", "s_cbranch_scc1 2", "s_nop 15", "s_nop 15"] if o["xidle"] and st == 1 else [])
        if lb and o["topw"] > 6:
            fill.setdefault({7: 20, 8: 19, 9: 14, 10: 13, 11: 8, 12: 7}[o["topw"]] - 1, []).append("s_waitcnt lgkmcnt(6)")
        out = []
        for i, m in enumerate(M):
            out.append((top if i == 0 else []) + ([m] if not o["no_mfma"] else []) + fill.get(i, []))
        return out

    def first(self, pre, nm_=48):
        e = self.e
        o = self.o
        seq = self.mfmas(0, raw=True)
        todo, queue, seen = [], [], set()
        for k, t, tm in seq:
            for nm in (("G", k, t), ("F", tm + k)):
                if nm not in todo:
                    todo.append(nm)

        def rd():
            nm = todo.pop(0)
            ops = self.rd_g(SET[0] + 40 + (nm[1] * 2 + nm[2]) * 4, nm[1], nm[2]) if nm[0] == "G" else \
                self.rd_f(SET[0] + 4 * nm[1], 0, nm[1])
            for op in ops:
                e(op)
                queue.append(nm)
        for _ in range(o["fpre"]):
            rd()
        R = self.reads(1, 1)
        bar = o["fbar"]
        sp = (o["flast"] - bar) / 22.0
        fill = {bar - 1: ["v_add_u32 v8, s53, v8", "v_add_u32 v9, s53, v9"], bar: ["s_waitcnt lgkmcnt(0)", "s_barrier"]}
        for i, r in enumerate(R):
            fill.setdefault(bar + int(i * sp), []).append(r)
        for i, p in enumerate(pre):
            fill.setdefault(min(o["flast"] + i * 2 // 3, nm_ - 1), []).extend(p)
        for i, (k, t, tm) in enumerate(seq[:nm_]):
            idx = max((q for q, tg in enumerate(queue) if tg in (("G", k, t), ("F", tm + k))), default=-1)
            if idx >= 0:
                n = min(len(queue) - 1 - idx, 14)
                e(f"s_waitcnt lgkmcnt({n})")
                del queue[:len(queue) - n]
            m = self.mf(SET[0] + 40 + (k * 2 + t) * 4, SET[0] + 4 * (tm + k), t, tm)
            if (t, tm) not in seen:
                seen.add((t, tm))
                m = m[:m.rindex(",")] + (", v[40:43]" if o["off"] else ", 0")
            e(m)
            if todo:
                assert i < bar - 1
                rd()
            if i == bar:
                del queue[:]
            for x in fill.get(i, []):
                e(x)

    def epi_ops(self, un):
        tm, t = un >> 1, un & 1
        a = ACC + un * 4
        tb = TMP + 4 * t
        L = []
        if not self.o["no_epi"] and not (self.o["pk"] == 1 or (self.o["pk"] == 2 and un == 15)):
            for r in range(4):
                L.append(f"v_fma_f32 v{a + r}, v{a + r}, v{16 + 4 * t + r}, v{24 + 4 * t + r}")
            for r in range(4):
                L.append(f"v_exp_f32 v{tb + r}, v{a + r}")
            for r in range(4):
                L.append(f"v_fma_f32 v{tb + r}, v{tb + r}, s42, s42")
            for r in range(4):
                L.append(f"v_rcp_f32 v{tb + r}, v{tb + r}")
            for r in range(4):
                L.append(f"v_mul_f32 v{tb + r}, v{tb + r}, v{a + r}")
            for p in range(2):
                L.append(f"v_cvt_pk_bf16_f32 v{a + p}, v{tb + 2 * p}, v{tb + 2 * p + 1}")
        elif not self.o["no_epi"]:
            for p in range(2):
                q = 4 * t + 2 * p
                L.append(f"v_pk_fma_f32 v[{a + 2 * p}:{a + 2 * p + 1}], v[{a + 2 * p}:{a + 2 * p + 1}], v[{16 + q}:{17 + q}], v[{24 + q}:{25 + q}]")
            for r in range(4):
                L.append(f"v_exp_f32 v{tb + r}, v{a + r}")
            for p in range(2):
                L.append(f"v_pk_fma_f32 v[{tb + 2 * p}:{tb + 2 * p + 1}], v[{tb + 2 * p}:{tb + 2 * p + 1}], s[42:43], s[42:43]")
            for r in range(4):
                L.append(f"v_rcp_f32 v{tb + r}, v{tb + r}")
            for p in range(2):
                L.append(f"v_pk_mul_f32 v[{tb + 2 * p}:{tb + 2 * p + 1}], v[{tb + 2 * p}:{tb + 2 * p + 1}], v[{a + 2 * p}:{a + 2 * p + 1}]")
            for p in range(2):
                L.append(f"v_cvt_pk_bf16_f32 v{a + p}, v{tb + 2 * p}, v{tb + 2 * p + 1}")
        if self.o["direct"] and tm == 7:
            if t:
                L = [x.replace(f"v_cvt_pk_bf16_f32 v{a},", f"v_cvt_pk_bf16_f32 v{a - 2},")
                      .replace(f"v_cvt_pk_bf16_f32 v{a + 1},", f"v_cvt_pk_bf16_f32 v{a - 1},") for x in L]
                L += ["s_nop 0", f"v_permlane16_swap_b32 v{a - 4}, v{a - 2}", f"v_permlane16_swap_b32 v{a - 3}, v{a - 1}"]
                if not self.o["no_store"]:
                    L.append(f"buffer_store_dwordx4 v[{a - 4}:{a - 1}], v0, s[12:15], 0 offen {self.o['saux']}")
        elif self.o["diag"] & 2:
            L.append("ds_read_b32 v12, v1")
        elif self.o["wpair"]:
            if t:
                L.insert(len(L) - 2, f"DS ds_write_b64 v1, v[{a - 4}:{a - 3}] offset:{tm * 4096}")
                L.append(f"ds_write_b64 v11, v[{a}:{a + 1}] offset:{tm * 4096}")
        else:
            L.append(f"ds_write_b64 v{11 if t else 1}, v[{a}:{a + 1}] offset:{tm * 4096}")
        return L

    def tail(self):
        e = self.e
        o = self.o
        nt = o["nt"]
        seq = []
        for u in range(27, 32 - nt):
            for tm in range(8):
                ts = (0, 1) if tm % 2 else (1, 0)
                seq += [(u, k, ts[0], tm) for k in (0, 1, 2)] + [(u, k, ts[1], tm) for k in (2, 1, 0)]
        done_at = {}
        for tm in range(8):
            if o["alt"]:
                for u in range(32 - nt, 32):
                    seq += [(u, k, t, tm) for k in range(3) for t in range(2)]
                done_at[2 * tm] = len(seq) - 2
                done_at[2 * tm + 1] = len(seq) - 1
                continue
            lo = 32 - nt
            if tm == 0 and nt == 4 and o["split0"]:
                seq += [(u, k, t, tm) for t in range(2) for u in (28, 29) for k in range(3)]
                lo = 30
            for t in range(2):
                for u in range(lo, 32):
                    seq += [(u, k, t, tm) for k in range(3)]
                done_at[2 * tm + t] = len(seq) - 1
        first, last = {}, {}
        for i, (u, k, t, tm) in enumerate(seq):
            for nm in (("G", u, k, t), ("F", u, tm + k)):
                first.setdefault(nm, i)
                last[nm] = i
        reg = {}
        for dl in range(10):
            reg[("F", 27, dl)] = SET[1] + 4 * dl
        for k in range(3):
            for t in range(2):
                reg[("G", 27, k, t)] = SET[1] + 40 + (k * 2 + t) * 4
        free = list(range(SET[0], SET[0] + 64, 4)) + list(range(TMP + 8, 64, 4)) + [12]
        todo = sorted((nm for nm in first if nm not in reg), key=lambda nm: first[nm])
        queue = []

        def lds(op, tag=None):
            e(op)
            queue.append(tag)

        def wait_for(tags):
            idx = max((i for i, tg in enumerate(queue) if tg in tags), default=-1)
            if idx >= 0:
                n = min(len(queue) - 1 - idx, 14)
                e(f"s_waitcnt lgkmcnt({n})")
                del queue[:len(queue) - n]

        half = []

        def issue_read(nm):
            if nm[0] == "P":
                i = nm[1]
                lds(f"ds_read_b128 v[{16 + 4 * i}:{19 + 4 * i}], v10 offset:{(i >> 1) * 256 + (i & 1) * 64}", nm)
                return
            r = free.pop(0)
            reg[nm] = r
            u = nm[1]
            if nm[0] == "F":
                ops = self.rd_f(r, u & 1, nm[2], XBUF * ((u >> 1) - 14))
            else:
                ops = self.rd_g(r, nm[2], nm[3], WBUF * (u % NWB))
            if not o["no_reads"]:
                lds(ops[0], nm)
                half.extend((op, nm) for op in ops[1:])

        e("s_waitcnt lgkmcnt(0)")
        self.stamp(3)
        if not o["lbar"]:
            e("s_barrier")
        chk, pchk = o["tchk"], o["pchk"]
        head = {0: [f"v_subrev_u32 v8, {3 * WBUF}, v8", "s_mov_b32 s43, s42"], 1: [f"v_subrev_u32 v9, {3 * WBUF}, v9"],
                2: ["v_add_u32 v5, s55, v5"], 3: ["v_add_u32 v6, s55, v6"], 4: ["v_add_u32 v7, s55, v7"],
                chk: ["s_barrier"]}
        avail = {28: 1, 29: 5, 30: chk, 31: chk}
        if o["lbar"]:
            tb = o["tbar"]
            head = {0: [f"v_subrev_u32 v8, {2 * WBUF}, v8", f"v_subrev_u32 v9, {2 * WBUF}, v9", "s_mov_b32 s43, s42"],
                    1: ["v_add_u32 v2, s47, v2", "v_add_u32 v3, s47, v3"], 2: ["v_add_u32 v4, s47, v4", "v_add_u32 v5, s47, v5"],
                    3: ["v_add_u32 v6, s47, v6", "v_add_u32 v7, s47, v7"],
                    tb: ["s_barrier"], chk: ["s_barrier"]}
            avail = {28: tb + 1, 29: tb + 1, 30: chk, 31: chk}
        bar_at = {}
        quiet = -1
        bars = [int(ch) for ch in str(o["bars"])]
        cost = lambda x: 8 if ("v_exp" in x or "v_rcp" in x) else 12 if "ds_write" in x else 4
        cur, pend, nxt = [], [], 0
        mark = {}
        credit = 0.0
        per_gap = sum(cost(x) for x in self.epi_ops(0) + self.epi_ops(1)) / (6.0 * nt) * o['pace'] + 0.5
        stalls = []
        for i, (u, k, t, tm) in enumerate(seq):
            g, f = ("G", u, k, t), ("F", u, tm + k)
            while g in todo or f in todo or any(nm == g for _, nm in half):
                stalls.append(i)
                if half:
                    lds(*half.pop(0))
                else:
                    issue_read(todo.pop(0))
            wait_for({g, f})
            if not o["no_mfma"]:
                e(self.mf(reg[g], reg[f], t, tm))
            if nxt < 16 and done_at[nxt] == i:
                mark[nxt] = len(self.l)
                pend.append(nxt)
                nxt += 1
            for nm in (g, f):
                if last[nm] == i:
                    free.append(reg[nm])
            for x in head.get(i, []):
                e(x)
            if o["tst"] and i in [int(v) for v in o["tst"].split(",")]:
                q = 1 + [int(v) for v in o["tst"].split(",")].index(i)
                e(f"s_memtime s[{60 + 4 * q}:{61 + 4 * q}]")
            if i in bar_at and not o["latebar"]:
                wait_for({bar_at.pop(i)})
                e("s_barrier")
            wnext = cur and any(x[:2].lower() == "ds" for x in cur[:3])
            if i >= 1 and i != chk and not (wnext and not half) and i > quiet:
                if half:
                    lds(*half.pop(0))
                    credit -= 4 * bool(cur or pend)
                else:
                    hold = min([first[nm] for nm in todo if nm[0] != "P" and i < avail[nm[1]]], default=999)
                    cand = [nm for nm in todo if (i >= pchk if nm[0] == "P" else
                                                  i >= avail[nm[1]] and first[nm] <= hold + o["hold"])]
                    if cand and (cand[0][0] == "P" or free):
                        todo.remove(cand[0])
                        issue_read(cand[0])
                        credit -= 4 * bool(cur or pend)
            if cur or pend:
                credit += per_gap
            while credit > 0:
                if not cur:
                    if not pend or len(self.l) - mark[pend[0]] < 8:
                        credit = 0
                        break
                    curun = pend.pop(0)
                    cur = self.epi_ops(curun)
                x = cur.pop(0)
                if x.startswith("DS "):
                    lds(x[3:])
                elif x.startswith("ds_"):
                    lds(x, ("W", curun))
                    if curun & 1:
                        free.extend([ACC + 4 * curun - 4, ACC + 4 * curun])
                    quiet = i + o["wq"]
                    if curun & 1 and curun >> 1 in bars and not o["diag"] & 1:
                        bar_at[i + o["blag"]] = ("W", curun)
                else:
                    e(x)
                credit -= cost(x)
        assert not todo
        if stalls:
            print("tail: late reads at", stalls, file=sys.stderr)
        rest = [(curun, cur)] if cur else []
        rest += [(un, None) for un in pend]
        for un, ops in rest:
            if ops is None:
                gap = len(self.l) - mark[un]
                if gap < 8:
                    e(f"s_nop {7 - gap}")
                ops = self.epi_ops(un)
            for x in ops:
                if x.startswith("DS "):
                    lds(x[3:])
                elif x.startswith("ds_"):
                    for key in sorted(bar_at):
                        wait_for({bar_at.pop(key)})
                        e("s_barrier")
                    lds(x, ("W", un))
                    if un & 1 and un >> 1 in bars and not o["diag"] & 1:
                        bar_at[un] = ("W", un)
                else:
                    e(x)
        for key in sorted(bar_at):
            wait_for({bar_at.pop(key)})
            e("s_barrier")

    def compute(self):
        e = self.e
        o = self.o
        if o["pages"]:
            e(".p2align 12")
            self.lab("L_page1")
        self.lab("L_compute")
        e("s_and_b32 s38, s18, 1")
        e("s_bfe_u32 s39, s18, 0x10001")
        e("v_and_b32 v10, 15, v0")
        e("v_lshrrev_b32 v16, 4, v0")
        if o["cpf"]:
            e("s_getpc_b64 s[20:21]")
            e("v_lshlrev_b32 v12, 7, v0")
            e("v_mov_b32 v13, s21")
            e("v_add_co_u32 v12, vcc, s20, v12")
            e("s_cmp_lt_u32 s36, %d" % o["cpf"])
            e("s_cselect_b32 s3, s18, 1")
            e("v_addc_co_u32 v13, vcc, 0, v13, vcc")
            e("s_and_b32 s3, s3, 3")
            e("s_cbranch_scc1 L_nocpf")
            e("s_mov_b32 exec_hi, (1 << (((L_end - L_compute) >> 7) - 32)) - 1")
            e("global_load_dword v14, v[12:13], off")
            e("s_mov_b32 exec_hi, -1")
            self.lab("L_nocpf")
        self.pi(17, 10, 18, 19)
        e("v_lshrrev_b32 v18, 2, v10")
        e("v_lshl_add_u32 v19, v16, 3, v18")
        e("v_lshlrev_b32 v19, 7, v19")
        e("v_and_b32 v20, 3, v10")
        e("v_lshl_add_u32 v19, v20, 3, v19")
        e("v_lshrrev_b32 v18, 1, v18")
        e("v_and_b32 v20, 1, v16")
        e("v_lshl_or_b32 v18, v20, 1, v18")
        e("s_lshl_b32 s45, s39, 1")
        e("v_xor_b32 v18, s45, v18")
        e("v_lshl_add_u32 v19, v18, 5, v19")
        e(f"v_add_u32 v8, {WBASE}, v19")
        e("v_xor_b32 v9, 32, v8")
        e("s_lshl_b32 s3, s38, 11")
        e(f"s_add_u32 s46, s3, {XBUF}")
        if o["rotk"]:
            e("s_bfe_u32 s47, s16, 0x10008")
            e("v_lshl_or_b32 v21, s47, 2, v16")
        for idx, sh in ((0, 0), (1, 1), (2, -1)):
            e(f"v_add_u32 v18, {sh}, v17")
            e("v_bfe_u32 v19, v18, 1, 3")
            e(f"v_xor_b32 v19, v19, v{21 if o['rotk'] else 16}")
            e("v_lshlrev_b32 v19, 4, v19")
            e(f"v_lshl_add_u32 v19, v{17 if sh == -1 else 18}, 7, v19")
            e(f"v_add_u32 v{2 + idx}, s46, v19")
            e(f"v_xor_b32 v{5 + idx}, 64, v{2 + idx}")
        e("v_lshrrev_b32 v18, 1, v16")
        e("v_lshl_add_u32 v18, s39, 2, v18")
        e("v_and_b32 v19, 7, v10")
        e("v_xor_b32 v18, v18, v19")
        e("v_lshlrev_b32 v18, 4, v18")
        e("v_lshl_add_u32 v18, v20, 3, v18")
        e("v_lshl_add_u32 v18, v10, 7, v18")
        e(f"s_add_u32 s3, s3, {STG}")
        e("v_add_u32 v1, s3, v18")
        e("v_xor_b32 v11, 32, v1")
        if o["direct"]:
            e("s_lshl_b32 s3, s38, 7")
            e("s_add_u32 s3, s3, s16")
            e("s_add_u32 s3, s3, 7")
            e("s_lshl_b32 s3, s3, 10")
            e("s_lshl_b32 s45, s39, 5")
            e("s_add_u32 s3, s3, s45")
            e("s_add_u32 s3, s3, s17")
            e("s_lshl_b32 s3, s3, 1")
            e("v_lshl_add_u32 v18, v20, 5, s3")
            e("v_lshrrev_b32 v19, 1, v16")
            e("v_lshl_add_u32 v18, v19, 4, v18")
            e("v_lshl_add_u32 v0, v17, 14, v18")
            e("s_waitcnt lgkmcnt(0)")
        e("s_lshl_b32 s3, s39, 6")
        e(f"s_add_u32 s3, s3, {PB}")
        e("v_and_b32 v18, 4, v10")
        e("v_add_lshl_u32 v18, v18, v16, 2")
        e("v_and_or_b32 v18, v10, 3, v18")
        e("v_lshl_add_u32 v10, v18, 1, s3")
        e("v_mov_b64 v[24:25], 0")
        e("v_mov_b64 v[26:27], 0")
        if o["fall"]:
            seq = self.mfmas(0, raw=True)
            for t, tm in sorted({(t, tm) for k, t, tm in seq[o["brpos"]:]} - {(t, tm) for k, t, tm in seq[:o["brpos"]]}):
                for h in range(2):
                    r = ACC + (tm * 2 + t) * 4 + 2 * h
                    e(f"v_mov_b64 v[{r}:{r + 1}], 0")
            for _ in range(o["lpad"]):
                e("s_nop 0")
        if o["ltouch"]:
            e("s_mov_b64 vcc, 0")
        e("s_mov_b32 s40, 1")
        e("s_mov_b32 s41, 1")
        e("s_mov_b32 s42, 0xbfb8aa3b")
        e(f"s_movk_i32 s53, {WBUF}")
        e(f"s_mov_b32 s54, {XBUF}")
        e(f"s_mov_b32 s46, {-(NWB - 1) * WBUF & 0xffffffff:#x}")
        e(f"s_mov_b32 s47, {-(NXB - 1) * XBUF & 0xffffffff:#x}")
        e("s_mov_b32 s52, 12")
        if o["prio_c"]:
            e(f"s_setprio {o['prio_c']}")
        e("s_barrier")
        self.params()
        self.stamp(1)
        e("s_barrier")
        self.stamp(2)

        def wadv():
            return [["s_add_u32 s41, s41, 1", f"s_cmp_eq_u32 s41, {NWB}"],
                    ["s_cselect_b32 s43, s46, s53", "s_cselect_b32 s41, 0, s41"],
                    ["v_add_u32 v8, s43, v8"], ["v_add_u32 v9, s43, v9"]]

        pre0 = wadv() + [["s_add_u32 s40, s40, 1", f"s_cmp_eq_u32 s40, {NXB}"],
                         ["s_cselect_b32 s55, s47, s54", "s_cselect_b32 s40, 0, s40"]] + \
            [[f"v_add_u32 v{2 + i}, s55, v{2 + i}"] for i in range(3)]
        pre1 = wadv() + [[f"v_add_u32 v{5 + i}, s55, v{5 + i}"] for i in range(3)]
        if o["lbar"]:
            assert o["topw"] <= 6 or o["lbar"] > {7: 20, 8: 19, 9: 14, 10: 13, 11: 8, 12: 7}[o["topw"]]
            self.first([], 48)
            body = self.substage(1, pre0) + self.substage(0, pre1 + [["s_sub_u32 s52, s52, 1"]])
        else:
            self.first(pre0, o["brpos"] if o["fall"] else 48)
            body = self.substage(1, pre1) + self.substage(0, pre0 + [["s_sub_u32 s52, s52, 1"]])
        cut = 48 + o["brpos"]
        if not o["fall"]:
            e("s_branch L_centry")
        if o["pages"]:
            self.lab("L_touch0")
        if not o["fall"]:
            e(".p2align 6")
            for _ in range(o["lpad"]):
                e("s_nop 0")
        self.lab("L_cloop")
        for gap in body[cut:]:
            for x in gap:
                e(x)
        self.lab("L_centry")
        for gap in body[:cut]:
            for x in gap:
                e(x)
        e("s_cbranch_scc0 L_cloop")
        for gap in body[cut:]:
            for x in gap:
                e(x)
        self.lab("L_tail")
        self.tail()
        self.lab("L_tail_end")
        if o["stamps"] and o["direct"]:
            e("s_waitcnt vmcnt(0)")
            e("v_mbcnt_lo_u32_b32 v0, -1, 0")
            e("v_mbcnt_hi_u32_b32 v0, -1, v0")
        self.stamp(4)
        self.dump_stamps(5, "c")
        e("s_endpgm")

    def gen(self):
        e = self.e
        o = self.o
        self.l.append(HEADER.rstrip())
        self.l.append(f"; @launch grid=(256,1,1) block=(512,1,1) lds={LDS}")
        self.l.append(DOC)
        self.l.append('.amdgcn_target "amdgcn-amd-amdhsa--gfx950"')
        self.l.append(".text")
        self.l.append(f".globl {KN}")
        if o["pages"]:
            self.l.append(".p2align 12")
        self.l.append(".p2align 8")
        self.l.append(f".type {KN},@function")
        self.lab(KN)
        e("s_cmp_ge_u32 s2, 256")
        e("s_cbranch_scc1 L_end")
        if o["stamps"]:
            e("s_memtime s[60:61]")
            e("s_memrealtime s[62:63]")
        e("v_readfirstlane_b32 s18, v0")
        e("s_load_dwordx2 s[8:9], s[0:1], 8")
        e("s_load_dwordx2 s[4:5], s[0:1], 0")
        if o["early"]:
            e("s_bfe_u32 s3, s18, 0x50003")
            e("s_load_dwordx2 s[12:13], s[0:1], s3 offset:16")
        e("v_and_b32 v0, 63, v0")
        e("s_lshr_b32 s17, s2, 5")
        e("s_and_b32 s20, s2, 1")
        e("s_lshl3_add_u32 s17, s20, s17")
        e("s_bfe_u32 s22, s2, 0x20001")
        e("s_bfe_u32 s16, s2, 0x20003")
        e("s_lshl2_add_u32 s16, s22, s16")
        e("s_lshr_b32 s18, s18, 6")
        e("s_lshl_b32 s17, s17, 6")
        e("s_lshl_b32 s16, s16, 8")
        e("s_cmp_ge_u32 s18, 4")
        if o["pages"] >= 2:
            e("s_cbranch_scc0 L_loader")
            self.l.append("@DISPATCH")
            e("s_branch L_compute")
        else:
            e(("s_cbranch_scc1" if o["lfirst"] else "s_cbranch_scc0") + " L_compute")
        self.loader()
        self.compute()
        for f in self.late:
            f()
        self.lab("L_end")
        e("s_endpgm")
        if o["padkb"]:
            e(f".fill {o['padkb'] * 256}, 4, 0xbf800000")
        self.l.append(f""".section .rodata,"a"
.p2align 6
.amdhsa_kernel {KN}
  .amdhsa_next_free_vgpr 256
  .amdhsa_next_free_sgpr 96
  .amdhsa_accum_offset 256
  .amdhsa_group_segment_fixed_size 0
  .amdhsa_kernarg_size 72
  .amdhsa_user_sgpr_count 2
  .amdhsa_user_sgpr_kernarg_segment_ptr 1
  .amdhsa_system_sgpr_workgroup_id_x 1
.end_amdhsa_kernel""")
        return self.finish()

    def finish(self):
        L = "\n".join(self.l).split("\n")
        if self.o["pages"] < 2:
            return "\n".join(L) + "\n"
        import re
        import subprocess
        i0 = L.index("L_touch0:")
        it, ie = L.index("L_tail:"), L.index("L_tail_end:")
        probe = []
        for i, x in enumerate(L):
            if it < i <= ie:
                probe.append(f"L_pos{i}:")
            if x != "@DISPATCH":
                probe.append(x.replace("L_ltouch", "L_end"))
        open("probe.s", "w").write("\n".join(probe) + "\n")
        subprocess.run(["clang", "-x", "assembler", "-target", "amdgcn-amd-amdhsa", "-mcpu=gfx950",
                        "-c", "probe.s", "-o", "probe.o"], check=True)
        sym = subprocess.run(["llvm-readelf", "-s", "probe.o"], capture_output=True, text=True).stdout
        addr = {m.group(2): int(m.group(1), 16) for m in re.finditer(r"^\s*\d+: ([0-9a-f]+)\s.*\s(\S+)$", sym, re.M)}
        base = addr["L_page1"]
        win = self.o["win"]
        out, n, covered = [], 1, (addr["L_touch0"] - base) // 64 * 64 + win
        if not self.o["touch1"]:
            covered = 4096
        for i, x in enumerate(L):
            if it < i < ie:
                pos = addr[f"L_pos{i}"] - base + 4 * (n - 1) + 4 * (n > 1 and self.o["ltouch"])
                if pos >= covered and n < 4:
                    if n == 1 and self.o["ltouch"]:
                        out += ["L_ltouch:", "    s_cbranch_vccnz L_lret"]
                    out += [f"L_touch{n}:", "    s_cbranch_scc0 " + {"c": "L_compute"}.get(self.o["tchain"][n - 1], "L_touch" + self.o["tchain"][n - 1])]
                    n += 1
                    covered = min(pos // 64 * 64 + win, (pos // 4096 + 1) * 4096)
            out.append(x)
        disp, wave = [], 7
        for ch in str(self.o["tord"]):
            if ch == "w":
                disp.append("    s_waitcnt lgkmcnt(0)")
                continue
            if int(ch) < n:
                disp += [f"    s_cmp_lg_u32 s18, {wave}", "    s_cbranch_scc0 " + (f"L_touch{ch}" if ch != "0" else "L_compute")]
            wave -= 1
        j = out.index("@DISPATCH")
        out[j:j + 1] = disp
        return "\n".join(out) + "\n"


if __name__ == "__main__":
    out = sys.argv[1]
    opts = {}
    for a in sys.argv[2:]:
        k, v = a.split("=")
        if k in ("bars", "tord", "tchain"):
            opts[k] = v
            continue
        try:
            v = int(v)
        except ValueError:
            try:
                v = float(v)
            except ValueError:
                v = v.replace("+", " ")
        opts[k] = v
    open(out, "w").write(G(**opts).gen())
```
